```python
import torch

def _softmax(x, axis=-1):
    return torch.softmax(x, dim=axis)

def _gelu(x):
    return torch.nn.functional.gelu(x, approximate='tanh')

def _silu(x):
    return torch.nn.functional.silu(x)

def _sigmoid(x):
    return torch.sigmoid(x)

def _layernorm(x, axis=-1, eps=1e-05):
    m = x.mean(dim=axis, keepdim=True)
    v = x.var(dim=axis, keepdim=True, unbiased=False)
    return (x - m) / torch.sqrt(v + eps)

def _scatter_add(tgt, idx, src, axis=0):
    return tgt.clone().index_add_(axis, idx, src)

def _segment_sum(src, seg, n):
    out = torch.zeros((n,) + src.shape[1:], dtype=src.dtype)
    return out.index_add_(0, seg, src)

def _pad(x, pw):
    flat = tuple((v for pair in reversed(pw) for v in pair))
    return torch.nn.functional.pad(x, flat)
kernel_name = 'concat_heads__sliding_block__memory_aug_recurrent_mem_tr__prompt'

def setup_inputs():

    _w = lambda a: (lambda t: t.to(torch.bfloat16) if t.is_floating_point() else t)(torch.as_tensor(a))

    def _A_setup():
        B, S, D = (1, 2048, 512)
        return {'x': _w((lambda *s: torch.randn(*s, dtype=torch.bfloat16) * 0.2)(B, S, D)), 'wqkv': _w((lambda *s: torch.randn(*s, dtype=torch.bfloat16) * 0.2)(D, 3 * D)), 'wo': _w((lambda *s: torch.randn(*s, dtype=torch.bfloat16) * 0.05)(D, D))}
    _A_in = _A_setup()

    def _B_setup():
        B, S, Dm = (1, 2048, 512)
        H, Dh = (32, 128)
        M, seg = (8, 32)
        seg = min(seg, S)
        S = S // seg * seg
        return {'x': _w((lambda *s: torch.randn(*s, dtype=torch.bfloat16) * 0.05)(B, S, Dm)), 'mem0': _w((lambda *s: torch.randn(*s, dtype=torch.bfloat16) * 1.6)(B, M, Dm)), 'Wq': _w((lambda *s: torch.randn(*s, dtype=torch.bfloat16) * 0.8)(Dm, H, Dh) * Dm ** (-0.5)), 'Wk': _w((lambda *s: torch.randn(*s, dtype=torch.bfloat16) * 0.8)(Dm, H, Dh) * Dm ** (-0.5)), 'Wv': _w((lambda *s: torch.randn(*s, dtype=torch.bfloat16) * 1.6)(Dm, H, Dh) * Dm ** (-0.5)), 'Wo': _w((lambda *s: torch.randn(*s, dtype=torch.bfloat16) * 1.6)(H, Dh, Dm) * (H * Dh) ** (-0.5)), 'seg_len': seg}
    _B_in = _B_setup()
    return {'A_x': _A_in['x'], 'A_wqkv': _A_in['wqkv'], 'A_wo': _A_in['wo'], 'B_x': _B_in['x'], 'B_mem0': _B_in['mem0'], 'B_Wq': _B_in['Wq'], 'B_Wk': _B_in['Wk'], 'B_Wv': _B_in['Wv'], 'B_Wo': _B_in['Wo'], 'B_seg_len': _B_in['seg_len']}

def reference(A_x, A_wqkv, A_wo, B_x, B_mem0, B_Wq, B_Wk, B_Wv, B_Wo, B_seg_len):

    def _A_ref(x, wqkv, wo):
        B, S, D = x.shape
        H = 32
        Dh = D // H
        W = 256
        qkv = (lambda x, *d: x.permute(*d))((x @ wqkv).reshape(B, S, 3, H, Dh), 2, 0, 3, 1, 4)
        q, k, v = (qkv[0], qkv[1], qkv[2])
        scores = torch.einsum('bhqd,bhkd->bhqk', q, k) * Dh ** (-0.5)
        idx = torch.arange(S)
        mask = (idx[:, None] - idx[None, :] >= 0) & (idx[:, None] - idx[None, :] < W)
        scores = torch.where(mask[None, None], scores, -1000000000.0)
        p = _softmax(scores, axis=-1)
        o = torch.einsum('bhqk,bhkd->bhqd', p, v)
        return (lambda x, *d: x.permute(*d))(o, 0, 2, 1, 3).reshape(B, S, D) @ wo

    def _B_ref(x, mem0, Wq, Wk, Wv, Wo, seg_len):
        B, S, Dm = x.shape
        H, Dh = (Wq.shape[1], Wq.shape[2])
        M = mem0.shape[1]
        scale = Dh ** (-0.5)
        n_seg = S // seg_len
        L = M + seg_len
        idx = torch.arange(L)
        mask = (idx[:, None] < M) | (idx[:, None] >= idx[None, :])
        mem = mem0
        outs = []
        for s in range(n_seg):
            xs = x[:, s * seg_len:(s + 1) * seg_len, :].clone()
            h = torch.concatenate([mem, xs], axis=1)
            q = torch.einsum('btd,dhe->bhte', h, Wq)
            k = torch.einsum('btd,dhe->bhte', h, Wk)
            v = torch.einsum('btd,dhe->bhte', h, Wv)
            scores = torch.einsum('bhqe,bhke->bhqk', q, k) * scale
            scores = torch.where(mask[None, None], scores, -1000000000.0)
            p = _softmax(scores, axis=-1)
            o = torch.einsum('bhqk,bhke->bhqe', p, v)
            o = torch.einsum('bhte,hed->btd', o, Wo)
            mem = o[:, :M, :].clone()
            outs.append(o[:, M:, :])
        return torch.concatenate(outs, axis=1)
    a = _A_ref(A_x, A_wqkv, A_wo)
    b = _B_ref(B_x, B_mem0, B_Wq, B_Wk, B_Wv, B_Wo, B_seg_len)
    return torch.concatenate([a, b], axis=-1)
```

```python
import re

TRANS = ('v_exp_f32', 'v_log_f32', 'v_rcp_f32', 'v_rsq_f32', 'v_sqrt_f32', 'v_sin_f32', 'v_cos_f32', 'v_rcp_iflag_f32')
REG_RE = re.compile(r'\b([vas])(\d+)\b|\b([vas])\[(\d+):(\d+)\]')

def regs_of(tok):
    out = set()
    for m in REG_RE.finditer(tok):
        if m.group(1):
            out.add((m.group(1), int(m.group(2))))
        else:
            for i in range(int(m.group(4)), int(m.group(5)) + 1):
                out.add((m.group(3), i))
    if re.search(r'\bvcc(_lo|_hi)?\b', tok): out.add(('s', 'vcc'))
    if re.search(r'\bm0\b', tok): out.add(('s', 'm0'))
    if re.search(r'\bexec\b', tok): out.add(('s', 'exec'))
    return out

def mfma_passes(op):
    if '32x32x16' in op or '32x32x8' in op or 'smfmac_f32_32x32' in op: return 8
    if '16x16x32' in op or '16x16x16' in op or '16x16x64' in op: return 4
    raise ValueError(op)

class Ins:
    __slots__ = ('text', 'op', 'kind', 'wr', 'rd', 'srcab', 'srcc', 'passes', 'states', 'dpp', 'wide_store', 'data')
    def __init__(self, text):
        self.text = text
        s = text.split(';')[0].strip()
        parts = s.split(None, 1)
        self.op = op = parts[0]
        rest = parts[1] if len(parts) > 1 else ''
        ops = [o.strip() for o in rest.split(',')]
        self.wr = set(); self.rd = set(); self.srcab = set(); self.srcc = set(); self.passes = 0
        self.states = 1; self.dpp = False; self.wide_store = False; self.data = set()
        if op == 's_nop':
            self.kind = 'nop'; self.states = int(ops[0], 0) + 1; return
        if op.startswith('v_mfma'):
            self.kind = 'mfma'; self.passes = mfma_passes(op)
            self.wr = regs_of(ops[0]); self.srcab = regs_of(ops[1]) | regs_of(ops[2]); self.srcc = regs_of(ops[3].split()[0])
            self.rd = self.srcab | self.srcc; return
        if op.startswith('v_smfmac'):
            self.kind = 'mfma'; self.passes = mfma_passes(op)
            self.wr = regs_of(ops[0]); self.srcab = regs_of(ops[1]) | regs_of(ops[2]) | regs_of(ops[3].split()[0]); self.srcc = regs_of(ops[0])
            self.rd = self.srcab | self.srcc; return
        if op.startswith('v_'):
            self.kind = 'valu'
            if op.startswith('v_cmp'):
                self.wr = regs_of(ops[0]); self.rd = set().union(*[regs_of(o) for o in ops[1:]])
            elif op.startswith('v_permlane'):
                self.kind = 'permlane'
                self.wr = regs_of(ops[0]) | regs_of(ops[1]); self.rd = set(self.wr)
            elif op in ('v_readfirstlane_b32', 'v_readlane_b32'):
                self.kind = 'readlane'
                self.wr = regs_of(ops[0]); self.rd = set().union(*[regs_of(o) for o in ops[1:]])
            elif op.startswith(('v_add_co', 'v_sub_co', 'v_addc_co', 'v_subb_co', 'v_subrev_co')):
                self.wr = regs_of(ops[0]) | regs_of(ops[1]); self.rd = set().union(*[regs_of(o) for o in ops[2:]])
            else:
                self.wr = regs_of(ops[0]); self.rd = set().union(*[regs_of(o) for o in ops[1:]]) if len(ops) > 1 else set()
                if op.startswith(('v_fmac', 'v_writelane', 'v_pk_fmac', 'v_dot2c')): self.rd |= self.wr
                if op.startswith('v_cndmask') and len(ops) == 3: self.rd.add(('s', 'vcc'))
            if '_dpp' in op or 'quad_perm' in rest or 'row_' in rest: self.dpp = True
            if op.replace('_e32', '').replace('_e64', '') in TRANS: self.kind = 'trans'
            return
        if op.startswith('ds_'):
            self.kind = 'ds'
            if 'read' in op or 'bpermute' in op or 'swizzle' in op or 'rtn' in op:
                self.wr = regs_of(ops[0]); self.rd = set().union(*[regs_of(o.split()[0]) for o in ops[1:]])
            else:
                self.rd = set().union(*[regs_of(o.split()[0]) for o in ops])
            return
        if op.startswith(('buffer_', 'global_')):
            self.kind = 'vmem'
            if op in ('buffer_inv', 'buffer_wbl2'): return
            islds = bool(re.search(r'\blds\b', rest)) or '_lds_' in op
            allr = [regs_of(o.split()[0]) for o in ops]
            if 'load' in op and not islds:
                self.wr = allr[0]; self.rd = set().union(*allr[1:])
            elif 'atomic' in op:
                self.rd = set().union(*allr)
                if 'sc0' in rest: self.wr = allr[0]
            else:
                self.rd = set().union(*allr)
                if islds: self.rd.add(('s', 'm0'))
                if 'store' in op:
                    self.data = allr[0] if op.startswith('buffer_') else allr[1]
                    if 'x3' in op or 'x4' in op: self.wide_store = True
            return
        if op.startswith('s_'):
            self.kind = 'salu'
            if op in ('s_waitcnt', 's_barrier', 's_endpgm', 's_branch', 's_sleep', 's_setprio') or op.startswith('s_cbranch'):
                return
            if op.startswith('s_cmp'):
                self.rd = set().union(*[regs_of(o) for o in ops]); return
            self.wr = regs_of(ops[0]); self.rd = set().union(*[regs_of(o) for o in ops[1:]]) if len(ops) > 1 else set()
            return
        raise ValueError('unknown instr ' + text)

XDL_VALU = {2: 5, 4: 8, 8: 12, 16: 20}
XDL_AB = {2: 5, 4: 8, 8: 12, 16: 20}
XDL_COVL = {2: 4, 4: 6, 8: 10, 16: 18}
XDL_WAR = {2: 1, 4: 3, 8: 7, 16: 15}

def need(p, c):
    n = 0
    pv = p.kind in ('valu', 'trans', 'permlane', 'readlane')
    cv = c.kind in ('valu', 'trans', 'permlane', 'readlane')
    vw = {r for r in p.wr if r[0] in 'va'}
    sw = {r for r in p.wr if r[0] == 's'}
    if pv:
        if c.kind == 'mfma' and vw & c.rd: n = max(n, 2)
        if c.kind == 'permlane' and vw & c.rd: n = max(n, 2)
        if cv and c.dpp and vw & c.rd: n = max(n, 2)
        if c.kind == 'readlane' and vw & c.rd: n = max(n, 1)
        if p.kind == 'trans' and cv and c.kind != 'trans' and vw & (c.rd | c.wr): n = max(n, 1)
        if p.kind == 'trans' and c.kind in ('vmem', 'ds', 'mfma') and vw & c.rd: n = max(n, 2)
        if sw:
            if cv and sw & c.rd: n = max(n, 4 if c.kind == 'readlane' or c.op.startswith('v_writelane') else 2)
            if c.kind == 'vmem' and sw & c.rd: n = max(n, 5)
            if c.kind == 'salu' and sw & c.rd: n = max(n, 1)
    if p.kind == 'mfma':
        D = p.wr
        if c.kind == 'mfma':
            if D & c.srcab: n = max(n, XDL_AB[p.passes])
            if D & c.srcc:
                if not (c.srcc == D and c.op == p.op): n = max(n, XDL_COVL[p.passes])
            elif D & c.wr: n = max(n, XDL_COVL[p.passes])
        elif cv:
            if D & (c.rd | c.wr): n = max(n, XDL_VALU[p.passes])
            if p.srcc & c.wr: n = max(n, XDL_WAR[p.passes])
        elif c.kind in ('vmem', 'ds'):
            if D & (c.rd | c.wr): n = max(n, XDL_VALU[p.passes])
            if p.srcc & c.wr: n = max(n, XDL_WAR[p.passes])
    if p.kind == 'vmem' and p.wide_store:
        if p.data & c.wr: n = max(n, 2 if cv else 1)
    if p.kind == 'salu' and ('s', 'm0') in p.wr and ('s', 'm0') in c.rd and c.kind in ('vmem', 'ds'): n = max(n, 1)
    return n

class Asm:
    def __init__(self):
        self.items = []
        self.nlab = 0
    def __call__(self, text):
        for line in text.split('\n'):
            line = line.strip()
            if not line: continue
            if line.startswith(';'): self.items.append(('c', line)); continue
            if line.endswith(':'): self.items.append(('l', line[:-1])); continue
            self.items.append(('i', Ins(line)))
    def label(self, name): self.items.append(('l', name))
    def newlabel(self, base='L'):
        self.nlab += 1
        return f'{base}_{self.nlab}'
    def comment(self, s): self.items.append(('c', '; ' + s))
    def finalize(self):
        out = []
        hist = []
        npad = 0
        for kind, it in self.items:
            if kind == 'c': out.append('    ' + it); continue
            if kind == 'l': out.append(it + ':'); continue
            req = 0
            dist = 0
            for p in reversed(hist):
                nn = need(p, it)
                if nn > dist: req = max(req, nn - dist)
                dist += p.states
                if dist > 24: break
            while req > 0:
                k = min(req, 16)
                nop = Ins(f's_nop {k-1}')
                out.append(f'    s_nop {k-1}')
                hist.append(nop); req -= k; npad += 1
            out.append('    ' + it.text)
            hist.append(it)
            if it.op == 's_branch': hist = []
            if len(hist) > 40: hist = hist[-30:]
        self.npad = npad
        return '\n'.join(out)
```

```python
MB = 1 << 20
WS_QF = 0 * MB
WS_KVF = 16 * MB
WS_OX = 48 * MB
WS_KM = 64 * MB
WS_VMT = 96 * MB
WS_PX = 72 * MB
WS_MX = 73 * MB
WS_QA = 80 * MB
WS_KA = 82 * MB
WS_VAT = 84 * MB
WS_OA = 86 * MB
WS_CNT = 90 * MB
WS_PROG = 91 * MB
WS_PART = 128 * MB
WS_SIZE = 256 * MB
DBG_TICK0 = 0
DBG_TOTAL = 1
DBG_FALLB = 2
DBG_RINIT = 3
DBG_WTK = 4
DBG_QUEUE = 24
DBG_CG2 = 5
DBG_CAT = 6
DBG_CQ = 7
DBG_KV = 8
DBG_PROG = 32
KNAME = 'concat_heads__sliding_block__memory_aug_recurrent_mem_tr__prompt_kernel'
S_AX, S_AWQKV, S_AWO, S_BX, S_MEM0, S_WQ, S_WK, S_WV, S_WO, S_OUT, S_DBG, S_WS = [8 + 4 * i for i in range(12)]
def srd(b): return f's[{b}:{b+3}]'
```

```python
from asmlib import *
from common import *

sW = 56
sGA = 60
sGB = 64
sLDA, sLDB, sAOFF, sBOFF, sKIT, sE0, sE1, sE2, sE3, sT0, sT1, sT2, sT3, sM0A, sM0B, sAINC, sBINC = range(68, 85)
sRET = 86
def vr(b, n): return f'v[{b}:{b+n-1}]'
def ar(b, n): return f'a[{b}:{b+n-1}]'

class Gemm:
    def __init__(self, BM, BN, WM, WN, name):
        self.BM, self.BN, self.WM, self.WN, self.name = BM, BN, WM, WN, name
        self.TM = BM // 16 // WM; self.TN = BN // 16 // WN
        assert BN == 128 and self.TM % 2 == 0 and self.TN % 2 == 0
        self.ASZ = BM * 128; self.BSZ = 64 * 256
        self.STG = self.ASZ + self.BSZ
        self.NS = 4
        self.NA = BM // 32
        self.NB = 4
        self.vDA0, self.vDA1, self.vDB = 2, 3, 4
        self.vRA0, self.vRA1 = 5, 6
        self.vRB = 8
        self.vAF = 16
        self.vBF = self.vAF + 2 * self.TM * 4
    def setup(self, A):
        BM, WM, WN, TM, TN = self.BM, self.WM, self.WN, self.TM, self.TN
        A('v_and_b32 v10, 63, v0')
        A('v_lshrrev_b32 v11, 3, v10'); A('v_and_b32 v12, 7, v10'); A('v_and_b32 v13, 3, v11')
        A('v_xor_b32 v12, v12, v13')
        A(f's_mul_i32 s{sT0}, s{sW}, {BM // 4}')
        A(f'v_add_u32 v11, s{sT0}, v11')
        A(f'v_mul_lo_u32 v11, v11, s{sLDA}')
        A(f'v_lshl_add_u32 v{self.vDA0}, v12, 4, v11')
        A(f'v_xor_b32 v{self.vDA1}, 64, v{self.vDA0}')
        if BM == 32:
            A(f's_and_b32 s{sT0}, s{sW}, 1'); A(f's_lshl_b32 s{sT0}, s{sT0}, 6')
            A(f'v_xor_b32 v{self.vDA0}, s{sT0}, v{self.vDA0}')
        A('v_lshrrev_b32 v11, 4, v10'); A('v_and_b32 v12, 15, v10'); A('v_lshlrev_b32 v13, 2, v11')
        A('v_xor_b32 v12, v12, v13')
        A(f's_lshl_b32 s{sT0}, s{sW}, 4')
        A(f'v_add_u32 v11, s{sT0}, v11')
        A(f'v_mul_lo_u32 v11, v11, s{sLDB}')
        A(f'v_lshl_add_u32 v{self.vDB}, v12, 4, v11')
        A(f's_lshl_b32 s{sAINC}, s{sLDA}, 3')
        A(f's_lshl_b32 s{sBINC}, s{sLDB}, 2')
        A(f's_mul_i32 s{sM0A}, s{sW}, {BM // 4 * 128}')
        A(f's_lshl_b32 s{sM0B}, s{sW}, 12'); A(f's_add_u32 s{sM0B}, s{sM0B}, {self.ASZ}')
        A('v_and_b32 v11, 15, v10'); A('v_lshrrev_b32 v12, 4, v10   ; g')
        A('v_lshrrev_b32 v13, 2, v11   ; m/4'); A('v_and_b32 v14, 3, v11   ; m%4')
        A('v_lshl_add_u32 v15, v13, 3, v14   ; row')
        if WM > 1:
            A(f's_lshr_b32 s{sT0}, s{sW}, 1'); A(f's_mul_i32 s{sT0}, s{sT0}, {BM // WM}')
            A(f'v_add_u32 v15, s{sT0}, v15')
        A('v_and_b32 v7, 1, v13'); A('v_lshl_add_u32 v7, v7, 2, v14')
        A('v_xor_b32 v7, v7, v12')
        A('v_lshlrev_b32 v7, 4, v7')
        A(f'v_lshl_add_u32 v{self.vRA0}, v15, 7, v7')
        A(f'v_xor_b32 v{self.vRA1}, 64, v{self.vRA0}')
        A('v_lshl_add_u32 v15, v12, 3, v13   ; row')
        wn = f's{sT0}'
        if WN == 2: A(f's_and_b32 s{sT0}, s{sW}, 1')
        else: A(f's_mov_b32 s{sT0}, s{sW}')
        A(f's_mul_i32 s{sT0}, s{sT0}, {TN // 2}')
        for c in range(TN // 2):
            A(f's_add_u32 s{sT1}, s{sT0}, {c}')
            A(f'v_xor_b32 v7, s{sT1}, v13')
            A('v_lshl_add_u32 v7, v7, 2, v14')
            A('v_lshlrev_b32 v7, 4, v7')
            A(f'v_lshl_add_u32 v{self.vRB + c}, v15, 8, v7')
            A(f'v_add_u32 v{self.vRB + c}, {self.ASZ}, v{self.vRB + c}')
    def dma(self, A, buf):
        base = buf * self.STG
        A(f's_mov_b32 s{sT2}, s{sAOFF}')
        for i in range(self.NA):
            A(f's_add_u32 m0, s{sM0A}, {base + 1024 * i}')
            v = self.vDA0 if (i % 2 == 0 or self.BM == 32) else self.vDA1
            A(f'buffer_load_dwordx4 v{v}, {srd(sGA)}, s{sT2} offen sc1 lds')
            if i + 1 < self.NA: A(f's_add_u32 s{sT2}, s{sT2}, s{sAINC}')
        A(f's_mov_b32 s{sT2}, s{sBOFF}')
        for i in range(self.NB):
            A(f's_add_u32 m0, s{sM0B}, {base + 1024 * i}')
            A(f'buffer_load_dwordx4 v{self.vDB}, {srd(sGB)}, s{sT2} offen lds')
            if i + 1 < self.NB: A(f's_add_u32 s{sT2}, s{sT2}, s{sBINC}')
        A(f's_add_u32 s{sAOFF}, s{sAOFF}, 128')
        A(f's_lshl_b32 s{sT2}, s{sLDB}, 6'); A(f's_add_u32 s{sBOFF}, s{sBOFF}, s{sT2}')
    def reads(self, A, buf, kk, fb):
        base = buf * self.STG
        for tm in range(self.TM):
            kt = tm % 2
            off = base + (4 * kt + 32 * (tm // 2)) * 128
            v = self.vRA0 if kk == 0 else self.vRA1
            d = self.vAF + (fb * self.TM + tm) * 4
            assert off < 65536 or True
            A(self.ds(f'ds_read_b128 {vr(d, 4)}', v, off))
        for tn in range(self.TN):
            c, a = tn // 2, tn % 2
            d = self.vBF + (fb * self.TN + tn) * 4
            for half in range(2):
                off = base + kk * 8192 + half * 1024 + 8 * a
                A(self.ds(f'ds_read_b64_tr_b16 {vr(d + 2 * half, 2)}', self.vRB + c, off))
    def ds(self, pre, v, off):
        if off >= 65536: return f'{pre}, v{v + self.SH} offset:{off - 65536}'
        return f'{pre}, v{v} offset:{off}'
    SH = 100
    def mainloop(self, A, orient):
        TM, TN, NS = self.TM, self.TN, self.NS
        nd = self.NA + self.NB
        lab = A.newlabel(f'L_{self.name}{orient}')
        for v in [self.vRA0, self.vRA1] + [self.vRB + c for c in range(TN // 2)]:
            A(f'v_add_u32 v{v + self.SH}, 65536, v{v}')
        for r in range(TM * TN * 4): A(f'v_accvgpr_write_b32 a{r}, 0')
        A('s_barrier')
        for s in range(NS - 1): self.dma(A, s)
        A.label(lab)
        nrd = TM + 2 * TN
        for s in range(NS):
            A(f's_waitcnt vmcnt({(NS - 2) * nd})')
            A('s_barrier')
            self.reads(A, s, 0, 0)
            self.dma(A, (s + NS - 1) % NS)
            self.reads(A, s, 1, 1)
            for kk in range(2):
                A(f's_waitcnt lgkmcnt({min(nrd, 15) if kk == 0 else 0})')
                for tm in range(TM):
                    for tn in range(TN):
                        acc = ar(4 * (tm * TN + tn), 4)
                        xa = vr(self.vAF + (kk * TM + tm) * 4, 4); wb = vr(self.vBF + (kk * TN + tn) * 4, 4)
                        if orient == 'T': A(f'v_mfma_f32_16x16x32_bf16 {acc}, {wb}, {xa}, {acc}')
                        else: A(f'v_mfma_f32_16x16x32_bf16 {acc}, {xa}, {wb}, {acc}')
        A(f's_sub_u32 s{sKIT}, s{sKIT}, 1')
        A(f's_cmp_lg_u32 s{sKIT}, 0')
        A(f's_cbranch_scc1 {lab}')
        A('s_waitcnt vmcnt(0)')
        A('s_nop 7')
    def pack(self, A, t0, t1, d):
        for i, t in enumerate((t0, t1)):
            for r in range(4): A(f'v_accvgpr_read_b32 v{120 + 4 * i + r}, a{4 * t + r}')
        for i in range(4): A(f'v_cvt_pk_bf16_f32 v{d + i}, v{120 + 2 * i}, v{121 + 2 * i}')
```

```python
from asmlib import *
from common import *
import math

sW, sH, sSTEP, sPSL, sMCUR, sMNXT, sT0, sT1, sT2, sKXO, sVXO, sKMO, sMODE, sT3 = range(56, 70)
sEX = 70
vIDX = 1; vID = 2; vSEL = 4
vL16H, vHOME, vMP, vPST, vPLD, vMPUB, vKX, vVX, vKM, vVM, vSW, vSR, vOW = range(8, 21)
vNEG1 = 21
vFR = 24
vQK = 56
vVA = 72
vSTG = 80
vKXR = 104
vVXR = 112
vTMP = 120
vT2 = 22
LDS_MEM = 131072
LDS_SX = LDS_MEM + 8192
LDS_O = LDS_SX + 6144
LDS_KV = LDS_O + 2048
LDS_MISC = LDS_SX
NSTG = 3
assert LDS_KV + 16384 == 163840
vPB = vFR + 8

def vr(b, n): return f'v[{b}:{b+n-1}]'

def operand_order():
    ops = []
    for a in range(2):
        for ks in range(8):
            ops.append(('k', a, ks)); ops.append(('q', a, ks))
    for ks in range(8):
        ops.append(('v', 0, ks)); ops.append(('v', 1, ks))
    for a in range(8):
        for ks in range(2):
            ops.append(('o', a, ks))
    return ops
OPS = operand_order()
HOMED = [i for i in range(32) if i % 4 == 3] + [32 + i for i in (0, 1, 2)] + [48 + i for i in (1, 4, 7, 10, 13)]
assert len(HOMED) == 16
LOC = {}
_r = 0
for i, o in enumerate(OPS):
    if i in HOMED:
        LOC[o] = ('lds', HOMED.index(i))
    else:
        LOC[o] = ('a', 8 * _r) if _r < 32 else ('v', 128 + 8 * (_r - 32))
        _r += 1
assert _r == 48

class Cnt:
    def __init__(self, A, name, maxv): self.A = A; self.name = name; self.maxv = maxv; self.q = []
    def issue(self, tag=None): self.q.append(tag)
    def wait(self, tag):
        if tag not in self.q: return
        idx = len(self.q) - 1 - self.q[::-1].index(tag)
        n = len(self.q) - 1 - idx
        n = min(n, self.maxv)
        self.A(f's_waitcnt {self.name}({n})')
        self.q = self.q[len(self.q) - n:] if n else []
    def all(self):
        self.A(f's_waitcnt {self.name}(0)'); self.q = []

def gen_setup(A):
    A('s_mov_b32 s4, 0x33333333'); A('s_mov_b32 s5, 0x33333333'); A('s_mov_b32 s6, 0xcccccccc'); A('s_mov_b32 s7, 0xcccccccc')
    A('v_and_b32 v120, 63, v0            ; lane')
    A('v_and_b32 v121, 15, v120          ; n = lane%16')
    A('v_lshrrev_b32 v122, 4, v120       ; g = lane/16')
    A(f'v_mov_b32 v{vNEG1}, -1')
    A('v_and_b32 v123, 1, v121')
    A('v_cmp_eq_u32 vcc, 0, v123')
    A(f'v_mov_b32 v124, 0xeeeeeeee')
    A(f'v_mov_b32 v125, 0x44444444')
    A(f'v_cndmask_b32 v{vIDX}, v124, v125, vcc')
    A('v_lshrrev_b32 v123, 2, v121')
    A('v_and_b32 v124, 3, v121           ; e')
    A('v_and_b32 v125, 1, v124')
    A('v_lshlrev_b32 v125, 4, v125       ; shift 0/16')
    A('v_mov_b32 v126, 0x3f80')
    A('v_lshlrev_b32 v126, v125, v126')
    A('v_cmp_eq_u32 vcc, v123, v122')
    A('v_cndmask_b32 v126, 0, v126, vcc')
    A('v_cmp_gt_u32 vcc, 2, v124')
    A(f'v_cndmask_b32 v{vID}, 0, v126, vcc')
    A(f'v_cndmask_b32 v{vID+1}, v126, 0, vcc')
    A('v_and_b32 v125, 1, v121')
    A('v_lshlrev_b32 v125, 4, v125')
    A('v_mov_b32 v126, 0x3f80')
    A('v_lshlrev_b32 v126, v125, v126')
    A('v_lshrrev_b32 v123, 1, v121       ; m/2 (0..7)')
    for r in range(4):
        A(f'v_cmp_eq_u32 vcc, {r}, v123')
        A(f'v_cndmask_b32 v{vSEL+r}, 0, v126, vcc')
    A(f'v_lshlrev_b32 v123, 4, v120      ; lane*16')
    A(f'v_add_u32 v{vL16H}, {LDS_MEM}, v123')
    A(f's_lshl_b32 s{sT0}, s{sW}, 15')
    A(f'v_add_u32 v{vHOME}, s{sT0}, v123')
    A(f's_lshl_b32 s{sT0}, s{sW}, 11')
    A(f'v_add_u32 v{vMP}, s{sT0}, v{vL16H}')
    A('v_lshrrev_b32 v123, 2, v121       ; q')
    A('v_and_b32 v124, 3, v121           ; e')
    A(f's_lshl_b32 s{sT0}, s{sW}, 16'); A(f's_lshl_b32 s{sT1}, s{sH}, 8'); A(f's_add_u32 s{sT0}, s{sT0}, s{sT1}')
    A('v_lshlrev_b32 v125, 13, v123'); A('v_lshlrev_b32 v126, 6, v122'); A('v_lshlrev_b32 v127, 4, v124')
    A(f'v_add3_u32 v{vPST}, v125, v126, v127'); A(f'v_add_u32 v{vPST}, s{sT0}, v{vPST}')
    A(f's_lshl_b32 s{sT0}, s{sH}, 13'); A(f's_lshl_b32 s{sT1}, s{sW}, 6'); A(f's_add_u32 s{sT0}, s{sT0}, s{sT1}')
    A('v_lshlrev_b32 v125, 10, v123'); A('v_lshlrev_b32 v126, 8, v122')
    A(f'v_add3_u32 v{vPLD}, v125, v126, v127'); A(f'v_add_u32 v{vPLD}, s{sT0}, v{vPLD}')
    A(f's_lshl_b32 s{sT0}, s{sH}, 8'); A(f's_lshl_b32 s{sT1}, s{sW}, 6'); A(f's_add_u32 s{sT0}, s{sT0}, s{sT1}')
    A('v_lshlrev_b32 v125, 4, v122'); A('v_lshlrev_b32 v126, 2, v121')
    A(f'v_add3_u32 v{vMPUB}, v125, v126, s{sT0}')
    A('v_lshlrev_b32 v126, 4, v120')
    A(f's_lshl_b32 s{sT0}, s{sH}, 14'); A(f's_lshl_b32 s{sT1}, s{sW}, 12'); A(f's_add_u32 s{sT0}, s{sT0}, s{sT1}')
    A(f'v_add_u32 v{vKX}, s{sT0}, v126')
    A(f's_add_u32 s{sT1}, s{sT1}, {LDS_KV}')
    A(f'v_add_u32 v{vVX}, s{sT1}, v126')
    A('v_lshlrev_b32 v125, 3, v123'); A('v_add_u32 v125, v125, v124   ; 8(m/4)+m%4')
    A('v_lshlrev_b32 v127, 4, v125'); A('v_lshlrev_b32 v126, 2, v122')
    A(f's_lshl_b32 s{sT0}, s{sH}, 11'); A(f's_lshl_b32 s{sT1}, s{sW}, 9'); A(f's_add_u32 s{sT0}, s{sT0}, s{sT1}')
    A(f'v_add3_u32 v{vVM}, v127, v126, s{sT0}')
    A('v_and_b32 v125, 1, v121'); A('v_lshl_add_u32 v125, v123, 1, v125   ; t')
    A('v_lshlrev_b32 v127, 8, v125'); A('v_lshlrev_b32 v126, 4, v122')
    A(f's_lshl_b32 s{sT0}, s{sH}, 11'); A(f's_lshl_b32 s{sT1}, s{sW}, 6'); A(f's_add_u32 s{sT0}, s{sT0}, s{sT1}')
    A(f'v_add3_u32 v{vKM}, v127, v126, s{sT0}')
    A('v_lshrrev_b32 v126, 1, v122'); A('v_lshlrev_b32 v126, 8, v126    ; (g/2)*256')
    A('v_and_b32 v127, 1, v122'); A('v_lshlrev_b32 v127, 4, v127     ; half*16')
    A('v_lshlrev_b32 v125, 5, v125     ; t*32')
    A(f'v_add3_u32 v{vOW}, v125, v126, v127')
    A(f's_lshl_b32 s{sT0}, s{sW}, 9'); A(f's_add_u32 s{sT0}, s{sT0}, {LDS_O}')
    A(f'v_add_u32 v{vOW}, s{sT0}, v{vOW}')
    A('v_lshrrev_b32 v125, 2, v120'); A('v_and_b32 v126, 1, v120'); A('v_lshl_add_u32 v125, v125, 1, v126')
    A('v_mul_u32_u24 v125, 48, v125')
    A(f's_mul_i32 s{sT0}, s{sW}, 1536'); A(f's_add_u32 s{sT0}, s{sT0}, {LDS_SX}')
    A(f'v_add_u32 v{vSW}, s{sT0}, v125')
    A('v_and_b32 v126, 2, v121')
    A('v_cmp_eq_u32 vcc, 0, v126')
    A(f'v_mov_b32 v126, {LDS_SX}'); A(f'v_mov_b32 v127, {LDS_SX + 3072}')
    A('v_cndmask_b32 v126, v126, v127, vcc')
    A(f'v_add_u32 v{vSR}, v125, v126')

def gen_load_weights(A):
    A('v_and_b32 v120, 63, v0'); A('v_and_b32 v121, 15, v120'); A('v_lshrrev_b32 v122, 4, v120')
    vD = 24
    vDO = 28
    vTQ = 32
    vTO = 33
    vTT = 40
    for i in range(4):
        A(f'v_xor_b32 v123, {i << 2}, v121')
        A('v_lshlrev_b32 v123, 4, v123')
        A(f'v_add_u32 v124, {4 * i}, v122')
        A('v_lshlrev_b32 v124, 13, v124')
        A(f's_lshl_b32 s{sT0}, s{sW}, 17'); A(f's_lshl_b32 s{sT1}, s{sH}, 8'); A(f's_add_u32 s{sT0}, s{sT0}, s{sT1}')
        A(f'v_add3_u32 v{vD+i}, v123, v124, s{sT0}')
    for i in range(4):
        sw = (i & 1) | ((i >> 1) << 3)
        A(f'v_xor_b32 v123, {sw}, v121')
        A('v_lshrrev_b32 v125, 3, v123       ; u')
        A('v_and_b32 v123, 7, v123')
        A('v_lshlrev_b32 v123, 4, v123')
        A('v_lshl_add_u32 v123, v125, 8, v123')
        A(f'v_add_u32 v124, {4 * i}, v122')
        A('v_lshlrev_b32 v124, 10, v124')
        A(f's_lshl_b32 s{sT0}, s{sW}, 14'); A(f's_lshl_b32 s{sT1}, s{sH}, 17'); A(f's_add_u32 s{sT0}, s{sT0}, s{sT1}')
        A(f'v_add3_u32 v{vDO+i}, v123, v124, s{sT0}')
    A('v_lshrrev_b32 v123, 2, v121    ; r'); A('v_and_b32 v124, 3, v121   ; q')
    A('v_lshrrev_b32 v125, 1, v122'); A('v_lshlrev_b32 v125, 4, v125'); A('v_and_b32 v126, 1, v122'); A('v_lshlrev_b32 v126, 1, v126')
    A('v_lshlrev_b32 v127, 2, v123    ; 4r = 8(r/2)+4(r%2)')
    A('v_add3_u32 v125, v125, v126, v127   ; row')
    A(f's_lshl_b32 s{sT0}, s{sW}, 2')
    A(f'v_add_u32 v126, s{sT0}, v124      ; chunk = 4w+q')
    A('v_xor_b32 v126, v126, v127         ; ^ (r<<2)')
    A('v_lshlrev_b32 v126, 4, v126')
    A(f'v_lshl_add_u32 v{vTQ}, v125, 8, v126')
    A(f'v_add_u32 v{vTQ}, {LDS_MEM}, v{vTQ}')
    A('v_and_b32 v126, 1, v122    ; g%2'); A('v_lshrrev_b32 v127, 1, v123   ; r/2')
    A('v_lshrrev_b32 v125, 1, v122'); A('v_lshlrev_b32 v125, 4, v125')
    A('v_lshl_add_u32 v125, v126, 2, v125'); A('v_lshl_add_u32 v125, v127, 3, v125')
    A('v_and_b32 v34, 1, v123'); A('v_add_u32 v125, v125, v34     ; row')
    A(f's_and_b32 s{sT0}, s{sW}, 1'); A(f's_lshl_b32 s{sT0}, s{sT0}, 3')
    A(f'v_lshlrev_b32 v34, 1, v124'); A(f'v_add_u32 v34, s{sT0}, v34    ; 8u+2q')
    A('v_lshl_add_u32 v126, v127, 3, v126   ; swz')
    A('v_xor_b32 v34, v34, v126')
    A('v_lshlrev_b32 v34, 4, v34')
    A(f'v_lshl_add_u32 v{vTO}, v125, 8, v34')
    A(f'v_add_u32 v{vTO}, {LDS_MEM}, v{vTO}')
    A(f'v_xor_b32 v{vTO+1}, 16, v{vTO}')
    chunks = [(m, ks) for m in 'qkv' for ks in range(8)] + [('o', c) for c in range(8)]
    def dma(ci):
        m, x = chunks[ci]
        buf = LDS_MEM + (ci % 2) * 16384
        for i in range(4):
            A(f's_lshl_b32 s{sT0}, s{sW}, 12')
            A(f's_add_u32 m0, s{sT0}, {buf + 1024 * i}')
            if m != 'o':
                S = {'q': S_WQ, 'k': S_WK, 'v': S_WV}[m]
                A(f's_mov_b32 s{sT1}, {x * 64 * 8192}')
                A(f'buffer_load_dwordx4 v{vD+i}, {srd(S)}, s{sT1} offen lds')
            else:
                ks, ah, wp = x >> 2, (x >> 1) & 1, x & 1
                A(f's_mov_b32 s{sT1}, {ks * 65536 + wp * 512 + ah * 128}')
                A(f'buffer_load_dwordx4 v{vDO+i}, {srd(S_WO)}, s{sT1} offen lds')
    def dest(o, tmpi):
        k, b = LOC[o]
        if k == 'lds': return 'v', vTT + 8 * tmpi
        return k, b
    dma(0); dma(1)
    for ci, (m, x) in enumerate(chunks):
        boff = (ci % 2) * 16384
        A('s_waitcnt vmcnt(4)' if ci + 1 < len(chunks) else 's_waitcnt vmcnt(0)')
        A('s_barrier')
        skip = None
        homed = []
        if m != 'o':
            for a in range(2):
                o = (m, a, x)
                k, b = dest(o, a)
                if LOC[o][0] == 'lds': homed.append((o, b))
                for p in range(4):
                    A(f'ds_read_b64_tr_b16 {k}[{b+2*p}:{b+2*p+1}], v{vTQ} offset:{boff + (p >> 1) * 8192 + (p & 1) * 256 + 8 * a}')
        else:
            ks, ah, wp = x >> 2, (x >> 1) & 1, x & 1
            skip = A.newlabel('L_wskip')
            A(f's_lshr_b32 s{sT0}, s{sW}, 1'); A(f's_cmp_lg_u32 s{sT0}, {wp}'); A(f's_cbranch_scc1 {skip}')
            for ap in range(4):
                o = ('o', 4 * ah + ap, ks)
                k, b = dest(o, ap)
                if LOC[o][0] == 'lds': homed.append((o, b))
                for p in range(4):
                    A(f'ds_read_b64_tr_b16 {k}[{b+2*p}:{b+2*p+1}], v{vTO + (ap >> 1)} offset:{boff + (p >> 1) * 8192 + (p & 1) * 512 + 8 * (ap & 1)}')
        A('s_waitcnt lgkmcnt(0)')
        for o, b in homed:
            slot = LOC[o][1]
            A(f'ds_write_b128 v{vHOME}, {vr(b, 4)} offset:{slot * 2048}')
            A(f'ds_write_b128 v{vHOME}, {vr(b + 4, 4)} offset:{slot * 2048 + 1024}')
        if skip: A.label(skip)
        A('s_barrier')
        if ci + 2 < len(chunks): dma(ci + 2)
    A('s_waitcnt lgkmcnt(0)')

def st_mode(A, ins):
    return ins

def gen_stores(A, lst, tag):
    l1 = A.newlabel('L_sslow'); l2 = A.newlabel('L_sdone')
    A(f's_cmp_lg_u32 s{sMODE}, 0'); A(f's_cbranch_scc1 {l1}')
    for s in lst: A(s)
    A(f's_branch {l2}')
    A.label(l1)
    for s in lst:
        A(s + ' sc1' if s.startswith('buffer_store') else s)
    A.label(l2)

def gen_init_exchange(A):
    for r in range(4): A(f'v_mov_b32 v{vTMP+r}, -1')
    lst = []
    for sl in range(1):
        for i in range(2):
            lst.append(f's_mov_b32 s{sT0}, {WS_PX + sl * 262144 + i * 4096}')
            lst.append(f'buffer_store_dwordx4 {vr(vTMP,4)}, v{vPLD}, {srd(S_WS)}, s{sT0} offen')
    lst.append('s_mov_b64 exec, 0xf000f')
    for sl in range(4):
        lst.append(f's_mov_b32 s{sT0}, {WS_MX + sl * 8192}')
        lst.append(f'buffer_store_dword v{vNEG1}, v{vMPUB}, {srd(S_WS)}, s{sT0} offen')
        lst.append(f'buffer_store_dword v{vNEG1}, v{vMPUB}, {srd(S_WS)}, s{sT0} offen offset:32')
    lst.append('s_mov_b64 exec, -1')
    gen_stores(A, lst, 'init')
    A('s_waitcnt vmcnt(0)')
    A('s_barrier')
    l = A.newlabel('L_noarr')
    A(f's_cmp_lg_u32 s{sW}, 0'); A(f's_cbranch_scc1 {l}')
    A(f'v_mov_b32 v{vTMP}, 1'); A(f'v_mov_b32 v{vTMP+1}, {4 * DBG_RINIT}')
    A('s_mov_b64 exec, 1')
    A(f'buffer_atomic_add v{vTMP}, v{vTMP+1}, {srd(S_DBG)}, 0 offen')
    A('s_mov_b64 exec, -1')
    A.label(l)

def gen_wait_init(A):
    l = A.newlabel('L_winit')
    A(f'v_mov_b32 v{vTMP+1}, {4 * DBG_RINIT}')
    A.label(l)
    A(f'buffer_load_dword v{vTMP}, v{vTMP+1}, {srd(S_DBG)}, 0 offen sc1')
    A('s_waitcnt vmcnt(0)')
    A(f'v_cmp_gt_u32 vcc, 32, v{vTMP}')
    A(f's_cbranch_vccnz {l}')

def gen_mem0(A):
    A('v_and_b32 v120, 63, v0'); A('v_and_b32 v121, 15, v120'); A('v_lshrrev_b32 v122, 4, v120')
    A('v_lshrrev_b32 v123, 1, v121'); A('v_lshlrev_b32 v123, 10, v123')
    A('v_and_b32 v124, 1, v121'); A('v_lshlrev_b32 v124, 4, v124'); A('v_lshlrev_b32 v125, 5, v122')
    A('v_add3_u32 v123, v123, v124, v125')
    A(f's_lshl_b32 s{sT0}, s{sW}, 8')
    A(f'buffer_load_dwordx4 {vr(vFR,4)}, v123, {srd(S_MEM0)}, s{sT0} offen')
    A(f'buffer_load_dwordx4 {vr(vFR+4,4)}, v123, {srd(S_MEM0)}, s{sT0} offen offset:128')
    A('s_waitcnt vmcnt(0)')
    A(f's_mov_b32 s{sT0}, 0x05040100'); A(f's_mov_b32 s{sT1}, 0x07060302')
    for i in range(2):
        s = vFR + 4 * i; d = vPB + 4 * i
        A(f'v_perm_b32 v{d}, v{s+2}, v{s}, s{sT0}')
        A(f'v_perm_b32 v{d+1}, v{s+2}, v{s}, s{sT1}')
        A(f'v_perm_b32 v{d+2}, v{s+3}, v{s+1}, s{sT0}')
        A(f'v_perm_b32 v{d+3}, v{s+3}, v{s+1}, s{sT1}')


def gen_setup2(A):
    A('v_and_b32 v121, 15, v0')
    A('v_cmp_lt_u32 vcc, 7, v121')
    A('v_mov_b32 v122, 0x3f803f80')
    for r in range(4): A(f'v_cndmask_b32 v{vSEL+r}, v{vSEL+r}, v122, vcc')

def gen_steps(A, mode, nsteps=64, prof=None, flag=True, opt=(), kvwait=None):
    X = '' if mode == 'f' else ' sc1'
    L = lambda n: f'L_rec{mode}_{n}'
    lg = Cnt(A, 'lgkmcnt', 15)
    SC = 128 ** -0.5 * math.log2(math.e)
    import struct
    SCBITS = struct.unpack('<I', struct.pack('<f', SC))[0]
    homed_seq = [OPS[i] for i in HOMED]
    slot_of = {o: i % NSTG for i, o in enumerate(homed_seq)}
    sTAG = sPSL
    def breg(o):
        k, b = LOC[o]
        if k == 'lds':
            b = vSTG + 8 * slot_of[o]
            return f'v[{b}:{b+7}]'
        return f'{k}[{b}:{b+7}]'
    def stage(i):
        if i >= len(homed_seq): return
        o = homed_seq[i]; b = vSTG + 8 * slot_of[o]; slot = LOC[o][1]
        A(f'ds_read_b128 {vr(b,4)}, v{vHOME} offset:{slot*2048}'); lg.issue()
        A(f'ds_read_b128 {vr(b+4,4)}, v{vHOME} offset:{slot*2048+1024}'); lg.issue(('stg', i))
    def smf(acc, areg, o):
        if LOC[o][0] == 'lds':
            lg.wait(('stg', homed_seq.index(o)))
        A(f'v_smfmac_f32_16x16x64_bf16 {vr(acc,4)}, {vr(areg,4)}, {breg(o)}, v{vIDX}')
    def P(i):
        if prof is not None: A(f's_memtime s[{prof+2*i}:{prof+2*i+1}]')
    def zero(b, n):
        for r in range(0, n, 2): A(f'v_mov_b64 v[{b+r}:{b+r+1}], 0')
    def kvdma():
        A(f's_mov_b32 m0, s{sT3}')
        for i in range(4):
            A(f'buffer_load_dwordx4 v{vKX}, {srd(S_WS)}, s{sKXO} offen offset:{1024*i} sc1 lds')
    A(f's_mov_b32 s{sSTEP}, 0')
    A(f's_mov_b32 s{sTAG}, 0')
    A(f's_mov_b32 s{sMCUR}, {WS_MX}')
    A(f's_mov_b32 s{sKXO}, {WS_KVF}')
    A(f's_mov_b32 s{sKMO}, 0')
    A(f's_mov_b32 s{sT2}, {SCBITS}')
    A(f's_mov_b32 s{sVXO}, {WS_PX}')
    A(f's_lshl_b32 s{sT3}, s{sW}, 12'); A(f's_add_u32 s{sT3}, s{sT3}, {LDS_KV}')
    if kvwait: kvwait(A, first=True)
    kvdma()
    for i in range(NSTG): stage(i)
    lg.q = []
    zero(vQK, 24)
    A('s_waitcnt vmcnt(0)')
    A(f's_branch {L("have_mem")}')
    A.label(L('step'))
    P(0)
    A(f's_sub_u32 s{sT0}, s{sMCUR}, {LDS_MEM}')
    A.label(L('poll2'))
    A(f'buffer_load_dwordx4 {vr(vPB,4)}, v{vMP}, {srd(S_WS)}, s{sT0} offen sc1')
    A(f'buffer_load_dwordx4 {vr(vPB+4,4)}, v{vMP}, {srd(S_WS)}, s{sT0} offen offset:1024 sc1')
    A('s_waitcnt vmcnt(0)')
    A(f'v_max3_u32 v{vTMP}, v{vPB}, v{vPB+1}, v{vPB+2}'); A(f'v_max3_u32 v{vTMP+1}, v{vPB+3}, v{vPB+4}, v{vPB+5}')
    A(f'v_max3_u32 v{vTMP}, v{vTMP}, v{vPB+6}, v{vPB+7}'); A(f'v_max_u32 v{vTMP}, v{vTMP}, v{vTMP+1}')
    A(f'v_cmp_eq_u32 vcc, -1, v{vTMP}')
    A('s_mov_b64 exec, vcc')
    A(f's_cbranch_execnz {L("poll2")}')
    A('s_mov_b64 exec, -1')
    A.label(L('have_mem'))
    P(1)
    A(f'ds_write_b128 v{vMP}, {vr(vPB,4)}'); A(f'ds_write_b128 v{vMP}, {vr(vPB+4,4)} offset:1024')
    A('s_waitcnt lgkmcnt(0)')
    A('s_barrier')
    P(2)
    for ks in range(8):
        A(f'ds_read_b128 {vr(vFR+4*ks,4)}, v{vL16H} offset:{1024*ks}'); lg.issue(('fr', ks))
    for i in range(4):
        A(f'ds_read_b128 {vr(vKXR+4*i,4)}, v{vVX} offset:{1024*i}'); lg.issue(('kv', i))
    A(f's_add_u32 s{sKXO}, s{sKXO}, {32*16384}')
    nstaged = NSTG
    vAP = vT2; vDP = vTMP; vX = vTMP + 4
    bg = []
    def post_qk_list(a):
        k = vQK + 8 * a; q = k + 4
        return [f'v_add_f32 v{k}, v{k}, v{k+1}', f'v_add_f32 v{k+2}, v{k+2}, v{k+3}', f'v_add_f32 v{q}, v{q}, v{q+1}', f'v_add_f32 v{q+2}, v{q+2}, v{q+3}',
                f'v_cvt_pk_bf16_f32 v{vAP}, v{k}, v{k+2}', f'v_cvt_pk_bf16_f32 v{vAP+1}, v{q}, v{q+2}',
                f'v_mfma_f32_16x16x16_bf16 {vr(vDP,4)}, {vr(vAP,2)}, {vr(vID,2)}, 0']
    def post_qk2_list(a):
        return [f'v_cvt_pk_bf16_f32 v{vX+2*a}, v{vDP}, v{vDP+1}', f'v_cvt_pk_bf16_f32 v{vX+2*a+1}, v{vDP+2}, v{vDP+3}']
    cnt = 0
    for a in range(2):
        for ks in range(8):
            if a == 0: lg.wait(('fr', ks))
            for m in 'kq':
                o = (m, a, ks)
                smf(vQK + 8 * a + (4 if m == 'q' else 0), vFR + 4 * ks, o)
                if LOC[o][0] == 'lds':
                    stage(nstaged); nstaged += 1
                cnt += 1
                if cnt == 10:
                    lg.wait(('kv', 3))
                    if kvwait: kvwait(A, first=False)
                    kvdma()
                if cnt == 14 and flag:
                    fl = A.newlabel('L_nofl')
                    A(f's_cmp_lg_u32 s{sW}, 0'); A(f's_cbranch_scc1 {fl}')
                    A(f'v_mov_b32 v{vT2}, s{sSTEP}')
                    A(f's_lshl_b32 s{sT0}, s{sH}, 2'); A(f's_add_u32 s{sT0}, s{sT0}, {4*DBG_PROG}'); A(f'v_mov_b32 v{vT2+1}, s{sT0}')
                    A('s_mov_b64 exec, 1')
                    A(f'buffer_store_dword v{vT2}, v{vT2+1}, {srd(S_DBG)}, 0 offen sc1')
                    A('s_mov_b64 exec, -1')
                    A.label(fl)
                if cnt == 19: bg = post_qk_list(0)
                if cnt == 27: bg += post_qk2_list(0)
                for _ in range(2):
                    if bg: A(bg.pop(0))
    assert not bg
    P(3)
    vops = [('v', a, ks) for ks in range(8) for a in range(2)]
    vi = [0]
    def vstep(n=1):
        for _ in range(n):
            if vi[0] >= 16: return
            o = vops[vi[0]]; vi[0] += 1
            smf(vVA + 4 * o[1], vFR + 4 * o[2], o)
    vstep(1)
    for i_ in post_qk_list(1): A(i_)
    vstep(2)
    for i_ in post_qk2_list(1): A(i_)
    vS = vQK
    A(f'v_mfma_f32_16x16x32_bf16 {vr(vS,4)}, {vr(vKXR,4)}, {vr(vX,4)}, 0')
    A(f'v_mfma_f32_16x16x32_bf16 {vr(vS+4,4)}, {vr(vKXR+4,4)}, {vr(vX,4)}, 0')
    A(f'v_mfma_f32_16x16x32_bf16 {vr(vS+8,4)}, {vr(vX,4)}, {vr(vX,4)}, 0')
    vstep(2)
    A(f's_add_u32 s{sT0}, s{sKMO}, {WS_KM}')
    A('s_mov_b64 exec, s[6:7]')
    A(f'ds_write_b128 v{vSW}, {vr(vS,4)}'); lg.issue()
    A(f'ds_write_b128 v{vSW}, {vr(vS+4,4)} offset:16'); lg.issue()
    A(f'ds_write_b64 v{vSW}, {vr(vS+8,2)} offset:32'); lg.issue()
    A('s_mov_b64 exec, s[4:5]')
    A(f'buffer_store_dwordx4 {vr(vX,4)}, v{vKM}, {srd(S_WS)}, s{sT0} offen sc1')
    A('s_mov_b64 exec, -1')
    vstep(4)
    lg.all()
    A('s_barrier')
    P(4)
    A(f'ds_read_b128 {vr(vS,4)}, v{vSR}'); lg.issue()
    A(f'ds_read_b128 {vr(vKXR,4)}, v{vSR} offset:1536'); lg.issue('e0')
    A(f'ds_read_b128 {vr(vS+4,4)}, v{vSR} offset:16'); lg.issue()
    A(f'ds_read_b128 {vr(vKXR+4,4)}, v{vSR} offset:1552'); lg.issue('e1')
    A(f'ds_read_b64 {vr(vS+8,2)}, v{vSR} offset:32'); lg.issue()
    A(f'ds_read_b64 {vr(vT2,2)}, v{vSR} offset:1568'); lg.issue('ex')
    vstep(7)
    assert vi[0] == 16, vi
    lg.wait('e0')
    for r in range(0, 4, 2): A(f'v_pk_add_f32 v[{vS+r}:{vS+r+1}], v[{vS+r}:{vS+r+1}], v[{vKXR+r}:{vKXR+r+1}]')
    lg.wait('e1')
    for r in range(4, 8, 2): A(f'v_pk_add_f32 v[{vS+r}:{vS+r+1}], v[{vS+r}:{vS+r+1}], v[{vKXR+r}:{vKXR+r+1}]')
    lg.wait('ex')
    A(f'v_pk_add_f32 v[{vS+8}:{vS+9}], v[{vS+8}:{vS+9}], v[{vT2}:{vT2+1}]')
    for r in range(10): A(f'v_add_f32_dpp v{vS+r}, v{vS+r}, v{vS+r} quad_perm:[2,3,0,1] row_mask:0xf bank_mask:0xf')
    vM = vTMP; vM2 = vTMP + 1
    A(f'v_max3_f32 v{vM}, v{vS}, v{vS+1}, v{vS+2}'); A(f'v_max3_f32 v{vM2}, v{vS+3}, v{vS+4}, v{vS+5}')
    A(f'v_max3_f32 v{vM}, v{vM}, v{vS+6}, v{vS+7}'); A(f'v_max3_f32 v{vM2}, v{vM2}, v{vS+8}, v{vS+9}')
    A(f'v_max_f32 v{vM}, v{vM}, v{vM2}')
    A(f'v_mov_b32 v{vM2}, v{vM}')
    stage(nstaged); nstaged += 1
    A(f'v_permlane16_swap_b32 v{vM}, v{vM2}')
    A(f'v_max_f32 v{vM}, v{vM}, v{vM2}')
    A(f'v_mov_b32 v{vM2}, v{vM}')
    stage(nstaged); nstaged += 1
    A(f'v_permlane32_swap_b32 v{vM}, v{vM2}')
    A(f'v_max_f32 v{vM}, v{vM}, v{vM2}')
    A(f'v_mul_f32 v{vM}, s{sT2}, v{vM}')
    for r in range(10): A(f'v_fma_f32 v{vS+r}, v{vS+r}, s{sT2}, -v{vM}')
    for r in range(10):
        A(f'v_exp_f32 v{vS+r}, v{vS+r}')
    vPx = vTMP
    vVM0 = vTMP + 4
    for a in range(2):
        b = vVA + 4 * a
        A(f'v_add_f32 v{b}, v{b}, v{b+1}'); A(f'v_add_f32 v{b+2}, v{b+2}, v{b+3}')
    for r in range(4): A(f'v_cvt_pk_bf16_f32 v{vPx+r}, v{vS+2*r}, v{vS+2*r+1}')
    A(f'v_cvt_pk_bf16_f32 v{vS+12}, v{vS+8}, v{vS+9}'); A(f'v_mov_b32 v{vS+13}, 0')
    vO = vS
    A(f'v_mfma_f32_16x16x32_bf16 {vr(vS+8,4)}, {vr(vSEL,4)}, {vr(vPx,4)}, 0')
    for a in range(2):
        b = vVA + 4 * a
        A(f'v_cvt_pk_bf16_f32 v{vVM0+2*a}, v{b}, v{b+2}'); A(f'v_mov_b32 v{vVM0+2*a+1}, 0')
    A(f'v_mfma_f32_16x16x16_bf16 {vr(vS+8,4)}, {vr(vSEL,2)}, {vr(vS+12,2)}, {vr(vS+8,4)}')
    for a in range(2):
        A(f'v_mfma_f32_16x16x32_bf16 {vr(vO+4*a,4)}, {vr(vVXR+4*a,4)}, {vr(vPx,4)}, 0')
    for a in range(2):
        A(f'v_mfma_f32_16x16x16_bf16 {vr(vO+4*a,4)}, {vr(vVM0+2*a,2)}, {vr(vS+12,2)}, {vr(vO+4*a,4)}')
    A(f's_add_u32 s{sT0}, s{sKMO}, {WS_VMT}')
    A(f'buffer_store_dword v{vVM0}, v{vVM}, {srd(S_WS)}, s{sT0} offen sc1')
    A(f'buffer_store_dword v{vVM0+2}, v{vVM}, {srd(S_WS)}, s{sT0} offen offset:64 sc1')
    A(f's_cmp_eq_u32 s{sSTEP}, {nsteps-1}')
    A(f's_cbranch_scc1 {L("done")}')
    stage(nstaged); nstaged += 1
    vL = vT2; vL2 = vT2 + 1
    A(f'v_rcp_f32 v{vL}, v{vS+8}')
    zero(vFR, 4)
    A(f'v_mov_b32 v{vL2}, v{vL}')
    zero(vFR + 4, 4)
    A(f'v_permlane32_swap_b32 v{vL}, v{vL2}')
    for r in range(0, 8, 2): A(f'v_pk_mul_f32 v[{vO+r}:{vO+r+1}], v[{vO+r}:{vO+r+1}], v[{vL}:{vL+1}] op_sel:[0,1] op_sel_hi:[1,1]')
    for r in range(4): A(f'v_cvt_pk_bf16_f32 v{vTMP+r}, v{vO+2*r}, v{vO+2*r+1}')
    A('s_mov_b64 exec, s[6:7]')
    A(f'ds_write_b128 v{vOW}, {vr(vTMP,4)}')
    A('s_mov_b64 exec, -1')
    vWA = vFR
    zero(vFR + 8, 12)
    A('s_waitcnt lgkmcnt(0)'); lg.q = []
    A('s_barrier')
    P(5)
    vOF = vQK
    A(f'ds_read_b128 {vr(vOF,4)}, v{vL16H} offset:{LDS_O-LDS_MEM}'); lg.issue('of0')
    A(f'ds_read_b128 {vr(vOF+4,4)}, v{vL16H} offset:{LDS_O-LDS_MEM+1024}'); lg.issue('of1')
    zero(vFR + 20, 12)
    A(f's_add_u32 s{sT0}, s{sVXO}, 32768')
    lg.wait('of0')
    vPK = vVA
    def post_o(a):
        b = vWA + 4 * a
        return [f'v_add_f32 v{b}, v{b}, v{b+1}', f'v_add_f32 v{b+2}, v{b+2}, v{b+3}', f'v_cvt_pk_bf16_f32 v{vPK+a}, v{b}, v{b+2}', f'v_bfi_b32 v{vPK+a}, 1, s{sTAG}, v{vPK+a}']
    bg = []
    for a in range(8):
        for ks in range(2):
            if a == 0 and ks == 1: lg.wait('of1')
            o = ('o', a, ks)
            smf(vWA + 4 * a, vOF + 4 * ks, o)
            if LOC[o][0] == 'lds':
                stage(nstaged); nstaged += 1
            for _ in range(2):
                if bg: A(bg.pop(0))
        if a >= 1: bg += post_o(a - 1)
        if a == 5: A(f'buffer_store_dwordx4 {vr(vPK,4)}, v{vPST}, {srd(S_WS)}, s{sVXO} offen{X}')
    for i_ in bg + post_o(7): A(i_)
    A(f'buffer_store_dwordx4 {vr(vPK+4,4)}, v{vPST}, {srd(S_WS)}, s{sT0} offen{X}')
    P(6)
    A(f's_add_u32 s{sT0}, s{sVXO}, 4096')
    A(f'buffer_load_dwordx4 {vr(vPB,4)}, v{vPLD}, {srd(S_WS)}, s{sVXO} offen sc1')
    A(f'buffer_load_dwordx4 {vr(vPB+4,4)}, v{vPLD}, {srd(S_WS)}, s{sT0} offen sc1')
    for i in range(NSTG): stage(i)
    lg.q = []
    zero(vQK, 16)
    A(f's_add_u32 s{sMNXT}, s{sMCUR}, 8192'); A(f's_and_b32 s{sMNXT}, s{sMNXT}, 32767'); A(f's_add_u32 s{sMNXT}, s{sMNXT}, {WS_MX}')
    A(f's_branch {L("poll1c")}')
    A.label(L('poll1'))
    A(f'buffer_load_dwordx4 {vr(vPB,4)}, v{vPLD}, {srd(S_WS)}, s{sVXO} offen sc1')
    A(f'buffer_load_dwordx4 {vr(vPB+4,4)}, v{vPLD}, {srd(S_WS)}, s{sT0} offen sc1')
    A.label(L('poll1c'))
    A('s_waitcnt vmcnt(0)')
    tt = 0
    for a_ in range(2):
        for b_ in range(2):
            for t_ in range(2):
                if (a_ ^ t_) | (b_ ^ t_): tt |= 1 << (a_ * 4 + b_ * 2 + t_)
    for i in range(4): A(f'v_bitop3_b32 v{vTMP+i}, v{vPB+2*i}, v{vPB+2*i+1}, s{sTAG} bitop3:{tt}')
    A(f'v_or3_b32 v{vTMP}, v{vTMP}, v{vTMP+1}, v{vTMP+2}')
    A(f'v_and_or_b32 v{vTMP}, v{vTMP}, 1, v{vTMP+3}' if False else f'v_or_b32 v{vTMP}, v{vTMP}, v{vTMP+3}')
    A(f'v_and_b32 v{vTMP}, 1, v{vTMP}')
    A(f'v_cmp_ne_u32 vcc, 0, v{vTMP}')
    A('s_mov_b64 exec, vcc')
    A(f's_cbranch_execnz {L("poll1")}')
    A('s_mov_b64 exec, -1')
    P(7)
    vR = vTMP
    A(f'v_mfma_f32_16x16x32_bf16 {vr(vR,4)}, {vr(vSEL,4)}, {vr(vPB,4)}, 0')
    A(f'v_mfma_f32_16x16x32_bf16 {vr(vR,4)}, {vr(vSEL,4)}, {vr(vPB+4,4)}, {vr(vR,4)}')
    zero(vVA, 8)
    for r in range(4): A(f'v_add_f32_dpp v{vR+r}, v{vR+r}, v{vR+r} row_ror:4 row_mask:0xf bank_mask:0xf')
    for r in range(4): A(f'v_add_f32_dpp v{vR+r}, v{vR+r}, v{vR+r} row_ror:8 row_mask:0xf bank_mask:0xf')
    A(f'v_cvt_pk_bf16_f32 v{vR+4}, v{vR}, v{vR+2}'); A(f'v_cvt_pk_bf16_f32 v{vR+5}, v{vR+1}, v{vR+3}')
    A(f'v_min_u32 v{vR+4}, -2, v{vR+4}'); A(f'v_min_u32 v{vR+5}, -2, v{vR+5}')
    A('s_mov_b64 exec, 0xf000f')
    A(f'buffer_store_dword v{vR+4}, v{vMPUB}, {srd(S_WS)}, s{sMNXT} offen{X}')
    A(f'buffer_store_dword v{vR+5}, v{vMPUB}, {srd(S_WS)}, s{sMNXT} offen offset:32{X}')
    A(f'buffer_store_dword v{vNEG1}, v{vMPUB}, {srd(S_WS)}, s{sMCUR} offen{X}')
    A(f'buffer_store_dword v{vNEG1}, v{vMPUB}, {srd(S_WS)}, s{sMCUR} offen offset:32{X}')
    A('s_mov_b64 exec, -1')
    P(8)
    A(f's_mov_b32 s{sMCUR}, s{sMNXT}')
    A(f's_xor_b32 s{sTAG}, s{sTAG}, 1')
    A(f's_add_u32 s{sKMO}, s{sKMO}, 65536')
    A(f's_add_u32 s{sSTEP}, s{sSTEP}, 1')
    if prof is not None:
        A('s_waitcnt lgkmcnt(0)')
        for i in range(9): A(f'v_writelane_b32 v{vTMP}, s{prof+2*i}, {i}')
        A(f's_lshl_b32 s{sT0}, s{sH}, 2'); A(f's_add_u32 s{sT0}, s{sT0}, s{sW}'); A(f's_lshl_b32 s{sT0}, s{sT0}, 6'); A(f's_add_u32 s{sT0}, s{sT0}, s{sSTEP}'); A(f's_lshl_b32 s{sT0}, s{sT0}, 6')
        A(f's_add_u32 s{sT0}, s{sT0}, {120*MB}')
        A(f'v_mbcnt_lo_u32_b32 v{vTMP+1}, -1, 0'); A(f'v_lshlrev_b32 v{vTMP+1}, 2, v{vTMP+1}')
        A('s_mov_b64 exec, 0xffff')
        A(f'buffer_store_dword v{vTMP}, v{vTMP+1}, {srd(S_WS)}, s{sT0} offen')
        A('s_mov_b64 exec, -1')
    A(f's_branch {L("step")}')
    A.label(L('done'))
    A('s_waitcnt vmcnt(0)')
    A('s_barrier')
    if flag:
        fl = A.newlabel('L_nofl')
        A(f's_cmp_lg_u32 s{sW}, 0'); A(f's_cbranch_scc1 {fl}')
        A(f'v_mov_b32 v{vT2}, {nsteps}')
        A(f's_lshl_b32 s{sT0}, s{sH}, 2'); A(f's_add_u32 s{sT0}, s{sT0}, {4*DBG_PROG}'); A(f'v_mov_b32 v{vT2+1}, s{sT0}')
        A('s_mov_b64 exec, 1')
        A(f'buffer_store_dword v{vT2}, v{vT2+1}, {srd(S_DBG)}, 0 offen sc1')
        A('s_mov_b64 exec, -1')
        A('s_waitcnt vmcnt(0)')
        A.label(fl)

sRDY = 70
def kvwait(A, first):
    l = A.newlabel('L_kvw'); l2 = A.newlabel('L_kvd')
    if first:
        A(f's_mov_b32 s{sRDY}, 0'); A(f's_mov_b32 s{sT1}, 0')
    else:
        A(f's_add_u32 s{sT1}, s{sSTEP}, 1'); A(f's_lshr_b32 s{sT1}, s{sT1}, 2')
    A(f's_cmp_lt_u32 s{sT1}, s{sRDY}'); A(f's_cbranch_scc1 {l2}')
    A(f's_cmp_ge_u32 s{sT1}, 16'); A(f's_cbranch_scc1 {l2}')
    A(f'v_mbcnt_lo_u32_b32 v{vT2+1}, -1, 0'); A(f'v_lshlrev_b32 v{vT2+1}, 2, v{vT2+1}')
    A('s_mov_b64 exec, 0xffff')
    A.label(l)
    A(f'buffer_load_dword v{vT2}, v{vT2+1}, {srd(S_DBG)}, 0 offen offset:{4*DBG_KV} sc1')
    A('s_waitcnt vmcnt(0)')
    A(f'v_and_b32 v{vT2}, 0xffff, v{vT2}')
    A(f'v_cmp_gt_u32 vcc, 32, v{vT2}')
    A(f's_or_b32 s{sRDY}, vcc_lo, 0x10000')
    A(f's_ff1_i32_b32 s{sRDY}, s{sRDY}')
    A(f's_cmp_lt_u32 s{sT1}, s{sRDY}'); A(f's_cbranch_scc0 {l}')
    A('s_mov_b64 exec, -1')
    A.label(l2)
```

```python
from asmlib import *
from common import *
from gemm import *
import math, struct
def fbits(x): return struct.unpack('<I', struct.pack('<f', x))[0]

sTK, sP0, sP1, sP2 = 88, 89, 90, 91
LDS_TICK = 163840 - 64
G128 = Gemm(128, 128, 2, 2, 'g128')
G32 = Gemm(32, 128, 1, 4, 'g32')

N_KV, N_G2, N_Q, N_AT, N_G3 = 1024, 192, 512, 256, 64
T_KV = 0; T_G2 = T_KV + N_KV; T_Q = T_G2 + N_G2; T_AT = T_Q + N_Q; T_G3 = T_AT + N_AT; T_B = T_G3 + N_G3
PER_SEG = 12
N_B = 65 * PER_SEG
T_END = T_B + N_B

def copy_srd(A, dst, src):
    for i in range(4): A(f's_mov_b32 s{dst+i}, s{src+i}')

def signal(A, S, off_expr_sgpr=None, off=None):
    A('s_waitcnt vmcnt(0)')
    A('s_barrier')
    l = A.newlabel('L_sig')
    A(f's_cmp_lg_u32 s{sW}, 0'); A(f's_cbranch_scc1 {l}')
    A('v_mov_b32 v120, 1')
    A(f'v_mov_b32 v121, {off}' if off is not None else f'v_mov_b32 v121, s{off_expr_sgpr}')
    A('s_mov_b64 exec, 1')
    A(f'buffer_atomic_add v120, v121, {srd(S)}, 0 offen')
    A('s_mov_b64 exec, -1')
    A.label(l)

def wait_cnt(A, S, target, off=None, off_sgpr=None):
    l = A.newlabel('L_wt'); l2 = A.newlabel('L_wd')
    A(f'v_mov_b32 v121, {off}' if off is not None else f'v_mov_b32 v121, s{off_sgpr}')
    A.label(l)
    A(f'buffer_load_dword v120, v121, {srd(S)}, 0 offen sc1')
    A('s_waitcnt vmcnt(0)')
    A(f'v_readfirstlane_b32 s{sT0}, v120')
    A(f's_cmp_ge_u32 s{sT0}, {target}')
    A(f's_cbranch_scc1 {l2}')
    A('s_sleep 8')
    A(f's_branch {l}')
    A.label(l2)

def lane_consts(A):
    A('v_and_b32 v10, 63, v0'); A('v_and_b32 v11, 15, v10'); A('v_lshrrev_b32 v12, 4, v10')

def gen_g1(A):
    G = G128
    A.label('L_task_kv')
    A(f's_lshr_b32 s{sP0}, s{sTK}, 6'); A(f's_and_b32 s{sP1}, s{sTK}, 31'); A(f's_bfe_u32 s{sP2}, s{sTK}, 0x10005')
    l = A.newlabel('L_nz')
    A(f's_cmp_lg_u32 s{sTK}, 0'); A(f's_cbranch_scc1 {l}')
    A('v_lshlrev_b32 v120, 2, v0'); A('v_mov_b32 v121, 0'); A(f's_mov_b32 s{sT0}, {WS_CNT}')
    A(f'buffer_store_dword v121, v120, {srd(S_WS)}, s{sT0} offen sc1')
    A.label(l)
    A(f's_cmp_eq_u32 s{sP2}, 0'); A('s_cbranch_scc1 L_g1_k')
    copy_srd(A, sGB, S_WV); A('s_branch L_g1_go')
    A.label('L_g1_k'); copy_srd(A, sGB, S_WK); A('s_branch L_g1_go')
    A.label('L_task_q')
    A(f's_sub_u32 s{sT0}, s{sTK}, {T_Q}'); A(f's_lshr_b32 s{sP0}, s{sT0}, 5'); A(f's_and_b32 s{sP1}, s{sT0}, 31'); A(f's_mov_b32 s{sP2}, 2')
    copy_srd(A, sGB, S_WQ)
    A.label('L_g1_go')
    copy_srd(A, sGA, S_BX)
    A(f's_mov_b32 s{sLDA}, 1024'); A(f's_mov_b32 s{sLDB}, 8192'); A(f's_mov_b32 s{sKIT}, 2')
    A(f's_lshl_b32 s{sAOFF}, s{sP0}, 17'); A(f's_lshl_b32 s{sBOFF}, s{sP1}, 8')
    G.setup(A)
    A(f's_cmp_eq_u32 s{sP2}, 1'); A('s_cbranch_scc1 L_g1_v')
    G.mainloop(A, 'T')
    lane_consts(A)
    A('v_lshlrev_b32 v13, 4, v10')
    A(f's_lshr_b32 s{sT0}, s{sW}, 1'); A(f's_and_b32 s{sT1}, s{sW}, 1')
    A(f's_lshl_b32 s{sE0}, s{sP0}, 2'); A(f's_lshl_b32 s{sT0}, s{sT0}, 1'); A(f's_add_u32 s{sE0}, s{sE0}, s{sT0}   ; seg0')
    A(f's_lshl_b32 s{sE0}, s{sE0}, 5'); A(f's_add_u32 s{sE0}, s{sE0}, s{sP1}'); A(f's_lshl_b32 s{sE0}, s{sE0}, 2'); A(f's_lshl_b32 s{sT1}, s{sT1}, 1'); A(f's_add_u32 s{sE0}, s{sE0}, s{sT1}')
    A(f's_cmp_eq_u32 s{sP2}, 0')
    A(f's_cselect_b32 s{sE1}, 12, 11'); A(f's_cselect_b32 s{sE2}, {WS_KVF}, {WS_QF}')
    A(f's_lshl_b32 s{sE0}, s{sE0}, s{sE1}'); A(f's_add_u32 s{sE0}, s{sE0}, s{sE2}')
    A(f's_lshl_b32 s{sE3}, 1, s{sE1}    ; stride')
    for i in range(2):
        for c in range(2):
            A(f's_mul_i32 s{sT0}, s{sE3}, {i * 128 + c}'); A(f's_add_u32 s{sT0}, s{sT0}, s{sE0}')
            for kt in range(2):
                tm = 2 * i + kt
                d = 16 + 4 * ((i * 2 + c) * 2 + kt)
                G.pack(A, tm * 4 + 2 * c, tm * 4 + 2 * c + 1, d)
                A(f'buffer_store_dwordx4 {vr(d,4)}, v13, {srd(S_WS)}, s{sT0} offen offset:{1024*kt} sc1')
    A(f's_cmp_eq_u32 s{sP2}, 0'); A('s_cbranch_scc1 L_g1_sigkv')
    signal(A, S_DBG, off=4 * DBG_CQ)
    A('s_branch L_next')
    A.label('L_g1_v')
    G.mainloop(A, 'N')
    lane_consts(A)
    A('v_lshlrev_b32 v13, 4, v10')
    A(f's_lshr_b32 s{sT0}, s{sW}, 1'); A(f's_and_b32 s{sT1}, s{sW}, 1')
    A(f's_lshl_b32 s{sE0}, s{sP0}, 2'); A(f's_lshl_b32 s{sT0}, s{sT0}, 1'); A(f's_add_u32 s{sE0}, s{sE0}, s{sT0}')
    A(f's_lshl_b32 s{sE0}, s{sE0}, 5'); A(f's_add_u32 s{sE0}, s{sE0}, s{sP1}'); A(f's_lshl_b32 s{sE0}, s{sE0}, 2'); A(f's_lshl_b32 s{sT1}, s{sT1}, 1'); A(f's_add_u32 s{sE0}, s{sE0}, s{sT1}')
    A(f's_lshl_b32 s{sE0}, s{sE0}, 12'); A(f's_add_u32 s{sE0}, s{sE0}, {WS_KVF}')
    for i in range(2):
        for c in range(2):
            A(f's_add_u32 s{sT0}, s{sE0}, {(i * 128 + c) * 4096}')
            for a in range(2):
                tn = 2 * c + a
                d = 16 + 4 * ((i * 2 + c) * 2 + a)
                G.pack(A, (2 * i) * 4 + tn, (2 * i + 1) * 4 + tn, d)
                A(f'buffer_store_dwordx4 {vr(d,4)}, v13, {srd(S_WS)}, s{sT0} offen offset:{2048 + 1024*a} sc1')
    A.label('L_g1_sigkv')
    A(f's_lshl_b32 s{sT3}, s{sP0}, 2'); A(f's_add_u32 s{sT3}, s{sT3}, {4 * DBG_KV}')
    signal(A, S_DBG, off_expr_sgpr=sT3)
    A('s_branch L_next')

def gen_g2(A):
    G = G128
    A.label('L_task_g2')
    A(f's_sub_u32 s{sT0}, s{sTK}, {T_G2}')
    A(f's_mul_hi_u32 s{sP0}, s{sT0}, {(1 << 32) // 12 + 1}')
    A(f's_mul_i32 s{sT1}, s{sP0}, 12'); A(f's_sub_u32 s{sP1}, s{sT0}, s{sT1}')
    copy_srd(A, sGA, S_AX); copy_srd(A, sGB, S_AWQKV)
    A(f's_mov_b32 s{sLDA}, 1024'); A(f's_mov_b32 s{sLDB}, 3072'); A(f's_mov_b32 s{sKIT}, 2')
    A(f's_lshl_b32 s{sAOFF}, s{sP0}, 17'); A(f's_lshl_b32 s{sBOFF}, s{sP1}, 8')
    G.setup(A)
    A(f's_cmp_ge_u32 s{sP1}, 8'); A('s_cbranch_scc1 L_g2_v')
    G.mainloop(A, 'T')
    lane_consts(A)
    A('v_lshrrev_b32 v13, 3, v11'); A('v_lshlrev_b32 v13, 4, v13'); A('v_and_b32 v14, 3, v11'); A('v_add_u32 v13, v13, v14')
    A('v_bfe_u32 v14, v11, 2, 1')
    A(f's_cmp_ge_u32 s{sP1}, 4')
    A(f's_cselect_b32 s{sE1}, 2, 3'); A(f's_cselect_b32 s{sE2}, 128, 64'); A(f's_cselect_b32 s{sE3}, {WS_KA - WS_QA}, 0'); A(f's_add_u32 s{sE3}, s{sE3}, {WS_QA}')
    A(f'v_lshlrev_b32 v14, s{sE1}, v14'); A('v_add_u32 v13, v13, v14')
    A('v_and_b32 v14, 1, v12'); A('v_lshl_add_u32 v13, v14, 5, v13    ; + 32hh')
    A('v_lshlrev_b32 v13, 4, v13')
    A('v_lshrrev_b32 v14, 1, v12'); A('v_lshl_add_u32 v13, v14, 16, v13')
    A(f's_and_b32 s{sT0}, s{sP1}, 3'); A(f's_lshl_b32 s{sT0}, s{sT0}, 3'); A(f's_and_b32 s{sT1}, s{sW}, 1'); A(f's_lshl_b32 s{sT1}, s{sT1}, 2'); A(f's_add_u32 s{sT0}, s{sT0}, s{sT1}')
    A(f's_lshl_b32 s{sE0}, s{sT0}, 16')
    A(f's_lshr_b32 s{sT0}, s{sW}, 1'); A(f's_lshl_b32 s{sT0}, s{sT0}, 1'); A(f's_lshl_b32 s{sT1}, s{sP0}, 2'); A(f's_add_u32 s{sT0}, s{sT0}, s{sT1}'); A(f's_lshl_b32 s{sT0}, s{sT0}, 10')
    A(f's_add_u32 s{sE0}, s{sE0}, s{sT0}'); A(f's_add_u32 s{sE0}, s{sE0}, s{sE3}')
    for i in range(2):
        for c in range(2):
            for kt in range(2):
                tm = 2 * i + kt
                d = 16 + 4 * ((i * 2 + c) * 2 + kt)
                A(f's_add_u32 s{sT0}, s{sE0}, {i * 1024 + c * 131072}')
                if kt: A(f's_add_u32 s{sT0}, s{sT0}, s{sE2}')
                G.pack(A, tm * 4 + 2 * c, tm * 4 + 2 * c + 1, d)
                A(f'buffer_store_dwordx4 {vr(d,4)}, v13, {srd(S_WS)}, s{sT0} offen sc1')
    A('s_branch L_g2_sig')
    A.label('L_g2_v')
    G.mainloop(A, 'N')
    lane_consts(A)
    A('v_and_b32 v13, 7, v11      ; [(n/4)&1][n%4]')
    A('v_and_b32 v14, 1, v12'); A('v_lshl_add_u32 v13, v14, 4, v13    ; +16hh')
    A('v_lshrrev_b32 v14, 1, v12'); A('v_lshl_add_u32 v13, v14, 5, v13   ; +32u')
    A('v_lshlrev_b32 v13, 4, v13')
    A('v_lshrrev_b32 v14, 3, v11'); A('v_lshl_add_u32 v13, v14, 16, v13')
    A(f's_and_b32 s{sT0}, s{sP1}, 3'); A(f's_lshl_b32 s{sT0}, s{sT0}, 3'); A(f's_and_b32 s{sT1}, s{sW}, 1'); A(f's_lshl_b32 s{sT1}, s{sT1}, 2'); A(f's_add_u32 s{sT0}, s{sT0}, s{sT1}')
    A(f's_lshl_b32 s{sE0}, s{sT0}, 16')
    A(f's_lshr_b32 s{sT0}, s{sW}, 1'); A(f's_lshl_b32 s{sT0}, s{sT0}, 1'); A(f's_lshl_b32 s{sT1}, s{sP0}, 2'); A(f's_add_u32 s{sT0}, s{sT0}, s{sT1}'); A(f's_lshl_b32 s{sT0}, s{sT0}, 10')
    A(f's_add_u32 s{sE0}, s{sE0}, s{sT0}'); A(f's_add_u32 s{sE0}, s{sE0}, {WS_VAT}')
    for i in range(2):
        for c in range(2):
            A(f's_add_u32 s{sT0}, s{sE0}, {i * 1024 + c * 131072}')
            for a in range(2):
                tn = 2 * c + a
                d = 16 + 4 * ((i * 2 + c) * 2 + a)
                G.pack(A, (2 * i) * 4 + tn, (2 * i + 1) * 4 + tn, d)
                A(f'buffer_store_dwordx4 {vr(d,4)}, v13, {srd(S_WS)}, s{sT0} offen offset:{128*a} sc1')
    A.label('L_g2_sig')
    signal(A, S_DBG, off=4 * DBG_CG2)
    A('s_branch L_next')

def out_epilogue(A, G):
    lane_consts(A)
    A('v_lshrrev_b32 v13, 2, v11'); A('v_and_b32 v14, 3, v11'); A('v_lshl_add_u32 v13, v13, 3, v14')
    A('v_lshlrev_b32 v13, 11, v13'); A('v_lshl_add_u32 v13, v12, 4, v13')
    if G.WM == 2:
        A(f's_lshr_b32 s{sT0}, s{sW}, 1'); A(f's_lshl_b32 s{sT0}, s{sT0}, 17'); A(f's_add_u32 s{sE0}, s{sE0}, s{sT0}')
        A(f's_and_b32 s{sT0}, s{sW}, 1'); A(f's_lshl_b32 s{sT0}, s{sT0}, 7'); A(f's_add_u32 s{sE0}, s{sE0}, s{sT0}')
    else:
        A(f's_lshl_b32 s{sT0}, s{sW}, 6'); A(f's_add_u32 s{sE0}, s{sE0}, s{sT0}')
    n = 0
    for tm in range(G.TM):
        A(f's_add_u32 s{sT0}, s{sE0}, {(32 * (tm // 2) + 4 * (tm % 2)) * 2048}')
        for c in range(G.TN // 2):
            d = 16 + 4 * n; n += 1
            G.pack(A, tm * G.TN + 2 * c, tm * G.TN + 2 * c + 1, d)
            A(f'buffer_store_dwordx4 {vr(d,4)}, v13, {srd(S_OUT)}, s{sT0} offen offset:{64*c}')

def gen_g3(A):
    G = G128
    A.label('L_task_g3')
    wait_cnt(A, S_DBG, N_AT, off=4 * DBG_CAT)
    A(f's_sub_u32 s{sT0}, s{sTK}, {T_G3}'); A(f's_lshr_b32 s{sP0}, s{sT0}, 2'); A(f's_and_b32 s{sP1}, s{sT0}, 3')
    copy_srd(A, sGA, S_WS); copy_srd(A, sGB, S_AWO)
    A(f's_mov_b32 s{sLDA}, 1024'); A(f's_mov_b32 s{sLDB}, 1024'); A(f's_mov_b32 s{sKIT}, 2')
    A(f's_lshl_b32 s{sAOFF}, s{sP0}, 17'); A(f's_add_u32 s{sAOFF}, s{sAOFF}, {WS_OA}'); A(f's_lshl_b32 s{sBOFF}, s{sP1}, 8')
    G.setup(A)
    G.mainloop(A, 'T')
    A(f's_lshl_b32 s{sE0}, s{sP0}, 18'); A(f's_lshl_b32 s{sT0}, s{sP1}, 8'); A(f's_add_u32 s{sE0}, s{sE0}, s{sT0}')
    out_epilogue(A, G)
    A('s_branch L_next')

def gen_g4(A):
    G = G32
    A.label('L_task_g4')
    A(f's_lshl_b32 s{sT3}, s{sP0}, 2'); A(f's_add_u32 s{sT3}, s{sT3}, {WS_CNT}')
    wait_cnt(A, S_WS, 8, off_sgpr=sT3)
    copy_srd(A, sGA, S_WS); copy_srd(A, sGB, S_WO)
    A(f's_mov_b32 s{sLDA}, 8192'); A(f's_mov_b32 s{sLDB}, 1024'); A(f's_mov_b32 s{sKIT}, 16')
    A(f's_lshl_b32 s{sAOFF}, s{sP0}, 18'); A(f's_add_u32 s{sAOFF}, s{sAOFF}, {WS_OX}'); A(f's_lshl_b32 s{sBOFF}, s{sP1}, 8')
    G.setup(A)
    G.mainloop(A, 'T')
    A(f's_lshl_b32 s{sE0}, s{sP0}, 16'); A(f's_lshl_b32 s{sT0}, s{sP1}, 8'); A(f's_add_u32 s{sE0}, s{sE0}, s{sT0}'); A(f's_add_u32 s{sE0}, s{sE0}, 1024')
    out_epilogue(A, G)
    A('s_branch L_next')

def gen_at(A):
    A.label('L_task_at')
    wait_cnt(A, S_DBG, N_G2, off=4 * DBG_CG2)
    A(f's_sub_u32 s{sT0}, s{sTK}, {T_AT}'); A(f's_lshr_b32 s{sP0}, s{sT0}, 3'); A(f's_and_b32 s{sP1}, s{sT0}, 7')
    A(f's_lshl_b32 s{sP1}, s{sP1}, 2'); A(f's_add_u32 s{sP1}, s{sP1}, s{sW}     ; head')
    A(f's_lshl_b32 s{sP0}, s{sP0}, 1')
    A(f's_mov_b32 s{sP2}, 2')
    vQ = 16; vK = 20; vV = 56; vS = 128; vO = 0
    vNEG = 15
    A('v_and_b32 v10, 63, v0'); A('v_lshlrev_b32 v11, 4, v10     ; lane*16')
    A('v_and_b32 v12, 31, v10'); A('v_lshrrev_b32 v13, 5, v10     ; q, hh')
    A('v_lshl_add_u32 v14, v13, 4, v12'); A('v_lshlrev_b32 v14, 4, v14')
    A('v_lshlrev_b32 v9, 3, v13'); A('v_sub_u32 v9, v12, v9')
    A(f'v_mov_b32 v{vNEG}, 0xff800000')
    A('v_lshlrev_b32 v8, 10, v12'); A('v_lshl_add_u32 v8, v13, 4, v8')
    A('v_cmp_eq_u32 vcc, 16, v12'); A('v_cmp_eq_u32 s[92:93], 20, v12'); A('s_or_b64 vcc, vcc, s[92:93]')
    A('v_mov_b32 v7, 0x3f803f80'); A('v_cndmask_b32 v7, 0, v7, vcc')
    for r in range(72): A(f'v_mov_b32 v{vV+r}, v7')
    A('s_mov_b32 s92, 0x0000ffff'); A('s_mov_b32 s93, 0x0000ffff')
    C = fbits(0.25 * math.log2(math.e))
    A(f's_mov_b32 s{sE3}, {C}')
    A.label('L_at_loop')
    A(f's_lshl_b32 s{sE0}, s{sP1}, 6'); A(f's_add_u32 s{sE0}, s{sE0}, s{sP0}'); A(f's_lshl_b32 s{sE0}, s{sE0}, 10')
    A(f's_add_u32 s{sT0}, s{sE0}, {WS_QA}')
    A(f'buffer_load_dwordx4 {vr(vQ,4)}, v11, {srd(S_WS)}, s{sT0} offen sc1')
    def skip_if_invalid(i, tag):
        if i == 8: return None
        l = A.newlabel(f'L_at{tag}')
        A(f's_cmp_lt_u32 s{sP0}, {8 - i}'); A(f's_cbranch_scc1 {l}')
        return l
    for i in range(9):
        l = skip_if_invalid(i, 'l')
        A(f's_add_u32 s{sT0}, s{sE0}, {WS_KA}'); A(f's_sub_u32 s{sT0}, s{sT0}, {(8 - i) * 1024}')
        A(f'buffer_load_dwordx4 {vr(vK+4*i,4)}, v11, {srd(S_WS)}, s{sT0} offen sc1')
        A(f's_add_u32 s{sT0}, s{sT0}, {WS_VAT - WS_KA}')
        A('s_mov_b64 exec, s[92:93]')
        A(f'buffer_load_dwordx4 {vr(vV+8*i,4)}, v14, {srd(S_WS)}, s{sT0} offen sc1')
        A(f'buffer_load_dwordx4 {vr(vV+8*i+4,4)}, v14, {srd(S_WS)}, s{sT0} offen offset:512 sc1')
        A('s_mov_b64 exec, -1')
        if l: A.label(l)
    A('s_waitcnt vmcnt(0)')
    def sreg(i, r): return (vS + 16 * i + r) if i < 8 else (vK + r)
    for i in range(9):
        l = skip_if_invalid(i, 's')
        if i < 8:
            A(f'v_mfma_f32_32x32x16_bf16 {vr(vS+16*i,16)}, {vr(vK+4*i,4)}, {vr(vQ,4)}, 0')
        else:
            A(f'v_mfma_f32_32x32x16_bf16 {vr(vK,16)}, {vr(vK+32,4)}, {vr(vQ,4)}, 0')
        if l:
            l2 = A.newlabel('L_atv')
            A(f's_branch {l2}')
            A.label(l)
            for r in range(16): A(f'v_mov_b32 v{sreg(i,r)}, v{vNEG}')
            A.label(l2)
    A('s_nop 7'); A('s_nop 7')
    for r in range(16):
        c = 16 * (r // 8) + r % 8
        A(f'v_cmp_gt_i32 vcc, {c}, v9')
        A(f'v_cndmask_b32 v{sreg(0,r)}, v{vNEG}, v{sreg(0,r)}, vcc')
        A(f'v_cndmask_b32 v{sreg(8,r)}, v{sreg(8,r)}, v{vNEG}, vcc')
    allr = [sreg(i, r) for i in range(9) for r in range(16)]
    A(f'v_max3_f32 v2, v{allr[0]}, v{allr[1]}, v{allr[2]}'); A(f'v_max3_f32 v3, v{allr[3]}, v{allr[4]}, v{allr[5]}')
    for k in range(6, 144, 4):
        A(f'v_max3_f32 v2, v2, v{allr[k]}, v{allr[k+1]}')
        if k + 3 < 144: A(f'v_max3_f32 v3, v3, v{allr[k+2]}, v{allr[k+3]}')
    A('v_max_f32 v2, v2, v3'); A('v_mov_b32 v3, v2'); A('v_permlane32_swap_b32 v2, v3'); A('v_max_f32 v2, v2, v3')
    A(f'v_mul_f32 v2, s{sE3}, v2')
    for r in range(16): A(f'v_accvgpr_write_b32 a{r}, 0')
    for i in range(9):
        l = skip_if_invalid(i, 'p')
        for r in range(16): A(f'v_fma_f32 v{sreg(i,r)}, v{sreg(i,r)}, s{sE3}, -v2')
        for r in range(16): A(f'v_exp_f32 v{sreg(i,r)}, v{sreg(i,r)}')
        b = sreg(i, 0)
        for r in range(8): A(f'v_cvt_pk_bf16_f32 v{b+r}, v{b+2*r}, v{b+2*r+1}')
        for u in range(2):
            A(f'v_mfma_f32_32x32x16_bf16 a[0:15], {vr(vV+8*i+4*u,4)}, {vr(b+4*u,4)}, a[0:15]')
        if l: A.label(l)
    A('s_nop 7'); A('s_nop 7')
    for r in range(9): A(f'v_accvgpr_read_b32 v{vS+r}, a{r}')
    A(f'v_rcp_f32 v2, v{vS+8}')
    for r in range(8): A(f'v_mul_f32 v{vS+r}, v{vS+r}, v2')
    for r in range(4): A(f'v_cvt_pk_bf16_f32 v{vS+16+r}, v{vS+2*r}, v{vS+2*r+1}')
    A(f's_lshl_b32 s{sT0}, s{sP0}, 15'); A(f's_lshl_b32 s{sT1}, s{sP1}, 5'); A(f's_add_u32 s{sT0}, s{sT0}, s{sT1}'); A(f's_add_u32 s{sT0}, s{sT0}, {WS_OA}')
    A(f'buffer_store_dwordx4 {vr(vS+16,4)}, v8, {srd(S_WS)}, s{sT0} offen sc1')
    A(f's_add_u32 s{sP0}, s{sP0}, 1'); A(f's_sub_u32 s{sP2}, s{sP2}, 1'); A(f's_cmp_lg_u32 s{sP2}, 0'); A('s_cbranch_scc1 L_at_loop')
    signal(A, S_DBG, off=4 * DBG_CAT)
    A('s_branch L_next')

def gen_bt(A):
    A.label('L_task_bt')
    wait_cnt(A, S_DBG, N_Q, off=4 * DBG_CQ)
    wait_cnt(A, S_DBG, 64, off=4 * DBG_KV)
    A(f's_lshr_b32 s{sT3}, s{sP0}, 2'); A(f's_lshl_b32 s{sT3}, s{sT3}, 2'); A(f's_add_u32 s{sT3}, s{sT3}, {4 * DBG_KV}')
    wait_cnt(A, S_DBG, 64, off_sgpr=sT3)
    A(f's_lshl_b32 s{sP1}, s{sP1}, 2'); A(f's_add_u32 s{sP1}, s{sP1}, s{sW}     ; head')
    vQ = 16; vKV = 48; vKM = 112; vVM = 128; vS = 144; vONE = 4
    lane_consts(A)
    A('v_lshlrev_b32 v13, 4, v10')
    A(f's_lshl_b32 s{sE0}, s{sP0}, 5'); A(f's_add_u32 s{sE0}, s{sE0}, s{sP1}     ; seg*32+h')
    A(f's_lshl_b32 s{sT0}, s{sE0}, 13'); A(f's_add_u32 s{sT0}, s{sT0}, {WS_QF}')
    for i in range(8):
        if i == 4: A(f's_add_u32 s{sT0}, s{sT0}, 4096')
        A(f'buffer_load_dwordx4 {vr(vQ+4*i,4)}, v13, {srd(S_WS)}, s{sT0} offen offset:{1024*(i%4)} sc1')
    A(f's_lshl_b32 s{sT0}, s{sE0}, 14'); A(f's_add_u32 s{sT0}, s{sT0}, {WS_KVF}')
    for i in range(16):
        if i and i % 4 == 0: A(f's_add_u32 s{sT0}, s{sT0}, 4096')
        A(f'buffer_load_dwordx4 {vr(vKV+4*i,4)}, v13, {srd(S_WS)}, s{sT0} offen offset:{1024*(i%4)} sc1')
    A(f's_lshl_b32 s{sT3}, s{sP1}, 2'); A(f's_add_u32 s{sT3}, s{sT3}, {4 * DBG_PROG}')
    A(f's_add_u32 s{sE1}, s{sP0}, 1')
    wait_cnt(A, S_DBG, f's{sE1}', off_sgpr=sT3)
    A('v_lshrrev_b32 v14, 2, v11'); A('v_and_b32 v15, 1, v11'); A('v_lshl_add_u32 v14, v14, 1, v15'); A('v_lshlrev_b32 v14, 8, v14'); A('v_lshl_add_u32 v14, v12, 4, v14')
    A(f's_lshl_b32 s{sT0}, s{sE0}, 11'); A(f's_add_u32 s{sT0}, s{sT0}, {WS_KM}')
    for w in range(4): A(f'buffer_load_dwordx4 {vr(vKM+4*w,4)}, v14, {srd(S_WS)}, s{sT0} offen offset:{64*w} sc1')
    A('v_lshrrev_b32 v14, 2, v11'); A('v_and_b32 v15, 3, v11'); A('v_lshl_add_u32 v14, v14, 3, v15   ; kappa0(n)')
    A('v_lshlrev_b32 v9, 3, v12'); A('v_sub_u32 v9, v14, v9      ; d = 8(n/4)+n%4-8g')
    A('v_lshlrev_b32 v8, 13, v14'); A('v_lshl_add_u32 v8, v12, 4, v8')
    A('v_lshlrev_b32 v14, 4, v14'); A('v_lshl_add_u32 v14, v12, 2, v14')
    A(f's_add_u32 s{sT0}, s{sT0}, {WS_VMT - WS_KM}')
    for w in range(4):
        for a in range(2):
            A(f'buffer_load_dword v{vVM+4*w+2*a}, v14, {srd(S_WS)}, s{sT0} offen offset:{512*w+64*a} sc1')
            A(f'v_mov_b32 v{vVM+4*w+2*a+1}, 0')
    for r in range(4): A(f'v_mov_b32 v{vONE+r}, 0x3f803f80')
    A('v_mov_b32 v15, 0xff800000')
    A('s_waitcnt vmcnt(0)')
    for qt in range(2):
        for kt in range(3):
            d = vS + 12 * qt + 4 * kt
            for w in range(4):
                a_ = vr(vKV + 16 * w + 4 * kt, 4) if kt < 2 else vr(vKM + 4 * w, 4)
                A(f'v_mfma_f32_16x16x32_bf16 {vr(d,4)}, {a_}, {vr(vQ+8*w+4*qt,4)}, {vr(d,4) if w else 0}')
    C = fbits(128 ** -0.5 * math.log2(math.e))
    A(f's_mov_b32 s{sE3}, {C}')
    vP = 168
    vO = 184
    for qt in range(2):
        b = vS + 12 * qt
        for kt in range(2):
            for r in range(4):
                c = 4 * kt + r - 4 * qt
                A(f'v_cmp_gt_i32 vcc, {c}, v9')
                A(f'v_cndmask_b32 v{b+4*kt+r}, v{b+4*kt+r}, v15, vcc')
        A(f'v_max3_f32 v2, v{b}, v{b+1}, v{b+2}'); A(f'v_max3_f32 v3, v{b+3}, v{b+4}, v{b+5}')
        A(f'v_max3_f32 v2, v2, v{b+6}, v{b+7}'); A(f'v_max3_f32 v3, v3, v{b+8}, v{b+9}'); A('v_max_f32 v2, v2, v3')
        A('v_mov_b32 v3, v2'); A('v_permlane16_swap_b32 v2, v3'); A('v_max_f32 v2, v2, v3')
        A('v_mov_b32 v3, v2'); A('v_permlane32_swap_b32 v2, v3'); A('v_max_f32 v2, v2, v3')
        A(f'v_mul_f32 v2, s{sE3}, v2')
        for r in range(10): A(f'v_fma_f32 v{b+r}, v{b+r}, s{sE3}, -v2')
        for r in range(10): A(f'v_exp_f32 v{b+r}, v{b+r}')
        p = vP + 8 * qt
        for r in range(5): A(f'v_cvt_pk_bf16_f32 v{p+r}, v{b+2*r}, v{b+2*r+1}')
        A(f'v_mov_b32 v{p+5}, 0')
        o = vO + 36 * qt
        A(f'v_mfma_f32_16x16x32_bf16 {vr(o+32,4)}, {vr(vONE,4)}, {vr(p,4)}, 0')
        for w in range(4):
            for a in range(2):
                d = o + 8 * w + 4 * a
                A(f'v_mfma_f32_16x16x32_bf16 {vr(d,4)}, {vr(vKV+16*w+8+4*a,4)}, {vr(p,4)}, 0')
        A(f'v_mfma_f32_16x16x16_bf16 {vr(o+32,4)}, {vr(vONE,2)}, {vr(p+4,2)}, {vr(o+32,4)}')
        for w in range(4):
            for a in range(2):
                d = o + 8 * w + 4 * a
                A(f'v_mfma_f32_16x16x16_bf16 {vr(d,4)}, {vr(vVM+4*w+2*a,2)}, {vr(p+4,2)}, {vr(d,4)}')
    A(f's_lshl_b32 s{sT0}, s{sP0}, 18'); A(f's_lshl_b32 s{sT1}, s{sP1}, 8'); A(f's_add_u32 s{sT0}, s{sT0}, s{sT1}'); A(f's_add_u32 s{sT0}, s{sT0}, {WS_OX}')
    for qt in range(2):
        o = vO + 36 * qt
        A(f'v_rcp_f32 v2, v{o+32}')
        for r in range(32): A(f'v_mul_f32 v{o+r}, v{o+r}, v2')
        for w in range(4):
            d = vQ + 16 * qt + 4 * w
            for r in range(4): A(f'v_cvt_pk_bf16_f32 v{d+r}, v{o+8*w+2*r}, v{o+8*w+2*r+1}')
            A(f'buffer_store_dwordx4 {vr(d,4)}, v8, {srd(S_WS)}, s{sT0} offen offset:{64*w} sc1')
        if qt == 0: A(f's_add_u32 s{sT0}, s{sT0}, {4*8192}')
    A(f's_lshl_b32 s{sT3}, s{sP0}, 2'); A(f's_add_u32 s{sT3}, s{sT3}, {WS_CNT}')
    signal(A, S_WS, off_expr_sgpr=sT3)
    A('s_branch L_next')

def gen_worker(A):
    A.label('L_next')
    A('s_barrier')
    l = A.newlabel('L_ntk')
    A(f's_cmp_lg_u32 s{sW}, 0'); A(f's_cbranch_scc1 {l}')
    A('v_mov_b32 v120, 1'); A(f'v_mov_b32 v121, {4 * DBG_QUEUE}'); A(f'v_mov_b32 v122, {LDS_TICK}')
    A('s_mov_b64 exec, 1')
    A(f'buffer_atomic_add v120, v121, {srd(S_DBG)}, 0 offen sc0')
    A('s_waitcnt vmcnt(0)')
    A('ds_write_b32 v122, v120')
    A('s_mov_b64 exec, -1')
    A('s_waitcnt lgkmcnt(0)')
    A.label(l)
    A('s_barrier')
    A(f'v_mov_b32 v122, {LDS_TICK}')
    A('ds_read_b32 v120, v122')
    A('s_waitcnt lgkmcnt(0)')
    A(f'v_readfirstlane_b32 s{sTK}, v120')
    A(f's_cmp_lt_u32 s{sTK}, {T_G2}'); A('s_cbranch_scc1 L_task_kv')
    A(f's_cmp_lt_u32 s{sTK}, {T_Q}'); A('s_cbranch_scc1 L_task_g2')
    A(f's_cmp_lt_u32 s{sTK}, {T_AT}'); A('s_cbranch_scc1 L_task_q')
    A(f's_cmp_lt_u32 s{sTK}, {T_G3}'); A('s_cbranch_scc1 L_task_at')
    A(f's_cmp_lt_u32 s{sTK}, {T_B}'); A('s_cbranch_scc1 L_task_g3')
    A(f's_cmp_ge_u32 s{sTK}, {T_END}'); A('s_cbranch_scc1 L_end')
    A(f's_sub_u32 s{sT0}, s{sTK}, {T_B}')
    A(f's_mul_hi_u32 s{sP0}, s{sT0}, {(1 << 32) // 12 + 1}')
    A(f's_mul_i32 s{sT1}, s{sP0}, 12'); A(f's_sub_u32 s{sP1}, s{sT0}, s{sT1}')
    A(f's_cmp_ge_u32 s{sP1}, 8'); A('s_cbranch_scc1 L_b_g4')
    A(f's_cmp_ge_u32 s{sP0}, 64'); A('s_cbranch_scc1 L_next')
    A('s_branch L_task_bt')
    A.label('L_b_g4')
    A(f's_cmp_eq_u32 s{sP0}, 0'); A('s_cbranch_scc1 L_next')
    A(f's_sub_u32 s{sP0}, s{sP0}, 1'); A(f's_sub_u32 s{sP1}, s{sP1}, 8')
    A('s_branch L_task_g4')
    gen_g1(A); gen_g2(A); gen_g3(A); gen_g4(A); gen_at(A); gen_bt(A)
```

```python
import sys
from asmlib import *
from common import *
import rec, workers
from rec import sW, sH, sMODE, sT0, sT1, LDS_MISC
OPT = sys.argv[1:]
FORCE_SLOW = 'slow' in OPT
A = Asm()
A('s_cmp_ge_u32 s2, 256'); A('s_cbranch_scc1 L_end')
A('s_load_dwordx16 s[72:87], s[0:1], 0')
A('s_load_dwordx8 s[88:95], s[0:1], 64')
A('s_load_dwordx2 s[96:97], s[0:1], 96')
A('s_waitcnt lgkmcnt(0)')
sizes = {S_AX: (72, 2097152), S_AWQKV: (74, 1572864), S_AWO: (76, 524288), S_BX: (78, 2097152), S_MEM0: (80, 8192),
         S_WQ: (82, 4194304), S_WK: (84, 4194304), S_WV: (86, 4194304), S_WO: (88, 4194304), S_OUT: (92, 4194304),
         S_DBG: (94, 256), S_WS: (96, WS_SIZE)}
for b, (src, sz) in sizes.items():
    A(f's_mov_b32 s{b}, s{src}'); A(f's_mov_b32 s{b+1}, s{src+1}'); A(f's_mov_b32 s{b+2}, {sz}'); A(f's_mov_b32 s{b+3}, 0x20000')
A('v_lshrrev_b32 v1, 6, v0'); A(f'v_readfirstlane_b32 s{sW}, v1')
A(f's_cmp_lg_u32 s{sW}, 0'); A('s_cbranch_scc1 L_role_wait')
A(f's_getreg_b32 s{sT0}, hwreg(HW_REG_XCC_ID)'); A(f's_and_b32 s{sT0}, s{sT0}, 15')
if FORCE_SLOW:
    A(f's_and_b32 s{sT1}, s2, 31'); A(f's_cmp_eq_u32 s{sT1}, 5'); A(f's_cselect_b32 s{sT0}, 0, 1')
A('s_mov_b64 exec, 1')
A('s_mov_b32 s72, 64')
A(f's_cmp_lg_u32 s{sT0}, 0'); A('s_cbranch_scc1 L_role_tot')
A('v_mov_b32 v4, 1'); A(f'v_mov_b32 v3, {4*DBG_TICK0}')
A(f'buffer_atomic_add v4, v3, {srd(S_DBG)}, 0 offen sc0')
A('s_waitcnt vmcnt(0)')
A('v_readfirstlane_b32 s72, v4')
A.label('L_role_tot')
A('v_mov_b32 v4, 1'); A(f'v_mov_b32 v3, {4*DBG_TOTAL}')
A(f'buffer_atomic_add v4, v3, {srd(S_DBG)}, 0 offen')
A('v_mov_b32 v3, 0')
A.label('L_role_poll')
A(f'buffer_load_dwordx2 v[4:5], v3, {srd(S_DBG)}, 0 offen sc1')
A('s_waitcnt vmcnt(0)')
A('v_readfirstlane_b32 s73, v4'); A('v_readfirstlane_b32 s74, v5')
A('s_cmp_ge_u32 s73, 32'); A('s_cbranch_scc1 L_role_fast')
A('s_cmp_ge_u32 s74, 256'); A('s_cbranch_scc1 L_role_slow0')
A('s_sleep 2')
A('s_branch L_role_poll')
A.label('L_role_slow0')
A(f'buffer_load_dword v4, v3, {srd(S_DBG)}, 0 offen sc1')
A('s_waitcnt vmcnt(0)')
A('v_readfirstlane_b32 s73, v4')
A('s_cmp_ge_u32 s73, 32'); A('s_cbranch_scc1 L_role_fast')
A('s_cmp_lt_u32 s72, 32'); A('s_cbranch_scc1 L_role_slowhead')
A('v_mov_b32 v4, 1'); A(f'v_mov_b32 v3, {4*DBG_FALLB}')
A(f'buffer_atomic_add v4, v3, {srd(S_DBG)}, 0 offen sc0')
A('s_waitcnt vmcnt(0)')
A('v_readfirstlane_b32 s72, v4')
A('s_add_u32 s72, s72, s73')
A.label('L_role_slowhead')
A('s_or_b32 s75, s72, 0x300')
A('s_cmp_lt_u32 s72, 32'); A('s_cselect_b32 s75, s75, 0')
A('s_branch L_role_pub')
A.label('L_role_fast')
A('s_or_b32 s75, s72, 0x100')
A('s_cmp_lt_u32 s72, 32'); A('s_cselect_b32 s75, s75, 0')
A.label('L_role_pub')
A('v_mov_b32 v4, s75'); A(f'v_mov_b32 v3, {LDS_MISC}')
A('ds_write_b32 v3, v4')
A('s_mov_b64 exec, -1')
A('s_waitcnt lgkmcnt(0)')
A.label('L_role_wait')
A('s_barrier')
A(f'v_mov_b32 v3, {LDS_MISC}')
A('ds_read_b32 v4, v3')
A('s_waitcnt lgkmcnt(0)')
A('v_readfirstlane_b32 s75, v4')
A('s_barrier')
A('s_bitcmp1_b32 s75, 8'); A('s_cbranch_scc0 L_next')
A(f's_and_b32 s{sH}, s75, 31'); A(f's_bfe_u32 s{sMODE}, s75, 0x10009')
rec.gen_setup(A)
rec.gen_init_exchange(A)
rec.gen_load_weights(A)
rec.gen_wait_init(A)
rec.gen_mem0(A)
rec.gen_setup2(A)
A(f's_cmp_lg_u32 s{sMODE}, 0'); A('s_cbranch_scc1 L_rec_slow')
rec.gen_steps(A, 'f', 64, kvwait=rec.kvwait)
A('s_branch L_next')
A.label('L_rec_slow')
rec.gen_steps(A, 's', 64, kvwait=rec.kvwait)
A('s_branch L_next')
workers.gen_worker(A)
A.label('L_end')
A('s_endpgm')
body = A.finalize()
hdr = open('concat_heads__sliding_block__memory_aug_recurrent_mem_tr__prompt.s.ref').read().split('; Override launch')[0]
print(f'''{hdr}; @launch grid=(256,1,1) block=(256,1,1) lds=163840
.amdgcn_target "amdgcn-amd-amdhsa--gfx950"
.text
.globl {KNAME}
.p2align 8
.type {KNAME},@function
{KNAME}:
{body}
.section .rodata,"a"
.p2align 6
.amdhsa_kernel {KNAME}
  .amdhsa_next_free_vgpr 512
  .amdhsa_next_free_sgpr 102
  .amdhsa_accum_offset 256
  .amdhsa_group_segment_fixed_size 0
  .amdhsa_kernarg_size 104
  .amdhsa_user_sgpr_count 2
  .amdhsa_user_sgpr_kernarg_segment_ptr 1
  .amdhsa_system_sgpr_workgroup_id_x 1
.end_amdhsa_kernel
''')
```

```python
from asmlib import *
from common import *

sW = 56
sGA = 60
sGB = 64
sLDA, sLDB, sAOFF, sBOFF, sKIT, sE0, sE1, sE2, sE3, sT0, sT1, sT2, sT3, sM0A, sM0B, sAINC, sBINC = range(68, 85)
sRET = 86
def vr(b, n): return f'v[{b}:{b+n-1}]'
def ar(b, n): return f'a[{b}:{b+n-1}]'

class Gemm:
    def __init__(self, BM, BN, WM, WN, name):
        self.BM, self.BN, self.WM, self.WN, self.name = BM, BN, WM, WN, name
        self.TM = BM // 16 // WM; self.TN = BN // 16 // WN
        assert BN == 128 and self.TM % 2 == 0 and self.TN % 2 == 0
        self.ASZ = BM * 128; self.BSZ = 64 * 256
        self.STG = self.ASZ + self.BSZ
        self.NS = 4
        self.NA = BM // 32
        self.NB = 4
        self.vDA0, self.vDA1, self.vDB = 2, 3, 4
        self.vRA0, self.vRA1 = 5, 6
        self.vRB = 8
        self.vAF = 16
        self.vBF = self.vAF + 2 * self.TM * 4
    def setup(self, A):
        BM, WM, WN, TM, TN = self.BM, self.WM, self.WN, self.TM, self.TN
        A('v_and_b32 v10, 63, v0')
        A('v_lshrrev_b32 v11, 3, v10'); A('v_and_b32 v12, 7, v10'); A('v_and_b32 v13, 3, v11')
        A('v_xor_b32 v12, v12, v13')
        A(f's_mul_i32 s{sT0}, s{sW}, {BM // 4}')
        A(f'v_add_u32 v11, s{sT0}, v11')
        A(f'v_mul_lo_u32 v11, v11, s{sLDA}')
        A(f'v_lshl_add_u32 v{self.vDA0}, v12, 4, v11')
        A(f'v_xor_b32 v{self.vDA1}, 64, v{self.vDA0}')
        if BM == 32:
            A(f's_and_b32 s{sT0}, s{sW}, 1'); A(f's_lshl_b32 s{sT0}, s{sT0}, 6')
            A(f'v_xor_b32 v{self.vDA0}, s{sT0}, v{self.vDA0}')
        A('v_lshrrev_b32 v11, 4, v10'); A('v_and_b32 v12, 15, v10'); A('v_lshlrev_b32 v13, 2, v11')
        A('v_xor_b32 v12, v12, v13')
        A(f's_lshl_b32 s{sT0}, s{sW}, 4')
        A(f'v_add_u32 v11, s{sT0}, v11')
        A(f'v_mul_lo_u32 v11, v11, s{sLDB}')
        A(f'v_lshl_add_u32 v{self.vDB}, v12, 4, v11')
        A(f's_lshl_b32 s{sAINC}, s{sLDA}, 3')
        A(f's_lshl_b32 s{sBINC}, s{sLDB}, 2')
        A(f's_mul_i32 s{sM0A}, s{sW}, {BM // 4 * 128}')
        A(f's_lshl_b32 s{sM0B}, s{sW}, 12'); A(f's_add_u32 s{sM0B}, s{sM0B}, {self.ASZ}')
        A('v_and_b32 v11, 15, v10'); A('v_lshrrev_b32 v12, 4, v10   ; g')
        A('v_lshrrev_b32 v13, 2, v11   ; m/4'); A('v_and_b32 v14, 3, v11   ; m%4')
        A('v_lshl_add_u32 v15, v13, 3, v14   ; row')
        if WM > 1:
            A(f's_lshr_b32 s{sT0}, s{sW}, 1'); A(f's_mul_i32 s{sT0}, s{sT0}, {BM // WM}')
            A(f'v_add_u32 v15, s{sT0}, v15')
        A('v_and_b32 v7, 1, v13'); A('v_lshl_add_u32 v7, v7, 2, v14')
        A('v_xor_b32 v7, v7, v12')
        A('v_lshlrev_b32 v7, 4, v7')
        A(f'v_lshl_add_u32 v{self.vRA0}, v15, 7, v7')
        A(f'v_xor_b32 v{self.vRA1}, 64, v{self.vRA0}')
        A('v_lshl_add_u32 v15, v12, 3, v13   ; row')
        wn = f's{sT0}'
        if WN == 2: A(f's_and_b32 s{sT0}, s{sW}, 1')
        else: A(f's_mov_b32 s{sT0}, s{sW}')
        A(f's_mul_i32 s{sT0}, s{sT0}, {TN // 2}')
        for c in range(TN // 2):
            A(f's_add_u32 s{sT1}, s{sT0}, {c}')
            A(f'v_xor_b32 v7, s{sT1}, v13')
            A('v_lshl_add_u32 v7, v7, 2, v14')
            A('v_lshlrev_b32 v7, 4, v7')
            A(f'v_lshl_add_u32 v{self.vRB + c}, v15, 8, v7')
            A(f'v_add_u32 v{self.vRB + c}, {self.ASZ}, v{self.vRB + c}')
    def dma(self, A, buf):
        base = buf * self.STG
        A(f's_mov_b32 s{sT2}, s{sAOFF}')
        for i in range(self.NA):
            A(f's_add_u32 m0, s{sM0A}, {base + 1024 * i}')
            v = self.vDA0 if (i % 2 == 0 or self.BM == 32) else self.vDA1
            A(f'buffer_load_dwordx4 v{v}, {srd(sGA)}, s{sT2} offen sc1 lds')
            if i + 1 < self.NA: A(f's_add_u32 s{sT2}, s{sT2}, s{sAINC}')
        A(f's_mov_b32 s{sT2}, s{sBOFF}')
        for i in range(self.NB):
            A(f's_add_u32 m0, s{sM0B}, {base + 1024 * i}')
            A(f'buffer_load_dwordx4 v{self.vDB}, {srd(sGB)}, s{sT2} offen lds')
            if i + 1 < self.NB: A(f's_add_u32 s{sT2}, s{sT2}, s{sBINC}')
        A(f's_add_u32 s{sAOFF}, s{sAOFF}, 128')
        A(f's_lshl_b32 s{sT2}, s{sLDB}, 6'); A(f's_add_u32 s{sBOFF}, s{sBOFF}, s{sT2}')
    def reads(self, A, buf, kk, fb):
        base = buf * self.STG
        for tm in range(self.TM):
            kt = tm % 2
            off = base + (4 * kt + 32 * (tm // 2)) * 128
            v = self.vRA0 if kk == 0 else self.vRA1
            d = self.vAF + (fb * self.TM + tm) * 4
            assert off < 65536 or True
            A(self.ds(f'ds_read_b128 {vr(d, 4)}', v, off))
        for tn in range(self.TN):
            c, a = tn // 2, tn % 2
            d = self.vBF + (fb * self.TN + tn) * 4
            for half in range(2):
                off = base + kk * 8192 + half * 1024 + 8 * a
                A(self.ds(f'ds_read_b64_tr_b16 {vr(d + 2 * half, 2)}', self.vRB + c, off))
    def ds(self, pre, v, off):
        if off >= 65536: return f'{pre}, v{v + self.SH} offset:{off - 65536}'
        return f'{pre}, v{v} offset:{off}'
    SH = 100
    def mainloop(self, A, orient, hook=None):
        TM, TN, NS = self.TM, self.TN, self.NS
        nd = self.NA + self.NB
        lab = A.newlabel(f'L_{self.name}{orient}')
        for v in [self.vRA0, self.vRA1] + [self.vRB + c for c in range(TN // 2)]:
            A(f'v_add_u32 v{v + self.SH}, 65536, v{v}')
        for r in range(TM * TN * 4): A(f'v_accvgpr_write_b32 a{r}, 0')
        A('s_barrier')
        for s in range(NS - 1): self.dma(A, s)
        if hook:
            A(f's_waitcnt vmcnt({(NS - 2) * nd})')
            hook()
            A('s_waitcnt vmcnt(0)')
        A.label(lab)
        nrd = TM + 2 * TN
        for s in range(NS):
            A(f's_waitcnt vmcnt({(NS - 2) * nd})')
            A('s_barrier')
            self.reads(A, s, 0, 0)
            self.dma(A, (s + NS - 1) % NS)
            self.reads(A, s, 1, 1)
            for kk in range(2):
                A(f's_waitcnt lgkmcnt({min(nrd, 15) if kk == 0 else 0})')
                for tm in range(TM):
                    for tn in range(TN):
                        acc = ar(4 * (tm * TN + tn), 4)
                        xa = vr(self.vAF + (kk * TM + tm) * 4, 4); wb = vr(self.vBF + (kk * TN + tn) * 4, 4)
                        if orient == 'T': A(f'v_mfma_f32_16x16x32_bf16 {acc}, {wb}, {xa}, {acc}')
                        else: A(f'v_mfma_f32_16x16x32_bf16 {acc}, {xa}, {wb}, {acc}')
        A(f's_sub_u32 s{sKIT}, s{sKIT}, 1')
        A(f's_cmp_lg_u32 s{sKIT}, 0')
        A(f's_cbranch_scc1 {lab}')
        A('s_waitcnt vmcnt(0)')
        A('s_nop 7')
    def pack(self, A, t0, t1, d):
        for i, t in enumerate((t0, t1)):
            for r in range(4): A(f'v_accvgpr_read_b32 v{120 + 4 * i + r}, a{4 * t + r}')
        for i in range(4): A(f'v_cvt_pk_bf16_f32 v{d + i}, v{120 + 2 * i}, v{121 + 2 * i}')
```

```python
from asmlib import *
from common import *
from gemm import *
import wsgemm as WS
import math, struct
def fbits(x): return struct.unpack('<I', struct.pack('<f', x))[0]

sTK, sP0, sP1, sP2 = 88, 89, 90, 91
LDS_TICK = 163840 - 64
G128 = Gemm(128, 128, 2, 2, 'g128')
G32 = Gemm(32, 128, 1, 4, 'g32')

NSET = 8
N_KV, N_Q, N_G2, N_SV, N_AT, N_G3 = 128, 64, 24, 16 * NSET, 256, 64
T_KV = 0; T_Q = T_KV + N_KV; T_G2 = T_Q + N_Q; T_SV = T_G2 + N_G2; T_AT = T_SV + N_SV; T_G3 = T_AT + N_AT; T_END = T_G3 + N_G3
KVQ_DONE = 0x100020
def divmod_const(A, src, d, q, r):
    A(f's_mul_hi_u32 s{q}, s{src}, {(1 << 32) // d + 1}')
    A(f's_mul_i32 s{r}, s{q}, {d}'); A(f's_sub_u32 s{r}, s{src}, s{r}')

TRACE = False
def trace(A, slot):
    if not TRACE: return
    A('s_memrealtime s[94:95]'); A('s_waitcnt lgkmcnt(0)')
    A(f's_lshl_b32 s96, s{sTK}, 4'); A(f's_add_u32 s96, s96, {110*MB + 4*slot}')
    A('v_mov_b32 v120, s94'); A('v_mov_b32 v121, s96')
    A(f'buffer_store_dword v120, v121, {srd(S_WS)}, 0 offen')

def copy_srd(A, dst, src):
    for i in range(4): A(f's_mov_b32 s{dst+i}, s{src+i}')

def signal(A, S, off_expr_sgpr=None, off=None):
    A('s_waitcnt vmcnt(0)')
    A('s_barrier')
    l = A.newlabel('L_sig')
    A(f's_cmp_lg_u32 s{sW}, 0'); A(f's_cbranch_scc1 {l}')
    A('v_mov_b32 v120, 1')
    A(f'v_mov_b32 v121, {off}' if off is not None else f'v_mov_b32 v121, s{off_expr_sgpr}')
    A('s_mov_b64 exec, 1')
    A(f'buffer_atomic_add v120, v121, {srd(S)}, 0 offen')
    A('s_mov_b64 exec, -1')
    A.label(l)

def wait_cnt(A, S, target, off=None, off_sgpr=None, sleep=8):
    l = A.newlabel('L_wt'); l2 = A.newlabel('L_wd')
    A(f'v_mov_b32 v121, {off}' if off is not None else f'v_mov_b32 v121, s{off_sgpr}')
    A.label(l)
    A(f'buffer_load_dword v120, v121, {srd(S)}, 0 offen sc1')
    A('s_waitcnt vmcnt(0)')
    A(f'v_readfirstlane_b32 s{sT0}, v120')
    A(f's_cmp_ge_u32 s{sT0}, {target}')
    A(f's_cbranch_scc1 {l2}')
    A(f's_sleep {sleep}')
    A(f's_branch {l}')
    A.label(l2)

def lane_consts(A):
    A('v_and_b32 v10, 63, v0'); A('v_and_b32 v11, 15, v10'); A('v_lshrrev_b32 v12, 4, v10')

def atomic_add(A, S, val, off_sgpr):
    A(f'v_mov_b32 v120, {val}'); A(f'v_mov_b32 v121, s{off_sgpr}')
    A('s_mov_b64 exec, 1')
    A(f'buffer_atomic_add v120, v121, {srd(S)}, 0 offen')
    A('s_mov_b64 exec, -1')

def gen_g1(A):
    A.label('L_task_kv')
    A(f's_lshr_b32 s{sP0}, s{sTK}, 5'); A(f's_and_b32 s{sP1}, s{sTK}, 15'); A(f's_bfe_u32 s{sP2}, s{sTK}, 0x10004')
    l = A.newlabel('L_nz')
    A(f's_cmp_lg_u32 s{sTK}, 0'); A(f's_cbranch_scc1 {l}')
    A('v_lshlrev_b32 v120, 3, v0'); A('v_mov_b32 v122, 0'); A('v_mov_b32 v123, 0'); A(f's_mov_b32 s{sT0}, {WS_CNT}')
    A(f'buffer_store_dwordx2 v[122:123], v120, {srd(S_WS)}, s{sT0} offen sc1')
    A.label(l)
    A(f's_cmp_eq_u32 s{sP2}, 0'); A('s_cbranch_scc1 L_g1_k')
    copy_srd(A, sGB, S_WV); A('s_branch L_g1_go')
    A.label('L_g1_k'); copy_srd(A, sGB, S_WK); A('s_branch L_g1_go')
    A.label('L_task_q')
    A(f's_sub_u32 s{sT0}, s{sTK}, {T_Q}'); A(f's_lshr_b32 s{sP0}, s{sT0}, 4'); A(f's_and_b32 s{sP1}, s{sT0}, 15'); A(f's_mov_b32 s{sP2}, 2')
    copy_srd(A, sGB, S_WQ)
    A.label('L_g1_go')
    copy_srd(A, sGA, S_BX)
    A(f's_mov_b32 s{sLDB}, 8192'); A(f's_mov_b32 s{sKIT}, 4')
    A(f's_lshl_b32 s{sBOFF}, s{sP1}, 9')
    WS.load_w(A)
    trace(A, 3)
    WS.setup_a(A)
    A(f's_lshl_b32 s{sAOFF}, s{sP0}, 19')
    A('v_lshlrev_b32 v1, 4, v10')
    A(f's_lshl_b32 s{sE0}, s{sP0}, 9'); A(f's_lshl_b32 s{sT0}, s{sP1}, 1'); A(f's_add_u32 s{sE0}, s{sE0}, s{sT0}'); A(f's_lshr_b32 s{sT0}, s{sW}, 1'); A(f's_add_u32 s{sE0}, s{sE0}, s{sT0}')
    A(f's_lshl_b32 s{sE0}, s{sE0}, 2'); A(f's_and_b32 s{sT0}, s{sW}, 1'); A(f's_lshl_b32 s{sT0}, s{sT0}, 1'); A(f's_add_u32 s{sE0}, s{sE0}, s{sT0}')
    A(f's_cmp_eq_u32 s{sP2}, 2')
    A(f's_cselect_b32 s{sE1}, 11, 12'); A(f's_cselect_b32 s{sE2}, {WS_QF}, {WS_KVF}'); A(f's_cselect_b32 s{sLDA}, 65536, 1')
    A(f's_lshl_b32 s{sE0}, s{sE0}, s{sE1}'); A(f's_add_u32 s{sE0}, s{sE0}, s{sE2}')
    A(f's_lshl_b32 s{sE3}, 1, s{sE1}    ; stride')
    def sig(A, d):
        A(f's_lshl_b32 s{sT3}, s{sP0}, 2'); A(f's_add_u32 s{sT3}, s{sT3}, s{sAINC}'); A(f's_lshl_b32 s{sT3}, s{sT3}, 2'); A(f's_add_u32 s{sT3}, s{sT3}, {4 * DBG_KV - 4}')
        atomic_add(A, S_DBG, f's{sLDA}', sT3)
    def epi_t(A, half):
        for i in range(2):
            for c in range(2):
                A(f's_mul_i32 s{sT0}, s{sE3}, {i * 128 + c}'); A(f's_add_u32 s{sT0}, s{sT0}, s{sE0}')
                for kt in range(2):
                    tm = 2 * i + kt
                    d = WS.vPKD + 4 * kt
                    WS.pack(A, tm * 4 + 2 * c, tm * 4 + 2 * c + 1, d)
                    A(f'buffer_store_dwordx4 {vr(d,4)}, v1, {srd(S_WS)}, s{sT0} offen offset:{1024*kt} sc1')
        A(f's_lshl_b32 s{sT0}, s{sE3}, 8'); A(f's_add_u32 s{sE0}, s{sE0}, s{sT0}')
    def epi_n(A, half):
        for i in range(2):
            for c in range(2):
                A(f's_add_u32 s{sT0}, s{sE0}, {(i * 128 + c) * 4096}')
                for a in range(2):
                    tn = 2 * c + a
                    d = WS.vPKD + 4 * a
                    WS.pack(A, (2 * i) * 4 + tn, (2 * i + 1) * 4 + tn, d)
                    A(f'buffer_store_dwordx4 {vr(d,4)}, v1, {srd(S_WS)}, s{sT0} offen offset:{2048 + 1024*a} sc1')
        A(f's_add_u32 s{sE0}, s{sE0}, {256 * 4096}')
    A(f's_cmp_eq_u32 s{sP2}, 1'); A('s_cbranch_scc1 L_g1_v')
    WS.run_blocks(A, 'T', epi_t, sig, 'g1t')
    A('s_branch L_next')
    A.label('L_g1_v')
    WS.run_blocks(A, 'N', epi_n, sig, 'g1n')
    A('s_branch L_next')

def gen_g2(A):
    A.label('L_task_g2')
    A(f's_sub_u32 s{sT0}, s{sTK}, {T_G2}')
    divmod_const(A, sT0, 6, sP0, sP1)
    copy_srd(A, sGA, S_AX); copy_srd(A, sGB, S_AWQKV)
    A(f's_mov_b32 s{sLDB}, 3072'); A(f's_mov_b32 s{sKIT}, 4')
    A(f's_lshl_b32 s{sBOFF}, s{sP1}, 9')
    WS.load_w(A)
    WS.setup_a(A)
    A(f's_lshl_b32 s{sAOFF}, s{sP0}, 19')
    lane_consts(A)
    A(f's_and_b32 s{sT0}, s{sP1}, 1'); A(f's_lshl_b32 s{sT0}, s{sT0}, 4'); A(f's_lshl_b32 s{sT1}, s{sW}, 2'); A(f's_add_u32 s{sT0}, s{sT0}, s{sT1}')
    A(f's_lshl_b32 s{sE0}, s{sT0}, 16'); A(f's_lshl_b32 s{sT0}, s{sP0}, 14'); A(f's_add_u32 s{sE0}, s{sE0}, s{sT0}')
    def sig(A, d):
        A(f's_mov_b32 s{sT3}, {4 * DBG_CG2}')
        atomic_add(A, S_DBG, 1, sT3)
    A(f's_cmp_ge_u32 s{sP1}, 4'); A('s_cbranch_scc1 L_g2_v')
    A('v_lshrrev_b32 v13, 3, v11'); A('v_lshlrev_b32 v13, 4, v13'); A('v_and_b32 v14, 3, v11'); A('v_add_u32 v13, v13, v14')
    A('v_bfe_u32 v14, v11, 2, 1')
    A(f's_cmp_ge_u32 s{sP1}, 2')
    A(f's_cselect_b32 s{sE1}, 2, 3'); A(f's_cselect_b32 s{sE2}, 128, 64'); A(f's_cselect_b32 s{sE3}, {WS_KA - WS_QA}, 0'); A(f's_add_u32 s{sE3}, s{sE3}, {WS_QA}')
    A(f'v_lshlrev_b32 v14, s{sE1}, v14'); A('v_add_u32 v13, v13, v14')
    A('v_and_b32 v14, 1, v12'); A('v_lshl_add_u32 v13, v14, 5, v13')
    A('v_lshlrev_b32 v13, 4, v13')
    A('v_lshrrev_b32 v14, 1, v12'); A('v_lshl_add_u32 v1, v14, 16, v13')
    A(f's_add_u32 s{sE0}, s{sE0}, s{sE3}')
    WS.setup_a(A)
    def epi_t(A, half):
        for i in range(2):
            for c in range(2):
                for kt in range(2):
                    tm = 2 * i + kt
                    d = WS.vPKD + 4 * kt
                    A(f's_add_u32 s{sT0}, s{sE0}, {i * 1024 + c * 131072}')
                    if kt: A(f's_add_u32 s{sT0}, s{sT0}, s{sE2}')
                    WS.pack(A, tm * 4 + 2 * c, tm * 4 + 2 * c + 1, d)
                    A(f'buffer_store_dwordx4 {vr(d,4)}, v1, {srd(S_WS)}, s{sT0} offen sc1')
        A(f's_add_u32 s{sE0}, s{sE0}, 2048')
    WS.run_blocks(A, 'T', epi_t, sig, 'g2t')
    A('s_branch L_next')
    A.label('L_g2_v')
    A('v_and_b32 v13, 7, v11')
    A('v_and_b32 v14, 1, v12'); A('v_lshl_add_u32 v13, v14, 4, v13')
    A('v_lshrrev_b32 v14, 1, v12'); A('v_lshl_add_u32 v13, v14, 5, v13')
    A('v_lshlrev_b32 v13, 4, v13')
    A('v_lshrrev_b32 v14, 3, v11'); A('v_lshl_add_u32 v1, v14, 16, v13')
    A(f's_add_u32 s{sE0}, s{sE0}, {WS_VAT}')
    WS.setup_a(A)
    def epi_n(A, half):
        for i in range(2):
            for c in range(2):
                A(f's_add_u32 s{sT0}, s{sE0}, {i * 1024 + c * 131072}')
                for a in range(2):
                    tn = 2 * c + a
                    d = WS.vPKD + 4 * a
                    WS.pack(A, (2 * i) * 4 + tn, (2 * i + 1) * 4 + tn, d)
                    A(f'buffer_store_dwordx4 {vr(d,4)}, v1, {srd(S_WS)}, s{sT0} offen offset:{128*a} sc1')
        A(f's_add_u32 s{sE0}, s{sE0}, 2048')
    WS.run_blocks(A, 'N', epi_n, sig, 'g2n')
    A('s_branch L_next')

def out_epilogue(A, G):
    lane_consts(A)
    A('v_lshrrev_b32 v13, 2, v11'); A('v_and_b32 v14, 3, v11'); A('v_lshl_add_u32 v13, v13, 3, v14')
    A('v_lshlrev_b32 v13, 11, v13'); A('v_lshl_add_u32 v13, v12, 4, v13')
    if G.WM == 2:
        A(f's_lshr_b32 s{sT0}, s{sW}, 1'); A(f's_lshl_b32 s{sT0}, s{sT0}, 17'); A(f's_add_u32 s{sE0}, s{sE0}, s{sT0}')
        A(f's_and_b32 s{sT0}, s{sW}, 1'); A(f's_lshl_b32 s{sT0}, s{sT0}, 7'); A(f's_add_u32 s{sE0}, s{sE0}, s{sT0}')
    else:
        A(f's_lshl_b32 s{sT0}, s{sW}, 6'); A(f's_add_u32 s{sE0}, s{sE0}, s{sT0}')
    n = 0
    for tm in range(G.TM):
        A(f's_add_u32 s{sT0}, s{sE0}, {(32 * (tm // 2) + 4 * (tm % 2)) * 2048}')
        for c in range(G.TN // 2):
            d = 16 + 4 * n; n += 1
            G.pack(A, tm * G.TN + 2 * c, tm * G.TN + 2 * c + 1, d)
            A(f'buffer_store_dwordx4 {vr(d,4)}, v13, {srd(S_OUT)}, s{sT0} offen offset:{64*c}')

def gen_g3(A):
    G = G128
    A.label('L_task_g3')
    A(f's_sub_u32 s{sT1}, s{sTK}, {T_G3}')
    A(f's_lshr_b32 s{sP0}, s{sT1}, 2'); A(f's_and_b32 s{sP1}, s{sT1}, 3')
    wait_cnt(A, S_DBG, N_AT, off=4 * DBG_CAT)
    copy_srd(A, sGA, S_WS); copy_srd(A, sGB, S_AWO)
    A(f's_mov_b32 s{sLDA}, 1024'); A(f's_mov_b32 s{sLDB}, 1024'); A(f's_mov_b32 s{sKIT}, 2')
    A(f's_lshl_b32 s{sAOFF}, s{sP0}, 17'); A(f's_add_u32 s{sAOFF}, s{sAOFF}, {WS_OA}'); A(f's_lshl_b32 s{sBOFF}, s{sP1}, 8')
    G.setup(A)
    G.mainloop(A, 'T')
    A(f's_lshl_b32 s{sE0}, s{sP0}, 18'); A(f's_lshl_b32 s{sT0}, s{sP1}, 8'); A(f's_add_u32 s{sE0}, s{sE0}, s{sT0}')
    out_epilogue(A, G)
    A('s_branch L_next')

def gen_at(A):
    A.label('L_task_at')
    A(f's_sub_u32 s{sT1}, s{sTK}, {T_AT}')
    A(f's_lshr_b32 s{sP0}, s{sT1}, 3'); A(f's_and_b32 s{sP1}, s{sT1}, 7')
    wait_cnt(A, S_DBG, N_G2 * 4, off=4 * DBG_CG2)
    A(f's_lshl_b32 s{sP1}, s{sP1}, 2'); A(f's_add_u32 s{sP1}, s{sP1}, s{sW}     ; head')
    A(f's_lshl_b32 s{sP0}, s{sP0}, 1')
    A(f's_mov_b32 s{sP2}, 2')
    vQ = 16; vK = 20; vV = 56; vS = 128; vO = 0
    vNEG = 15
    A('v_and_b32 v10, 63, v0'); A('v_lshlrev_b32 v11, 4, v10     ; lane*16')
    A('v_and_b32 v12, 31, v10'); A('v_lshrrev_b32 v13, 5, v10     ; q, hh')
    A('v_lshl_add_u32 v14, v13, 4, v12'); A('v_lshlrev_b32 v14, 4, v14')
    A('v_lshlrev_b32 v9, 3, v13'); A('v_sub_u32 v9, v12, v9')
    A(f'v_mov_b32 v{vNEG}, 0xff800000')
    A('v_lshlrev_b32 v8, 10, v12'); A('v_lshl_add_u32 v8, v13, 4, v8')
    A('v_cmp_eq_u32 vcc, 16, v12'); A('v_cmp_eq_u32 s[98:99], 20, v12'); A('s_or_b64 vcc, vcc, s[98:99]')
    A('v_mov_b32 v7, 0x3f803f80'); A('v_cndmask_b32 v7, 0, v7, vcc')
    for r in range(72): A(f'v_mov_b32 v{vV+r}, v7')
    A('s_mov_b32 s98, 0x0000ffff'); A('s_mov_b32 s99, 0x0000ffff')
    C = fbits(0.25 * math.log2(math.e))
    A(f's_mov_b32 s{sE3}, {C}')
    A.label('L_at_loop')
    A(f's_lshl_b32 s{sE0}, s{sP1}, 6'); A(f's_add_u32 s{sE0}, s{sE0}, s{sP0}'); A(f's_lshl_b32 s{sE0}, s{sE0}, 10')
    A(f's_add_u32 s{sT0}, s{sE0}, {WS_QA}')
    A(f'buffer_load_dwordx4 {vr(vQ,4)}, v11, {srd(S_WS)}, s{sT0} offen sc1')
    def skip_if_invalid(i, tag):
        if i == 8: return None
        l = A.newlabel(f'L_at{tag}')
        A(f's_cmp_lt_u32 s{sP0}, {8 - i}'); A(f's_cbranch_scc1 {l}')
        return l
    for i in range(9):
        l = skip_if_invalid(i, 'l')
        A(f's_add_u32 s{sT0}, s{sE0}, {WS_KA}'); A(f's_sub_u32 s{sT0}, s{sT0}, {(8 - i) * 1024}')
        A(f'buffer_load_dwordx4 {vr(vK+4*i,4)}, v11, {srd(S_WS)}, s{sT0} offen sc1')
        A(f's_add_u32 s{sT0}, s{sT0}, {WS_VAT - WS_KA}')
        A('s_mov_b64 exec, s[98:99]')
        A(f'buffer_load_dwordx4 {vr(vV+8*i,4)}, v14, {srd(S_WS)}, s{sT0} offen sc1')
        A(f'buffer_load_dwordx4 {vr(vV+8*i+4,4)}, v14, {srd(S_WS)}, s{sT0} offen offset:512 sc1')
        A('s_mov_b64 exec, -1')
        if l: A.label(l)
    A('s_waitcnt vmcnt(0)')
    def sreg(i, r): return (vS + 16 * i + r) if i < 8 else (vK + r)
    for i in range(9):
        l = skip_if_invalid(i, 's')
        if i < 8:
            A(f'v_mfma_f32_32x32x16_bf16 {vr(vS+16*i,16)}, {vr(vK+4*i,4)}, {vr(vQ,4)}, 0')
        else:
            A(f'v_mfma_f32_32x32x16_bf16 {vr(vK,16)}, {vr(vK+32,4)}, {vr(vQ,4)}, 0')
        if l:
            l2 = A.newlabel('L_atv')
            A(f's_branch {l2}')
            A.label(l)
            for r in range(16): A(f'v_mov_b32 v{sreg(i,r)}, v{vNEG}')
            A.label(l2)
    A('s_nop 7'); A('s_nop 7')
    for r in range(16):
        c = 16 * (r // 8) + r % 8
        A(f'v_cmp_gt_i32 vcc, {c}, v9')
        A(f'v_cndmask_b32 v{sreg(0,r)}, v{vNEG}, v{sreg(0,r)}, vcc')
        A(f'v_cndmask_b32 v{sreg(8,r)}, v{sreg(8,r)}, v{vNEG}, vcc')
    allr = [sreg(i, r) for i in range(9) for r in range(16)]
    A(f'v_max3_f32 v2, v{allr[0]}, v{allr[1]}, v{allr[2]}'); A(f'v_max3_f32 v3, v{allr[3]}, v{allr[4]}, v{allr[5]}')
    for k in range(6, 144, 4):
        A(f'v_max3_f32 v2, v2, v{allr[k]}, v{allr[k+1]}')
        if k + 3 < 144: A(f'v_max3_f32 v3, v3, v{allr[k+2]}, v{allr[k+3]}')
    A('v_max_f32 v2, v2, v3'); A('v_mov_b32 v3, v2'); A('v_permlane32_swap_b32 v2, v3'); A('v_max_f32 v2, v2, v3')
    A(f'v_mul_f32 v2, s{sE3}, v2')
    for r in range(16): A(f'v_accvgpr_write_b32 a{r}, 0')
    for i in range(9):
        l = skip_if_invalid(i, 'p')
        for r in range(16): A(f'v_fma_f32 v{sreg(i,r)}, v{sreg(i,r)}, s{sE3}, -v2')
        for r in range(16): A(f'v_exp_f32 v{sreg(i,r)}, v{sreg(i,r)}')
        b = sreg(i, 0)
        for r in range(8): A(f'v_cvt_pk_bf16_f32 v{b+r}, v{b+2*r}, v{b+2*r+1}')
        for u in range(2):
            A(f'v_mfma_f32_32x32x16_bf16 a[0:15], {vr(vV+8*i+4*u,4)}, {vr(b+4*u,4)}, a[0:15]')
        if l: A.label(l)
    A('s_nop 7'); A('s_nop 7')
    for r in range(9): A(f'v_accvgpr_read_b32 v{vS+r}, a{r}')
    A(f'v_rcp_f32 v2, v{vS+8}')
    for r in range(8): A(f'v_mul_f32 v{vS+r}, v{vS+r}, v2')
    for r in range(4): A(f'v_cvt_pk_bf16_f32 v{vS+16+r}, v{vS+2*r}, v{vS+2*r+1}')
    A(f's_lshl_b32 s{sT0}, s{sP0}, 15'); A(f's_lshl_b32 s{sT1}, s{sP1}, 5'); A(f's_add_u32 s{sT0}, s{sT0}, s{sT1}'); A(f's_add_u32 s{sT0}, s{sT0}, {WS_OA}')
    A(f'buffer_store_dwordx4 {vr(vS+16,4)}, v8, {srd(S_WS)}, s{sT0} offen sc1')
    A(f's_add_u32 s{sP0}, s{sP0}, 1'); A(f's_sub_u32 s{sP2}, s{sP2}, 1'); A(f's_cmp_lg_u32 s{sP2}, 0'); A('s_cbranch_scc1 L_at_loop')
    signal(A, S_DBG, off=4 * DBG_CAT)
    A('s_branch L_next')

def gen_sv(A):
    sSEG, sHG, sCB, sHD = sP0, sP1, sP2, 92
    A.label('L_task_sv')
    A(f's_sub_u32 s{sT0}, s{sTK}, {T_SV}'); A(f's_lshr_b32 s{sSEG}, s{sT0}, 4'); A(f's_bfe_u32 s{sHG}, s{sT0}, 0x30001'); A(f's_and_b32 s{sCB}, s{sT0}, 1')
    copy_srd(A, sGB, S_WO)
    A(f's_mov_b32 s{sLDB}, 1024')
    A(f's_lshl_b32 s{sBOFF}, s{sHG}, 19'); A(f's_lshl_b32 s{sT0}, s{sCB}, 9'); A(f's_add_u32 s{sBOFF}, s{sBOFF}, s{sT0}')
    WS.load_w(A)
    WS.setup_a(A)
    A(f's_lshl_b32 s{sHD}, s{sHG}, 2'); A(f's_add_u32 s{sHD}, s{sHD}, s{sW}     ; head')
    for i in range(16): wait_cnt(A, S_DBG, KVQ_DONE, off=4 * (DBG_KV + i))
    vQ = 136; vKV = 168; vKM = 232; vVM = 16; vS = 32; vP = 56; vO = 72; vONE = 248
    vL16, vKMA, vVMA, vD, vNEG, vOW, vPW, vRD = 108, 109, 110, 111, 112, 113, 117, 118
    lane_consts(A)
    A(f'v_lshlrev_b32 v{vL16}, 4, v10')
    A('v_lshrrev_b32 v14, 2, v11'); A('v_and_b32 v15, 1, v11'); A('v_lshl_add_u32 v14, v14, 1, v15'); A('v_lshlrev_b32 v14, 8, v14'); A(f'v_lshl_add_u32 v{vKMA}, v12, 4, v14')
    A('v_lshrrev_b32 v14, 2, v11'); A('v_and_b32 v15, 3, v11'); A('v_lshl_add_u32 v14, v14, 3, v15   ; kappa0(n)')
    A('v_lshlrev_b32 v9, 3, v12'); A(f'v_sub_u32 v{vD}, v14, v9')
    A('v_lshlrev_b32 v9, 4, v14'); A(f'v_lshl_add_u32 v{vVMA}, v12, 2, v9')
    A('v_lshlrev_b32 v13, 10, v14'); A(f's_lshl_b32 s{sT0}, s{sW}, 8'); A(f'v_add_u32 v13, s{sT0}, v13')
    for wp in range(4):
        A(f'v_add_u32 v9, {4 * wp}, v12'); A('v_xor_b32 v9, v9, v11'); A(f'v_lshl_add_u32 v{vOW + wp}, v9, 4, v13')
    A('v_lshlrev_b32 v13, 10, v14'); A(f'v_add_u32 v13, s{sT0}, v13'); A(f'v_lshl_add_u32 v{vPW}, v12, 5, v13')
    A(f'v_mov_b32 v{vNEG}, 0xff800000')
    for r in range(4): A(f'v_mov_b32 v{vONE+r}, 0x3f803f80')
    C = fbits(128 ** -0.5 * math.log2(math.e))
    A(f's_mov_b32 s{sE3}, {C}')
    def qkv_loads(segreg):
        A(f's_lshl_b32 s{sT1}, s{segreg}, 5'); A(f's_add_u32 s{sT1}, s{sT1}, s{sHD}')
        A(f's_lshl_b32 s{sT0}, s{sT1}, 13'); A(f's_add_u32 s{sT0}, s{sT0}, {WS_QF}')
        for i in range(8):
            if i == 4: A(f's_add_u32 s{sT0}, s{sT0}, 4096')
            A(f'buffer_load_dwordx4 {vr(vQ+4*i,4)}, v{vL16}, {srd(S_WS)}, s{sT0} offen offset:{1024*(i%4)} sc1')
        A(f's_lshl_b32 s{sT0}, s{sT1}, 14'); A(f's_add_u32 s{sT0}, s{sT0}, {WS_KVF}')
        for i in range(16):
            if i and i % 4 == 0: A(f's_add_u32 s{sT0}, s{sT0}, 4096')
            A(f'buffer_load_dwordx4 {vr(vKV+4*i,4)}, v{vL16}, {srd(S_WS)}, s{sT0} offen offset:{1024*(i%4)} sc1')
    qkv_loads(sSEG)
    A.label('L_sv_loop')
    A(f's_lshl_b32 s{sE0}, s{sSEG}, 5'); A(f's_add_u32 s{sE0}, s{sE0}, s{sHD}     ; seg*32+h')
    A('s_waitcnt vmcnt(0)')
    for qt in range(2):
        for kt in range(2):
            d = vS + 12 * qt + 4 * kt
            for w in range(4):
                A(f'v_mfma_f32_16x16x32_bf16 {vr(d,4)}, {vr(vKV + 16 * w + 4 * kt, 4)}, {vr(vQ+8*w+4*qt,4)}, {vr(d,4) if w else 0}')
    A(f's_lshl_b32 s{sT3}, s{sHD}, 2'); A(f's_add_u32 s{sT3}, s{sT3}, {4 * DBG_PROG}')
    A(f's_add_u32 s{sE1}, s{sSEG}, 1')
    wait_cnt(A, S_DBG, f's{sE1}', off_sgpr=sT3, sleep=2)
    A(f's_lshl_b32 s{sT0}, s{sE0}, 11'); A(f's_add_u32 s{sT0}, s{sT0}, {WS_KM}')
    for w in range(4): A(f'buffer_load_dwordx4 {vr(vKM+4*w,4)}, v{vKMA}, {srd(S_WS)}, s{sT0} offen offset:{64*w} sc1')
    A(f's_add_u32 s{sT0}, s{sT0}, {WS_VMT - WS_KM}')
    for w in range(4):
        for a in range(2):
            A(f'buffer_load_dword v{vVM+4*w+2*a}, v{vVMA}, {srd(S_WS)}, s{sT0} offen offset:{512*w+64*a} sc1')
            A(f'v_mov_b32 v{vVM+4*w+2*a+1}, 0')
    for qt in range(2):
        b = vS + 12 * qt
        for kt in range(2):
            for r in range(4):
                c = 4 * kt + r - 4 * qt
                A(f'v_cmp_gt_i32 vcc, {c}, v{vD}')
                A(f'v_cndmask_b32 v{b+4*kt+r}, v{b+4*kt+r}, v{vNEG}, vcc')
    A('s_waitcnt vmcnt(8)')
    for qt in range(2):
        d = vS + 12 * qt + 8
        for w in range(4):
            A(f'v_mfma_f32_16x16x32_bf16 {vr(d,4)}, {vr(vKM + 4 * w, 4)}, {vr(vQ+8*w+4*qt,4)}, {vr(d,4) if w else 0}')
    A('s_barrier')
    for qt in range(2):
        b = vS + 12 * qt
        A(f'v_max3_f32 v2, v{b}, v{b+1}, v{b+2}'); A(f'v_max3_f32 v3, v{b+3}, v{b+4}, v{b+5}')
        A(f'v_max3_f32 v2, v2, v{b+6}, v{b+7}'); A(f'v_max3_f32 v3, v3, v{b+8}, v{b+9}'); A('v_max_f32 v2, v2, v3')
        A('v_mov_b32 v3, v2'); A('v_permlane16_swap_b32 v2, v3'); A('v_max_f32 v2, v2, v3')
        A('v_mov_b32 v3, v2'); A('v_permlane32_swap_b32 v2, v3'); A('v_max_f32 v2, v2, v3')
        A(f'v_mul_f32 v2, s{sE3}, v2')
        for r in range(10): A(f'v_fma_f32 v{b+r}, v{b+r}, s{sE3}, -v2')
        for r in range(10): A(f'v_exp_f32 v{b+r}, v{b+r}')
        p = vP + 8 * qt
        for r in range(5): A(f'v_cvt_pk_bf16_f32 v{p+r}, v{b+2*r}, v{b+2*r+1}')
        A(f'v_mov_b32 v{p+5}, 0')
        o = vO
        if qt == 0: A('s_waitcnt vmcnt(0)')
        A(f'v_mfma_f32_16x16x32_bf16 {vr(o+32,4)}, {vr(vONE,4)}, {vr(p,4)}, 0')
        for w in range(4):
            for a in range(2):
                d = o + 8 * w + 4 * a
                A(f'v_mfma_f32_16x16x32_bf16 {vr(d,4)}, {vr(vKV+16*w+8+4*a,4)}, {vr(p,4)}, 0')
        A(f'v_mfma_f32_16x16x16_bf16 {vr(o+32,4)}, {vr(vONE,2)}, {vr(p+4,2)}, {vr(o+32,4)}')
        for w in range(4):
            for a in range(2):
                d = o + 8 * w + 4 * a
                A(f'v_mfma_f32_16x16x16_bf16 {vr(d,4)}, {vr(vVM+4*w+2*a,2)}, {vr(p+4,2)}, {vr(d,4)}')
        A(f'v_rcp_f32 v2, v{o+32}')
        for r in range(32): A(f'v_mul_f32 v{o+r}, v{o+r}, v2')
        for w in range(4):
            d = o + 8 * w
            for r in range(4): A(f'v_cvt_pk_bf16_f32 v{d+r}, v{o+8*w+2*r}, v{o+8*w+2*r+1}')
            A(f'ds_write_b128 v{vOW+w}, {vr(d,4)} offset:{4096*qt}')
    A(f's_add_u32 s93, s{sSEG}, {NSET}'); A('s_min_u32 s93, s93, 63')
    qkv_loads(93)
    A('s_waitcnt lgkmcnt(0)')
    A('s_barrier')
    WS.compute(A, 0, 'T', TM=2)
    A(f's_lshl_b32 s{sE2}, s{sSEG}, 1'); A(f's_add_u32 s{sE2}, s{sE2}, s{sCB}      ; seg*2+cb')
    A(f's_lshl_b32 s{sE1}, s{sE2}, 18'); A(f's_add_u32 s{sE1}, s{sE1}, {WS_PART}')
    A(f's_lshl_b32 s{sT0}, s{sHG}, 15'); A(f's_add_u32 s{sT0}, s{sT0}, s{sE1}')
    for tm in range(2):
        if tm: A(f's_add_u32 s{sT0}, s{sT0}, 4096')
        for tn in range(4):
            A(f'buffer_store_dwordx4 {vr(WS.vACC + 4 * (tm * 4 + tn), 4)}, v{vPW}, {srd(S_WS)}, s{sT0} offen offset:{128 * (tn // 2) + 16 * (tn % 2)} sc1')
    A(f's_lshl_b32 s{sT3}, s{sE2}, 2'); A(f's_add_u32 s{sT3}, s{sT3}, {WS_CNT}')
    signal(A, S_WS, off_expr_sgpr=sT3)
    wait_cnt(A, S_WS, 8, off_sgpr=sT3, sleep=1)
    A(f's_lshl_b32 s{sT0}, s{sHD}, 10'); A(f's_add_u32 s{sT0}, s{sT0}, s{sE1}')
    for i in range(8):
        A(f'buffer_load_dwordx4 {vr(vO + 4 * i, 4)}, v{vL16}, {srd(S_WS)}, s{sT0} offen sc1')
        if i < 7: A(f's_add_u32 s{sT0}, s{sT0}, 32768')
    A('s_waitcnt vmcnt(0)')
    for st in (16, 8, 4):
        for r in range(st): A(f'v_add_f32 v{vO+r}, v{vO+r}, v{vO+st+r}')
    A(f'v_cvt_pk_bf16_f32 v{vO+4}, v{vO}, v{vO+1}'); A(f'v_cvt_pk_bf16_f32 v{vO+5}, v{vO+2}, v{vO+3}')
    A(f'v_lshrrev_b32 v{vRD}, 1, v{vL16}')
    A(f's_lshl_b32 s{sT0}, s{sE0}, 11'); A(f's_lshl_b32 s{sT1}, s{sCB}, 9'); A(f's_add_u32 s{sT0}, s{sT0}, s{sT1}'); A(f's_add_u32 s{sT0}, s{sT0}, 1024')
    A(f'buffer_store_dwordx2 {vr(vO+4,2)}, v{vRD}, {srd(S_OUT)}, s{sT0} offen')
    if TRACE:
        A('s_memrealtime s[94:95]'); A('s_waitcnt lgkmcnt(0)')
        A(f's_lshl_b32 s96, s{sE2}, 3'); A(f's_add_u32 s96, s96, s{sHG}'); A('s_lshl_b32 s96, s96, 2'); A(f's_add_u32 s96, s96, {111*MB}')
        A('v_mov_b32 v120, s94'); A('v_mov_b32 v121, s96')
        A(f'buffer_store_dword v120, v121, {srd(S_WS)}, 0 offen')
    A(f's_add_u32 s{sSEG}, s{sSEG}, {NSET}')
    A(f's_cmp_lt_u32 s{sSEG}, 64'); A('s_cbranch_scc1 L_sv_loop')
    A('s_branch L_next')

def gen_worker(A):
    A.label('L_worker')
    A(f's_mov_b32 s{sTK}, 4000')
    A.label('L_next')
    A('s_barrier')
    trace(A, 2)
    l = A.newlabel('L_ntk')
    A(f's_cmp_lg_u32 s{sW}, 0'); A(f's_cbranch_scc1 {l}')
    A('v_mov_b32 v120, 1'); A(f'v_mov_b32 v121, {4 * DBG_QUEUE}'); A(f'v_mov_b32 v122, {LDS_TICK}')
    A('s_mov_b64 exec, 1')
    A(f'buffer_atomic_add v120, v121, {srd(S_DBG)}, 0 offen sc0')
    A('s_waitcnt vmcnt(0)')
    A('ds_write_b32 v122, v120')
    A('s_mov_b64 exec, -1')
    A('s_waitcnt lgkmcnt(0)')
    A.label(l)
    A('s_barrier')
    A(f'v_mov_b32 v122, {LDS_TICK}')
    A('ds_read_b32 v120, v122')
    A('s_waitcnt lgkmcnt(0)')
    A(f'v_readfirstlane_b32 s{sTK}, v120')
    trace(A, 0)
    A(f's_cmp_lt_u32 s{sTK}, {T_Q}'); A('s_cbranch_scc1 L_task_kv')
    A(f's_cmp_lt_u32 s{sTK}, {T_G2}'); A('s_cbranch_scc1 L_task_q')
    A(f's_cmp_lt_u32 s{sTK}, {T_SV}'); A('s_cbranch_scc1 L_task_g2')
    A(f's_cmp_lt_u32 s{sTK}, {T_AT}'); A('s_cbranch_scc1 L_task_sv')
    A(f's_cmp_lt_u32 s{sTK}, {T_G3}'); A('s_cbranch_scc1 L_task_at')
    A(f's_cmp_lt_u32 s{sTK}, {T_END}'); A('s_cbranch_scc1 L_task_g3')
    A('s_branch L_end')
    gen_g1(A); gen_g2(A); gen_g3(A); gen_at(A); gen_sv(A)
```

```python
from asmlib import *
from common import *
from gemm import sW, sGA, sGB, sLDA, sLDB, sAOFF, sBOFF, sKIT, sE0, sE1, sE2, sE3, sT0, sT1, sT2, sT3, sM0A, sM0B, sAINC, sBINC, vr, ar

vWD0, vWD1, vWT0, vWT1 = 2, 3, 4, 5
vAD, vADT = 6, 7
vAR = 128
vAF = 16
vACC = 48
vPKD = 112

def wreg(tn, ks): return 4 * (tn * 16 + ks)

def load_w(A):
    A('v_and_b32 v10, 63, v0')
    A('v_lshrrev_b32 v11, 5, v10'); A('v_and_b32 v12, 31, v10')
    A(f's_lshl_b32 s{sT0}, s{sW}, 4')
    A(f'v_add_u32 v13, s{sT0}, v11'); A(f'v_mul_lo_u32 v13, v13, s{sLDB}')
    A('v_lshlrev_b32 v14, 2, v11'); A('v_xor_b32 v14, v14, v12')
    A(f'v_lshl_add_u32 v{vWD0}, v14, 4, v13')
    A(f'v_xor_b32 v{vWD1}, 128, v{vWD0}')
    A(f's_lshl_b32 s{sBINC}, s{sLDB}, 1')
    A(f's_lshl_b32 s{sM0B}, s{sW}, 13')
    A('v_and_b32 v11, 15, v10'); A('v_lshrrev_b32 v12, 4, v10'); A('v_lshrrev_b32 v13, 2, v11'); A('v_and_b32 v14, 3, v11')
    A('v_lshl_add_u32 v15, v12, 3, v13')
    for c in range(2):
        A(f's_lshl_b32 s{sT0}, s{sW}, 1'); A(f's_add_u32 s{sT0}, s{sT0}, {c}')
        A(f'v_xor_b32 v9, s{sT0}, v13'); A('v_lshl_add_u32 v9, v9, 2, v14'); A('v_lshlrev_b32 v9, 4, v9')
        A(f'v_lshl_add_u32 v{vWT0 + c}, v15, 9, v9')
    A(f'v_add_u32 v{vAR}, 65536, v{vWT0}'); A(f'v_add_u32 v{vAR+1}, 65536, v{vWT1}')
    A('s_barrier')
    def dma(ch):
        base = (ch % 4) * 32768
        A(f's_mov_b32 s{sT2}, s{sBOFF}')
        for i in range(8):
            A(f's_add_u32 m0, s{sM0B}, {base + 1024 * i}')
            A(f'buffer_load_dwordx4 v{vWD0 if i % 2 == 0 else vWD1}, {srd(sGB)}, s{sT2} offen lds')
            if i < 7: A(f's_add_u32 s{sT2}, s{sT2}, s{sBINC}')
        A(f's_lshl_b32 s{sT2}, s{sLDB}, 6'); A(f's_add_u32 s{sBOFF}, s{sBOFF}, s{sT2}')
    for ch in range(3): dma(ch)
    for ch in range(8):
        pend = min(7, ch + 2) - ch
        A(f's_waitcnt vmcnt({8 * pend})')
        A('s_barrier')
        if ch + 3 < 8: dma(ch + 3)
        base = (ch % 4) * 32768
        for kk in range(2):
            for tn in range(4):
                c, a = tn // 2, tn % 2
                for half in range(2):
                    off = base + kk * 16384 + half * 2048 + 8 * a
                    v = vWT0 + c
                    if off >= 65536: v = vAR + c; off -= 65536
                    d = wreg(tn, 2 * ch + kk) + 2 * half
                    A(f'ds_read_b64_tr_b16 a[{d}:{d+1}], v{v} offset:{off}')
        A('s_waitcnt lgkmcnt(0)')
    A('s_barrier')

def setup_a(A):
    A('v_and_b32 v10, 63, v0')
    A(f's_lshr_b32 s{sT0}, s{sW}, 1'); A(f's_lshl_b32 s{sT0}, s{sT0}, 15'); A(f's_and_b32 s{sT1}, s{sW}, 1'); A(f's_lshl_b32 s{sT1}, s{sT1}, 12')
    A(f's_add_u32 s{sM0A}, s{sT0}, s{sT1}')
    A(f'v_lshlrev_b32 v{vAD}, 4, v10'); A(f'v_add_u32 v{vAD}, s{sM0A}, v{vAD}')
    A('v_and_b32 v11, 15, v10'); A('v_lshrrev_b32 v12, 4, v10'); A('v_lshrrev_b32 v13, 2, v11'); A('v_and_b32 v14, 3, v11')
    A('v_lshl_add_u32 v15, v13, 3, v14'); A('v_lshlrev_b32 v15, 10, v15')
    for k in range(4):
        A(f'v_add_u32 v9, {4 * k}, v12'); A('v_xor_b32 v9, v9, v11')
        A(f'v_lshl_add_u32 v{vAR + k}, v9, 4, v15')
        A(f'v_add_u32 v{vAR + 4 + k}, 65536, v{vAR + k}')

def a_dma_list(buf):
    out = []
    for i in range(16):
        roff = (8 * (i >> 2) + (i & 3)) * 1024
        g = [f'v_xor_b32 v{vADT}, {i << 4}, v{vAD}',
             f's_add_u32 m0, s{sM0A}, {buf * 65536 + roff}',
             f's_add_u32 s{sT2}, s{sAOFF}, {roff}',
             f'buffer_load_dwordx4 v{vADT}, {srd(sGA)}, s{sT2} offen sc1 lds']
        out.append(g)
    return out

def compute(A, buf, orient, TM=4, bg=None):
    bg = list(bg or [])
    def rd(ks, fs):
        for tm in range(TM):
            off = (32 * (tm // 2) + 4 * (tm % 2)) * 1024 + (ks >> 2) * 256
            A(f'ds_read_b128 {vr(vAF + 16 * fs + 4 * tm, 4)}, v{vAR + 4 * buf + (ks & 3)} offset:{off}')
    rd(0, 0)
    for ks in range(16):
        fs = ks % 2
        if ks + 1 < 16: rd(ks + 1, 1 - fs)
        A(f's_waitcnt lgkmcnt({TM if ks + 1 < 16 else 0})')
        n = 0
        for tm in range(TM):
            for tn in range(4):
                acc = vr(vACC + 4 * (tm * 4 + tn), 4)
                xa = vr(vAF + 16 * fs + 4 * tm, 4); wb = ar(wreg(tn, ks), 4)
                c = acc if ks else '0'
                if orient == 'T': A(f'v_mfma_f32_16x16x32_bf16 {acc}, {wb}, {xa}, {c}')
                else: A(f'v_mfma_f32_16x16x32_bf16 {acc}, {xa}, {wb}, {c}')
                n += 1
                if n == 4 and bg:
                    for i_ in bg.pop(0): A(i_)
    for g in bg:
        for i_ in g: A(i_)

def pack(A, t0, t1, d):
    b0 = vACC + 4 * t0; b1 = vACC + 4 * t1
    A(f'v_cvt_pk_bf16_f32 v{d}, v{b0}, v{b0+1}'); A(f'v_cvt_pk_bf16_f32 v{d+1}, v{b0+2}, v{b0+3}')
    A(f'v_cvt_pk_bf16_f32 v{d+2}, v{b1}, v{b1+1}'); A(f'v_cvt_pk_bf16_f32 v{d+3}, v{b1+2}, v{b1+3}')

def run_blocks(A, orient, epilogue, sig, name):
    lab = A.newlabel(f'L_ws{name}')
    for g in a_dma_list(0):
        for i_ in g: A(i_)
    A(f's_add_u32 s{sAOFF}, s{sAOFF}, 65536')
    A(f's_mov_b32 s{sAINC}, 0')
    A('s_waitcnt vmcnt(0)')
    A.label(lab)
    for half in range(2):
        A('s_waitcnt vmcnt(8)')
        A('s_barrier')
        if half == 1:
            l = A.newlabel('L_wsg')
            A(f's_cmp_eq_u32 s{sAINC}, 0'); A(f's_cbranch_scc1 {l}')
            A(f's_cmp_lg_u32 s{sW}, 0'); A(f's_cbranch_scc1 {l}')
            sig(A, -1)
            A('s_waitcnt vmcnt(8)' if False else 's_nop 0')
            A.label(l)
        compute(A, half, orient, bg=a_dma_list(1 - half))
        A(f's_add_u32 s{sAOFF}, s{sAOFF}, 65536')
        epilogue(A, half)
    A(f's_add_u32 s{sAINC}, s{sAINC}, 1')
    A(f's_cmp_lt_u32 s{sAINC}, s{sKIT}')
    A(f's_cbranch_scc1 {lab}')
    A('s_waitcnt vmcnt(0)')
    A('s_barrier')
    l = A.newlabel('L_wsg')
    A(f's_cmp_lg_u32 s{sW}, 0'); A(f's_cbranch_scc1 {l}')
    sig(A, -1)
    A.label(l)
```

```python
import sys
from asmlib import *
from common import *
import rec, workers
from rec import sW, sH, sMODE, sT0, sT1, LDS_MISC
OPT = sys.argv[1:]
FORCE_SLOW = 'slow' in OPT
A = Asm()
workers.TRACE = 'trace' in OPT
TR = workers.TRACE
def htrace(slot):
    if not TR: return
    A('s_memrealtime s[94:95]'); A('s_waitcnt lgkmcnt(0)')
    A(f's_lshl_b32 s96, s{sH}, 4'); A(f's_add_u32 s96, s96, {109*MB + 4*slot}')
    A('v_mov_b32 v120, s94'); A('v_mov_b32 v121, s96')
    A(f'buffer_store_dword v120, v121, {srd(S_WS)}, 0 offen')
A('s_cmp_ge_u32 s2, 256'); A('s_cbranch_scc1 L_end')
A('s_load_dwordx16 s[72:87], s[0:1], 0')
A('s_load_dwordx8 s[88:95], s[0:1], 64')
A('s_load_dwordx2 s[96:97], s[0:1], 96')
A('s_waitcnt lgkmcnt(0)')
sizes = {S_AX: (72, 2097152), S_AWQKV: (74, 1572864), S_AWO: (76, 524288), S_BX: (78, 2097152), S_MEM0: (80, 8192),
         S_WQ: (82, 4194304), S_WK: (84, 4194304), S_WV: (86, 4194304), S_WO: (88, 4194304), S_OUT: (92, 4194304),
         S_DBG: (94, 256), S_WS: (96, WS_SIZE)}
for b, (src, sz) in sizes.items():
    A(f's_mov_b32 s{b}, s{src}'); A(f's_mov_b32 s{b+1}, s{src+1}'); A(f's_mov_b32 s{b+2}, {sz}'); A(f's_mov_b32 s{b+3}, 0x20000')
A('v_lshrrev_b32 v1, 6, v0'); A(f'v_readfirstlane_b32 s{sW}, v1')
A(f's_cmp_lg_u32 s{sW}, 0'); A('s_cbranch_scc1 L_role_wait')
A(f's_getreg_b32 s{sT0}, hwreg(HW_REG_XCC_ID)'); A(f's_and_b32 s{sT0}, s{sT0}, 15')
if FORCE_SLOW:
    A(f's_and_b32 s{sT1}, s2, 31'); A(f's_cmp_eq_u32 s{sT1}, 5'); A(f's_cselect_b32 s{sT0}, 0, 1')
A('s_mov_b64 exec, 1')
A('s_mov_b32 s72, 64')
A(f's_cmp_lg_u32 s{sT0}, 0'); A('s_cbranch_scc1 L_role_tot')
A('v_mov_b32 v4, 1'); A(f'v_mov_b32 v3, {4*DBG_TICK0}')
A(f'buffer_atomic_add v4, v3, {srd(S_DBG)}, 0 offen sc0')
A('s_waitcnt vmcnt(0)')
A('v_readfirstlane_b32 s72, v4')
A.label('L_role_tot')
A('v_mov_b32 v4, 1'); A(f'v_mov_b32 v3, {4*DBG_TOTAL}')
A(f'buffer_atomic_add v4, v3, {srd(S_DBG)}, 0 offen')
A('v_mov_b32 v3, 0')
A.label('L_role_poll')
A(f'buffer_load_dwordx2 v[4:5], v3, {srd(S_DBG)}, 0 offen sc1')
A('s_waitcnt vmcnt(0)')
A('v_readfirstlane_b32 s73, v4'); A('v_readfirstlane_b32 s74, v5')
A('s_cmp_ge_u32 s73, 32'); A('s_cbranch_scc1 L_role_fast')
A('s_cmp_ge_u32 s74, 256'); A('s_cbranch_scc1 L_role_slow0')
A('s_sleep 2')
A('s_branch L_role_poll')
A.label('L_role_slow0')
A(f'buffer_load_dword v4, v3, {srd(S_DBG)}, 0 offen sc1')
A('s_waitcnt vmcnt(0)')
A('v_readfirstlane_b32 s73, v4')
A('s_cmp_ge_u32 s73, 32'); A('s_cbranch_scc1 L_role_fast')
A('s_cmp_lt_u32 s72, 32'); A('s_cbranch_scc1 L_role_slowhead')
A('v_mov_b32 v4, 1'); A(f'v_mov_b32 v3, {4*DBG_FALLB}')
A(f'buffer_atomic_add v4, v3, {srd(S_DBG)}, 0 offen sc0')
A('s_waitcnt vmcnt(0)')
A('v_readfirstlane_b32 s72, v4')
A('s_add_u32 s72, s72, s73')
A.label('L_role_slowhead')
A('s_or_b32 s75, s72, 0x300')
A('s_cmp_lt_u32 s72, 32'); A('s_cselect_b32 s75, s75, 0')
A('s_branch L_role_pub')
A.label('L_role_fast')
A('s_or_b32 s75, s72, 0x100')
A('s_cmp_lt_u32 s72, 32'); A('s_cselect_b32 s75, s75, 0')
A.label('L_role_pub')
A('v_mov_b32 v4, s75'); A(f'v_mov_b32 v3, {LDS_MISC}')
A('ds_write_b32 v3, v4')
A('s_mov_b64 exec, -1')
A('s_waitcnt lgkmcnt(0)')
A.label('L_role_wait')
A('s_barrier')
A(f'v_mov_b32 v3, {LDS_MISC}')
A('ds_read_b32 v4, v3')
A('s_waitcnt lgkmcnt(0)')
A('v_readfirstlane_b32 s75, v4')
A('s_barrier')
A('s_bitcmp1_b32 s75, 8'); A('s_cbranch_scc0 L_worker')
A(f's_and_b32 s{sH}, s75, 31'); A(f's_bfe_u32 s{sMODE}, s75, 0x10009')
htrace(0)
rec.gen_setup(A)
rec.gen_init_exchange(A)
rec.gen_load_weights(A)
htrace(1)
rec.gen_wait_init(A)
rec.gen_mem0(A)
rec.gen_setup2(A)
A(f's_cmp_lg_u32 s{sMODE}, 0'); A('s_cbranch_scc1 L_rec_slow')
rec.gen_steps(A, 'f', 64, kvwait=rec.kvwait, prof=72 if 'prof' in OPT else None)
htrace(2)
A('s_branch L_worker')
A.label('L_rec_slow')
rec.gen_steps(A, 's', 64, kvwait=rec.kvwait)
A('s_branch L_worker')
workers.gen_worker(A)
A.label('L_end')
A('s_endpgm')
body = A.finalize()
hdr = open('concat_heads__sliding_block__memory_aug_recurrent_mem_tr__prompt.s.ref').read().split('; Override launch')[0]
print(f'''{hdr}; @launch grid=(256,1,1) block=(256,1,1) lds=163840
.amdgcn_target "amdgcn-amd-amdhsa--gfx950"
.text
.globl {KNAME}
.p2align 8
.type {KNAME},@function
{KNAME}:
{body}
.section .rodata,"a"
.p2align 6
.amdhsa_kernel {KNAME}
  .amdhsa_next_free_vgpr 512
  .amdhsa_next_free_sgpr 102
  .amdhsa_accum_offset 256
  .amdhsa_group_segment_fixed_size 0
  .amdhsa_kernarg_size 104
  .amdhsa_user_sgpr_count 2
  .amdhsa_user_sgpr_kernarg_segment_ptr 1
  .amdhsa_system_sgpr_workgroup_id_x 1
.end_amdhsa_kernel
''')
```

```python
from asmlib import *
from common import *
import math

sW, sH, sSTEP, sPSL, sMCUR, sMNXT, sT0, sT1, sT2, sKXO, sVXO, sKMO, sMODE, sT3 = range(56, 70)
sEX = 70
vIDX = 1; vID = 2; vSEL = 4
vL16H, vHOME, vMP, vPST, vPLD, vMPUB, vKX, vVX, vKM, vVM, vSW, vSR, vOW = range(8, 21)
vNEG1 = 21
vFR = 24
vQK = 56
vVA = 72
vSTG = 80
vKXR = 104
vVXR = 112
vTMP = 120
vT2 = 22
vSR2T = 119
vSR2 = 0
LDS_MEM = 131072
LDS_SX = LDS_MEM + 8192
LDS_O = LDS_SX + 6144
LDS_KV = LDS_O + 2048
LDS_MISC = LDS_SX
NSTG = 3
assert LDS_KV + 16384 == 163840
vPB = vFR
sFO = 90

def vr(b, n): return f'v[{b}:{b+n-1}]'

def operand_order():
    ops = []
    for i in range(2):
        for m, a in (('k', 0), ('q', 0), ('k', 1), ('q', 1), ('v', 0), ('v', 1)): ops.append((m, a, i))
    for a in range(2):
        for i in range(2, 8):
            ops.append(('k', a, i)); ops.append(('q', a, i))
    for i in range(2, 8):
        ops.append(('v', 0, i)); ops.append(('v', 1, i))
    for a in range(8):
        for ks in range(2):
            ops.append(('o', a, ks))
    return ops
OPS = operand_order()
HOMED = [3, 7, 11] + [15, 19, 23, 27, 31, 35] + [36, 38] + [48 + i for i in (1, 4, 7, 10, 13)]
assert len(HOMED) == 16
LOC = {}
_r = 0
for i, o in enumerate(OPS):
    if i in HOMED:
        LOC[o] = ('lds', HOMED.index(i))
    else:
        LOC[o] = ('a', 8 * _r) if _r < 32 else ('v', 128 + 8 * (_r - 32))
        _r += 1
assert _r == 48

class Cnt:
    def __init__(self, A, name, maxv): self.A = A; self.name = name; self.maxv = maxv; self.q = []
    def issue(self, tag=None): self.q.append(tag)
    def wait(self, tag):
        if tag not in self.q: return
        idx = len(self.q) - 1 - self.q[::-1].index(tag)
        n = len(self.q) - 1 - idx
        n = min(n, self.maxv)
        self.A(f's_waitcnt {self.name}({n})')
        self.q = self.q[len(self.q) - n:] if n else []
    def all(self):
        self.A(f's_waitcnt {self.name}(0)'); self.q = []

def gen_setup(A):
    A('s_mov_b32 s4, 0x33333333'); A('s_mov_b32 s5, 0x33333333'); A('s_mov_b32 s6, 0xcccccccc'); A('s_mov_b32 s7, 0xcccccccc')
    A('v_and_b32 v120, 63, v0            ; lane')
    A('v_and_b32 v121, 15, v120          ; n = lane%16')
    A('v_lshrrev_b32 v122, 4, v120       ; g = lane/16')
    A(f'v_mov_b32 v{vNEG1}, -1')
    A('v_and_b32 v123, 2, v121')
    A('v_cmp_eq_u32 vcc, 0, v123')
    A(f'v_mov_b32 v124, 0xeeeeeeee')
    A(f'v_mov_b32 v125, 0x44444444')
    A(f'v_cndmask_b32 v{vIDX}, v124, v125, vcc')
    A('v_lshrrev_b32 v123, 2, v121')
    A('v_and_b32 v124, 3, v121           ; e')
    A('v_and_b32 v125, 1, v124')
    A('v_lshlrev_b32 v125, 4, v125       ; shift 0/16')
    A('v_mov_b32 v126, 0x3f80')
    A('v_lshlrev_b32 v126, v125, v126')
    A('v_cmp_eq_u32 vcc, v123, v122')
    A('v_cndmask_b32 v126, 0, v126, vcc')
    A('v_cmp_gt_u32 vcc, 2, v124')
    A(f'v_cndmask_b32 v{vID}, 0, v126, vcc')
    A(f'v_cndmask_b32 v{vID+1}, v126, 0, vcc')
    A('v_and_b32 v125, 1, v121')
    A('v_lshlrev_b32 v125, 4, v125')
    A('v_mov_b32 v126, 0x3f80')
    A('v_lshlrev_b32 v126, v125, v126')
    A('v_lshrrev_b32 v123, 1, v121       ; m/2 (0..7)')
    for r in range(4):
        A(f'v_cmp_eq_u32 vcc, {r}, v123')
        A(f'v_cndmask_b32 v{vSEL+r}, 0, v126, vcc')
    A(f'v_lshlrev_b32 v123, 4, v120      ; lane*16')
    A(f'v_add_u32 v{vL16H}, {LDS_MEM}, v123')
    A(f's_lshl_b32 s{sT0}, s{sW}, 15')
    A(f'v_add_u32 v{vHOME}, s{sT0}, v123')
    A(f's_lshl_b32 s{sT0}, s{sW}, 11')
    A(f'v_add_u32 v{vMP}, s{sT0}, v{vL16H}')
    A('v_lshrrev_b32 v123, 2, v121       ; q')
    A('v_and_b32 v124, 3, v121           ; e')
    A(f's_lshl_b32 s{sT0}, s{sW}, 16'); A(f's_lshl_b32 s{sT1}, s{sH}, 8'); A(f's_add_u32 s{sT0}, s{sT0}, s{sT1}')
    A('v_lshlrev_b32 v125, 13, v123'); A('v_lshlrev_b32 v126, 6, v122'); A('v_lshlrev_b32 v127, 4, v124')
    A(f'v_add3_u32 v{vPST}, v125, v126, v127'); A(f'v_add_u32 v{vPST}, s{sT0}, v{vPST}')
    A(f's_lshl_b32 s{sT0}, s{sH}, 13'); A(f's_lshl_b32 s{sT1}, s{sW}, 6'); A(f's_add_u32 s{sT0}, s{sT0}, s{sT1}')
    A('v_lshlrev_b32 v125, 10, v123'); A('v_lshlrev_b32 v126, 8, v122')
    A(f'v_add3_u32 v{vPLD}, v125, v126, v127'); A(f'v_add_u32 v{vPLD}, s{sT0}, v{vPLD}')
    A(f's_lshl_b32 s{sT0}, s{sH}, 8'); A(f's_lshl_b32 s{sT1}, s{sW}, 6'); A(f's_add_u32 s{sT0}, s{sT0}, s{sT1}')
    A('v_lshlrev_b32 v125, 5, v122'); A('v_lshlrev_b32 v126, 2, v121')
    A(f'v_add3_u32 v{vMPUB}, v125, v126, s{sT0}')
    A('v_lshlrev_b32 v126, 4, v120')
    A(f's_lshl_b32 s{sT0}, s{sH}, 14'); A(f's_lshl_b32 s{sT1}, s{sW}, 12'); A(f's_add_u32 s{sT0}, s{sT0}, s{sT1}')
    A(f'v_add_u32 v{vKX}, s{sT0}, v126')
    A(f's_add_u32 s{sT1}, s{sT1}, {LDS_KV}')
    A(f'v_add_u32 v{vVX}, s{sT1}, v126')
    A('v_lshlrev_b32 v125, 3, v123'); A('v_add_u32 v125, v125, v124   ; 8(m/4)+m%4')
    A('v_lshlrev_b32 v127, 4, v125'); A('v_lshlrev_b32 v126, 2, v122')
    A(f's_lshl_b32 s{sT0}, s{sH}, 11'); A(f's_lshl_b32 s{sT1}, s{sW}, 9'); A(f's_add_u32 s{sT0}, s{sT0}, s{sT1}')
    A(f'v_add3_u32 v{vVM}, v127, v126, s{sT0}')
    A('v_and_b32 v125, 1, v121'); A('v_lshl_add_u32 v125, v123, 1, v125   ; t')
    A('v_lshlrev_b32 v127, 8, v125'); A('v_lshlrev_b32 v126, 4, v122')
    A(f's_lshl_b32 s{sT0}, s{sH}, 11'); A(f's_lshl_b32 s{sT1}, s{sW}, 6'); A(f's_add_u32 s{sT0}, s{sT0}, s{sT1}')
    A(f'v_add3_u32 v{vKM}, v127, v126, s{sT0}')
    A('v_lshrrev_b32 v126, 1, v122'); A('v_lshlrev_b32 v126, 8, v126    ; (g/2)*256')
    A('v_and_b32 v127, 1, v122'); A('v_lshlrev_b32 v127, 5, v127     ; half*32')
    A('v_and_b32 v125, 1, v121'); A('v_lshlrev_b32 v125, 4, v125'); A('v_lshl_add_u32 v125, v123, 6, v125   ; (n/4)*64 + (n&1)*16')
    A(f'v_add3_u32 v{vOW}, v125, v126, v127')
    A(f's_lshl_b32 s{sT0}, s{sW}, 9'); A(f's_add_u32 s{sT0}, s{sT0}, {LDS_O}')
    A(f'v_add_u32 v{vOW}, s{sT0}, v{vOW}')
    A('v_lshrrev_b32 v125, 2, v120'); A('v_and_b32 v126, 1, v120'); A('v_lshl_add_u32 v125, v125, 1, v126')
    A('v_mul_u32_u24 v125, 48, v125')
    A(f's_mul_i32 s{sT0}, s{sW}, 1536'); A(f's_add_u32 s{sT0}, s{sT0}, {LDS_SX}')
    A(f'v_add_u32 v{vSW}, s{sT0}, v125')
    A('v_and_b32 v126, 2, v121')
    A('v_cmp_eq_u32 vcc, 0, v126')
    A(f'v_mov_b32 v126, {LDS_SX}'); A(f'v_mov_b32 v127, {LDS_SX + 16}')
    A('v_cndmask_b32 v126, v126, v127, vcc')
    A(f'v_add_u32 v{vSR}, v125, v126')
    A(f'v_mov_b32 v126, {LDS_SX + 32}'); A(f'v_mov_b32 v127, {LDS_SX + 36}')
    A('v_cndmask_b32 v126, v126, v127, vcc')
    A(f'v_add_u32 v{vSR2T}, v125, v126')

def gen_load_weights(A):
    A('v_and_b32 v120, 63, v0'); A('v_and_b32 v121, 15, v120'); A('v_lshrrev_b32 v122, 4, v120')
    vD = 24
    vDO = 28
    vTQ = 32
    vTO = 33
    vTT = 40
    vW2 = 36
    vDT = 72
    for i in range(4):
        A(f'v_xor_b32 v123, {i << 2}, v121')
        A('v_lshlrev_b32 v123, 4, v123')
        A(f'v_add_u32 v124, {4 * i}, v122')
        A('v_lshlrev_b32 v124, 13, v124')
        A(f's_lshl_b32 s{sT0}, s{sW}, 17'); A(f's_lshl_b32 s{sT1}, s{sH}, 8'); A(f's_add_u32 s{sT0}, s{sT0}, s{sT1}')
        A(f'v_add3_u32 v{vD+i}, v123, v124, s{sT0}')
        A(f'v_lshrrev_b32 v{vW2+i}, 6, v123'); A(f'v_lshlrev_b32 v{vW2+i}, 1, v{vW2+i}')
    for i in range(4):
        sw = (i & 1) | ((i >> 1) << 3)
        A(f'v_xor_b32 v123, {sw}, v121')
        A('v_lshrrev_b32 v125, 3, v123       ; u')
        A('v_and_b32 v123, 7, v123')
        A('v_lshlrev_b32 v123, 4, v123')
        A('v_lshl_add_u32 v123, v125, 8, v123')
        A(f'v_add_u32 v124, {4 * i}, v122')
        A('v_lshlrev_b32 v124, 10, v124')
        A(f's_lshl_b32 s{sT0}, s{sW}, 14'); A(f's_lshl_b32 s{sT1}, s{sH}, 17'); A(f's_add_u32 s{sT0}, s{sT0}, s{sT1}')
        A(f'v_add3_u32 v{vDO+i}, v123, v124, s{sT0}')
    A('v_lshrrev_b32 v123, 2, v121    ; r'); A('v_and_b32 v124, 3, v121   ; q')
    A('v_lshrrev_b32 v125, 1, v122'); A('v_lshlrev_b32 v125, 4, v125'); A('v_and_b32 v126, 1, v122'); A('v_lshlrev_b32 v126, 1, v126')
    A('v_lshlrev_b32 v127, 2, v123    ; 4r = 8(r/2)+4(r%2)')
    A('v_add3_u32 v125, v125, v126, v127   ; row')
    A(f's_lshl_b32 s{sT0}, s{sW}, 2')
    A(f'v_add_u32 v126, s{sT0}, v124      ; chunk = 4w+q')
    A('v_xor_b32 v126, v126, v127         ; ^ (r<<2)')
    A('v_lshlrev_b32 v126, 4, v126')
    A(f'v_lshl_add_u32 v{vTQ}, v125, 8, v126')
    A(f'v_add_u32 v{vTQ}, {LDS_MEM}, v{vTQ}')
    A('v_and_b32 v126, 1, v122    ; g%2'); A('v_lshrrev_b32 v127, 1, v123   ; r/2')
    A('v_lshrrev_b32 v125, 1, v122'); A('v_lshlrev_b32 v125, 4, v125')
    A('v_lshl_add_u32 v125, v126, 2, v125'); A('v_lshl_add_u32 v125, v127, 3, v125')
    A('v_and_b32 v34, 1, v123'); A('v_add_u32 v125, v125, v34     ; row')
    A(f's_and_b32 s{sT0}, s{sW}, 1'); A(f's_lshl_b32 s{sT0}, s{sT0}, 3')
    A(f'v_lshlrev_b32 v34, 1, v124'); A(f'v_add_u32 v34, s{sT0}, v34    ; 8u+2q')
    A('v_lshl_add_u32 v126, v127, 3, v126   ; swz')
    A('v_xor_b32 v34, v34, v126')
    A('v_lshlrev_b32 v34, 4, v34')
    A(f'v_lshl_add_u32 v{vTO}, v125, 8, v34')
    A(f'v_add_u32 v{vTO}, {LDS_MEM}, v{vTO}')
    A(f'v_xor_b32 v{vTO+1}, 16, v{vTO}')
    chunks = [(m, ks) for m in 'qkv' for ks in range(8)] + [('o', c) for c in range(8)]
    def dma(ci):
        m, x = chunks[ci]
        buf = LDS_MEM + (ci % 2) * 16384
        for i in range(4):
            A(f's_lshl_b32 s{sT0}, s{sW}, 12')
            A(f's_add_u32 m0, s{sT0}, {buf + 1024 * i}')
            if m != 'o':
                S = {'q': S_WQ, 'k': S_WK, 'v': S_WV}[m]
                A(f's_mov_b32 s{sT1}, {x * 64 * 8192}')
                A(f'buffer_load_dwordx4 v{vD+i}, {srd(S)}, s{sT1} offen lds')
            else:
                ks, ah, wp = x >> 2, (x >> 1) & 1, x & 1
                A(f's_mov_b32 s{sT1}, {ks * 65536 + wp * 512 + ah * 128}')
                A(f'buffer_load_dwordx4 v{vDO+i}, {srd(S_WO)}, s{sT1} offen lds')
    def dest(o, tmpi):
        k, b = LOC[o]
        if k == 'lds': return 'v', vTT + 8 * tmpi
        return k, b
    dma(0); dma(1)
    for ci, (m, x) in enumerate(chunks):
        boff = (ci % 2) * 16384
        A('s_waitcnt vmcnt(4)' if ci + 1 < len(chunks) else 's_waitcnt vmcnt(0)')
        A('s_barrier')
        skip = None
        homed = []
        if m != 'o':
            lend = A.newlabel('L_wv')
            for wv in range(4):
                lnext = A.newlabel('L_wn')
                if wv < 3:
                    A(f's_cmp_lg_u32 s{sW}, {wv}'); A(f's_cbranch_scc1 {lnext}')
                hm = []
                for a in range(2):
                    o = (m, a, (x - 2 * wv) & 7)
                    k, b = dest(o, a)
                    if LOC[o][0] == 'lds': hm.append((o, b))
                    for p in range(4):
                        A(f'ds_read_b64_tr_b16 {k}[{b+2*p}:{b+2*p+1}], v{vTQ} offset:{boff + (p >> 1) * 8192 + (p & 1) * 256 + 8 * a}')
                if hm: A('s_waitcnt lgkmcnt(0)')
                for o, b in hm:
                    slot = LOC[o][1]
                    A(f'ds_write_b128 v{vHOME}, {vr(b, 4)} offset:{slot * 2048}')
                    A(f'ds_write_b128 v{vHOME}, {vr(b + 4, 4)} offset:{slot * 2048 + 1024}')
                if wv < 3:
                    A(f's_branch {lend}')
                    A.label(lnext)
            A.label(lend)
        else:
            ks, ah, wp = x >> 2, (x >> 1) & 1, x & 1
            skip = A.newlabel('L_wskip')
            A(f's_lshr_b32 s{sT0}, s{sW}, 1'); A(f's_cmp_lg_u32 s{sT0}, {wp}'); A(f's_cbranch_scc1 {skip}')
            for ap in range(4):
                o = ('o', 4 * ah + ap, ks)
                k, b = dest(o, ap)
                if LOC[o][0] == 'lds': homed.append((o, b))
                for p in range(4):
                    A(f'ds_read_b64_tr_b16 {k}[{b+2*p}:{b+2*p+1}], v{vTO + (ap >> 1)} offset:{boff + (p >> 1) * 8192 + (p & 1) * 512 + 8 * (ap & 1)}')
        A('s_waitcnt lgkmcnt(0)')
        for o, b in homed:
            slot = LOC[o][1]
            A(f'ds_write_b128 v{vHOME}, {vr(b, 4)} offset:{slot * 2048}')
            A(f'ds_write_b128 v{vHOME}, {vr(b + 4, 4)} offset:{slot * 2048 + 1024}')
        if skip: A.label(skip)
        A('s_barrier')
        if ci + 2 < len(chunks): dma(ci + 2)
    A('s_waitcnt lgkmcnt(0)')

def st_mode(A, ins):
    return ins

def gen_stores(A, lst, tag):
    l1 = A.newlabel('L_sslow'); l2 = A.newlabel('L_sdone')
    A(f's_cmp_lg_u32 s{sMODE}, 0'); A(f's_cbranch_scc1 {l1}')
    for s in lst: A(s)
    A(f's_branch {l2}')
    A.label(l1)
    for s in lst:
        A(s + ' sc1' if s.startswith('buffer_store') else s)
    A.label(l2)

def gen_init_exchange(A):
    for r in range(4): A(f'v_mov_b32 v{vTMP+r}, -1')
    lst = []
    for sl in range(1):
        for i in range(2):
            lst.append(f's_mov_b32 s{sT0}, {WS_PX + sl * 262144 + i * 4096}')
            lst.append(f'buffer_store_dwordx4 {vr(vTMP,4)}, v{vPLD}, {srd(S_WS)}, s{sT0} offen')
    lst.append('s_mov_b64 exec, 0xf000f')
    for sl in range(4):
        lst.append(f's_mov_b32 s{sT0}, {WS_MX + sl * 8192}')
        lst.append(f'buffer_store_dword v{vNEG1}, v{vMPUB}, {srd(S_WS)}, s{sT0} offen')
        lst.append(f'buffer_store_dword v{vNEG1}, v{vMPUB}, {srd(S_WS)}, s{sT0} offen offset:16')
    lst.append('s_mov_b64 exec, -1')
    gen_stores(A, lst, 'init')
    A('s_waitcnt vmcnt(0)')
    A('s_barrier')
    l = A.newlabel('L_noarr')
    A(f's_cmp_lg_u32 s{sW}, 0'); A(f's_cbranch_scc1 {l}')
    A(f'v_mov_b32 v{vTMP}, 1'); A(f'v_mov_b32 v{vTMP+1}, {4 * DBG_RINIT}')
    A('s_mov_b64 exec, 1')
    A(f'buffer_atomic_add v{vTMP}, v{vTMP+1}, {srd(S_DBG)}, 0 offen')
    A('s_mov_b64 exec, -1')
    A.label(l)

def gen_wait_init(A):
    l = A.newlabel('L_winit')
    A(f'v_mov_b32 v{vTMP+1}, {4 * DBG_RINIT}')
    A.label(l)
    A(f'buffer_load_dword v{vTMP}, v{vTMP+1}, {srd(S_DBG)}, 0 offen sc1')
    A('s_waitcnt vmcnt(0)')
    A(f'v_cmp_gt_u32 vcc, 32, v{vTMP}')
    A(f's_cbranch_vccnz {l}')

def gen_mem0(A):
    A('v_and_b32 v120, 63, v0'); A('v_and_b32 v121, 15, v120'); A('v_lshrrev_b32 v122, 4, v120')
    A('v_lshrrev_b32 v123, 2, v121'); A('v_and_b32 v124, 1, v121'); A('v_lshl_add_u32 v123, v123, 1, v124'); A('v_lshlrev_b32 v123, 10, v123')
    A('v_and_b32 v124, 2, v121'); A('v_lshlrev_b32 v124, 3, v124'); A('v_lshlrev_b32 v125, 5, v122')
    A('v_add3_u32 v123, v123, v124, v125')
    A(f's_lshl_b32 s{sT0}, s{sW}, 8')
    A(f'buffer_load_dwordx4 {vr(vFR+8,4)}, v123, {srd(S_MEM0)}, s{sT0} offen')
    A(f'buffer_load_dwordx4 {vr(vFR+12,4)}, v123, {srd(S_MEM0)}, s{sT0} offen offset:128')
    A('s_waitcnt vmcnt(0)')
    A(f's_mov_b32 s{sT0}, 0x05040100'); A(f's_mov_b32 s{sT1}, 0x07060302')
    for i in range(2):
        s = vFR + 8 + 4 * i; d = vPB + 4 * i
        A(f'v_perm_b32 v{d}, v{s+2}, v{s}, s{sT0}')
        A(f'v_perm_b32 v{d+1}, v{s+2}, v{s}, s{sT1}')
        A(f'v_perm_b32 v{d+2}, v{s+3}, v{s+1}, s{sT0}')
        A(f'v_perm_b32 v{d+3}, v{s+3}, v{s+1}, s{sT1}')


def gen_setup2(A):
    A('v_and_b32 v121, 15, v0')
    A('v_cmp_lt_u32 vcc, 7, v121')
    A('v_mov_b32 v122, 0x3f803f80')
    for r in range(4): A(f'v_cndmask_b32 v{vSEL+r}, v{vSEL+r}, v122, vcc')
    A(f'v_mov_b32 v{vSR2}, v{vSR2T}')

def gen_steps(A, mode, nsteps=64, prof=None, flag=True, opt=(), kvwait=None):
    X = '' if mode == 'f' else ' sc1'
    L = lambda n: f'L_rec{mode}_{n}'
    lg = Cnt(A, 'lgkmcnt', 15)
    SC = 128 ** -0.5 * math.log2(math.e)
    import struct
    SCBITS = struct.unpack('<I', struct.pack('<f', SC))[0]
    homed_seq = [OPS[i] for i in HOMED]
    slot_of = {o: i % NSTG for i, o in enumerate(homed_seq)}
    sTAG = sPSL
    QP = 'quad_perm:[2,3,0,1] row_mask:0xf bank_mask:0xf'
    def breg(o):
        k, b = LOC[o]
        if k == 'lds':
            b = vSTG + 8 * slot_of[o]
            return f'v[{b}:{b+7}]'
        return f'{k}[{b}:{b+7}]'
    def stage(i):
        if i >= len(homed_seq): return
        o = homed_seq[i]; b = vSTG + 8 * slot_of[o]; slot = LOC[o][1]
        A(f'ds_read_b128 {vr(b,4)}, v{vHOME} offset:{slot*2048}'); lg.issue()
        A(f'ds_read_b128 {vr(b+4,4)}, v{vHOME} offset:{slot*2048+1024}'); lg.issue(('stg', i))
    def smf(acc, areg, o):
        if LOC[o][0] == 'lds':
            lg.wait(('stg', homed_seq.index(o)))
        A(f'v_smfmac_f32_16x16x64_bf16 {vr(acc,4)}, {vr(areg,4)}, {breg(o)}, v{vIDX}')
    def P(i):
        if prof is not None: A(f's_memtime s[{prof+2*i}:{prof+2*i+1}]')
    def zero(b, n):
        for r in range(0, n, 2): A(f'v_mov_b64 v[{b+r}:{b+r+1}], 0')
    def kvdma(lst):
        A(f's_mov_b32 m0, s{sT3}')
        for i in lst:
            if 'nodma' in opt: continue
            A(f'buffer_load_dwordx4 v{vKX}, {srd(S_WS)}, s{sKXO} offen offset:{1024*i} sc1 lds')
    def kvread():
        for i in range(4): A(f'ds_read_b128 {vr(vKXR+4*i,4)}, v{vVX} offset:{1024*i}')
    def hadd(b): return f'v_pk_add_f32 v[{b}:{b+1}], v[{b}:{b+1}], v[{b+2}:{b+3}]'
    A(f's_mov_b32 s{sSTEP}, 0')
    A(f's_mov_b32 s{sTAG}, 0')
    A(f's_mov_b32 s{sMCUR}, {WS_MX}')
    A(f's_mov_b32 s{sKXO}, {WS_KVF}')
    A(f's_mov_b32 s{sKMO}, 0')
    A(f's_mov_b32 s{sT2}, {SCBITS}')
    A(f's_mov_b32 s{sVXO}, {WS_PX}')
    A(f's_lshl_b32 s{sT3}, s{sW}, 12'); A(f's_add_u32 s{sT3}, s{sT3}, {LDS_KV}')
    for i in range(2, 8):
        A(f's_lshl_b32 s{sFO+i}, s{sW}, 1'); A(f's_add_u32 s{sFO+i}, s{sFO+i}, {i}'); A(f's_and_b32 s{sFO+i}, s{sFO+i}, 7'); A(f's_lshl_b32 s{sFO+i}, s{sFO+i}, 10')
    if kvwait: kvwait(A, first=True)
    kvdma(range(4))
    for i in range(NSTG): stage(i)
    lg.q = []
    zero(vQK, 24)
    A('s_waitcnt vmcnt(0)')
    kvread()
    A(f's_add_u32 s{sKXO}, s{sKXO}, {32*16384}')
    A(f's_branch {L("have_mem")}')
    A.label(L('step'))
    P(0)
    A(f's_sub_u32 s{sT0}, s{sMCUR}, {LDS_MEM}')
    A.label(L('poll2'))
    A(f'buffer_load_dwordx4 {vr(vPB,4)}, v{vMP}, {srd(S_WS)}, s{sT0} offen sc1')
    A(f'buffer_load_dwordx4 {vr(vPB+4,4)}, v{vMP}, {srd(S_WS)}, s{sT0} offen offset:1024 sc1')
    A('s_waitcnt vmcnt(0)')
    A(f'v_max3_u32 v{vTMP}, v{vPB}, v{vPB+1}, v{vPB+2}'); A(f'v_max3_u32 v{vTMP+1}, v{vPB+3}, v{vPB+4}, v{vPB+5}')
    A(f'v_max3_u32 v{vTMP}, v{vTMP}, v{vPB+6}, v{vPB+7}'); A(f'v_max_u32 v{vTMP}, v{vTMP}, v{vTMP+1}')
    A(f'v_cmp_eq_u32 vcc, -1, v{vTMP}')
    A('s_mov_b64 exec, vcc')
    A(f's_cbranch_execnz {L("poll2")}')
    A('s_mov_b64 exec, -1')
    A.label(L('have_mem'))
    P(1)
    A(f'ds_write_b128 v{vMP}, {vr(vPB,4)}'); A(f'ds_write_b128 v{vMP}, {vr(vPB+4,4)} offset:1024')
    nstaged = NSTG
    def acc_of(m, a): return (vVA + 4 * a) if m == 'v' else vQK + 8 * a + (4 if m == 'q' else 0)
    pre = [o for o in OPS[:12]]
    for o in pre[:3]: smf(acc_of(o[0], o[1]), vFR + 4 * o[2], o)
    if kvwait: kvwait(A, first=False)
    for i in range(2, 8): A(f'v_add_u32 v{vFR+4*i}, s{sFO+i}, v{vL16H}')
    A('s_waitcnt lgkmcnt(0)')
    A('s_barrier')
    P(2)
    for i in range(2, 8):
        A(f'ds_read_b128 {vr(vFR+4*i,4)}, v{vFR+4*i}'); lg.issue(('fr', i))
    n_ = 0
    for o in pre[3:]:
        smf(acc_of(o[0], o[1]), vFR + 4 * o[2], o)
        if LOC[o][0] == 'lds':
            stage(nstaged); nstaged += 1
        n_ += 1
        if n_ in (2, 4, 6, 8): kvdma([n_ // 2 - 1])
    A(f's_add_u32 s{sKXO}, s{sKXO}, {32*16384}')
    vAP = vT2; vDP = vTMP; vX = vTMP + 4
    bg = []
    def post_qk_list(a):
        k = vQK + 8 * a; q = k + 4
        return [hadd(k), hadd(q),
                f'v_cvt_pk_bf16_f32 v{vAP}, v{k}, v{k+1}', f'v_cvt_pk_bf16_f32 v{vAP+1}, v{q}, v{q+1}',
                f'v_mfma_f32_16x16x16_bf16 {vr(vDP,4)}, {vr(vAP,2)}, {vr(vID,2)}, 0']
    def post_qk2_list(a):
        return [f'v_cvt_pk_bf16_f32 v{vX+2*a}, v{vDP}, v{vDP+1}', f'v_cvt_pk_bf16_f32 v{vX+2*a+1}, v{vDP+2}, v{vDP+3}']
    if flag:
        fl = A.newlabel('L_nofl')
        A(f's_cmp_lg_u32 s{sW}, 0'); A(f's_cbranch_scc1 {fl}')
        A(f'v_mov_b32 v{vT2}, s{sSTEP}')
        A(f's_lshl_b32 s{sT0}, s{sH}, 2'); A(f's_add_u32 s{sT0}, s{sT0}, {4*DBG_PROG}'); A(f'v_mov_b32 v{vT2+1}, s{sT0}')
        A('s_mov_b64 exec, 1')
        A(f'buffer_store_dword v{vT2}, v{vT2+1}, {srd(S_DBG)}, 0 offen sc1')
        A('s_mov_b64 exec, -1')
        A.label(fl)
    cnt = 0
    for a in range(2):
        for ks in range(2, 8):
            if a == 0: lg.wait(('fr', ks))
            for m in 'kq':
                o = (m, a, ks)
                smf(acc_of(m, a), vFR + 4 * ks, o)
                if LOC[o][0] == 'lds':
                    stage(nstaged); nstaged += 1
                cnt += 1
                if cnt == 14: bg = post_qk_list(0)
                if cnt == 22: bg += post_qk2_list(0)
                if bg: A(bg.pop(0))
    assert not bg
    P(3)
    vops = [('v', a, ks) for ks in range(2, 8) for a in range(2)]
    vi = [0]
    def vstep(n=1):
        for _ in range(n):
            if vi[0] >= 12: return
            o = vops[vi[0]]; vi[0] += 1
            smf(vVA + 4 * o[1], vFR + 4 * o[2], o)
    vstep(1)
    for i_ in post_qk_list(1): A(i_)
    vstep(2)
    for i_ in post_qk2_list(1): A(i_)
    vS = vQK
    A(f'v_mfma_f32_16x16x32_bf16 {vr(vS,4)}, {vr(vKXR,4)}, {vr(vX,4)}, 0')
    A(f'v_mfma_f32_16x16x32_bf16 {vr(vS+4,4)}, {vr(vKXR+4,4)}, {vr(vX,4)}, 0')
    A(f'v_mfma_f32_16x16x32_bf16 {vr(vS+8,4)}, {vr(vX,4)}, {vr(vX,4)}, 0')
    vstep(1)
    A(f's_add_u32 s{sT0}, s{sKMO}, {WS_KM}')
    A('s_mov_b64 exec, s[6:7]')
    A(f'ds_write_b128 v{vSW}, {vr(vS,4)}'); lg.issue()
    A(f'ds_write_b128 v{vSW}, {vr(vS+4,4)} offset:16'); lg.issue()
    A(f'ds_write_b64 v{vSW}, {vr(vS+8,2)} offset:32'); lg.issue()
    A('s_mov_b64 exec, s[4:5]')
    if 'nokm' not in opt: A(f'buffer_store_dwordx4 {vr(vX,4)}, v{vKM}, {srd(S_WS)}, s{sT0} offen sc1')
    A('s_mov_b64 exec, -1')
    vstep(3)
    lg.all()
    A('s_barrier')
    P(4)
    E = [vS, vS + 4, vS + 8, vKXR]
    Em = [vS + 12, vS + 13, vS + 14, vS + 15]
    for w in range(4):
        A(f'ds_read_b128 {vr(E[w],4)}, v{vSR} offset:{1536*w}'); lg.issue(('e', w))
    for w in range(4):
        A(f'ds_read_b32 v{Em[w]}, v{vSR2} offset:{1536*w}'); lg.issue(('em', w))
    vstep(5)
    assert vi[0] == 12, vi
    lg.wait(('e', 1))
    for r in (0, 2): A(f'v_pk_add_f32 v[{E[0]+r}:{E[0]+r+1}], v[{E[0]+r}:{E[0]+r+1}], v[{E[1]+r}:{E[1]+r+1}]')
    lg.wait(('e', 3))
    for r in (0, 2): A(f'v_pk_add_f32 v[{E[2]+r}:{E[2]+r+1}], v[{E[2]+r}:{E[2]+r+1}], v[{E[3]+r}:{E[3]+r+1}]')
    lg.wait(('em', 3))
    A(f'v_pk_add_f32 v[{Em[0]}:{Em[1]}], v[{Em[0]}:{Em[1]}], v[{Em[2]}:{Em[3]}]')
    for r in (0, 2): A(f'v_pk_add_f32 v[{E[0]+r}:{E[0]+r+1}], v[{E[0]+r}:{E[0]+r+1}], v[{E[2]+r}:{E[2]+r+1}]')
    e4 = vS + 4
    A(f'v_add_f32 v{e4}, v{Em[0]}, v{Em[1]}')
    vM = vTMP; vM2 = vTMP + 1
    A(f'v_max3_f32 v{vM}, v{vS}, v{vS+1}, v{vS+2}'); A(f'v_max3_f32 v{vM}, v{vM}, v{vS+3}, v{e4}')
    stage(nstaged); nstaged += 1
    A(f'v_max_f32_dpp v{vM}, v{vM}, v{vM} {QP}')
    A(f'v_mov_b32 v{vM2}, v{vM}')
    stage(nstaged); nstaged += 1
    A(f'v_permlane16_swap_b32 v{vM}, v{vM2}')
    A(f'v_max_f32 v{vM}, v{vM}, v{vM2}')
    A(f'v_mov_b32 v{vM2}, v{vM}')
    A(hadd(vVA)); A(hadd(vVA + 4))
    A(f'v_permlane32_swap_b32 v{vM}, v{vM2}')
    A(f'v_max_f32 v{vM}, v{vM}, v{vM2}')
    A(f'v_mul_f32 v{vM}, s{sT2}, v{vM}')
    for r in range(5): A(f'v_fma_f32 v{vS+r}, v{vS+r}, s{sT2}, -v{vM}')
    for r in range(5): A(f'v_exp_f32 v{vS+r}, v{vS+r}')
    vPx = vTMP
    vVM0 = vTMP + 4
    for a in range(2):
        b = vVA + 4 * a
        A(f'v_cvt_pk_bf16_f32 v{vVM0+2*a}, v{b}, v{b+1}'); A(f'v_mov_b32 v{vVM0+2*a+1}, 0')
    A(f'v_cvt_pk_bf16_f32 v{vPx}, v{vS}, v{vS+1}'); A(f'v_cvt_pk_bf16_f32 v{vPx+1}, v{vS+2}, v{vS+3}')
    A(f'v_mov_b32_dpp v{e4+1}, v{e4} {QP}')
    A(f'v_mov_b32 v{vS+13}, 0')
    A(f'v_mov_b32_dpp v{vPx+2}, v{vPx} {QP}'); A(f'v_mov_b32_dpp v{vPx+3}, v{vPx+1} {QP}')
    A(f'v_cvt_pk_bf16_f32 v{vS+12}, v{e4}, v{e4+1}')
    vO = vS
    A(f's_add_u32 s{sT0}, s{sKMO}, {WS_VMT}')
    A(f'v_mfma_f32_16x16x32_bf16 {vr(vS+8,4)}, {vr(vSEL,4)}, {vr(vPx,4)}, 0')
    for a in range(2):
        A(f'v_mfma_f32_16x16x32_bf16 {vr(vO+4*a,4)}, {vr(vVXR+4*a,4)}, {vr(vPx,4)}, 0')
    if 'novm' not in opt:
        A(f'buffer_store_dword v{vVM0}, v{vVM}, {srd(S_WS)}, s{sT0} offen sc1')
        A(f'buffer_store_dword v{vVM0+2}, v{vVM}, {srd(S_WS)}, s{sT0} offen offset:64 sc1')
    A(f's_cmp_eq_u32 s{sSTEP}, {nsteps-1}')
    A(f's_cbranch_scc1 {L("done")}')
    A(f'v_mfma_f32_16x16x16_bf16 {vr(vS+8,4)}, {vr(vSEL,2)}, {vr(vS+12,2)}, {vr(vS+8,4)}')
    for a in range(2):
        A(f'v_mfma_f32_16x16x16_bf16 {vr(vO+4*a,4)}, {vr(vVM0+2*a,2)}, {vr(vS+12,2)}, {vr(vO+4*a,4)}')
    zero(vFR, 8)
    vL = vT2; vL2 = vT2 + 1
    A(f'v_rcp_f32 v{vL}, v{vS+8}')
    zero(vFR + 8, 2)
    A(f'v_mov_b32 v{vL2}, v{vL}')
    zero(vFR + 10, 4)
    A(f'v_permlane32_swap_b32 v{vL}, v{vL2}')
    for r in range(0, 8, 2): A(f'v_pk_mul_f32 v[{vO+r}:{vO+r+1}], v[{vO+r}:{vO+r+1}], v[{vL}:{vL+1}] op_sel:[0,1] op_sel_hi:[1,1]')
    for r in range(4): A(f'v_cvt_pk_bf16_f32 v{vTMP+r}, v{vO+2*r}, v{vO+2*r+1}')
    A('s_mov_b64 exec, s[6:7]')
    A(f'ds_write_b128 v{vOW}, {vr(vTMP,4)}')
    A('s_mov_b64 exec, -1')
    vWA = vFR
    zero(vFR + 14, 10)
    A('s_waitcnt lgkmcnt(0)'); lg.q = []
    A('s_barrier')
    P(5)
    vOF = vQK
    A(f'ds_read_b128 {vr(vOF,4)}, v{vL16H} offset:{LDS_O-LDS_MEM}'); lg.issue('of0')
    A(f'ds_read_b128 {vr(vOF+4,4)}, v{vL16H} offset:{LDS_O-LDS_MEM+1024}'); lg.issue('of1')
    zero(vFR + 24, 8)
    A(f's_add_u32 s{sT0}, s{sVXO}, 32768')
    lg.wait('of0')
    vPK = vVA
    def post_o(a):
        b = vWA + 4 * a
        return [hadd(b), f'v_cvt_pk_bf16_f32 v{vPK+a}, v{b}, v{b+1}', f'v_bfi_b32 v{vPK+a}, 1, s{sTAG}, v{vPK+a}']
    bg = []
    for a in range(8):
        for ks in range(2):
            if a == 0 and ks == 1: lg.wait('of1')
            o = ('o', a, ks)
            smf(vWA + 4 * a, vOF + 4 * ks, o)
            if LOC[o][0] == 'lds':
                stage(nstaged); nstaged += 1
            for _ in range(1 + ks):
                if bg: A(bg.pop(0))
        if a >= 1: bg += post_o(a - 1)
        if a == 5: A(f'buffer_store_dwordx4 {vr(vPK,4)}, v{vPST}, {srd(S_WS)}, s{sVXO} offen{X}')
    for i_ in bg + post_o(7): A(i_)
    A(f'buffer_store_dwordx4 {vr(vPK+4,4)}, v{vPST}, {srd(S_WS)}, s{sT0} offen{X}')
    P(6)
    A(f's_add_u32 s{sT0}, s{sVXO}, 4096')
    A(f'buffer_load_dwordx4 {vr(vPB,4)}, v{vPLD}, {srd(S_WS)}, s{sVXO} offen sc1')
    A(f'buffer_load_dwordx4 {vr(vPB+4,4)}, v{vPLD}, {srd(S_WS)}, s{sT0} offen sc1')
    for i in range(NSTG): stage(i)
    lg.q = []
    zero(vQK, 16)
    A(f's_add_u32 s{sMNXT}, s{sMCUR}, 8192'); A(f's_and_b32 s{sMNXT}, s{sMNXT}, 32767'); A(f's_add_u32 s{sMNXT}, s{sMNXT}, {WS_MX}')
    A(f's_branch {L("poll1c")}')
    A.label(L('poll1'))
    A(f'buffer_load_dwordx4 {vr(vPB,4)}, v{vPLD}, {srd(S_WS)}, s{sVXO} offen sc1')
    A(f'buffer_load_dwordx4 {vr(vPB+4,4)}, v{vPLD}, {srd(S_WS)}, s{sT0} offen sc1')
    A.label(L('poll1c'))
    A('s_waitcnt vmcnt(0)')
    tt = 0
    for a_ in range(2):
        for b_ in range(2):
            for t_ in range(2):
                if (a_ ^ t_) | (b_ ^ t_): tt |= 1 << (a_ * 4 + b_ * 2 + t_)
    for i in range(4): A(f'v_bitop3_b32 v{vTMP+i}, v{vPB+2*i}, v{vPB+2*i+1}, s{sTAG} bitop3:{tt}')
    A(f'v_or3_b32 v{vTMP}, v{vTMP}, v{vTMP+1}, v{vTMP+2}')
    A(f'v_bitop3_b32 v{vTMP}, v{vTMP}, v{vTMP+3}, 1 bitop3:0xa8')
    A(f'v_cmp_ne_u32 vcc, 0, v{vTMP}')
    A('s_mov_b64 exec, vcc')
    A(f's_cbranch_execnz {L("poll1")}')
    A('s_mov_b64 exec, -1')
    P(7)
    vR = vTMP
    A(f'v_mfma_f32_16x16x32_bf16 {vr(vR,4)}, {vr(vSEL,4)}, {vr(vPB,4)}, 0')
    A(f'v_mfma_f32_16x16x32_bf16 {vr(vR,4)}, {vr(vSEL,4)}, {vr(vPB+4,4)}, {vr(vR,4)}')
    zero(vVA, 8)
    kvread()
    for r in range(4): A(f'v_add_f32_dpp v{vR+r}, v{vR+r}, v{vR+r} row_ror:4 row_mask:0xf bank_mask:0xf')
    for r in range(4): A(f'v_add_f32_dpp v{vR+r}, v{vR+r}, v{vR+r} row_ror:8 row_mask:0xf bank_mask:0xf')
    A(f'v_cvt_pk_bf16_f32 v{vR+4}, v{vR}, v{vR+2}'); A(f'v_cvt_pk_bf16_f32 v{vR+5}, v{vR+1}, v{vR+3}')
    A(f'v_min_u32 v{vR+4}, -2, v{vR+4}'); A(f'v_min_u32 v{vR+5}, -2, v{vR+5}')
    A('s_mov_b64 exec, 0xf000f')
    A(f'buffer_store_dword v{vR+4}, v{vMPUB}, {srd(S_WS)}, s{sMNXT} offen{X}')
    A(f'buffer_store_dword v{vR+5}, v{vMPUB}, {srd(S_WS)}, s{sMNXT} offen offset:16{X}')
    A(f'buffer_store_dword v{vNEG1}, v{vMPUB}, {srd(S_WS)}, s{sMCUR} offen{X}')
    A(f'buffer_store_dword v{vNEG1}, v{vMPUB}, {srd(S_WS)}, s{sMCUR} offen offset:16{X}')
    A('s_mov_b64 exec, -1')
    P(8)
    A(f's_mov_b32 s{sMCUR}, s{sMNXT}')
    A(f's_xor_b32 s{sTAG}, s{sTAG}, 1')
    A(f's_add_u32 s{sKMO}, s{sKMO}, 65536')
    A(f's_add_u32 s{sSTEP}, s{sSTEP}, 1')
    if prof is not None:
        A('s_memrealtime s[98:99]')
        A('s_waitcnt lgkmcnt(0)')
        A(f'v_writelane_b32 v{vTMP}, s98, 9')
        for i in range(9): A(f'v_writelane_b32 v{vTMP}, s{prof+2*i}, {i}')
        A(f's_lshl_b32 s{sT0}, s{sH}, 2'); A(f's_add_u32 s{sT0}, s{sT0}, s{sW}'); A(f's_lshl_b32 s{sT0}, s{sT0}, 6'); A(f's_add_u32 s{sT0}, s{sT0}, s{sSTEP}'); A(f's_lshl_b32 s{sT0}, s{sT0}, 6')
        A(f's_add_u32 s{sT0}, s{sT0}, {120*MB}')
        A(f'v_mbcnt_lo_u32_b32 v{vTMP+1}, -1, 0'); A(f'v_lshlrev_b32 v{vTMP+1}, 2, v{vTMP+1}')
        A('s_mov_b64 exec, 0xffff')
        A(f'buffer_store_dword v{vTMP}, v{vTMP+1}, {srd(S_WS)}, s{sT0} offen')
        A('s_mov_b64 exec, -1')
    A(f's_branch {L("step")}')
    A.label(L('done'))
    A('s_waitcnt vmcnt(0)')
    A('s_barrier')
    if flag:
        fl = A.newlabel('L_nofl')
        A(f's_cmp_lg_u32 s{sW}, 0'); A(f's_cbranch_scc1 {fl}')
        A(f'v_mov_b32 v{vT2}, {nsteps}')
        A(f's_lshl_b32 s{sT0}, s{sH}, 2'); A(f's_add_u32 s{sT0}, s{sT0}, {4*DBG_PROG}'); A(f'v_mov_b32 v{vT2+1}, s{sT0}')
        A('s_mov_b64 exec, 1')
        A(f'buffer_store_dword v{vT2}, v{vT2+1}, {srd(S_DBG)}, 0 offen sc1')
        A('s_mov_b64 exec, -1')
        A('s_waitcnt vmcnt(0)')
        A.label(fl)
    A('v_mbcnt_lo_u32_b32 v0, -1, 0'); A('v_mbcnt_hi_u32_b32 v0, -1, v0')
    A(f's_lshl_b32 s{sT0}, s{sW}, 6'); A(f'v_add_u32 v0, s{sT0}, v0')

sRDY = 70
def kvwait(A, first):
    l = A.newlabel('L_kvw'); l2 = A.newlabel('L_kvd')
    if first:
        A(f's_mov_b32 s{sRDY}, 0'); A(f's_mov_b32 s{sT1}, 0')
    else:
        A(f's_add_u32 s{sT1}, s{sSTEP}, 1'); A(f's_lshr_b32 s{sT1}, s{sT1}, 2')
    A(f's_cmp_lt_u32 s{sT1}, s{sRDY}'); A(f's_cbranch_scc1 {l2}')
    A(f's_cmp_ge_u32 s{sT1}, 16'); A(f's_cbranch_scc1 {l2}')
    A(f'v_mbcnt_lo_u32_b32 v{vT2+1}, -1, 0'); A(f'v_lshlrev_b32 v{vT2+1}, 2, v{vT2+1}')
    A('s_mov_b64 exec, 0xffff')
    A.label(l)
    A(f'buffer_load_dword v{vT2}, v{vT2+1}, {srd(S_DBG)}, 0 offen offset:{4*DBG_KV} sc1')
    A('s_waitcnt vmcnt(0)')
    A(f'v_and_b32 v{vT2}, 0xffff, v{vT2}')
    A(f'v_cmp_gt_u32 vcc, 32, v{vT2}')
    A(f's_or_b32 s{sRDY}, vcc_lo, 0x10000')
    A(f's_ff1_i32_b32 s{sRDY}, s{sRDY}')
    A(f's_cmp_lt_u32 s{sT1}, s{sRDY}'); A(f's_cbranch_scc0 {l}')
    A('s_mov_b64 exec, -1')
    A.label(l2)
```

```python
from asmlib import *
from common import *
from gemm import *
import wsgemm as WS
import math, struct
def fbits(x): return struct.unpack('<I', struct.pack('<f', x))[0]

sTK, sP0, sP1, sP2 = 88, 89, 90, 91
LDS_TICK = 163840 - 64
G128 = Gemm(128, 128, 2, 2, 'g128')
G32 = Gemm(32, 128, 1, 4, 'g32')

NSET = 8
N_KV, N_Q, N_G2, N_SV, N_AT, N_G3 = 128, 64, 24, 16 * NSET, 256, 64
T_KV = 0; T_Q = T_KV + N_KV; T_G2 = T_Q + N_Q; T_SV = T_G2 + N_G2; T_AT = T_SV + N_SV; T_G3 = T_AT + N_AT; T_END = T_G3 + N_G3
KVQ_DONE = 0x100020
def divmod_const(A, src, d, q, r):
    A(f's_mul_hi_u32 s{q}, s{src}, {(1 << 32) // d + 1}')
    A(f's_mul_i32 s{r}, s{q}, {d}'); A(f's_sub_u32 s{r}, s{src}, s{r}')

TRACE = False
LITE = False
def trace(A, slot):
    if not TRACE: return
    A('s_memrealtime s[94:95]'); A('s_waitcnt lgkmcnt(0)')
    A(f's_lshl_b32 s96, s{sTK}, 4'); A(f's_add_u32 s96, s96, {110*MB + 4*slot}')
    A('v_mov_b32 v120, s94'); A('v_mov_b32 v121, s96')
    A(f'buffer_store_dword v120, v121, {srd(S_WS)}, 0 offen')

def copy_srd(A, dst, src):
    for i in range(4): A(f's_mov_b32 s{dst+i}, s{src+i}')

def signal(A, S, off_expr_sgpr=None, off=None):
    A('s_waitcnt vmcnt(0)')
    A('s_barrier')
    l = A.newlabel('L_sig')
    A(f's_cmp_lg_u32 s{sW}, 0'); A(f's_cbranch_scc1 {l}')
    A('v_mov_b32 v120, 1')
    A(f'v_mov_b32 v121, {off}' if off is not None else f'v_mov_b32 v121, s{off_expr_sgpr}')
    A('s_mov_b64 exec, 1')
    A(f'buffer_atomic_add v120, v121, {srd(S)}, 0 offen')
    A('s_mov_b64 exec, -1')
    A.label(l)

def wait_cnt(A, S, target, off=None, off_sgpr=None, sleep=8, adaptive=False):
    l = A.newlabel('L_wt'); l2 = A.newlabel('L_wd')
    A(f'v_mov_b32 v121, {off}' if off is not None else f'v_mov_b32 v121, s{off_sgpr}')
    A.label(l)
    A(f'buffer_load_dword v120, v121, {srd(S)}, 0 offen sc1')
    A('s_waitcnt vmcnt(0)')
    A(f'v_readfirstlane_b32 s{sT0}, v120')
    A(f's_cmp_ge_u32 s{sT0}, {target}')
    A(f's_cbranch_scc1 {l2}')
    if adaptive:
        l3 = A.newlabel('L_wf')
        A(f's_sub_u32 s{sT0}, {target}, s{sT0}')
        A(f's_cmp_lt_u32 s{sT0}, 2'); A(f's_cbranch_scc1 {l3}')
        A('s_sleep 24')
        A(f's_cmp_lt_u32 s{sT0}, 3'); A(f's_cbranch_scc1 {l3}')
        A('s_sleep 48')
        A.label(l3)
    A(f's_sleep {sleep}')
    A(f's_branch {l}')
    A.label(l2)

def lane_consts(A):
    A('v_and_b32 v10, 63, v0'); A('v_and_b32 v11, 15, v10'); A('v_lshrrev_b32 v12, 4, v10')

def atomic_add(A, S, val, off_sgpr):
    A(f'v_mov_b32 v120, {val}'); A(f'v_mov_b32 v121, s{off_sgpr}')
    A('s_mov_b64 exec, 1')
    A(f'buffer_atomic_add v120, v121, {srd(S)}, 0 offen')
    A('s_mov_b64 exec, -1')

def gen_g1(A):
    A.label('L_task_kv')
    A(f's_lshr_b32 s{sP0}, s{sTK}, 5'); A(f's_and_b32 s{sP1}, s{sTK}, 15'); A(f's_bfe_u32 s{sP2}, s{sTK}, 0x10004')
    l = A.newlabel('L_nz')
    A(f's_cmp_lg_u32 s{sTK}, 0'); A(f's_cbranch_scc1 {l}')
    A('v_lshlrev_b32 v120, 3, v0'); A('v_mov_b32 v122, 0'); A('v_mov_b32 v123, 0'); A(f's_mov_b32 s{sT0}, {WS_CNT}')
    A(f'buffer_store_dwordx2 v[122:123], v120, {srd(S_WS)}, s{sT0} offen sc1')
    A.label(l)
    A(f's_cmp_eq_u32 s{sP2}, 0'); A('s_cbranch_scc1 L_g1_k')
    copy_srd(A, sGB, S_WV); A('s_branch L_g1_go')
    A.label('L_g1_k'); copy_srd(A, sGB, S_WK); A('s_branch L_g1_go')
    A.label('L_task_q')
    A(f's_sub_u32 s{sT0}, s{sTK}, {T_Q}'); A(f's_lshr_b32 s{sP0}, s{sT0}, 4'); A(f's_and_b32 s{sP1}, s{sT0}, 15'); A(f's_mov_b32 s{sP2}, 2')
    copy_srd(A, sGB, S_WQ)
    A.label('L_g1_go')
    copy_srd(A, sGA, S_BX)
    A(f's_mov_b32 s{sLDB}, 8192'); A(f's_mov_b32 s{sKIT}, 4')
    A(f's_lshl_b32 s{sBOFF}, s{sP1}, 9')
    WS.load_w(A)
    trace(A, 3)
    WS.setup_a(A)
    A(f's_lshl_b32 s{sAOFF}, s{sP0}, 19')
    A('v_lshlrev_b32 v1, 4, v10')
    A(f's_lshl_b32 s{sE0}, s{sP0}, 9'); A(f's_lshl_b32 s{sT0}, s{sP1}, 1'); A(f's_add_u32 s{sE0}, s{sE0}, s{sT0}'); A(f's_lshr_b32 s{sT0}, s{sW}, 1'); A(f's_add_u32 s{sE0}, s{sE0}, s{sT0}')
    A(f's_lshl_b32 s{sE0}, s{sE0}, 2'); A(f's_and_b32 s{sT0}, s{sW}, 1'); A(f's_lshl_b32 s{sT0}, s{sT0}, 1'); A(f's_add_u32 s{sE0}, s{sE0}, s{sT0}')
    A(f's_cmp_eq_u32 s{sP2}, 2')
    A(f's_cselect_b32 s{sE1}, 11, 12'); A(f's_cselect_b32 s{sE2}, {WS_QF}, {WS_KVF}'); A(f's_cselect_b32 s{sLDA}, 65536, 1')
    A(f's_lshl_b32 s{sE0}, s{sE0}, s{sE1}'); A(f's_add_u32 s{sE0}, s{sE0}, s{sE2}')
    A(f's_lshl_b32 s{sE3}, 1, s{sE1}    ; stride')
    def sig(A, d):
        A(f's_lshl_b32 s{sT3}, s{sP0}, 2'); A(f's_add_u32 s{sT3}, s{sT3}, s{sAINC}'); A(f's_lshl_b32 s{sT3}, s{sT3}, 2'); A(f's_add_u32 s{sT3}, s{sT3}, {4 * DBG_KV - 4}')
        atomic_add(A, S_DBG, f's{sLDA}', sT3)
    def epi_t(A, half):
        for i in range(2):
            for c in range(2):
                A(f's_mul_i32 s{sT0}, s{sE3}, {i * 128 + c}'); A(f's_add_u32 s{sT0}, s{sT0}, s{sE0}')
                for kt in range(2):
                    tm = 2 * i + kt
                    d = WS.vPKD + 4 * kt
                    WS.pack(A, tm * 4 + 2 * c, tm * 4 + 2 * c + 1, d)
                    A(f'buffer_store_dwordx4 {vr(d,4)}, v1, {srd(S_WS)}, s{sT0} offen offset:{1024*kt} sc1')
        A(f's_lshl_b32 s{sT0}, s{sE3}, 8'); A(f's_add_u32 s{sE0}, s{sE0}, s{sT0}')
    def epi_n(A, half):
        for i in range(2):
            for c in range(2):
                A(f's_add_u32 s{sT0}, s{sE0}, {(i * 128 + c) * 4096}')
                for a in range(2):
                    tn = 2 * c + a
                    d = WS.vPKD + 4 * a
                    WS.pack(A, (2 * i) * 4 + tn, (2 * i + 1) * 4 + tn, d)
                    A(f'buffer_store_dwordx4 {vr(d,4)}, v1, {srd(S_WS)}, s{sT0} offen offset:{2048 + 1024*a} sc1')
        A(f's_add_u32 s{sE0}, s{sE0}, {256 * 4096}')
    A(f's_cmp_eq_u32 s{sP2}, 1'); A('s_cbranch_scc1 L_g1_v')
    WS.run_blocks(A, 'T', epi_t, sig, 'g1t')
    A('s_branch L_next')
    A.label('L_g1_v')
    WS.run_blocks(A, 'N', epi_n, sig, 'g1n')
    A('s_branch L_next')

def gen_g2(A):
    A.label('L_task_g2')
    A(f's_sub_u32 s{sT0}, s{sTK}, {T_G2}')
    divmod_const(A, sT0, 6, sP0, sP1)
    copy_srd(A, sGA, S_AX); copy_srd(A, sGB, S_AWQKV)
    A(f's_mov_b32 s{sLDB}, 3072'); A(f's_mov_b32 s{sKIT}, 4')
    A(f's_lshl_b32 s{sBOFF}, s{sP1}, 9')
    WS.load_w(A)
    WS.setup_a(A)
    A(f's_lshl_b32 s{sAOFF}, s{sP0}, 19')
    lane_consts(A)
    A(f's_and_b32 s{sT0}, s{sP1}, 1'); A(f's_lshl_b32 s{sT0}, s{sT0}, 4'); A(f's_lshl_b32 s{sT1}, s{sW}, 2'); A(f's_add_u32 s{sT0}, s{sT0}, s{sT1}')
    A(f's_lshl_b32 s{sE0}, s{sT0}, 16'); A(f's_lshl_b32 s{sT0}, s{sP0}, 14'); A(f's_add_u32 s{sE0}, s{sE0}, s{sT0}')
    def sig(A, d):
        A(f's_mov_b32 s{sT3}, {4 * DBG_CG2}')
        atomic_add(A, S_DBG, 1, sT3)
    A(f's_cmp_ge_u32 s{sP1}, 4'); A('s_cbranch_scc1 L_g2_v')
    A('v_lshrrev_b32 v13, 3, v11'); A('v_lshlrev_b32 v13, 4, v13'); A('v_and_b32 v14, 3, v11'); A('v_add_u32 v13, v13, v14')
    A('v_bfe_u32 v14, v11, 2, 1')
    A(f's_cmp_ge_u32 s{sP1}, 2')
    A(f's_cselect_b32 s{sE1}, 2, 3'); A(f's_cselect_b32 s{sE2}, 128, 64'); A(f's_cselect_b32 s{sE3}, {WS_KA - WS_QA}, 0'); A(f's_add_u32 s{sE3}, s{sE3}, {WS_QA}')
    A(f'v_lshlrev_b32 v14, s{sE1}, v14'); A('v_add_u32 v13, v13, v14')
    A('v_and_b32 v14, 1, v12'); A('v_lshl_add_u32 v13, v14, 5, v13')
    A('v_lshlrev_b32 v13, 4, v13')
    A('v_lshrrev_b32 v14, 1, v12'); A('v_lshl_add_u32 v1, v14, 16, v13')
    A(f's_add_u32 s{sE0}, s{sE0}, s{sE3}')
    WS.setup_a(A)
    def epi_t(A, half):
        for i in range(2):
            for c in range(2):
                for kt in range(2):
                    tm = 2 * i + kt
                    d = WS.vPKD + 4 * kt
                    A(f's_add_u32 s{sT0}, s{sE0}, {i * 1024 + c * 131072}')
                    if kt: A(f's_add_u32 s{sT0}, s{sT0}, s{sE2}')
                    WS.pack(A, tm * 4 + 2 * c, tm * 4 + 2 * c + 1, d)
                    A(f'buffer_store_dwordx4 {vr(d,4)}, v1, {srd(S_WS)}, s{sT0} offen sc1')
        A(f's_add_u32 s{sE0}, s{sE0}, 2048')
    WS.run_blocks(A, 'T', epi_t, sig, 'g2t')
    A('s_branch L_next')
    A.label('L_g2_v')
    A('v_and_b32 v13, 7, v11')
    A('v_and_b32 v14, 1, v12'); A('v_lshl_add_u32 v13, v14, 4, v13')
    A('v_lshrrev_b32 v14, 1, v12'); A('v_lshl_add_u32 v13, v14, 5, v13')
    A('v_lshlrev_b32 v13, 4, v13')
    A('v_lshrrev_b32 v14, 3, v11'); A('v_lshl_add_u32 v1, v14, 16, v13')
    A(f's_add_u32 s{sE0}, s{sE0}, {WS_VAT}')
    WS.setup_a(A)
    def epi_n(A, half):
        for i in range(2):
            for c in range(2):
                A(f's_add_u32 s{sT0}, s{sE0}, {i * 1024 + c * 131072}')
                for a in range(2):
                    tn = 2 * c + a
                    d = WS.vPKD + 4 * a
                    WS.pack(A, (2 * i) * 4 + tn, (2 * i + 1) * 4 + tn, d)
                    A(f'buffer_store_dwordx4 {vr(d,4)}, v1, {srd(S_WS)}, s{sT0} offen offset:{128*a} sc1')
        A(f's_add_u32 s{sE0}, s{sE0}, 2048')
    WS.run_blocks(A, 'N', epi_n, sig, 'g2n')
    A('s_branch L_next')

def out_epilogue(A, G):
    lane_consts(A)
    A('v_lshrrev_b32 v13, 2, v11'); A('v_and_b32 v14, 3, v11'); A('v_lshl_add_u32 v13, v13, 3, v14')
    A('v_lshlrev_b32 v13, 11, v13'); A('v_lshl_add_u32 v13, v12, 4, v13')
    if G.WM == 2:
        A(f's_lshr_b32 s{sT0}, s{sW}, 1'); A(f's_lshl_b32 s{sT0}, s{sT0}, 17'); A(f's_add_u32 s{sE0}, s{sE0}, s{sT0}')
        A(f's_and_b32 s{sT0}, s{sW}, 1'); A(f's_lshl_b32 s{sT0}, s{sT0}, 7'); A(f's_add_u32 s{sE0}, s{sE0}, s{sT0}')
    else:
        A(f's_lshl_b32 s{sT0}, s{sW}, 6'); A(f's_add_u32 s{sE0}, s{sE0}, s{sT0}')
    n = 0
    for tm in range(G.TM):
        A(f's_add_u32 s{sT0}, s{sE0}, {(32 * (tm // 2) + 4 * (tm % 2)) * 2048}')
        for c in range(G.TN // 2):
            d = 16 + 4 * n; n += 1
            G.pack(A, tm * G.TN + 2 * c, tm * G.TN + 2 * c + 1, d)
            A(f'buffer_store_dwordx4 {vr(d,4)}, v13, {srd(S_OUT)}, s{sT0} offen offset:{64*c}')

def gen_g3(A):
    G = G128
    A.label('L_task_g3')
    A(f's_sub_u32 s{sT1}, s{sTK}, {T_G3}')
    A(f's_lshr_b32 s{sP0}, s{sT1}, 2'); A(f's_and_b32 s{sP1}, s{sT1}, 3')
    wait_cnt(A, S_DBG, N_AT, off=4 * DBG_CAT, sleep=32)
    copy_srd(A, sGA, S_WS); copy_srd(A, sGB, S_AWO)
    A(f's_mov_b32 s{sLDA}, 1024'); A(f's_mov_b32 s{sLDB}, 1024'); A(f's_mov_b32 s{sKIT}, 2')
    A(f's_lshl_b32 s{sAOFF}, s{sP0}, 17'); A(f's_add_u32 s{sAOFF}, s{sAOFF}, {WS_OA}'); A(f's_lshl_b32 s{sBOFF}, s{sP1}, 8')
    G.setup(A)
    G.mainloop(A, 'T')
    A(f's_lshl_b32 s{sE0}, s{sP0}, 18'); A(f's_lshl_b32 s{sT0}, s{sP1}, 8'); A(f's_add_u32 s{sE0}, s{sE0}, s{sT0}')
    out_epilogue(A, G)
    A('s_branch L_next')

def gen_at(A):
    A.label('L_task_at')
    A(f's_sub_u32 s{sT1}, s{sTK}, {T_AT}')
    A(f's_lshr_b32 s{sP0}, s{sT1}, 3'); A(f's_and_b32 s{sP1}, s{sT1}, 7')
    wait_cnt(A, S_DBG, N_G2 * 4, off=4 * DBG_CG2, sleep=32)
    A(f's_lshl_b32 s{sP1}, s{sP1}, 2'); A(f's_add_u32 s{sP1}, s{sP1}, s{sW}     ; head')
    A(f's_lshl_b32 s{sP0}, s{sP0}, 1')
    A(f's_mov_b32 s{sP2}, 2')
    vQ = 16; vK = 20; vV = 56; vS = 128; vO = 0
    vNEG = 15
    A('v_and_b32 v10, 63, v0'); A('v_lshlrev_b32 v11, 4, v10     ; lane*16')
    A('v_and_b32 v12, 31, v10'); A('v_lshrrev_b32 v13, 5, v10     ; q, hh')
    A('v_lshl_add_u32 v14, v13, 4, v12'); A('v_lshlrev_b32 v14, 4, v14')
    A('v_lshlrev_b32 v9, 3, v13'); A('v_sub_u32 v9, v12, v9')
    A(f'v_mov_b32 v{vNEG}, 0xff800000')
    A('v_lshlrev_b32 v8, 10, v12'); A('v_lshl_add_u32 v8, v13, 4, v8')
    A('v_cmp_eq_u32 vcc, 16, v12'); A('v_cmp_eq_u32 s[98:99], 20, v12'); A('s_or_b64 vcc, vcc, s[98:99]')
    A('v_mov_b32 v7, 0x3f803f80'); A('v_cndmask_b32 v7, 0, v7, vcc')
    for r in range(72): A(f'v_mov_b32 v{vV+r}, v7')
    A('s_mov_b32 s98, 0x0000ffff'); A('s_mov_b32 s99, 0x0000ffff')
    C = fbits(0.25 * math.log2(math.e))
    A(f's_mov_b32 s{sE3}, {C}')
    A.label('L_at_loop')
    A(f's_lshl_b32 s{sE0}, s{sP1}, 6'); A(f's_add_u32 s{sE0}, s{sE0}, s{sP0}'); A(f's_lshl_b32 s{sE0}, s{sE0}, 10')
    A(f's_add_u32 s{sT0}, s{sE0}, {WS_QA}')
    A(f'buffer_load_dwordx4 {vr(vQ,4)}, v11, {srd(S_WS)}, s{sT0} offen sc1')
    def skip_if_invalid(i, tag):
        if i == 8: return None
        l = A.newlabel(f'L_at{tag}')
        A(f's_cmp_lt_u32 s{sP0}, {8 - i}'); A(f's_cbranch_scc1 {l}')
        return l
    for i in range(9):
        l = skip_if_invalid(i, 'l')
        A(f's_add_u32 s{sT0}, s{sE0}, {WS_KA}'); A(f's_sub_u32 s{sT0}, s{sT0}, {(8 - i) * 1024}')
        A(f'buffer_load_dwordx4 {vr(vK+4*i,4)}, v11, {srd(S_WS)}, s{sT0} offen sc1')
        A(f's_add_u32 s{sT0}, s{sT0}, {WS_VAT - WS_KA}')
        A('s_mov_b64 exec, s[98:99]')
        A(f'buffer_load_dwordx4 {vr(vV+8*i,4)}, v14, {srd(S_WS)}, s{sT0} offen sc1')
        A(f'buffer_load_dwordx4 {vr(vV+8*i+4,4)}, v14, {srd(S_WS)}, s{sT0} offen offset:512 sc1')
        A('s_mov_b64 exec, -1')
        if l: A.label(l)
    A('s_waitcnt vmcnt(0)')
    def sreg(i, r): return (vS + 16 * i + r) if i < 8 else (vK + r)
    for i in range(9):
        l = skip_if_invalid(i, 's')
        if i < 8:
            A(f'v_mfma_f32_32x32x16_bf16 {vr(vS+16*i,16)}, {vr(vK+4*i,4)}, {vr(vQ,4)}, 0')
        else:
            A(f'v_mfma_f32_32x32x16_bf16 {vr(vK,16)}, {vr(vK+32,4)}, {vr(vQ,4)}, 0')
        if l:
            l2 = A.newlabel('L_atv')
            A(f's_branch {l2}')
            A.label(l)
            for r in range(16): A(f'v_mov_b32 v{sreg(i,r)}, v{vNEG}')
            A.label(l2)
    A('s_nop 7'); A('s_nop 7')
    for r in range(16):
        c = 16 * (r // 8) + r % 8
        A(f'v_cmp_gt_i32 vcc, {c}, v9')
        A(f'v_cndmask_b32 v{sreg(0,r)}, v{vNEG}, v{sreg(0,r)}, vcc')
        A(f'v_cndmask_b32 v{sreg(8,r)}, v{sreg(8,r)}, v{vNEG}, vcc')
    allr = [sreg(i, r) for i in range(9) for r in range(16)]
    A(f'v_max3_f32 v2, v{allr[0]}, v{allr[1]}, v{allr[2]}'); A(f'v_max3_f32 v3, v{allr[3]}, v{allr[4]}, v{allr[5]}')
    for k in range(6, 144, 4):
        A(f'v_max3_f32 v2, v2, v{allr[k]}, v{allr[k+1]}')
        if k + 3 < 144: A(f'v_max3_f32 v3, v3, v{allr[k+2]}, v{allr[k+3]}')
    A('v_max_f32 v2, v2, v3'); A('v_mov_b32 v3, v2'); A('v_permlane32_swap_b32 v2, v3'); A('v_max_f32 v2, v2, v3')
    A(f'v_mul_f32 v2, s{sE3}, v2')
    for r in range(16): A(f'v_accvgpr_write_b32 a{r}, 0')
    for i in range(9):
        l = skip_if_invalid(i, 'p')
        for r in range(16): A(f'v_fma_f32 v{sreg(i,r)}, v{sreg(i,r)}, s{sE3}, -v2')
        for r in range(16): A(f'v_exp_f32 v{sreg(i,r)}, v{sreg(i,r)}')
        b = sreg(i, 0)
        for r in range(8): A(f'v_cvt_pk_bf16_f32 v{b+r}, v{b+2*r}, v{b+2*r+1}')
        for u in range(2):
            A(f'v_mfma_f32_32x32x16_bf16 a[0:15], {vr(vV+8*i+4*u,4)}, {vr(b+4*u,4)}, a[0:15]')
        if l: A.label(l)
    A('s_nop 7'); A('s_nop 7')
    for r in range(9): A(f'v_accvgpr_read_b32 v{vS+r}, a{r}')
    A(f'v_rcp_f32 v2, v{vS+8}')
    for r in range(8): A(f'v_mul_f32 v{vS+r}, v{vS+r}, v2')
    for r in range(4): A(f'v_cvt_pk_bf16_f32 v{vS+16+r}, v{vS+2*r}, v{vS+2*r+1}')
    A(f's_lshl_b32 s{sT0}, s{sP0}, 15'); A(f's_lshl_b32 s{sT1}, s{sP1}, 5'); A(f's_add_u32 s{sT0}, s{sT0}, s{sT1}'); A(f's_add_u32 s{sT0}, s{sT0}, {WS_OA}')
    A(f'buffer_store_dwordx4 {vr(vS+16,4)}, v8, {srd(S_WS)}, s{sT0} offen sc1')
    A(f's_add_u32 s{sP0}, s{sP0}, 1'); A(f's_sub_u32 s{sP2}, s{sP2}, 1'); A(f's_cmp_lg_u32 s{sP2}, 0'); A('s_cbranch_scc1 L_at_loop')
    signal(A, S_DBG, off=4 * DBG_CAT)
    A('s_branch L_next')

def gen_sv(A):
    sSEG, sHG, sCB, sHD = sP0, sP1, sP2, 92
    A.label('L_task_sv')
    A(f's_sub_u32 s{sT0}, s{sTK}, {T_SV}'); A(f's_lshr_b32 s{sSEG}, s{sT0}, 4'); A(f's_bfe_u32 s{sHG}, s{sT0}, 0x30001'); A(f's_and_b32 s{sCB}, s{sT0}, 1')
    copy_srd(A, sGB, S_WO)
    A(f's_mov_b32 s{sLDB}, 1024')
    A(f's_lshl_b32 s{sBOFF}, s{sHG}, 19'); A(f's_lshl_b32 s{sT0}, s{sCB}, 9'); A(f's_add_u32 s{sBOFF}, s{sBOFF}, s{sT0}')
    WS.load_w(A)
    WS.setup_a(A)
    A(f's_lshl_b32 s{sHD}, s{sHG}, 2'); A(f's_add_u32 s{sHD}, s{sHD}, s{sW}     ; head')
    for i in range(16): wait_cnt(A, S_DBG, KVQ_DONE, off=4 * (DBG_KV + i), sleep=32)
    vQ = 136; vKV = 168; vKM = 232; vVM = 16; vS = 32; vP = 56; vO = 72; vONE = 248
    vL16, vKMA, vVMA, vD, vNEG, vOW, vPW, vRD = 108, 109, 110, 111, 112, 113, 117, 118
    lane_consts(A)
    A(f'v_lshlrev_b32 v{vL16}, 4, v10')
    A('v_lshrrev_b32 v14, 2, v11'); A('v_and_b32 v15, 1, v11'); A('v_lshl_add_u32 v14, v14, 1, v15'); A('v_lshlrev_b32 v14, 8, v14'); A(f'v_lshl_add_u32 v{vKMA}, v12, 4, v14')
    A('v_lshrrev_b32 v14, 2, v11'); A('v_and_b32 v15, 3, v11'); A('v_lshl_add_u32 v14, v14, 3, v15   ; kappa0(n)')
    A('v_lshlrev_b32 v9, 3, v12'); A(f'v_sub_u32 v{vD}, v14, v9')
    A('v_lshlrev_b32 v9, 4, v14'); A(f'v_lshl_add_u32 v{vVMA}, v12, 2, v9')
    A('v_lshlrev_b32 v13, 10, v14'); A(f's_lshl_b32 s{sT0}, s{sW}, 8'); A(f'v_add_u32 v13, s{sT0}, v13')
    for wp in range(4):
        A(f'v_add_u32 v9, {4 * wp}, v12'); A('v_xor_b32 v9, v9, v11'); A(f'v_lshl_add_u32 v{vOW + wp}, v9, 4, v13')
    A('v_lshlrev_b32 v13, 10, v14'); A(f'v_add_u32 v13, s{sT0}, v13'); A(f'v_lshl_add_u32 v{vPW}, v12, 5, v13')
    A(f'v_mov_b32 v{vNEG}, 0xff800000')
    for r in range(4): A(f'v_mov_b32 v{vONE+r}, 0x3f803f80')
    C = fbits(128 ** -0.5 * math.log2(math.e))
    A(f's_mov_b32 s{sE3}, {C}')
    def qkv_loads(segreg):
        A(f's_lshl_b32 s{sT1}, s{segreg}, 5'); A(f's_add_u32 s{sT1}, s{sT1}, s{sHD}')
        A(f's_lshl_b32 s{sT0}, s{sT1}, 13'); A(f's_add_u32 s{sT0}, s{sT0}, {WS_QF}')
        for i in range(8):
            if i == 4: A(f's_add_u32 s{sT0}, s{sT0}, 4096')
            A(f'buffer_load_dwordx4 {vr(vQ+4*i,4)}, v{vL16}, {srd(S_WS)}, s{sT0} offen offset:{1024*(i%4)} sc1')
        A(f's_lshl_b32 s{sT0}, s{sT1}, 14'); A(f's_add_u32 s{sT0}, s{sT0}, {WS_KVF}')
        for i in range(16):
            if i and i % 4 == 0: A(f's_add_u32 s{sT0}, s{sT0}, 4096')
            A(f'buffer_load_dwordx4 {vr(vKV+4*i,4)}, v{vL16}, {srd(S_WS)}, s{sT0} offen offset:{1024*(i%4)} sc1')
    qkv_loads(sSEG)
    A.label('L_sv_loop')
    A(f's_lshl_b32 s{sE0}, s{sSEG}, 5'); A(f's_add_u32 s{sE0}, s{sE0}, s{sHD}     ; seg*32+h')
    A('s_waitcnt vmcnt(0)')
    for qt in range(2):
        for kt in range(2):
            d = vS + 12 * qt + 4 * kt
            for w in range(4):
                A(f'v_mfma_f32_16x16x32_bf16 {vr(d,4)}, {vr(vKV + 16 * w + 4 * kt, 4)}, {vr(vQ+8*w+4*qt,4)}, {vr(d,4) if w else 0}')
    A(f's_lshl_b32 s{sT3}, s{sHD}, 2'); A(f's_add_u32 s{sT3}, s{sT3}, {4 * DBG_PROG}')
    A(f's_add_u32 s{sE1}, s{sSEG}, 1')
    wait_cnt(A, S_DBG, f's{sE1}', off_sgpr=sT3, sleep=2, adaptive=True)
    A(f's_lshl_b32 s{sT0}, s{sE0}, 11'); A(f's_add_u32 s{sT0}, s{sT0}, {WS_KM}')
    for w in range(4): A(f'buffer_load_dwordx4 {vr(vKM+4*w,4)}, v{vKMA}, {srd(S_WS)}, s{sT0} offen offset:{64*w} sc1')
    A(f's_add_u32 s{sT0}, s{sT0}, {WS_VMT - WS_KM}')
    for w in range(4):
        for a in range(2):
            A(f'buffer_load_dword v{vVM+4*w+2*a}, v{vVMA}, {srd(S_WS)}, s{sT0} offen offset:{512*w+64*a} sc1')
            A(f'v_mov_b32 v{vVM+4*w+2*a+1}, 0')
    for qt in range(2):
        b = vS + 12 * qt
        for kt in range(2):
            for r in range(4):
                c = 4 * kt + r - 4 * qt
                A(f'v_cmp_gt_i32 vcc, {c}, v{vD}')
                A(f'v_cndmask_b32 v{b+4*kt+r}, v{b+4*kt+r}, v{vNEG}, vcc')
    A('s_waitcnt vmcnt(8)')
    for qt in range(2):
        d = vS + 12 * qt + 8
        for w in range(4):
            A(f'v_mfma_f32_16x16x32_bf16 {vr(d,4)}, {vr(vKM + 4 * w, 4)}, {vr(vQ+8*w+4*qt,4)}, {vr(d,4) if w else 0}')
    A('s_barrier')
    for qt in range(2):
        b = vS + 12 * qt
        A(f'v_max3_f32 v2, v{b}, v{b+1}, v{b+2}'); A(f'v_max3_f32 v3, v{b+3}, v{b+4}, v{b+5}')
        A(f'v_max3_f32 v2, v2, v{b+6}, v{b+7}'); A(f'v_max3_f32 v3, v3, v{b+8}, v{b+9}'); A('v_max_f32 v2, v2, v3')
        A('v_mov_b32 v3, v2'); A('v_permlane16_swap_b32 v2, v3'); A('v_max_f32 v2, v2, v3')
        A('v_mov_b32 v3, v2'); A('v_permlane32_swap_b32 v2, v3'); A('v_max_f32 v2, v2, v3')
        A(f'v_mul_f32 v2, s{sE3}, v2')
        for r in range(10): A(f'v_fma_f32 v{b+r}, v{b+r}, s{sE3}, -v2')
        for r in range(10): A(f'v_exp_f32 v{b+r}, v{b+r}')
        p = vP + 8 * qt
        for r in range(5): A(f'v_cvt_pk_bf16_f32 v{p+r}, v{b+2*r}, v{b+2*r+1}')
        A(f'v_mov_b32 v{p+5}, 0')
        o = vO
        if qt == 0: A('s_waitcnt vmcnt(0)')
        A(f'v_mfma_f32_16x16x32_bf16 {vr(o+32,4)}, {vr(vONE,4)}, {vr(p,4)}, 0')
        for w in range(4):
            for a in range(2):
                d = o + 8 * w + 4 * a
                A(f'v_mfma_f32_16x16x32_bf16 {vr(d,4)}, {vr(vKV+16*w+8+4*a,4)}, {vr(p,4)}, 0')
        A(f'v_mfma_f32_16x16x16_bf16 {vr(o+32,4)}, {vr(vONE,2)}, {vr(p+4,2)}, {vr(o+32,4)}')
        for w in range(4):
            for a in range(2):
                d = o + 8 * w + 4 * a
                A(f'v_mfma_f32_16x16x16_bf16 {vr(d,4)}, {vr(vVM+4*w+2*a,2)}, {vr(p+4,2)}, {vr(d,4)}')
        A(f'v_rcp_f32 v2, v{o+32}')
        for r in range(32): A(f'v_mul_f32 v{o+r}, v{o+r}, v2')
        for w in range(4):
            d = o + 8 * w
            for r in range(4): A(f'v_cvt_pk_bf16_f32 v{d+r}, v{o+8*w+2*r}, v{o+8*w+2*r+1}')
            A(f'ds_write_b128 v{vOW+w}, {vr(d,4)} offset:{4096*qt}')
    A(f's_add_u32 s93, s{sSEG}, {NSET}'); A('s_min_u32 s93, s93, 63')
    qkv_loads(93)
    A('s_waitcnt lgkmcnt(0)')
    A('s_barrier')
    WS.compute(A, 0, 'T', TM=2)
    A(f's_lshl_b32 s{sE2}, s{sSEG}, 1'); A(f's_add_u32 s{sE2}, s{sE2}, s{sCB}      ; seg*2+cb')
    A(f's_lshl_b32 s{sE1}, s{sE2}, 18'); A(f's_add_u32 s{sE1}, s{sE1}, {WS_PART}')
    A(f's_lshl_b32 s{sT0}, s{sHG}, 15'); A(f's_add_u32 s{sT0}, s{sT0}, s{sE1}')
    for tm in range(2):
        if tm: A(f's_add_u32 s{sT0}, s{sT0}, 4096')
        for tn in range(4):
            A(f'buffer_store_dwordx4 {vr(WS.vACC + 4 * (tm * 4 + tn), 4)}, v{vPW}, {srd(S_WS)}, s{sT0} offen offset:{128 * (tn // 2) + 16 * (tn % 2)} sc1')
    A(f's_lshl_b32 s{sT3}, s{sE2}, 2'); A(f's_add_u32 s{sT3}, s{sT3}, {WS_CNT}')
    signal(A, S_WS, off_expr_sgpr=sT3)
    wait_cnt(A, S_WS, 8, off_sgpr=sT3, sleep=1)
    A(f's_lshl_b32 s{sT0}, s{sHD}, 10'); A(f's_add_u32 s{sT0}, s{sT0}, s{sE1}')
    for i in range(8):
        A(f'buffer_load_dwordx4 {vr(vO + 4 * i, 4)}, v{vL16}, {srd(S_WS)}, s{sT0} offen sc1')
        if i < 7: A(f's_add_u32 s{sT0}, s{sT0}, 32768')
    A('s_waitcnt vmcnt(0)')
    for st in (16, 8, 4):
        for r in range(st): A(f'v_add_f32 v{vO+r}, v{vO+r}, v{vO+st+r}')
    A(f'v_cvt_pk_bf16_f32 v{vO+4}, v{vO}, v{vO+1}'); A(f'v_cvt_pk_bf16_f32 v{vO+5}, v{vO+2}, v{vO+3}')
    A(f'v_lshrrev_b32 v{vRD}, 1, v{vL16}')
    A(f's_lshl_b32 s{sT0}, s{sE0}, 11'); A(f's_lshl_b32 s{sT1}, s{sCB}, 9'); A(f's_add_u32 s{sT0}, s{sT0}, s{sT1}'); A(f's_add_u32 s{sT0}, s{sT0}, 1024')
    A(f'buffer_store_dwordx2 {vr(vO+4,2)}, v{vRD}, {srd(S_OUT)}, s{sT0} offen')
    if TRACE or LITE:
        A('s_memrealtime s[94:95]'); A('s_waitcnt lgkmcnt(0)')
        A(f's_lshl_b32 s96, s{sE2}, 3'); A(f's_add_u32 s96, s96, s{sHG}'); A('s_lshl_b32 s96, s96, 2'); A(f's_add_u32 s96, s96, {111*MB}')
        A('v_mov_b32 v120, s94'); A('v_mov_b32 v121, s96')
        A(f'buffer_store_dword v120, v121, {srd(S_WS)}, 0 offen')
    A(f's_add_u32 s{sSEG}, s{sSEG}, {NSET}')
    A(f's_cmp_lt_u32 s{sSEG}, 64'); A('s_cbranch_scc1 L_sv_loop')
    A('s_branch L_next')

def gen_worker(A):
    A.label('L_worker')
    A(f's_mov_b32 s{sTK}, 4000')
    A.label('L_next')
    A('s_barrier')
    trace(A, 2)
    l = A.newlabel('L_ntk')
    A(f's_cmp_lg_u32 s{sW}, 0'); A(f's_cbranch_scc1 {l}')
    A('v_mov_b32 v120, 1'); A(f'v_mov_b32 v121, {4 * DBG_QUEUE}'); A(f'v_mov_b32 v122, {LDS_TICK}')
    A('s_mov_b64 exec, 1')
    A(f'buffer_atomic_add v120, v121, {srd(S_DBG)}, 0 offen sc0')
    A('s_waitcnt vmcnt(0)')
    A('ds_write_b32 v122, v120')
    A('s_mov_b64 exec, -1')
    A('s_waitcnt lgkmcnt(0)')
    A.label(l)
    A('s_barrier')
    A(f'v_mov_b32 v122, {LDS_TICK}')
    A('ds_read_b32 v120, v122')
    A('s_waitcnt lgkmcnt(0)')
    A(f'v_readfirstlane_b32 s{sTK}, v120')
    trace(A, 0)
    A(f's_cmp_lt_u32 s{sTK}, {T_Q}'); A('s_cbranch_scc1 L_task_kv')
    A(f's_cmp_lt_u32 s{sTK}, {T_G2}'); A('s_cbranch_scc1 L_task_q')
    A(f's_cmp_lt_u32 s{sTK}, {T_SV}'); A('s_cbranch_scc1 L_task_g2')
    A(f's_cmp_lt_u32 s{sTK}, {T_AT}'); A('s_cbranch_scc1 L_task_sv')
    A(f's_cmp_lt_u32 s{sTK}, {T_G3}'); A('s_cbranch_scc1 L_task_at')
    A(f's_cmp_lt_u32 s{sTK}, {T_END}'); A('s_cbranch_scc1 L_task_g3')
    A('s_branch L_end0')
    gen_g1(A); gen_g2(A); gen_g3(A); gen_at(A); gen_sv(A)
```

```python
import sys
from asmlib import *
from common import *
import rec, workers
from rec import sW, sH, sMODE, sT0, sT1, LDS_MISC
OPT = sys.argv[1:]
FORCE_SLOW = 'slow' in OPT
A = Asm()
workers.TRACE = 'trace' in OPT
workers.LITE = 'lite' in OPT
TR = workers.TRACE or workers.LITE
def htrace(slot):
    if not TR: return
    A('s_memrealtime s[94:95]'); A('s_waitcnt lgkmcnt(0)')
    A(f's_lshl_b32 s96, s{sH}, 4'); A(f's_add_u32 s96, s96, {109*MB + 4*slot}')
    A('v_mov_b32 v120, s94'); A('v_mov_b32 v121, s96')
    A(f'buffer_store_dword v120, v121, {srd(S_WS)}, 0 offen')
A('s_cmp_ge_u32 s2, 256'); A('s_cbranch_scc1 L_end')
if TR: A('s_memrealtime s[100:101]')
A('s_load_dwordx16 s[72:87], s[0:1], 0')
A('s_load_dwordx8 s[88:95], s[0:1], 64')
A('s_load_dwordx2 s[96:97], s[0:1], 96')
A('s_waitcnt lgkmcnt(0)')
sizes = {S_AX: (72, 2097152), S_AWQKV: (74, 1572864), S_AWO: (76, 524288), S_BX: (78, 2097152), S_MEM0: (80, 8192),
         S_WQ: (82, 4194304), S_WK: (84, 4194304), S_WV: (86, 4194304), S_WO: (88, 4194304), S_OUT: (92, 4194304),
         S_DBG: (94, 256), S_WS: (96, WS_SIZE)}
for b, (src, sz) in sizes.items():
    A(f's_mov_b32 s{b}, s{src}'); A(f's_mov_b32 s{b+1}, s{src+1}'); A(f's_mov_b32 s{b+2}, {sz}'); A(f's_mov_b32 s{b+3}, 0x20000')
A('v_lshrrev_b32 v1, 6, v0'); A(f'v_readfirstlane_b32 s{sW}, v1')
A(f's_cmp_lg_u32 s{sW}, 0'); A('s_cbranch_scc1 L_role_wait')
A(f's_getreg_b32 s{sT0}, hwreg(HW_REG_XCC_ID)'); A(f's_and_b32 s{sT0}, s{sT0}, 15')
if FORCE_SLOW:
    A(f's_and_b32 s{sT1}, s2, 31'); A(f's_cmp_eq_u32 s{sT1}, 5'); A(f's_cselect_b32 s{sT0}, 0, 1')
A('s_mov_b64 exec, 1')
A('s_mov_b32 s72, 64')
A(f's_cmp_lg_u32 s{sT0}, 0'); A('s_cbranch_scc1 L_role_tot')
A('v_mov_b32 v4, 1'); A(f'v_mov_b32 v3, {4*DBG_TICK0}')
A(f'buffer_atomic_add v4, v3, {srd(S_DBG)}, 0 offen sc0')
A('s_waitcnt vmcnt(0)')
A('v_readfirstlane_b32 s72, v4')
A.label('L_role_tot')
A('v_mov_b32 v4, 1'); A(f'v_mov_b32 v3, {4*DBG_TOTAL}')
A(f'buffer_atomic_add v4, v3, {srd(S_DBG)}, 0 offen')
A('v_mov_b32 v3, 0')
A.label('L_role_poll')
A(f'buffer_load_dwordx2 v[4:5], v3, {srd(S_DBG)}, 0 offen sc1')
A('s_waitcnt vmcnt(0)')
A('v_readfirstlane_b32 s73, v4'); A('v_readfirstlane_b32 s74, v5')
A('s_cmp_ge_u32 s73, 32'); A('s_cbranch_scc1 L_role_fast')
A('s_cmp_ge_u32 s74, 256'); A('s_cbranch_scc1 L_role_slow0')
A('s_sleep 2')
A('s_branch L_role_poll')
A.label('L_role_slow0')
A(f'buffer_load_dword v4, v3, {srd(S_DBG)}, 0 offen sc1')
A('s_waitcnt vmcnt(0)')
A('v_readfirstlane_b32 s73, v4')
A('s_cmp_ge_u32 s73, 32'); A('s_cbranch_scc1 L_role_fast')
A('s_cmp_lt_u32 s72, 32'); A('s_cbranch_scc1 L_role_slowhead')
A('v_mov_b32 v4, 1'); A(f'v_mov_b32 v3, {4*DBG_FALLB}')
A(f'buffer_atomic_add v4, v3, {srd(S_DBG)}, 0 offen sc0')
A('s_waitcnt vmcnt(0)')
A('v_readfirstlane_b32 s72, v4')
A('s_add_u32 s72, s72, s73')
A.label('L_role_slowhead')
A('s_or_b32 s75, s72, 0x300')
A('s_cmp_lt_u32 s72, 32'); A('s_cselect_b32 s75, s75, 0')
A('s_branch L_role_pub')
A.label('L_role_fast')
A('s_or_b32 s75, s72, 0x100')
A('s_cmp_lt_u32 s72, 32'); A('s_cselect_b32 s75, s75, 0')
A.label('L_role_pub')
A('v_mov_b32 v4, s75'); A(f'v_mov_b32 v3, {LDS_MISC}')
A('ds_write_b32 v3, v4')
A('s_mov_b64 exec, -1')
A('s_waitcnt lgkmcnt(0)')
A.label('L_role_wait')
A('s_barrier')
A(f'v_mov_b32 v3, {LDS_MISC}')
A('ds_read_b32 v4, v3')
A('s_waitcnt lgkmcnt(0)')
A('v_readfirstlane_b32 s75, v4')
A('s_barrier')
A('s_bitcmp1_b32 s75, 8'); A('s_cbranch_scc0 L_worker')
A(f's_and_b32 s{sH}, s75, 31'); A(f's_bfe_u32 s{sMODE}, s75, 0x10009')
htrace(0)
rec.gen_setup(A)
rec.gen_init_exchange(A)
rec.gen_load_weights(A)
htrace(1)
rec.gen_wait_init(A)
rec.gen_mem0(A)
rec.gen_setup2(A)
A(f's_cmp_lg_u32 s{sMODE}, 0'); A('s_cbranch_scc1 L_rec_slow')
rec.gen_steps(A, 'f', 64, kvwait=rec.kvwait, prof=72 if 'prof' in OPT else None, opt=OPT)
htrace(2)
A('s_branch L_worker')
A.label('L_rec_slow')
rec.gen_steps(A, 's', 64, kvwait=rec.kvwait)
A('s_branch L_worker')
workers.gen_worker(A)
A.label('L_end0')
if TR:
    A('s_memrealtime s[94:95]'); A('s_waitcnt lgkmcnt(0)')
    A('s_lshl_b32 s96, s2, 3'); A(f's_add_u32 s96, s96, {112*MB}')
    A('v_mov_b32 v120, s100'); A('v_mov_b32 v121, s94'); A('v_mov_b32 v122, s96')
    A(f'buffer_store_dwordx2 v[120:121], v122, {srd(S_WS)}, 0 offen')
A.label('L_end')
A('s_endpgm')
body = A.finalize()
hdr = open('concat_heads__sliding_block__memory_aug_recurrent_mem_tr__prompt.s.ref').read().split('; Override launch')[0]
print(f'''{hdr}; @launch grid=(256,1,1) block=(256,1,1) lds=163840
.amdgcn_target "amdgcn-amd-amdhsa--gfx950"
.text
.globl {KNAME}
.p2align 8
.type {KNAME},@function
{KNAME}:
{body}
.section .rodata,"a"
.p2align 6
.amdhsa_kernel {KNAME}
  .amdhsa_next_free_vgpr 512
  .amdhsa_next_free_sgpr 102
  .amdhsa_accum_offset 256
  .amdhsa_group_segment_fixed_size 0
  .amdhsa_kernarg_size 104
  .amdhsa_user_sgpr_count 2
  .amdhsa_user_sgpr_kernarg_segment_ptr 1
  .amdhsa_system_sgpr_workgroup_id_x 1
.end_amdhsa_kernel
''')
```

```python
from asmlib import *
from common import *
import math

sW, sH, sSTEP, sPSL, sMCUR, sMNXT, sT0, sT1, sT2, sKXO, sVXO, sKMO, sMODE, sT3 = range(56, 70)
sEX = 70
vIDX = 1; vID = 2; vSEL = 4
vL16H, vHOME, vMP, vPST, vPLD, vMPUB, vKX, vVX, vKM, vVM, vSW, vSR, vOW = range(8, 21)
vNEG1 = 21
vFR = 24
vQK = 56
vVA = 72
vSTG = 80
vKXR = 104
vVXR = 112
vTMP = 120
vT2 = 22
vSR2T = 119
vSR2 = 0
LDS_MEM = 131072
LDS_SX = LDS_MEM + 8192
LDS_O = LDS_SX + 6144
LDS_KV = LDS_O + 2048
LDS_MISC = LDS_SX
NSTG = 3
assert LDS_KV + 16384 == 163840
vPB = vFR
sFO = 90

def vr(b, n): return f'v[{b}:{b+n-1}]'

def operand_order():
    ops = []
    for i in range(2):
        for m, a in (('k', 0), ('q', 0), ('k', 1), ('q', 1), ('v', 0), ('v', 1)): ops.append((m, a, i))
    for a in range(2):
        for i in range(2, 8):
            ops.append(('k', a, i)); ops.append(('q', a, i))
    for i in range(2, 8):
        ops.append(('v', 0, i)); ops.append(('v', 1, i))
    for a in range(8):
        for ks in range(2):
            ops.append(('o', a, ks))
    return ops
OPS = operand_order()
HOMED = [3, 7, 11] + [15, 19, 23, 27, 31, 35] + [36, 38] + [48 + i for i in (1, 4, 7, 10, 13)]
assert len(HOMED) == 16
LOC = {}
_r = 0
for i, o in enumerate(OPS):
    if i in HOMED:
        LOC[o] = ('lds', HOMED.index(i))
    else:
        LOC[o] = ('a', 8 * _r) if _r < 32 else ('v', 128 + 8 * (_r - 32))
        _r += 1
assert _r == 48

class Cnt:
    def __init__(self, A, name, maxv): self.A = A; self.name = name; self.maxv = maxv; self.q = []
    def issue(self, tag=None): self.q.append(tag)
    def wait(self, tag):
        if tag not in self.q: return
        idx = len(self.q) - 1 - self.q[::-1].index(tag)
        n = len(self.q) - 1 - idx
        n = min(n, self.maxv)
        self.A(f's_waitcnt {self.name}({n})')
        self.q = self.q[len(self.q) - n:] if n else []
    def all(self):
        self.A(f's_waitcnt {self.name}(0)'); self.q = []

def gen_setup(A):
    A('s_mov_b32 s4, 0x33333333'); A('s_mov_b32 s5, 0x33333333'); A('s_mov_b32 s6, 0xcccccccc'); A('s_mov_b32 s7, 0xcccccccc')
    A('v_and_b32 v120, 63, v0            ; lane')
    A('v_and_b32 v121, 15, v120          ; n = lane%16')
    A('v_lshrrev_b32 v122, 4, v120       ; g = lane/16')
    A(f'v_mov_b32 v{vNEG1}, -1')
    A('v_and_b32 v123, 2, v121')
    A('v_cmp_eq_u32 vcc, 0, v123')
    A(f'v_mov_b32 v124, 0xeeeeeeee')
    A(f'v_mov_b32 v125, 0x44444444')
    A(f'v_cndmask_b32 v{vIDX}, v124, v125, vcc')
    A('v_lshrrev_b32 v123, 2, v121')
    A('v_and_b32 v124, 3, v121           ; e')
    A('v_and_b32 v125, 1, v124')
    A('v_lshlrev_b32 v125, 4, v125       ; shift 0/16')
    A('v_mov_b32 v126, 0x3f80')
    A('v_lshlrev_b32 v126, v125, v126')
    A('v_cmp_eq_u32 vcc, v123, v122')
    A('v_cndmask_b32 v126, 0, v126, vcc')
    A('v_cmp_gt_u32 vcc, 2, v124')
    A(f'v_cndmask_b32 v{vID}, 0, v126, vcc')
    A(f'v_cndmask_b32 v{vID+1}, v126, 0, vcc')
    A('v_and_b32 v125, 1, v121')
    A('v_lshlrev_b32 v125, 4, v125')
    A('v_mov_b32 v126, 0x3f80')
    A('v_lshlrev_b32 v126, v125, v126')
    A('v_lshrrev_b32 v123, 1, v121       ; m/2 (0..7)')
    for r in range(4):
        A(f'v_cmp_eq_u32 vcc, {r}, v123')
        A(f'v_cndmask_b32 v{vSEL+r}, 0, v126, vcc')
    A(f'v_lshlrev_b32 v123, 4, v120      ; lane*16')
    A(f'v_add_u32 v{vL16H}, {LDS_MEM}, v123')
    A(f's_lshl_b32 s{sT0}, s{sW}, 15')
    A(f'v_add_u32 v{vHOME}, s{sT0}, v123')
    A(f's_lshl_b32 s{sT0}, s{sW}, 11')
    A(f'v_add_u32 v{vMP}, s{sT0}, v{vL16H}')
    A('v_lshrrev_b32 v123, 2, v121       ; q')
    A('v_and_b32 v124, 3, v121           ; e')
    A(f's_lshl_b32 s{sT0}, s{sW}, 16'); A(f's_lshl_b32 s{sT1}, s{sH}, 8'); A(f's_add_u32 s{sT0}, s{sT0}, s{sT1}')
    A('v_lshlrev_b32 v125, 13, v123'); A('v_lshlrev_b32 v126, 6, v122'); A('v_lshlrev_b32 v127, 4, v124')
    A(f'v_add3_u32 v{vPST}, v125, v126, v127'); A(f'v_add_u32 v{vPST}, s{sT0}, v{vPST}')
    A(f's_lshl_b32 s{sT0}, s{sH}, 13'); A(f's_lshl_b32 s{sT1}, s{sW}, 6'); A(f's_add_u32 s{sT0}, s{sT0}, s{sT1}')
    A('v_lshlrev_b32 v125, 10, v123'); A('v_lshlrev_b32 v126, 8, v122')
    A(f'v_add3_u32 v{vPLD}, v125, v126, v127'); A(f'v_add_u32 v{vPLD}, s{sT0}, v{vPLD}')
    A(f's_lshl_b32 s{sT0}, s{sH}, 8'); A(f's_lshl_b32 s{sT1}, s{sW}, 6'); A(f's_add_u32 s{sT0}, s{sT0}, s{sT1}')
    A('v_lshlrev_b32 v125, 5, v122'); A('v_lshlrev_b32 v126, 2, v121')
    A(f'v_add3_u32 v{vMPUB}, v125, v126, s{sT0}')
    A('v_lshlrev_b32 v126, 4, v120')
    A(f's_lshl_b32 s{sT0}, s{sH}, 14'); A(f's_lshl_b32 s{sT1}, s{sW}, 12'); A(f's_add_u32 s{sT0}, s{sT0}, s{sT1}')
    A(f'v_add_u32 v{vKX}, s{sT0}, v126')
    A(f's_add_u32 s{sT1}, s{sT1}, {LDS_KV}')
    A(f'v_add_u32 v{vVX}, s{sT1}, v126')
    A('v_lshlrev_b32 v125, 3, v123'); A('v_add_u32 v125, v125, v124   ; 8(m/4)+m%4')
    A('v_lshlrev_b32 v127, 4, v125'); A('v_lshlrev_b32 v126, 2, v122')
    A(f's_lshl_b32 s{sT0}, s{sH}, 11'); A(f's_lshl_b32 s{sT1}, s{sW}, 9'); A(f's_add_u32 s{sT0}, s{sT0}, s{sT1}')
    A(f'v_add3_u32 v{vVM}, v127, v126, s{sT0}')
    A('v_and_b32 v125, 1, v121'); A('v_lshl_add_u32 v125, v123, 1, v125   ; t')
    A('v_lshlrev_b32 v127, 8, v125'); A('v_lshlrev_b32 v126, 4, v122')
    A(f's_lshl_b32 s{sT0}, s{sH}, 11'); A(f's_lshl_b32 s{sT1}, s{sW}, 6'); A(f's_add_u32 s{sT0}, s{sT0}, s{sT1}')
    A(f'v_add3_u32 v{vKM}, v127, v126, s{sT0}')
    A('v_lshrrev_b32 v126, 1, v122'); A('v_lshlrev_b32 v126, 8, v126    ; (g/2)*256')
    A('v_and_b32 v127, 1, v122'); A('v_lshlrev_b32 v127, 5, v127     ; half*32')
    A('v_and_b32 v125, 1, v121'); A('v_lshlrev_b32 v125, 4, v125'); A('v_lshl_add_u32 v125, v123, 6, v125   ; (n/4)*64 + (n&1)*16')
    A(f'v_add3_u32 v{vOW}, v125, v126, v127')
    A(f's_lshl_b32 s{sT0}, s{sW}, 9'); A(f's_add_u32 s{sT0}, s{sT0}, {LDS_O}')
    A(f'v_add_u32 v{vOW}, s{sT0}, v{vOW}')
    A('v_lshrrev_b32 v125, 2, v120'); A('v_and_b32 v126, 1, v120'); A('v_lshl_add_u32 v125, v125, 1, v126')
    A('v_mul_u32_u24 v125, 48, v125')
    A(f's_mul_i32 s{sT0}, s{sW}, 1536'); A(f's_add_u32 s{sT0}, s{sT0}, {LDS_SX}')
    A(f'v_add_u32 v{vSW}, s{sT0}, v125')
    A('v_and_b32 v126, 2, v121')
    A('v_cmp_eq_u32 vcc, 0, v126')
    A(f'v_mov_b32 v126, {LDS_SX}'); A(f'v_mov_b32 v127, {LDS_SX + 16}')
    A('v_cndmask_b32 v126, v126, v127, vcc')
    A(f'v_add_u32 v{vSR}, v125, v126')
    A(f'v_mov_b32 v126, {LDS_SX + 32}'); A(f'v_mov_b32 v127, {LDS_SX + 36}')
    A('v_cndmask_b32 v126, v126, v127, vcc')
    A(f'v_add_u32 v{vSR2T}, v125, v126')

def gen_load_weights(A):
    A('v_and_b32 v120, 63, v0'); A('v_and_b32 v121, 15, v120'); A('v_lshrrev_b32 v122, 4, v120')
    vD = 24
    vDO = 28
    vTQ = 32
    vTO = 33
    vTT = 40
    vW2 = 36
    vDT = 72
    for i in range(4):
        A(f'v_xor_b32 v123, {i << 2}, v121')
        A('v_lshlrev_b32 v123, 4, v123')
        A(f'v_add_u32 v124, {4 * i}, v122')
        A('v_lshlrev_b32 v124, 13, v124')
        A(f's_lshl_b32 s{sT0}, s{sW}, 17'); A(f's_lshl_b32 s{sT1}, s{sH}, 8'); A(f's_add_u32 s{sT0}, s{sT0}, s{sT1}')
        A(f'v_add3_u32 v{vD+i}, v123, v124, s{sT0}')
        A(f'v_lshrrev_b32 v{vW2+i}, 6, v123'); A(f'v_lshlrev_b32 v{vW2+i}, 1, v{vW2+i}')
    for i in range(4):
        sw = (i & 1) | ((i >> 1) << 3)
        A(f'v_xor_b32 v123, {sw}, v121')
        A('v_lshrrev_b32 v125, 3, v123       ; u')
        A('v_and_b32 v123, 7, v123')
        A('v_lshlrev_b32 v123, 4, v123')
        A('v_lshl_add_u32 v123, v125, 8, v123')
        A(f'v_add_u32 v124, {4 * i}, v122')
        A('v_lshlrev_b32 v124, 10, v124')
        A(f's_lshl_b32 s{sT0}, s{sW}, 14'); A(f's_lshl_b32 s{sT1}, s{sH}, 17'); A(f's_add_u32 s{sT0}, s{sT0}, s{sT1}')
        A(f'v_add3_u32 v{vDO+i}, v123, v124, s{sT0}')
    A('v_lshrrev_b32 v123, 2, v121    ; r'); A('v_and_b32 v124, 3, v121   ; q')
    A('v_lshrrev_b32 v125, 1, v122'); A('v_lshlrev_b32 v125, 4, v125'); A('v_and_b32 v126, 1, v122'); A('v_lshlrev_b32 v126, 1, v126')
    A('v_lshlrev_b32 v127, 2, v123    ; 4r = 8(r/2)+4(r%2)')
    A('v_add3_u32 v125, v125, v126, v127   ; row')
    A(f's_lshl_b32 s{sT0}, s{sW}, 2')
    A(f'v_add_u32 v126, s{sT0}, v124      ; chunk = 4w+q')
    A('v_xor_b32 v126, v126, v127         ; ^ (r<<2)')
    A('v_lshlrev_b32 v126, 4, v126')
    A(f'v_lshl_add_u32 v{vTQ}, v125, 8, v126')
    A(f'v_add_u32 v{vTQ}, {LDS_MEM}, v{vTQ}')
    A('v_and_b32 v126, 1, v122    ; g%2'); A('v_lshrrev_b32 v127, 1, v123   ; r/2')
    A('v_lshrrev_b32 v125, 1, v122'); A('v_lshlrev_b32 v125, 4, v125')
    A('v_lshl_add_u32 v125, v126, 2, v125'); A('v_lshl_add_u32 v125, v127, 3, v125')
    A('v_and_b32 v34, 1, v123'); A('v_add_u32 v125, v125, v34     ; row')
    A(f's_and_b32 s{sT0}, s{sW}, 1'); A(f's_lshl_b32 s{sT0}, s{sT0}, 3')
    A(f'v_lshlrev_b32 v34, 1, v124'); A(f'v_add_u32 v34, s{sT0}, v34    ; 8u+2q')
    A('v_lshl_add_u32 v126, v127, 3, v126   ; swz')
    A('v_xor_b32 v34, v34, v126')
    A('v_lshlrev_b32 v34, 4, v34')
    A(f'v_lshl_add_u32 v{vTO}, v125, 8, v34')
    A(f'v_add_u32 v{vTO}, {LDS_MEM}, v{vTO}')
    A(f'v_xor_b32 v{vTO+1}, 16, v{vTO}')
    chunks = [(m, ks) for m in 'qkv' for ks in range(8)] + [('o', c) for c in range(8)]
    def dma(ci):
        m, x = chunks[ci]
        buf = LDS_MEM + (ci % 2) * 16384
        for i in range(4):
            A(f's_lshl_b32 s{sT0}, s{sW}, 12')
            A(f's_add_u32 m0, s{sT0}, {buf + 1024 * i}')
            if m != 'o':
                S = {'q': S_WQ, 'k': S_WK, 'v': S_WV}[m]
                A(f's_mov_b32 s{sT1}, {x * 64 * 8192}')
                A(f'buffer_load_dwordx4 v{vD+i}, {srd(S)}, s{sT1} offen lds')
            else:
                ks, ah, wp = x >> 2, (x >> 1) & 1, x & 1
                A(f's_mov_b32 s{sT1}, {ks * 65536 + wp * 512 + ah * 128}')
                A(f'buffer_load_dwordx4 v{vDO+i}, {srd(S_WO)}, s{sT1} offen lds')
    def dest(o, tmpi):
        k, b = LOC[o]
        if k == 'lds': return 'v', vTT + 8 * tmpi
        return k, b
    dma(0); dma(1)
    for ci, (m, x) in enumerate(chunks):
        boff = (ci % 2) * 16384
        A('s_waitcnt vmcnt(4)' if ci + 1 < len(chunks) else 's_waitcnt vmcnt(0)')
        A('s_barrier')
        skip = None
        homed = []
        if m != 'o':
            lend = A.newlabel('L_wv')
            for wv in range(4):
                lnext = A.newlabel('L_wn')
                if wv < 3:
                    A(f's_cmp_lg_u32 s{sW}, {wv}'); A(f's_cbranch_scc1 {lnext}')
                hm = []
                for a in range(2):
                    o = (m, a, (x - 2 * wv) & 7)
                    k, b = dest(o, a)
                    if LOC[o][0] == 'lds': hm.append((o, b))
                    for p in range(4):
                        A(f'ds_read_b64_tr_b16 {k}[{b+2*p}:{b+2*p+1}], v{vTQ} offset:{boff + (p >> 1) * 8192 + (p & 1) * 256 + 8 * a}')
                if hm: A('s_waitcnt lgkmcnt(0)')
                for o, b in hm:
                    slot = LOC[o][1]
                    A(f'ds_write_b128 v{vHOME}, {vr(b, 4)} offset:{slot * 2048}')
                    A(f'ds_write_b128 v{vHOME}, {vr(b + 4, 4)} offset:{slot * 2048 + 1024}')
                if wv < 3:
                    A(f's_branch {lend}')
                    A.label(lnext)
            A.label(lend)
        else:
            ks, ah, wp = x >> 2, (x >> 1) & 1, x & 1
            skip = A.newlabel('L_wskip')
            A(f's_lshr_b32 s{sT0}, s{sW}, 1'); A(f's_cmp_lg_u32 s{sT0}, {wp}'); A(f's_cbranch_scc1 {skip}')
            for ap in range(4):
                o = ('o', 4 * ah + ap, ks)
                k, b = dest(o, ap)
                if LOC[o][0] == 'lds': homed.append((o, b))
                for p in range(4):
                    A(f'ds_read_b64_tr_b16 {k}[{b+2*p}:{b+2*p+1}], v{vTO + (ap >> 1)} offset:{boff + (p >> 1) * 8192 + (p & 1) * 512 + 8 * (ap & 1)}')
        A('s_waitcnt lgkmcnt(0)')
        for o, b in homed:
            slot = LOC[o][1]
            A(f'ds_write_b128 v{vHOME}, {vr(b, 4)} offset:{slot * 2048}')
            A(f'ds_write_b128 v{vHOME}, {vr(b + 4, 4)} offset:{slot * 2048 + 1024}')
        if skip: A.label(skip)
        A('s_barrier')
        if ci + 2 < len(chunks): dma(ci + 2)
    A('s_waitcnt lgkmcnt(0)')

def st_mode(A, ins):
    return ins

def gen_stores(A, lst, tag):
    l1 = A.newlabel('L_sslow'); l2 = A.newlabel('L_sdone')
    A(f's_cmp_lg_u32 s{sMODE}, 0'); A(f's_cbranch_scc1 {l1}')
    for s in lst: A(s)
    A(f's_branch {l2}')
    A.label(l1)
    for s in lst:
        A(s + ' sc1' if s.startswith('buffer_store') else s)
    A.label(l2)

def gen_init_exchange(A):
    for r in range(4): A(f'v_mov_b32 v{vTMP+r}, -1')
    lst = []
    for sl in range(1):
        for i in range(2):
            lst.append(f's_mov_b32 s{sT0}, {WS_PX + sl * 262144 + i * 4096}')
            lst.append(f'buffer_store_dwordx4 {vr(vTMP,4)}, v{vPLD}, {srd(S_WS)}, s{sT0} offen')
    lst.append('s_mov_b64 exec, 0xf000f')
    for sl in range(4):
        lst.append(f's_mov_b32 s{sT0}, {WS_MX + sl * 8192}')
        lst.append(f'buffer_store_dword v{vNEG1}, v{vMPUB}, {srd(S_WS)}, s{sT0} offen')
        lst.append(f'buffer_store_dword v{vNEG1}, v{vMPUB}, {srd(S_WS)}, s{sT0} offen offset:16')
    lst.append('s_mov_b64 exec, -1')
    gen_stores(A, lst, 'init')
    A(f's_lshl_b32 s{sT0}, s{sH}, 7'); A(f's_add_u32 s{sT0}, s{sT0}, {WS_PROG}'); A(f'v_mov_b32 v{vT2+1}, s{sT0}'); A(f'v_mov_b32 v{vT2}, 0')
    A(f'buffer_store_dword v{vT2}, v{vT2+1}, {srd(S_WS)}, 0 offen sc1')
    A('s_waitcnt vmcnt(0)')
    A('s_barrier')
    l = A.newlabel('L_noarr')
    A(f's_cmp_lg_u32 s{sW}, 0'); A(f's_cbranch_scc1 {l}')
    A(f'v_mov_b32 v{vTMP}, 1'); A(f'v_mov_b32 v{vTMP+1}, {4 * DBG_RINIT}')
    A('s_mov_b64 exec, 1')
    A(f'buffer_atomic_add v{vTMP}, v{vTMP+1}, {srd(S_DBG)}, 0 offen')
    A('s_mov_b64 exec, -1')
    A.label(l)

def gen_wait_init(A):
    l = A.newlabel('L_winit')
    A(f'v_mov_b32 v{vTMP+1}, {4 * DBG_RINIT}')
    A.label(l)
    A(f'buffer_load_dword v{vTMP}, v{vTMP+1}, {srd(S_DBG)}, 0 offen sc1')
    A('s_waitcnt vmcnt(0)')
    A(f'v_cmp_gt_u32 vcc, 32, v{vTMP}')
    A(f's_cbranch_vccnz {l}')

def gen_mem0(A):
    A('v_and_b32 v120, 63, v0'); A('v_and_b32 v121, 15, v120'); A('v_lshrrev_b32 v122, 4, v120')
    A('v_lshrrev_b32 v123, 2, v121'); A('v_and_b32 v124, 1, v121'); A('v_lshl_add_u32 v123, v123, 1, v124'); A('v_lshlrev_b32 v123, 10, v123')
    A('v_and_b32 v124, 2, v121'); A('v_lshlrev_b32 v124, 3, v124'); A('v_lshlrev_b32 v125, 5, v122')
    A('v_add3_u32 v123, v123, v124, v125')
    A(f's_lshl_b32 s{sT0}, s{sW}, 8')
    A(f'buffer_load_dwordx4 {vr(vFR+8,4)}, v123, {srd(S_MEM0)}, s{sT0} offen')
    A(f'buffer_load_dwordx4 {vr(vFR+12,4)}, v123, {srd(S_MEM0)}, s{sT0} offen offset:128')
    A('s_waitcnt vmcnt(0)')
    A(f's_mov_b32 s{sT0}, 0x05040100'); A(f's_mov_b32 s{sT1}, 0x07060302')
    for i in range(2):
        s = vFR + 8 + 4 * i; d = vPB + 4 * i
        A(f'v_perm_b32 v{d}, v{s+2}, v{s}, s{sT0}')
        A(f'v_perm_b32 v{d+1}, v{s+2}, v{s}, s{sT1}')
        A(f'v_perm_b32 v{d+2}, v{s+3}, v{s+1}, s{sT0}')
        A(f'v_perm_b32 v{d+3}, v{s+3}, v{s+1}, s{sT1}')


def gen_setup2(A):
    A('v_and_b32 v121, 15, v0')
    A('v_cmp_lt_u32 vcc, 7, v121')
    A('v_mov_b32 v122, 0x3f803f80')
    for r in range(4): A(f'v_cndmask_b32 v{vSEL+r}, v{vSEL+r}, v122, vcc')
    A(f'v_mov_b32 v{vSR2}, v{vSR2T}')

def gen_steps(A, mode, nsteps=64, prof=None, flag=True, opt=(), kvwait=None):
    X = '' if mode == 'f' else ' sc1'
    L = lambda n: f'L_rec{mode}_{n}'
    lg = Cnt(A, 'lgkmcnt', 15)
    SC = 128 ** -0.5 * math.log2(math.e)
    import struct
    SCBITS = struct.unpack('<I', struct.pack('<f', SC))[0]
    homed_seq = [OPS[i] for i in HOMED]
    slot_of = {o: i % NSTG for i, o in enumerate(homed_seq)}
    sTAG = sPSL
    QP = 'quad_perm:[2,3,0,1] row_mask:0xf bank_mask:0xf'
    def breg(o):
        k, b = LOC[o]
        if k == 'lds':
            b = vSTG + 8 * slot_of[o]
            return f'v[{b}:{b+7}]'
        return f'{k}[{b}:{b+7}]'
    def stage(i):
        if i >= len(homed_seq): return
        o = homed_seq[i]; b = vSTG + 8 * slot_of[o]; slot = LOC[o][1]
        A(f'ds_read_b128 {vr(b,4)}, v{vHOME} offset:{slot*2048}'); lg.issue()
        A(f'ds_read_b128 {vr(b+4,4)}, v{vHOME} offset:{slot*2048+1024}'); lg.issue(('stg', i))
    def smf(acc, areg, o):
        if LOC[o][0] == 'lds':
            lg.wait(('stg', homed_seq.index(o)))
        A(f'v_smfmac_f32_16x16x64_bf16 {vr(acc,4)}, {vr(areg,4)}, {breg(o)}, v{vIDX}')
    def P(i):
        if prof is not None: A(f's_memtime s[{prof+2*i}:{prof+2*i+1}]')
    def zero(b, n):
        for r in range(0, n, 2): A(f'v_mov_b64 v[{b+r}:{b+r+1}], 0')
    def kvdma(lst):
        A(f's_mov_b32 m0, s{sT3}')
        for i in lst:
            if 'nodma' in opt: continue
            A(f'buffer_load_dwordx4 v{vKX}, {srd(S_WS)}, s{sKXO} offen offset:{1024*i} sc1 lds')
    def kvread():
        for i in range(4): A(f'ds_read_b128 {vr(vKXR+4*i,4)}, v{vVX} offset:{1024*i}')
    def hadd(b): return f'v_pk_add_f32 v[{b}:{b+1}], v[{b}:{b+1}], v[{b+2}:{b+3}]'
    A(f's_mov_b32 s{sSTEP}, 0')
    A(f's_mov_b32 s{sTAG}, 0')
    A(f's_mov_b32 s{sMCUR}, {WS_MX}')
    A(f's_mov_b32 s{sKXO}, {WS_KVF}')
    A(f's_mov_b32 s{sKMO}, 0')
    A(f's_mov_b32 s{sT2}, {SCBITS}')
    A(f's_mov_b32 s{sVXO}, {WS_PX}')
    A(f's_lshl_b32 s{sT3}, s{sW}, 12'); A(f's_add_u32 s{sT3}, s{sT3}, {LDS_KV}')
    for i in range(2, 8):
        A(f's_lshl_b32 s{sFO+i}, s{sW}, 1'); A(f's_add_u32 s{sFO+i}, s{sFO+i}, {i}'); A(f's_and_b32 s{sFO+i}, s{sFO+i}, 7'); A(f's_lshl_b32 s{sFO+i}, s{sFO+i}, 10')
    if kvwait: kvwait(A, first=True)
    kvdma(range(4))
    for i in range(NSTG): stage(i)
    lg.q = []
    zero(vQK, 24)
    A('s_waitcnt vmcnt(0)')
    kvread()
    A(f's_add_u32 s{sKXO}, s{sKXO}, {32*16384}')
    A(f's_branch {L("have_mem")}')
    A.label(L('step'))
    P(0)
    A(f's_sub_u32 s{sT0}, s{sMCUR}, {LDS_MEM}')
    A.label(L('poll2'))
    A(f'buffer_load_dwordx4 {vr(vPB,4)}, v{vMP}, {srd(S_WS)}, s{sT0} offen sc1')
    A(f'buffer_load_dwordx4 {vr(vPB+4,4)}, v{vMP}, {srd(S_WS)}, s{sT0} offen offset:1024 sc1')
    A('s_waitcnt vmcnt(0)')
    A(f'v_max3_u32 v{vTMP}, v{vPB}, v{vPB+1}, v{vPB+2}'); A(f'v_max3_u32 v{vTMP+1}, v{vPB+3}, v{vPB+4}, v{vPB+5}')
    A(f'v_max3_u32 v{vTMP}, v{vTMP}, v{vPB+6}, v{vPB+7}'); A(f'v_max_u32 v{vTMP}, v{vTMP}, v{vTMP+1}')
    A(f'v_cmp_eq_u32 vcc, -1, v{vTMP}')
    A('s_mov_b64 exec, vcc')
    A(f's_cbranch_execnz {L("poll2")}')
    A('s_mov_b64 exec, -1')
    A.label(L('have_mem'))
    P(1)
    A(f'ds_write_b128 v{vMP}, {vr(vPB,4)}'); A(f'ds_write_b128 v{vMP}, {vr(vPB+4,4)} offset:1024')
    nstaged = NSTG
    def acc_of(m, a): return (vVA + 4 * a) if m == 'v' else vQK + 8 * a + (4 if m == 'q' else 0)
    pre = [o for o in OPS[:12]]
    for o in pre[:3]: smf(acc_of(o[0], o[1]), vFR + 4 * o[2], o)
    if kvwait: kvwait(A, first=False)
    for i in range(2, 8): A(f'v_add_u32 v{vFR+4*i}, s{sFO+i}, v{vL16H}')
    A('s_waitcnt lgkmcnt(0)')
    A('s_barrier')
    P(2)
    for i in range(2, 8):
        A(f'ds_read_b128 {vr(vFR+4*i,4)}, v{vFR+4*i}'); lg.issue(('fr', i))
    n_ = 0
    for o in pre[3:]:
        smf(acc_of(o[0], o[1]), vFR + 4 * o[2], o)
        if LOC[o][0] == 'lds':
            stage(nstaged); nstaged += 1
        n_ += 1
        if n_ in (2, 4, 6, 8): kvdma([n_ // 2 - 1])
    A(f's_add_u32 s{sKXO}, s{sKXO}, {32*16384}')
    vAP = vT2; vDP = vTMP; vX = vTMP + 4
    bg = []
    def post_qk_list(a):
        k = vQK + 8 * a; q = k + 4
        return [hadd(k), hadd(q),
                f'v_cvt_pk_bf16_f32 v{vAP}, v{k}, v{k+1}', f'v_cvt_pk_bf16_f32 v{vAP+1}, v{q}, v{q+1}',
                f'v_mfma_f32_16x16x16_bf16 {vr(vDP,4)}, {vr(vAP,2)}, {vr(vID,2)}, 0']
    def post_qk2_list(a):
        return [f'v_cvt_pk_bf16_f32 v{vX+2*a}, v{vDP}, v{vDP+1}', f'v_cvt_pk_bf16_f32 v{vX+2*a+1}, v{vDP+2}, v{vDP+3}']
    if flag:
        fl = A.newlabel('L_nofl')
        A(f's_cmp_lg_u32 s{sW}, 0'); A(f's_cbranch_scc1 {fl}')
        A(f'v_mov_b32 v{vT2}, s{sSTEP}')
        A(f's_lshl_b32 s{sT0}, s{sH}, 7'); A(f's_add_u32 s{sT0}, s{sT0}, {WS_PROG}'); A(f'v_mov_b32 v{vT2+1}, s{sT0}')
        A('s_mov_b64 exec, 1')
        A(f'buffer_store_dword v{vT2}, v{vT2+1}, {srd(S_WS)}, 0 offen sc1')
        A('s_mov_b64 exec, -1')
        A.label(fl)
    cnt = 0
    for a in range(2):
        for ks in range(2, 8):
            if a == 0: lg.wait(('fr', ks))
            for m in 'kq':
                o = (m, a, ks)
                smf(acc_of(m, a), vFR + 4 * ks, o)
                if LOC[o][0] == 'lds':
                    stage(nstaged); nstaged += 1
                cnt += 1
                if cnt == 14: bg = post_qk_list(0)
                if cnt == 22: bg += post_qk2_list(0)
                if bg: A(bg.pop(0))
    assert not bg
    P(3)
    vops = [('v', a, ks) for ks in range(2, 8) for a in range(2)]
    vi = [0]
    def vstep(n=1):
        for _ in range(n):
            if vi[0] >= 12: return
            o = vops[vi[0]]; vi[0] += 1
            smf(vVA + 4 * o[1], vFR + 4 * o[2], o)
    vstep(1)
    for i_ in post_qk_list(1): A(i_)
    vstep(2)
    for i_ in post_qk2_list(1): A(i_)
    vS = vQK
    A(f'v_mfma_f32_16x16x32_bf16 {vr(vS,4)}, {vr(vKXR,4)}, {vr(vX,4)}, 0')
    A(f'v_mfma_f32_16x16x32_bf16 {vr(vS+4,4)}, {vr(vKXR+4,4)}, {vr(vX,4)}, 0')
    A(f'v_mfma_f32_16x16x32_bf16 {vr(vS+8,4)}, {vr(vX,4)}, {vr(vX,4)}, 0')
    vstep(1)
    A(f's_add_u32 s{sT0}, s{sKMO}, {WS_KM}')
    A('s_mov_b64 exec, s[6:7]')
    A(f'ds_write_b128 v{vSW}, {vr(vS,4)}'); lg.issue()
    A(f'ds_write_b128 v{vSW}, {vr(vS+4,4)} offset:16'); lg.issue()
    A(f'ds_write_b64 v{vSW}, {vr(vS+8,2)} offset:32'); lg.issue()
    A('s_mov_b64 exec, s[4:5]')
    if 'nokm' not in opt: A(f'buffer_store_dwordx4 {vr(vX,4)}, v{vKM}, {srd(S_WS)}, s{sT0} offen sc1')
    A('s_mov_b64 exec, -1')
    vstep(3)
    lg.all()
    A('s_barrier')
    P(4)
    E = [vS, vS + 4, vS + 8, vKXR]
    Em = [vS + 12, vS + 13, vS + 14, vS + 15]
    for w in range(4):
        A(f'ds_read_b128 {vr(E[w],4)}, v{vSR} offset:{1536*w}'); lg.issue(('e', w))
    for w in range(4):
        A(f'ds_read_b32 v{Em[w]}, v{vSR2} offset:{1536*w}'); lg.issue(('em', w))
    vstep(5)
    assert vi[0] == 12, vi
    lg.wait(('e', 1))
    for r in (0, 2): A(f'v_pk_add_f32 v[{E[0]+r}:{E[0]+r+1}], v[{E[0]+r}:{E[0]+r+1}], v[{E[1]+r}:{E[1]+r+1}]')
    lg.wait(('e', 3))
    for r in (0, 2): A(f'v_pk_add_f32 v[{E[2]+r}:{E[2]+r+1}], v[{E[2]+r}:{E[2]+r+1}], v[{E[3]+r}:{E[3]+r+1}]')
    lg.wait(('em', 3))
    A(f'v_pk_add_f32 v[{Em[0]}:{Em[1]}], v[{Em[0]}:{Em[1]}], v[{Em[2]}:{Em[3]}]')
    for r in (0, 2): A(f'v_pk_add_f32 v[{E[0]+r}:{E[0]+r+1}], v[{E[0]+r}:{E[0]+r+1}], v[{E[2]+r}:{E[2]+r+1}]')
    e4 = vS + 4
    A(f'v_add_f32 v{e4}, v{Em[0]}, v{Em[1]}')
    vM = vTMP; vM2 = vTMP + 1
    A(f'v_max3_f32 v{vM}, v{vS}, v{vS+1}, v{vS+2}'); A(f'v_max3_f32 v{vM}, v{vM}, v{vS+3}, v{e4}')
    stage(nstaged); nstaged += 1
    A(f'v_max_f32_dpp v{vM}, v{vM}, v{vM} {QP}')
    A(f'v_mov_b32 v{vM2}, v{vM}')
    stage(nstaged); nstaged += 1
    A(f'v_permlane16_swap_b32 v{vM}, v{vM2}')
    A(f'v_max_f32 v{vM}, v{vM}, v{vM2}')
    A(f'v_mov_b32 v{vM2}, v{vM}')
    A(hadd(vVA)); A(hadd(vVA + 4))
    A(f'v_permlane32_swap_b32 v{vM}, v{vM2}')
    A(f'v_max_f32 v{vM}, v{vM}, v{vM2}')
    A(f'v_mul_f32 v{vM}, s{sT2}, v{vM}')
    for r in range(5): A(f'v_fma_f32 v{vS+r}, v{vS+r}, s{sT2}, -v{vM}')
    for r in range(5): A(f'v_exp_f32 v{vS+r}, v{vS+r}')
    vPx = vTMP
    vVM0 = vTMP + 4
    for a in range(2):
        b = vVA + 4 * a
        A(f'v_cvt_pk_bf16_f32 v{vVM0+2*a}, v{b}, v{b+1}'); A(f'v_mov_b32 v{vVM0+2*a+1}, 0')
    A(f'v_cvt_pk_bf16_f32 v{vPx}, v{vS}, v{vS+1}'); A(f'v_cvt_pk_bf16_f32 v{vPx+1}, v{vS+2}, v{vS+3}')
    A(f'v_mov_b32_dpp v{e4+1}, v{e4} {QP}')
    A(f'v_mov_b32 v{vS+13}, 0')
    A(f'v_mov_b32_dpp v{vPx+2}, v{vPx} {QP}'); A(f'v_mov_b32_dpp v{vPx+3}, v{vPx+1} {QP}')
    A(f'v_cvt_pk_bf16_f32 v{vS+12}, v{e4}, v{e4+1}')
    vO = vS
    A(f's_add_u32 s{sT0}, s{sKMO}, {WS_VMT}')
    A(f'v_mfma_f32_16x16x32_bf16 {vr(vS+8,4)}, {vr(vSEL,4)}, {vr(vPx,4)}, 0')
    for a in range(2):
        A(f'v_mfma_f32_16x16x32_bf16 {vr(vO+4*a,4)}, {vr(vVXR+4*a,4)}, {vr(vPx,4)}, 0')
    if 'novm' not in opt:
        A(f'buffer_store_dword v{vVM0}, v{vVM}, {srd(S_WS)}, s{sT0} offen sc1')
        A(f'buffer_store_dword v{vVM0+2}, v{vVM}, {srd(S_WS)}, s{sT0} offen offset:64 sc1')
    A(f's_cmp_eq_u32 s{sSTEP}, {nsteps-1}')
    A(f's_cbranch_scc1 {L("done")}')
    A(f'v_mfma_f32_16x16x16_bf16 {vr(vS+8,4)}, {vr(vSEL,2)}, {vr(vS+12,2)}, {vr(vS+8,4)}')
    for a in range(2):
        A(f'v_mfma_f32_16x16x16_bf16 {vr(vO+4*a,4)}, {vr(vVM0+2*a,2)}, {vr(vS+12,2)}, {vr(vO+4*a,4)}')
    zero(vFR, 8)
    vL = vT2; vL2 = vT2 + 1
    A(f'v_rcp_f32 v{vL}, v{vS+8}')
    zero(vFR + 8, 2)
    A(f'v_mov_b32 v{vL2}, v{vL}')
    zero(vFR + 10, 4)
    A(f'v_permlane32_swap_b32 v{vL}, v{vL2}')
    for r in range(0, 8, 2): A(f'v_pk_mul_f32 v[{vO+r}:{vO+r+1}], v[{vO+r}:{vO+r+1}], v[{vL}:{vL+1}] op_sel:[0,1] op_sel_hi:[1,1]')
    for r in range(4): A(f'v_cvt_pk_bf16_f32 v{vTMP+r}, v{vO+2*r}, v{vO+2*r+1}')
    A('s_mov_b64 exec, s[6:7]')
    A(f'ds_write_b128 v{vOW}, {vr(vTMP,4)}')
    A('s_mov_b64 exec, -1')
    vWA = vFR
    zero(vFR + 14, 10)
    A('s_waitcnt lgkmcnt(0)'); lg.q = []
    A('s_barrier')
    P(5)
    vOF = vQK
    A(f'ds_read_b128 {vr(vOF,4)}, v{vL16H} offset:{LDS_O-LDS_MEM}'); lg.issue('of0')
    A(f'ds_read_b128 {vr(vOF+4,4)}, v{vL16H} offset:{LDS_O-LDS_MEM+1024}'); lg.issue('of1')
    zero(vFR + 24, 8)
    A(f's_add_u32 s{sT0}, s{sVXO}, 32768')
    lg.wait('of0')
    vPK = vVA
    def post_o(a):
        b = vWA + 4 * a
        return [hadd(b), f'v_cvt_pk_bf16_f32 v{vPK+a}, v{b}, v{b+1}', f'v_bfi_b32 v{vPK+a}, 1, s{sTAG}, v{vPK+a}']
    bg = []
    for a in range(8):
        for ks in range(2):
            if a == 0 and ks == 1: lg.wait('of1')
            o = ('o', a, ks)
            smf(vWA + 4 * a, vOF + 4 * ks, o)
            if LOC[o][0] == 'lds':
                stage(nstaged); nstaged += 1
            for _ in range(1 + ks):
                if bg: A(bg.pop(0))
        if a >= 1: bg += post_o(a - 1)
        if a == 5: A(f'buffer_store_dwordx4 {vr(vPK,4)}, v{vPST}, {srd(S_WS)}, s{sVXO} offen{X}')
    for i_ in bg + post_o(7): A(i_)
    A(f'buffer_store_dwordx4 {vr(vPK+4,4)}, v{vPST}, {srd(S_WS)}, s{sT0} offen{X}')
    P(6)
    A(f's_add_u32 s{sT0}, s{sVXO}, 4096')
    A(f'buffer_load_dwordx4 {vr(vPB,4)}, v{vPLD}, {srd(S_WS)}, s{sVXO} offen sc1')
    A(f'buffer_load_dwordx4 {vr(vPB+4,4)}, v{vPLD}, {srd(S_WS)}, s{sT0} offen sc1')
    for i in range(NSTG): stage(i)
    lg.q = []
    zero(vQK, 16)
    A(f's_add_u32 s{sMNXT}, s{sMCUR}, 8192'); A(f's_and_b32 s{sMNXT}, s{sMNXT}, 32767'); A(f's_add_u32 s{sMNXT}, s{sMNXT}, {WS_MX}')
    A(f's_branch {L("poll1c")}')
    A.label(L('poll1'))
    A(f'buffer_load_dwordx4 {vr(vPB,4)}, v{vPLD}, {srd(S_WS)}, s{sVXO} offen sc1')
    A(f'buffer_load_dwordx4 {vr(vPB+4,4)}, v{vPLD}, {srd(S_WS)}, s{sT0} offen sc1')
    A.label(L('poll1c'))
    A('s_waitcnt vmcnt(0)')
    tt = 0
    for a_ in range(2):
        for b_ in range(2):
            for t_ in range(2):
                if (a_ ^ t_) | (b_ ^ t_): tt |= 1 << (a_ * 4 + b_ * 2 + t_)
    for i in range(4): A(f'v_bitop3_b32 v{vTMP+i}, v{vPB+2*i}, v{vPB+2*i+1}, s{sTAG} bitop3:{tt}')
    A(f'v_or3_b32 v{vTMP}, v{vTMP}, v{vTMP+1}, v{vTMP+2}')
    A(f'v_bitop3_b32 v{vTMP}, v{vTMP}, v{vTMP+3}, 1 bitop3:0xa8')
    A(f'v_cmp_ne_u32 vcc, 0, v{vTMP}')
    A('s_mov_b64 exec, vcc')
    A(f's_cbranch_execnz {L("poll1")}')
    A('s_mov_b64 exec, -1')
    P(7)
    vR = vTMP
    A(f'v_mfma_f32_16x16x32_bf16 {vr(vR,4)}, {vr(vSEL,4)}, {vr(vPB,4)}, 0')
    A(f'v_mfma_f32_16x16x32_bf16 {vr(vR,4)}, {vr(vSEL,4)}, {vr(vPB+4,4)}, {vr(vR,4)}')
    zero(vVA, 8)
    kvread()
    for r in range(4): A(f'v_add_f32_dpp v{vR+r}, v{vR+r}, v{vR+r} row_ror:4 row_mask:0xf bank_mask:0xf')
    for r in range(4): A(f'v_add_f32_dpp v{vR+r}, v{vR+r}, v{vR+r} row_ror:8 row_mask:0xf bank_mask:0xf')
    A(f'v_cvt_pk_bf16_f32 v{vR+4}, v{vR}, v{vR+2}'); A(f'v_cvt_pk_bf16_f32 v{vR+5}, v{vR+1}, v{vR+3}')
    A(f'v_min_u32 v{vR+4}, -2, v{vR+4}'); A(f'v_min_u32 v{vR+5}, -2, v{vR+5}')
    A('s_mov_b64 exec, 0xf000f')
    A(f'buffer_store_dword v{vR+4}, v{vMPUB}, {srd(S_WS)}, s{sMNXT} offen{X}')
    A(f'buffer_store_dword v{vR+5}, v{vMPUB}, {srd(S_WS)}, s{sMNXT} offen offset:16{X}')
    A(f'buffer_store_dword v{vNEG1}, v{vMPUB}, {srd(S_WS)}, s{sMCUR} offen{X}')
    A(f'buffer_store_dword v{vNEG1}, v{vMPUB}, {srd(S_WS)}, s{sMCUR} offen offset:16{X}')
    A('s_mov_b64 exec, -1')
    P(8)
    A(f's_mov_b32 s{sMCUR}, s{sMNXT}')
    A(f's_xor_b32 s{sTAG}, s{sTAG}, 1')
    A(f's_add_u32 s{sKMO}, s{sKMO}, 65536')
    A(f's_add_u32 s{sSTEP}, s{sSTEP}, 1')
    if prof is not None:
        A('s_memrealtime s[98:99]')
        A('s_waitcnt lgkmcnt(0)')
        A(f'v_writelane_b32 v{vTMP}, s98, 9')
        for i in range(9): A(f'v_writelane_b32 v{vTMP}, s{prof+2*i}, {i}')
        A(f's_lshl_b32 s{sT0}, s{sH}, 2'); A(f's_add_u32 s{sT0}, s{sT0}, s{sW}'); A(f's_lshl_b32 s{sT0}, s{sT0}, 6'); A(f's_add_u32 s{sT0}, s{sT0}, s{sSTEP}'); A(f's_lshl_b32 s{sT0}, s{sT0}, 6')
        A(f's_add_u32 s{sT0}, s{sT0}, {120*MB}')
        A(f'v_mbcnt_lo_u32_b32 v{vTMP+1}, -1, 0'); A(f'v_lshlrev_b32 v{vTMP+1}, 2, v{vTMP+1}')
        A('s_mov_b64 exec, 0xffff')
        A(f'buffer_store_dword v{vTMP}, v{vTMP+1}, {srd(S_WS)}, s{sT0} offen')
        A('s_mov_b64 exec, -1')
    A(f's_branch {L("step")}')
    A.label(L('done'))
    A('s_waitcnt vmcnt(0)')
    A('s_barrier')
    if flag:
        fl = A.newlabel('L_nofl')
        A(f's_cmp_lg_u32 s{sW}, 0'); A(f's_cbranch_scc1 {fl}')
        A(f'v_mov_b32 v{vT2}, {nsteps}')
        A(f's_lshl_b32 s{sT0}, s{sH}, 7'); A(f's_add_u32 s{sT0}, s{sT0}, {WS_PROG}'); A(f'v_mov_b32 v{vT2+1}, s{sT0}')
        A('s_mov_b64 exec, 1')
        A(f'buffer_store_dword v{vT2}, v{vT2+1}, {srd(S_WS)}, 0 offen sc1')
        A('s_mov_b64 exec, -1')
        A('s_waitcnt vmcnt(0)')
        A.label(fl)
    A('v_mbcnt_lo_u32_b32 v0, -1, 0'); A('v_mbcnt_hi_u32_b32 v0, -1, v0')
    A(f's_lshl_b32 s{sT0}, s{sW}, 6'); A(f'v_add_u32 v0, s{sT0}, v0')

sRDY = 70
def kvwait(A, first):
    l = A.newlabel('L_kvw'); l2 = A.newlabel('L_kvd')
    if first:
        A(f's_mov_b32 s{sRDY}, 0'); A(f's_mov_b32 s{sT1}, 0')
    else:
        A(f's_add_u32 s{sT1}, s{sSTEP}, 1'); A(f's_lshr_b32 s{sT1}, s{sT1}, 2')
    A(f's_cmp_lt_u32 s{sT1}, s{sRDY}'); A(f's_cbranch_scc1 {l2}')
    A(f's_cmp_ge_u32 s{sT1}, 16'); A(f's_cbranch_scc1 {l2}')
    A(f'v_mbcnt_lo_u32_b32 v{vT2+1}, -1, 0'); A(f'v_lshlrev_b32 v{vT2+1}, 2, v{vT2+1}')
    A('s_mov_b64 exec, 0xffff')
    A.label(l)
    A(f'buffer_load_dword v{vT2}, v{vT2+1}, {srd(S_DBG)}, 0 offen offset:{4*DBG_KV} sc1')
    A('s_waitcnt vmcnt(0)')
    A(f'v_and_b32 v{vT2}, 0xffff, v{vT2}')
    A(f'v_cmp_gt_u32 vcc, 32, v{vT2}')
    A(f's_or_b32 s{sRDY}, vcc_lo, 0x10000')
    A(f's_ff1_i32_b32 s{sRDY}, s{sRDY}')
    A(f's_cmp_lt_u32 s{sT1}, s{sRDY}'); A(f's_cbranch_scc0 {l}')
    A('s_mov_b64 exec, -1')
    A.label(l2)
```

```python
from asmlib import *
from common import *
from gemm import *
import wsgemm as WS
import math, struct
def fbits(x): return struct.unpack('<I', struct.pack('<f', x))[0]

sTK, sP0, sP1, sP2 = 88, 89, 90, 91
LDS_TICK = 163840 - 64
G128 = Gemm(128, 128, 2, 2, 'g128')
G32 = Gemm(32, 128, 1, 4, 'g32')

NSET = 8
N_KV, N_Q, N_G2, N_SV, N_AT, N_G3 = 128, 64, 24, 16 * NSET, 256, 64
T_KV = 0; T_Q = T_KV + N_KV; T_G2 = T_Q + N_Q; T_SV = T_G2 + N_G2; T_AT = T_SV + N_SV; T_G3 = T_AT + N_AT; T_END = T_G3 + N_G3
KVQ_DONE = 0x100020
def divmod_const(A, src, d, q, r):
    A(f's_mul_hi_u32 s{q}, s{src}, {(1 << 32) // d + 1}')
    A(f's_mul_i32 s{r}, s{q}, {d}'); A(f's_sub_u32 s{r}, s{src}, s{r}')

TRACE = False
LITE = False
def trace(A, slot):
    if not TRACE: return
    A('s_memrealtime s[94:95]'); A('s_waitcnt lgkmcnt(0)')
    A(f's_lshl_b32 s96, s{sTK}, 4'); A(f's_add_u32 s96, s96, {110*MB + 4*slot}')
    A('v_mov_b32 v120, s94'); A('v_mov_b32 v121, s96')
    A(f'buffer_store_dword v120, v121, {srd(S_WS)}, 0 offen')

def copy_srd(A, dst, src):
    for i in range(4): A(f's_mov_b32 s{dst+i}, s{src+i}')

def signal(A, S, off_expr_sgpr=None, off=None):
    A('s_waitcnt vmcnt(0)')
    A('s_barrier')
    l = A.newlabel('L_sig')
    A(f's_cmp_lg_u32 s{sW}, 0'); A(f's_cbranch_scc1 {l}')
    A('v_mov_b32 v120, 1')
    A(f'v_mov_b32 v121, {off}' if off is not None else f'v_mov_b32 v121, s{off_expr_sgpr}')
    A('s_mov_b64 exec, 1')
    A(f'buffer_atomic_add v120, v121, {srd(S)}, 0 offen')
    A('s_mov_b64 exec, -1')
    A.label(l)

def wait_cnt(A, S, target, off=None, off_sgpr=None, sleep=8, adaptive=False):
    l = A.newlabel('L_wt'); l2 = A.newlabel('L_wd')
    A(f'v_mov_b32 v121, {off}' if off is not None else f'v_mov_b32 v121, s{off_sgpr}')
    A.label(l)
    A(f'buffer_load_dword v120, v121, {srd(S)}, 0 offen sc1')
    A('s_waitcnt vmcnt(0)')
    A(f'v_readfirstlane_b32 s{sT0}, v120')
    A(f's_cmp_ge_u32 s{sT0}, {target}')
    A(f's_cbranch_scc1 {l2}')
    if adaptive:
        l3 = A.newlabel('L_wf')
        A(f's_sub_u32 s{sT0}, {target}, s{sT0}')
        A(f's_cmp_lt_u32 s{sT0}, 2'); A(f's_cbranch_scc1 {l3}')
        A('s_sleep 24')
        A(f's_cmp_lt_u32 s{sT0}, 3'); A(f's_cbranch_scc1 {l3}')
        A('s_sleep 48')
        A.label(l3)
    A(f's_sleep {sleep}')
    A(f's_branch {l}')
    A.label(l2)

def lane_consts(A):
    A('v_and_b32 v10, 63, v0'); A('v_and_b32 v11, 15, v10'); A('v_lshrrev_b32 v12, 4, v10')

def atomic_add(A, S, val, off_sgpr):
    A(f'v_mov_b32 v120, {val}'); A(f'v_mov_b32 v121, s{off_sgpr}')
    A('s_mov_b64 exec, 1')
    A(f'buffer_atomic_add v120, v121, {srd(S)}, 0 offen')
    A('s_mov_b64 exec, -1')

def gen_g1(A):
    A.label('L_task_kv')
    A(f's_lshr_b32 s{sP0}, s{sTK}, 5'); A(f's_and_b32 s{sP1}, s{sTK}, 15'); A(f's_bfe_u32 s{sP2}, s{sTK}, 0x10004')
    l = A.newlabel('L_nz')
    A(f's_cmp_lg_u32 s{sTK}, 0'); A(f's_cbranch_scc1 {l}')
    A('v_lshlrev_b32 v120, 7, v0'); A('v_mov_b32 v122, 0'); A('v_mov_b32 v123, 0'); A(f's_mov_b32 s{sT0}, {WS_CNT}')
    A(f'buffer_store_dwordx2 v[122:123], v120, {srd(S_WS)}, s{sT0} offen sc1')
    A.label(l)
    A(f's_cmp_eq_u32 s{sP2}, 0'); A('s_cbranch_scc1 L_g1_k')
    copy_srd(A, sGB, S_WV); A('s_branch L_g1_go')
    A.label('L_g1_k'); copy_srd(A, sGB, S_WK); A('s_branch L_g1_go')
    A.label('L_task_q')
    A(f's_sub_u32 s{sT0}, s{sTK}, {T_Q}'); A(f's_lshr_b32 s{sP0}, s{sT0}, 4'); A(f's_and_b32 s{sP1}, s{sT0}, 15'); A(f's_mov_b32 s{sP2}, 2')
    copy_srd(A, sGB, S_WQ)
    A.label('L_g1_go')
    copy_srd(A, sGA, S_BX)
    A(f's_mov_b32 s{sLDB}, 8192'); A(f's_mov_b32 s{sKIT}, 4')
    A(f's_lshl_b32 s{sBOFF}, s{sP1}, 9')
    WS.load_w(A)
    trace(A, 3)
    WS.setup_a(A)
    A(f's_lshl_b32 s{sAOFF}, s{sP0}, 19')
    A('v_lshlrev_b32 v1, 4, v10')
    A(f's_lshl_b32 s{sE0}, s{sP0}, 9'); A(f's_lshl_b32 s{sT0}, s{sP1}, 1'); A(f's_add_u32 s{sE0}, s{sE0}, s{sT0}'); A(f's_lshr_b32 s{sT0}, s{sW}, 1'); A(f's_add_u32 s{sE0}, s{sE0}, s{sT0}')
    A(f's_lshl_b32 s{sE0}, s{sE0}, 2'); A(f's_and_b32 s{sT0}, s{sW}, 1'); A(f's_lshl_b32 s{sT0}, s{sT0}, 1'); A(f's_add_u32 s{sE0}, s{sE0}, s{sT0}')
    A(f's_cmp_eq_u32 s{sP2}, 2')
    A(f's_cselect_b32 s{sE1}, 11, 12'); A(f's_cselect_b32 s{sE2}, {WS_QF}, {WS_KVF}'); A(f's_cselect_b32 s{sLDA}, 65536, 1')
    A(f's_lshl_b32 s{sE0}, s{sE0}, s{sE1}'); A(f's_add_u32 s{sE0}, s{sE0}, s{sE2}')
    A(f's_lshl_b32 s{sE3}, 1, s{sE1}    ; stride')
    def sig(A, d):
        A(f's_lshl_b32 s{sT3}, s{sP0}, 2'); A(f's_add_u32 s{sT3}, s{sT3}, s{sAINC}'); A(f's_lshl_b32 s{sT3}, s{sT3}, 2'); A(f's_add_u32 s{sT3}, s{sT3}, {4 * DBG_KV - 4}')
        atomic_add(A, S_DBG, f's{sLDA}', sT3)
    def epi_t(A, half):
        for i in range(2):
            for c in range(2):
                A(f's_mul_i32 s{sT0}, s{sE3}, {i * 128 + c}'); A(f's_add_u32 s{sT0}, s{sT0}, s{sE0}')
                for kt in range(2):
                    tm = 2 * i + kt
                    d = WS.vPKD + 4 * kt
                    WS.pack(A, tm * 4 + 2 * c, tm * 4 + 2 * c + 1, d)
                    A(f'buffer_store_dwordx4 {vr(d,4)}, v1, {srd(S_WS)}, s{sT0} offen offset:{1024*kt} sc1')
        A(f's_lshl_b32 s{sT0}, s{sE3}, 8'); A(f's_add_u32 s{sE0}, s{sE0}, s{sT0}')
    def epi_n(A, half):
        for i in range(2):
            for c in range(2):
                A(f's_add_u32 s{sT0}, s{sE0}, {(i * 128 + c) * 4096}')
                for a in range(2):
                    tn = 2 * c + a
                    d = WS.vPKD + 4 * a
                    WS.pack(A, (2 * i) * 4 + tn, (2 * i + 1) * 4 + tn, d)
                    A(f'buffer_store_dwordx4 {vr(d,4)}, v1, {srd(S_WS)}, s{sT0} offen offset:{2048 + 1024*a} sc1')
        A(f's_add_u32 s{sE0}, s{sE0}, {256 * 4096}')
    A(f's_cmp_eq_u32 s{sP2}, 1'); A('s_cbranch_scc1 L_g1_v')
    WS.run_blocks(A, 'T', epi_t, sig, 'g1t')
    A('s_branch L_next')
    A.label('L_g1_v')
    WS.run_blocks(A, 'N', epi_n, sig, 'g1n')
    A('s_branch L_next')

def gen_g2(A):
    A.label('L_task_g2')
    A(f's_sub_u32 s{sT0}, s{sTK}, {T_G2}')
    divmod_const(A, sT0, 6, sP0, sP1)
    copy_srd(A, sGA, S_AX); copy_srd(A, sGB, S_AWQKV)
    A(f's_mov_b32 s{sLDB}, 3072'); A(f's_mov_b32 s{sKIT}, 4')
    A(f's_lshl_b32 s{sBOFF}, s{sP1}, 9')
    WS.load_w(A)
    WS.setup_a(A)
    A(f's_lshl_b32 s{sAOFF}, s{sP0}, 19')
    lane_consts(A)
    A(f's_and_b32 s{sT0}, s{sP1}, 1'); A(f's_lshl_b32 s{sT0}, s{sT0}, 4'); A(f's_lshl_b32 s{sT1}, s{sW}, 2'); A(f's_add_u32 s{sT0}, s{sT0}, s{sT1}')
    A(f's_lshl_b32 s{sE0}, s{sT0}, 16'); A(f's_lshl_b32 s{sT0}, s{sP0}, 14'); A(f's_add_u32 s{sE0}, s{sE0}, s{sT0}')
    def sig(A, d):
        A(f's_mov_b32 s{sT3}, {4 * DBG_CG2}')
        atomic_add(A, S_DBG, 1, sT3)
    A(f's_cmp_ge_u32 s{sP1}, 4'); A('s_cbranch_scc1 L_g2_v')
    A('v_lshrrev_b32 v13, 3, v11'); A('v_lshlrev_b32 v13, 4, v13'); A('v_and_b32 v14, 3, v11'); A('v_add_u32 v13, v13, v14')
    A('v_bfe_u32 v14, v11, 2, 1')
    A(f's_cmp_ge_u32 s{sP1}, 2')
    A(f's_cselect_b32 s{sE1}, 2, 3'); A(f's_cselect_b32 s{sE2}, 128, 64'); A(f's_cselect_b32 s{sE3}, {WS_KA - WS_QA}, 0'); A(f's_add_u32 s{sE3}, s{sE3}, {WS_QA}')
    A(f'v_lshlrev_b32 v14, s{sE1}, v14'); A('v_add_u32 v13, v13, v14')
    A('v_and_b32 v14, 1, v12'); A('v_lshl_add_u32 v13, v14, 5, v13')
    A('v_lshlrev_b32 v13, 4, v13')
    A('v_lshrrev_b32 v14, 1, v12'); A('v_lshl_add_u32 v1, v14, 16, v13')
    A(f's_add_u32 s{sE0}, s{sE0}, s{sE3}')
    WS.setup_a(A)
    def epi_t(A, half):
        for i in range(2):
            for c in range(2):
                for kt in range(2):
                    tm = 2 * i + kt
                    d = WS.vPKD + 4 * kt
                    A(f's_add_u32 s{sT0}, s{sE0}, {i * 1024 + c * 131072}')
                    if kt: A(f's_add_u32 s{sT0}, s{sT0}, s{sE2}')
                    WS.pack(A, tm * 4 + 2 * c, tm * 4 + 2 * c + 1, d)
                    A(f'buffer_store_dwordx4 {vr(d,4)}, v1, {srd(S_WS)}, s{sT0} offen sc1')
        A(f's_add_u32 s{sE0}, s{sE0}, 2048')
    WS.run_blocks(A, 'T', epi_t, sig, 'g2t')
    A('s_branch L_next')
    A.label('L_g2_v')
    A('v_and_b32 v13, 7, v11')
    A('v_and_b32 v14, 1, v12'); A('v_lshl_add_u32 v13, v14, 4, v13')
    A('v_lshrrev_b32 v14, 1, v12'); A('v_lshl_add_u32 v13, v14, 5, v13')
    A('v_lshlrev_b32 v13, 4, v13')
    A('v_lshrrev_b32 v14, 3, v11'); A('v_lshl_add_u32 v1, v14, 16, v13')
    A(f's_add_u32 s{sE0}, s{sE0}, {WS_VAT}')
    WS.setup_a(A)
    def epi_n(A, half):
        for i in range(2):
            for c in range(2):
                A(f's_add_u32 s{sT0}, s{sE0}, {i * 1024 + c * 131072}')
                for a in range(2):
                    tn = 2 * c + a
                    d = WS.vPKD + 4 * a
                    WS.pack(A, (2 * i) * 4 + tn, (2 * i + 1) * 4 + tn, d)
                    A(f'buffer_store_dwordx4 {vr(d,4)}, v1, {srd(S_WS)}, s{sT0} offen offset:{128*a} sc1')
        A(f's_add_u32 s{sE0}, s{sE0}, 2048')
    WS.run_blocks(A, 'N', epi_n, sig, 'g2n')
    A('s_branch L_next')

def out_epilogue(A, G):
    lane_consts(A)
    A('v_lshrrev_b32 v13, 2, v11'); A('v_and_b32 v14, 3, v11'); A('v_lshl_add_u32 v13, v13, 3, v14')
    A('v_lshlrev_b32 v13, 11, v13'); A('v_lshl_add_u32 v13, v12, 4, v13')
    if G.WM == 2:
        A(f's_lshr_b32 s{sT0}, s{sW}, 1'); A(f's_lshl_b32 s{sT0}, s{sT0}, 17'); A(f's_add_u32 s{sE0}, s{sE0}, s{sT0}')
        A(f's_and_b32 s{sT0}, s{sW}, 1'); A(f's_lshl_b32 s{sT0}, s{sT0}, 7'); A(f's_add_u32 s{sE0}, s{sE0}, s{sT0}')
    else:
        A(f's_lshl_b32 s{sT0}, s{sW}, 6'); A(f's_add_u32 s{sE0}, s{sE0}, s{sT0}')
    n = 0
    for tm in range(G.TM):
        A(f's_add_u32 s{sT0}, s{sE0}, {(32 * (tm // 2) + 4 * (tm % 2)) * 2048}')
        for c in range(G.TN // 2):
            d = 16 + 4 * n; n += 1
            G.pack(A, tm * G.TN + 2 * c, tm * G.TN + 2 * c + 1, d)
            A(f'buffer_store_dwordx4 {vr(d,4)}, v13, {srd(S_OUT)}, s{sT0} offen offset:{64*c}')

def gen_g3(A):
    G = G128
    A.label('L_task_g3')
    A(f's_sub_u32 s{sT1}, s{sTK}, {T_G3}')
    A(f's_lshr_b32 s{sP0}, s{sT1}, 2'); A(f's_and_b32 s{sP1}, s{sT1}, 3')
    wait_cnt(A, S_DBG, N_AT, off=4 * DBG_CAT, sleep=32)
    copy_srd(A, sGA, S_WS); copy_srd(A, sGB, S_AWO)
    A(f's_mov_b32 s{sLDA}, 1024'); A(f's_mov_b32 s{sLDB}, 1024'); A(f's_mov_b32 s{sKIT}, 2')
    A(f's_lshl_b32 s{sAOFF}, s{sP0}, 17'); A(f's_add_u32 s{sAOFF}, s{sAOFF}, {WS_OA}'); A(f's_lshl_b32 s{sBOFF}, s{sP1}, 8')
    G.setup(A)
    G.mainloop(A, 'T')
    A(f's_lshl_b32 s{sE0}, s{sP0}, 18'); A(f's_lshl_b32 s{sT0}, s{sP1}, 8'); A(f's_add_u32 s{sE0}, s{sE0}, s{sT0}')
    out_epilogue(A, G)
    A('s_branch L_next')

def gen_at(A):
    A.label('L_task_at')
    A(f's_sub_u32 s{sT1}, s{sTK}, {T_AT}')
    A(f's_lshr_b32 s{sP0}, s{sT1}, 3'); A(f's_and_b32 s{sP1}, s{sT1}, 7')
    wait_cnt(A, S_DBG, N_G2 * 4, off=4 * DBG_CG2, sleep=32)
    A(f's_lshl_b32 s{sP1}, s{sP1}, 2'); A(f's_add_u32 s{sP1}, s{sP1}, s{sW}     ; head')
    A(f's_lshl_b32 s{sP0}, s{sP0}, 1')
    A(f's_mov_b32 s{sP2}, 2')
    vQ = 16; vK = 20; vV = 56; vS = 128; vO = 0
    vNEG = 15
    A('v_and_b32 v10, 63, v0'); A('v_lshlrev_b32 v11, 4, v10     ; lane*16')
    A('v_and_b32 v12, 31, v10'); A('v_lshrrev_b32 v13, 5, v10     ; q, hh')
    A('v_lshl_add_u32 v14, v13, 4, v12'); A('v_lshlrev_b32 v14, 4, v14')
    A('v_lshlrev_b32 v9, 3, v13'); A('v_sub_u32 v9, v12, v9')
    A(f'v_mov_b32 v{vNEG}, 0xff800000')
    A('v_lshlrev_b32 v8, 10, v12'); A('v_lshl_add_u32 v8, v13, 4, v8')
    A('v_cmp_eq_u32 vcc, 16, v12'); A('v_cmp_eq_u32 s[98:99], 20, v12'); A('s_or_b64 vcc, vcc, s[98:99]')
    A('v_mov_b32 v7, 0x3f803f80'); A('v_cndmask_b32 v7, 0, v7, vcc')
    for r in range(72): A(f'v_mov_b32 v{vV+r}, v7')
    A('s_mov_b32 s98, 0x0000ffff'); A('s_mov_b32 s99, 0x0000ffff')
    C = fbits(0.25 * math.log2(math.e))
    A(f's_mov_b32 s{sE3}, {C}')
    A.label('L_at_loop')
    A(f's_lshl_b32 s{sE0}, s{sP1}, 6'); A(f's_add_u32 s{sE0}, s{sE0}, s{sP0}'); A(f's_lshl_b32 s{sE0}, s{sE0}, 10')
    A(f's_add_u32 s{sT0}, s{sE0}, {WS_QA}')
    A(f'buffer_load_dwordx4 {vr(vQ,4)}, v11, {srd(S_WS)}, s{sT0} offen sc1')
    def skip_if_invalid(i, tag):
        if i == 8: return None
        l = A.newlabel(f'L_at{tag}')
        A(f's_cmp_lt_u32 s{sP0}, {8 - i}'); A(f's_cbranch_scc1 {l}')
        return l
    for i in range(9):
        l = skip_if_invalid(i, 'l')
        A(f's_add_u32 s{sT0}, s{sE0}, {WS_KA}'); A(f's_sub_u32 s{sT0}, s{sT0}, {(8 - i) * 1024}')
        A(f'buffer_load_dwordx4 {vr(vK+4*i,4)}, v11, {srd(S_WS)}, s{sT0} offen sc1')
        A(f's_add_u32 s{sT0}, s{sT0}, {WS_VAT - WS_KA}')
        A('s_mov_b64 exec, s[98:99]')
        A(f'buffer_load_dwordx4 {vr(vV+8*i,4)}, v14, {srd(S_WS)}, s{sT0} offen sc1')
        A(f'buffer_load_dwordx4 {vr(vV+8*i+4,4)}, v14, {srd(S_WS)}, s{sT0} offen offset:512 sc1')
        A('s_mov_b64 exec, -1')
        if l: A.label(l)
    A('s_waitcnt vmcnt(0)')
    def sreg(i, r): return (vS + 16 * i + r) if i < 8 else (vK + r)
    for i in range(9):
        l = skip_if_invalid(i, 's')
        if i < 8:
            A(f'v_mfma_f32_32x32x16_bf16 {vr(vS+16*i,16)}, {vr(vK+4*i,4)}, {vr(vQ,4)}, 0')
        else:
            A(f'v_mfma_f32_32x32x16_bf16 {vr(vK,16)}, {vr(vK+32,4)}, {vr(vQ,4)}, 0')
        if l:
            l2 = A.newlabel('L_atv')
            A(f's_branch {l2}')
            A.label(l)
            for r in range(16): A(f'v_mov_b32 v{sreg(i,r)}, v{vNEG}')
            A.label(l2)
    A('s_nop 7'); A('s_nop 7')
    for r in range(16):
        c = 16 * (r // 8) + r % 8
        A(f'v_cmp_gt_i32 vcc, {c}, v9')
        A(f'v_cndmask_b32 v{sreg(0,r)}, v{vNEG}, v{sreg(0,r)}, vcc')
        A(f'v_cndmask_b32 v{sreg(8,r)}, v{sreg(8,r)}, v{vNEG}, vcc')
    allr = [sreg(i, r) for i in range(9) for r in range(16)]
    A(f'v_max3_f32 v2, v{allr[0]}, v{allr[1]}, v{allr[2]}'); A(f'v_max3_f32 v3, v{allr[3]}, v{allr[4]}, v{allr[5]}')
    for k in range(6, 144, 4):
        A(f'v_max3_f32 v2, v2, v{allr[k]}, v{allr[k+1]}')
        if k + 3 < 144: A(f'v_max3_f32 v3, v3, v{allr[k+2]}, v{allr[k+3]}')
    A('v_max_f32 v2, v2, v3'); A('v_mov_b32 v3, v2'); A('v_permlane32_swap_b32 v2, v3'); A('v_max_f32 v2, v2, v3')
    A(f'v_mul_f32 v2, s{sE3}, v2')
    for r in range(16): A(f'v_accvgpr_write_b32 a{r}, 0')
    for i in range(9):
        l = skip_if_invalid(i, 'p')
        for r in range(16): A(f'v_fma_f32 v{sreg(i,r)}, v{sreg(i,r)}, s{sE3}, -v2')
        for r in range(16): A(f'v_exp_f32 v{sreg(i,r)}, v{sreg(i,r)}')
        b = sreg(i, 0)
        for r in range(8): A(f'v_cvt_pk_bf16_f32 v{b+r}, v{b+2*r}, v{b+2*r+1}')
        for u in range(2):
            A(f'v_mfma_f32_32x32x16_bf16 a[0:15], {vr(vV+8*i+4*u,4)}, {vr(b+4*u,4)}, a[0:15]')
        if l: A.label(l)
    A('s_nop 7'); A('s_nop 7')
    for r in range(9): A(f'v_accvgpr_read_b32 v{vS+r}, a{r}')
    A(f'v_rcp_f32 v2, v{vS+8}')
    for r in range(8): A(f'v_mul_f32 v{vS+r}, v{vS+r}, v2')
    for r in range(4): A(f'v_cvt_pk_bf16_f32 v{vS+16+r}, v{vS+2*r}, v{vS+2*r+1}')
    A(f's_lshl_b32 s{sT0}, s{sP0}, 15'); A(f's_lshl_b32 s{sT1}, s{sP1}, 5'); A(f's_add_u32 s{sT0}, s{sT0}, s{sT1}'); A(f's_add_u32 s{sT0}, s{sT0}, {WS_OA}')
    A(f'buffer_store_dwordx4 {vr(vS+16,4)}, v8, {srd(S_WS)}, s{sT0} offen sc1')
    A(f's_add_u32 s{sP0}, s{sP0}, 1'); A(f's_sub_u32 s{sP2}, s{sP2}, 1'); A(f's_cmp_lg_u32 s{sP2}, 0'); A('s_cbranch_scc1 L_at_loop')
    signal(A, S_DBG, off=4 * DBG_CAT)
    A('s_branch L_next')

def gen_sv(A):
    sSEG, sHG, sCB, sHD = sP0, sP1, sP2, 92
    A.label('L_task_sv')
    A(f's_sub_u32 s{sT0}, s{sTK}, {T_SV}'); A(f's_lshr_b32 s{sSEG}, s{sT0}, 4'); A(f's_bfe_u32 s{sHG}, s{sT0}, 0x30001'); A(f's_and_b32 s{sCB}, s{sT0}, 1')
    copy_srd(A, sGB, S_WO)
    A(f's_mov_b32 s{sLDB}, 1024')
    A(f's_lshl_b32 s{sBOFF}, s{sHG}, 19'); A(f's_lshl_b32 s{sT0}, s{sCB}, 9'); A(f's_add_u32 s{sBOFF}, s{sBOFF}, s{sT0}')
    WS.load_w(A)
    WS.setup_a(A)
    A(f's_lshl_b32 s{sHD}, s{sHG}, 2'); A(f's_add_u32 s{sHD}, s{sHD}, s{sW}     ; head')
    wait_cnt(A, S_DBG, 32, off=4 * DBG_RINIT, sleep=32)
    for i in range(16): wait_cnt(A, S_DBG, KVQ_DONE, off=4 * (DBG_KV + i), sleep=32)
    vQ = 136; vKV = 168; vKM = 232; vVM = 16; vS = 32; vP = 56; vO = 72; vONE = 248
    vL16, vKMA, vVMA, vD, vNEG, vOW, vPW, vRD = 108, 109, 110, 111, 112, 113, 117, 118
    lane_consts(A)
    A(f'v_lshlrev_b32 v{vL16}, 4, v10')
    A('v_lshrrev_b32 v14, 2, v11'); A('v_and_b32 v15, 1, v11'); A('v_lshl_add_u32 v14, v14, 1, v15'); A('v_lshlrev_b32 v14, 8, v14'); A(f'v_lshl_add_u32 v{vKMA}, v12, 4, v14')
    A('v_lshrrev_b32 v14, 2, v11'); A('v_and_b32 v15, 3, v11'); A('v_lshl_add_u32 v14, v14, 3, v15   ; kappa0(n)')
    A('v_lshlrev_b32 v9, 3, v12'); A(f'v_sub_u32 v{vD}, v14, v9')
    A('v_lshlrev_b32 v9, 4, v14'); A(f'v_lshl_add_u32 v{vVMA}, v12, 2, v9')
    A('v_lshlrev_b32 v13, 10, v14'); A(f's_lshl_b32 s{sT0}, s{sW}, 8'); A(f'v_add_u32 v13, s{sT0}, v13')
    for wp in range(4):
        A(f'v_add_u32 v9, {4 * wp}, v12'); A('v_xor_b32 v9, v9, v11'); A(f'v_lshl_add_u32 v{vOW + wp}, v9, 4, v13')
    A('v_lshlrev_b32 v13, 11, v14'); A(f's_lshl_b32 s{sT0}, s{sW}, 7'); A(f'v_add_u32 v13, s{sT0}, v13'); A(f'v_lshl_add_u32 v{vPW}, v12, 4, v13')
    A(f'v_mov_b32 v{vNEG}, 0xff800000')
    for r in range(4): A(f'v_mov_b32 v{vONE+r}, 0x3f803f80')
    C = fbits(128 ** -0.5 * math.log2(math.e))
    A(f's_mov_b32 s{sE3}, {C}')
    def qkv_loads(segreg):
        A(f's_lshl_b32 s{sT1}, s{segreg}, 5'); A(f's_add_u32 s{sT1}, s{sT1}, s{sHD}')
        A(f's_lshl_b32 s{sT0}, s{sT1}, 13'); A(f's_add_u32 s{sT0}, s{sT0}, {WS_QF}')
        for i in range(8):
            if i == 4: A(f's_add_u32 s{sT0}, s{sT0}, 4096')
            A(f'buffer_load_dwordx4 {vr(vQ+4*i,4)}, v{vL16}, {srd(S_WS)}, s{sT0} offen offset:{1024*(i%4)} sc1')
        A(f's_lshl_b32 s{sT0}, s{sT1}, 14'); A(f's_add_u32 s{sT0}, s{sT0}, {WS_KVF}')
        for i in range(16):
            if i and i % 4 == 0: A(f's_add_u32 s{sT0}, s{sT0}, 4096')
            A(f'buffer_load_dwordx4 {vr(vKV+4*i,4)}, v{vL16}, {srd(S_WS)}, s{sT0} offen offset:{1024*(i%4)} sc1')
    qkv_loads(sSEG)
    def svt(i):
        if not LITE: return
        A('s_memrealtime s[94:95]'); A('s_waitcnt lgkmcnt(0)')
        A(f's_lshl_b32 s96, s{sSEG}, 1'); A(f's_add_u32 s96, s96, s{sCB}'); A('s_lshl_b32 s96, s96, 3'); A(f's_add_u32 s96, s96, s{sHG}'); A('s_lshl_b32 s96, s96, 5'); A(f's_add_u32 s96, s96, {113*MB + 4*i}')
        A('v_mov_b32 v120, s94'); A('v_mov_b32 v121, s96')
        A(f'buffer_store_dword v120, v121, {srd(S_WS)}, 0 offen')
    A.label('L_sv_loop')
    svt(0)
    A(f's_lshl_b32 s{sE0}, s{sSEG}, 5'); A(f's_add_u32 s{sE0}, s{sE0}, s{sHD}     ; seg*32+h')
    A('s_waitcnt vmcnt(0)')
    for qt in range(2):
        for kt in range(2):
            d = vS + 12 * qt + 4 * kt
            for w in range(4):
                A(f'v_mfma_f32_16x16x32_bf16 {vr(d,4)}, {vr(vKV + 16 * w + 4 * kt, 4)}, {vr(vQ+8*w+4*qt,4)}, {vr(d,4) if w else 0}')
    svt(1)
    A(f's_lshl_b32 s{sT3}, s{sHD}, 7'); A(f's_add_u32 s{sT3}, s{sT3}, {WS_PROG}')
    A(f's_add_u32 s{sE1}, s{sSEG}, 1')
    wait_cnt(A, S_WS, f's{sE1}', off_sgpr=sT3, sleep=2, adaptive=True)
    svt(2)
    A(f's_lshl_b32 s{sT0}, s{sE0}, 11'); A(f's_add_u32 s{sT0}, s{sT0}, {WS_KM}')
    for w in range(4): A(f'buffer_load_dwordx4 {vr(vKM+4*w,4)}, v{vKMA}, {srd(S_WS)}, s{sT0} offen offset:{64*w} sc1')
    A(f's_add_u32 s{sT0}, s{sT0}, {WS_VMT - WS_KM}')
    for w in range(4):
        for a in range(2):
            A(f'buffer_load_dword v{vVM+4*w+2*a}, v{vVMA}, {srd(S_WS)}, s{sT0} offen offset:{512*w+64*a} sc1')
            A(f'v_mov_b32 v{vVM+4*w+2*a+1}, 0')
    for qt in range(2):
        b = vS + 12 * qt
        for kt in range(2):
            for r in range(4):
                c = 4 * kt + r - 4 * qt
                A(f'v_cmp_gt_i32 vcc, {c}, v{vD}')
                A(f'v_cndmask_b32 v{b+4*kt+r}, v{b+4*kt+r}, v{vNEG}, vcc')
    A('s_waitcnt vmcnt(8)' if not LITE else 's_waitcnt vmcnt(0)')
    for qt in range(2):
        d = vS + 12 * qt + 8
        for w in range(4):
            A(f'v_mfma_f32_16x16x32_bf16 {vr(d,4)}, {vr(vKM + 4 * w, 4)}, {vr(vQ+8*w+4*qt,4)}, {vr(d,4) if w else 0}')
    A('s_barrier')
    for qt in range(2):
        b = vS + 12 * qt
        A(f'v_max3_f32 v2, v{b}, v{b+1}, v{b+2}'); A(f'v_max3_f32 v3, v{b+3}, v{b+4}, v{b+5}')
        A(f'v_max3_f32 v2, v2, v{b+6}, v{b+7}'); A(f'v_max3_f32 v3, v3, v{b+8}, v{b+9}'); A('v_max_f32 v2, v2, v3')
        A('v_mov_b32 v3, v2'); A('v_permlane16_swap_b32 v2, v3'); A('v_max_f32 v2, v2, v3')
        A('v_mov_b32 v3, v2'); A('v_permlane32_swap_b32 v2, v3'); A('v_max_f32 v2, v2, v3')
        A(f'v_mul_f32 v2, s{sE3}, v2')
        for r in range(10): A(f'v_fma_f32 v{b+r}, v{b+r}, s{sE3}, -v2')
        for r in range(10): A(f'v_exp_f32 v{b+r}, v{b+r}')
        p = vP + 8 * qt
        for r in range(5): A(f'v_cvt_pk_bf16_f32 v{p+r}, v{b+2*r}, v{b+2*r+1}')
        A(f'v_mov_b32 v{p+5}, 0')
        o = vO
        if qt == 0: A('s_waitcnt vmcnt(0)')
        A(f'v_mfma_f32_16x16x32_bf16 {vr(o+32,4)}, {vr(vONE,4)}, {vr(p,4)}, 0')
        for w in range(4):
            for a in range(2):
                d = o + 8 * w + 4 * a
                A(f'v_mfma_f32_16x16x32_bf16 {vr(d,4)}, {vr(vKV+16*w+8+4*a,4)}, {vr(p,4)}, 0')
        A(f'v_mfma_f32_16x16x16_bf16 {vr(o+32,4)}, {vr(vONE,2)}, {vr(p+4,2)}, {vr(o+32,4)}')
        for w in range(4):
            for a in range(2):
                d = o + 8 * w + 4 * a
                A(f'v_mfma_f32_16x16x16_bf16 {vr(d,4)}, {vr(vVM+4*w+2*a,2)}, {vr(p+4,2)}, {vr(d,4)}')
        A(f'v_rcp_f32 v2, v{o+32}')
        for r in range(32): A(f'v_mul_f32 v{o+r}, v{o+r}, v2')
        for w in range(4):
            d = o + 8 * w
            for r in range(4): A(f'v_cvt_pk_bf16_f32 v{d+r}, v{o+8*w+2*r}, v{o+8*w+2*r+1}')
            A(f'ds_write_b128 v{vOW+w}, {vr(d,4)} offset:{4096*qt}')
    svt(3)
    A('s_waitcnt lgkmcnt(0)')
    A('s_barrier')
    WS.compute(A, 0, 'T', TM=2)
    svt(4)
    A(f's_lshl_b32 s{sE2}, s{sSEG}, 1'); A(f's_add_u32 s{sE2}, s{sE2}, s{sCB}      ; seg*2+cb')
    A(f's_lshl_b32 s{sE1}, s{sE2}, 18'); A(f's_add_u32 s{sE1}, s{sE1}, {WS_PART}'); A(f's_lshl_b32 s{sT0}, s{sW}, 13'); A(f's_add_u32 s{sE1}, s{sE1}, s{sT0}')
    A(f's_lshl_b32 s{sT0}, s{sHG}, 15'); A(f's_add_u32 s{sT0}, s{sT0}, s{sE1}')
    for t in range(8):
        if t == 4: A(f's_add_u32 s{sT0}, s{sT0}, 4096')
        A(f'buffer_store_dwordx4 {vr(WS.vACC + 4 * t, 4)}, v{vL16}, {srd(S_WS)}, s{sT0} offen offset:{1024 * (t % 4)} sc1')
    A(f's_lshl_b32 s{sT3}, s{sE2}, 7'); A(f's_add_u32 s{sT3}, s{sT3}, {WS_CNT}')
    signal(A, S_WS, off_expr_sgpr=sT3)
    svt(5)
    wait_cnt(A, S_WS, 8, off_sgpr=sT3, sleep=1)
    svt(6)
    A(f's_lshl_b32 s{sT0}, s{sHG}, 10'); A(f's_add_u32 s{sT0}, s{sT0}, s{sE1}')
    for i in range(8):
        A(f'buffer_load_dwordx4 {vr(vO + 4 * i, 4)}, v{vL16}, {srd(S_WS)}, s{sT0} offen sc1')
        if i < 7: A(f's_add_u32 s{sT0}, s{sT0}, 32768')
    A(f's_add_u32 s93, s{sSEG}, {NSET}'); A('s_min_u32 s93, s93, 63')
    qkv_loads(93)
    A('s_waitcnt vmcnt(24)')
    for st in (16, 8, 4):
        for r in range(st): A(f'v_add_f32 v{vO+r}, v{vO+r}, v{vO+st+r}')
    A(f'v_cvt_pk_bf16_f32 v{vO+4}, v{vO}, v{vO+1}'); A(f'v_cvt_pk_bf16_f32 v{vO+5}, v{vO+2}, v{vO+3}')
    A(f's_lshl_b32 s{sT0}, s{sSEG}, 16'); A(f's_lshr_b32 s{sT1}, s{sHG}, 2'); A(f's_lshl_b32 s{sT1}, s{sT1}, 13'); A(f's_add_u32 s{sT0}, s{sT0}, s{sT1}')
    A(f's_lshl_b32 s{sT1}, s{sCB}, 9'); A(f's_add_u32 s{sT0}, s{sT0}, s{sT1}'); A(f's_add_u32 s{sT0}, s{sT0}, 1024')
    A(f's_bfe_u32 s{sT1}, s{sHG}, 0x10001'); A(f's_lshl_b32 s{sT1}, s{sT1}, 6'); A(f's_add_u32 s{sT0}, s{sT0}, s{sT1}')
    A(f's_and_b32 s{sT1}, s{sHG}, 1'); A(f's_lshl_b32 s{sT1}, s{sT1}, 3'); A(f's_add_u32 s{sT0}, s{sT0}, s{sT1}')
    A(f'buffer_store_dwordx2 {vr(vO+4,2)}, v{vPW}, {srd(S_OUT)}, s{sT0} offen')
    if TRACE or LITE:
        A('s_memrealtime s[94:95]'); A('s_waitcnt lgkmcnt(0)')
        A(f's_lshl_b32 s96, s{sE2}, 3'); A(f's_add_u32 s96, s96, s{sHG}'); A('s_lshl_b32 s96, s96, 2'); A(f's_add_u32 s96, s96, {111*MB}')
        A('v_mov_b32 v120, s94'); A('v_mov_b32 v121, s96')
        A(f'buffer_store_dword v120, v121, {srd(S_WS)}, 0 offen')
    A(f's_add_u32 s{sSEG}, s{sSEG}, {NSET}')
    A(f's_cmp_lt_u32 s{sSEG}, 64'); A('s_cbranch_scc1 L_sv_loop')
    A('s_branch L_next')

def gen_worker(A):
    A.label('L_worker')
    A(f's_mov_b32 s{sTK}, 4000')
    A.label('L_next')
    A('s_barrier')
    trace(A, 2)
    l = A.newlabel('L_ntk')
    A(f's_cmp_lg_u32 s{sW}, 0'); A(f's_cbranch_scc1 {l}')
    A('v_mov_b32 v120, 1'); A(f'v_mov_b32 v121, {4 * DBG_QUEUE}'); A(f'v_mov_b32 v122, {LDS_TICK}')
    A('s_mov_b64 exec, 1')
    A(f'buffer_atomic_add v120, v121, {srd(S_DBG)}, 0 offen sc0')
    A('s_waitcnt vmcnt(0)')
    A('ds_write_b32 v122, v120')
    A('s_mov_b64 exec, -1')
    A('s_waitcnt lgkmcnt(0)')
    A.label(l)
    A('s_barrier')
    A(f'v_mov_b32 v122, {LDS_TICK}')
    A('ds_read_b32 v120, v122')
    A('s_waitcnt lgkmcnt(0)')
    A(f'v_readfirstlane_b32 s{sTK}, v120')
    trace(A, 0)
    A(f's_cmp_lt_u32 s{sTK}, {T_Q}'); A('s_cbranch_scc1 L_task_kv')
    A(f's_cmp_lt_u32 s{sTK}, {T_G2}'); A('s_cbranch_scc1 L_task_q')
    A(f's_cmp_lt_u32 s{sTK}, {T_SV}'); A('s_cbranch_scc1 L_task_g2')
    A(f's_cmp_lt_u32 s{sTK}, {T_AT}'); A('s_cbranch_scc1 L_task_sv')
    A(f's_cmp_lt_u32 s{sTK}, {T_G3}'); A('s_cbranch_scc1 L_task_at')
    A(f's_cmp_lt_u32 s{sTK}, {T_END}'); A('s_cbranch_scc1 L_task_g3')
    A('s_branch L_end0')
    gen_g1(A); gen_g2(A); gen_g3(A); gen_at(A); gen_sv(A)
```

```python
from asmlib import *
from common import *
import math

sW, sH, sSTEP, sPSL, sMCUR, sMNXT, sT0, sT1, sT2, sKXO, sVXO, sKMO, sMODE, sT3 = range(56, 70)
sRDY = 70
vIDX = 1; vID = 2; vSEL = 4
vL16H, vHOME, vMP, vPST, vPLD, vMPUB, vKX, vVX, vKM, vVM, vSW, vSR, vOW = range(8, 21)
vNEG1 = 21
vFR = 24
vQK = 56
vVA = 72
vSTG = 80
vKXR = 104
vVXR = 112
vTMP = 120
vT2 = 22
vSR2T = 119
vSR2 = 0
LDS_MEM = 131072
LDS_SX = LDS_MEM + 8192
LDS_O = LDS_SX + 6144
LDS_KV = LDS_O + 2048
LDS_MISC = LDS_SX
NSTG = 3
assert LDS_KV + 16384 == 163840
vPB = vFR
sFO = 90

def vr(b, n): return f'v[{b}:{b+n-1}]'

def operand_order():
    ops = []
    for i in range(2):
        for m, a in (('k', 0), ('q', 0), ('k', 1), ('q', 1), ('v', 0), ('v', 1)): ops.append((m, a, i))
    for a in range(2):
        for i in range(2, 8):
            ops.append(('k', a, i)); ops.append(('q', a, i))
    for i in range(2, 8):
        ops.append(('v', 0, i)); ops.append(('v', 1, i))
    for a in range(8):
        for ks in range(2):
            ops.append(('o', a, ks))
    return ops
OPS = operand_order()
HOMED = [3, 7, 11] + [15, 19, 23, 27, 31, 35] + [36, 38] + [48 + i for i in (1, 4, 7, 10, 13)]
assert len(HOMED) == 16
LOC = {}
_r = 0
for i, o in enumerate(OPS):
    if i in HOMED:
        _qs = [j for j in HOMED if OPS[j][0] == 'q']; _os = [j for j in HOMED if OPS[j][0] != 'q']
        assert len(_qs) == 8
        LOC[o] = ('lds', _qs.index(i) if o[0] == 'q' else 8 + _os.index(i))
    else:
        LOC[o] = ('a', 8 * _r) if _r < 32 else ('v', 128 + 8 * (_r - 32))
        _r += 1
assert _r == 48

class Cnt:
    def __init__(self, A, name, maxv): self.A = A; self.name = name; self.maxv = maxv; self.q = []
    def issue(self, tag=None): self.q.append(tag)
    def wait(self, tag):
        if tag not in self.q: return
        idx = len(self.q) - 1 - self.q[::-1].index(tag)
        n = len(self.q) - 1 - idx
        n = min(n, self.maxv)
        self.A(f's_waitcnt {self.name}({n})')
        self.q = self.q[len(self.q) - n:] if n else []
    def all(self):
        self.A(f's_waitcnt {self.name}(0)'); self.q = []

def gen_setup(A):
    A('s_mov_b32 s4, 0x33333333'); A('s_mov_b32 s5, 0x33333333'); A('s_mov_b32 s6, 0xcccccccc'); A('s_mov_b32 s7, 0xcccccccc')
    A('v_and_b32 v120, 63, v0            ; lane')
    A('v_and_b32 v121, 15, v120          ; n = lane%16')
    A('v_lshrrev_b32 v122, 4, v120       ; g = lane/16')
    A(f'v_mov_b32 v{vNEG1}, -1')
    A('v_and_b32 v123, 2, v121')
    A('v_cmp_eq_u32 vcc, 0, v123')
    A(f'v_mov_b32 v124, 0xeeeeeeee')
    A(f'v_mov_b32 v125, 0x44444444')
    A(f'v_cndmask_b32 v{vIDX}, v124, v125, vcc')
    A('v_lshrrev_b32 v123, 2, v121')
    A('v_and_b32 v124, 3, v121           ; e')
    A('v_and_b32 v125, 1, v124')
    A('v_lshlrev_b32 v125, 4, v125       ; shift 0/16')
    A('v_mov_b32 v126, 0x3f80')
    A('v_lshlrev_b32 v126, v125, v126')
    A('v_cmp_eq_u32 vcc, v123, v122')
    A('v_cndmask_b32 v126, 0, v126, vcc')
    A('v_cmp_gt_u32 vcc, 2, v124')
    A(f'v_cndmask_b32 v{vID}, 0, v126, vcc')
    A(f'v_cndmask_b32 v{vID+1}, v126, 0, vcc')
    A('v_and_b32 v125, 1, v121')
    A('v_lshlrev_b32 v125, 4, v125')
    A('v_mov_b32 v126, 0x3f80')
    A('v_lshlrev_b32 v126, v125, v126')
    A('v_lshrrev_b32 v123, 1, v121       ; m/2 (0..7)')
    for r in range(4):
        A(f'v_cmp_eq_u32 vcc, {r}, v123')
        A(f'v_cndmask_b32 v{vSEL+r}, 0, v126, vcc')
    A(f'v_lshlrev_b32 v123, 4, v120      ; lane*16')
    A(f'v_add_u32 v{vL16H}, {LDS_MEM}, v123')
    A(f's_lshl_b32 s{sT0}, s{sW}, 15')
    A(f'v_add_u32 v{vHOME}, s{sT0}, v123')
    A(f's_lshl_b32 s{sT0}, s{sW}, 11')
    A(f'v_add_u32 v{vMP}, s{sT0}, v{vL16H}')
    A('v_lshrrev_b32 v123, 2, v121       ; q')
    A('v_and_b32 v124, 3, v121           ; e')
    A(f's_lshl_b32 s{sT0}, s{sW}, 16'); A(f's_lshl_b32 s{sT1}, s{sH}, 8'); A(f's_add_u32 s{sT0}, s{sT0}, s{sT1}')
    A('v_lshlrev_b32 v125, 13, v123'); A('v_lshlrev_b32 v126, 6, v122'); A('v_lshlrev_b32 v127, 4, v124')
    A(f'v_add3_u32 v{vPST}, v125, v126, v127'); A(f'v_add_u32 v{vPST}, s{sT0}, v{vPST}')
    A(f's_lshl_b32 s{sT0}, s{sH}, 13'); A(f's_lshl_b32 s{sT1}, s{sW}, 6'); A(f's_add_u32 s{sT0}, s{sT0}, s{sT1}')
    A('v_lshlrev_b32 v125, 10, v123'); A('v_lshlrev_b32 v126, 8, v122')
    A(f'v_add3_u32 v{vPLD}, v125, v126, v127'); A(f'v_add_u32 v{vPLD}, s{sT0}, v{vPLD}')
    A(f's_lshl_b32 s{sT0}, s{sH}, 8'); A(f's_lshl_b32 s{sT1}, s{sW}, 6'); A(f's_add_u32 s{sT0}, s{sT0}, s{sT1}')
    A('v_lshlrev_b32 v125, 5, v122'); A('v_lshlrev_b32 v126, 2, v121')
    A(f'v_add3_u32 v{vMPUB}, v125, v126, s{sT0}')
    A('v_lshlrev_b32 v126, 4, v120')
    A(f's_lshl_b32 s{sT0}, s{sH}, 14'); A(f's_lshl_b32 s{sT1}, s{sW}, 12'); A(f's_add_u32 s{sT0}, s{sT0}, s{sT1}')
    A(f'v_add_u32 v{vKX}, s{sT0}, v126')
    A(f's_add_u32 s{sT1}, s{sT1}, {LDS_KV}')
    A(f'v_add_u32 v{vVX}, s{sT1}, v126')
    A('v_lshlrev_b32 v125, 3, v123'); A('v_add_u32 v125, v125, v124   ; 8(m/4)+m%4')
    A('v_lshlrev_b32 v127, 4, v125'); A('v_lshlrev_b32 v126, 2, v122')
    A(f's_lshl_b32 s{sT0}, s{sH}, 11'); A(f's_lshl_b32 s{sT1}, s{sW}, 9'); A(f's_add_u32 s{sT0}, s{sT0}, s{sT1}')
    A(f'v_add3_u32 v{vVM}, v127, v126, s{sT0}')
    A('v_and_b32 v125, 1, v121'); A('v_lshl_add_u32 v125, v123, 1, v125   ; t')
    A('v_lshlrev_b32 v127, 8, v125'); A('v_lshlrev_b32 v126, 4, v122')
    A(f's_lshl_b32 s{sT0}, s{sH}, 11'); A(f's_lshl_b32 s{sT1}, s{sW}, 6'); A(f's_add_u32 s{sT0}, s{sT0}, s{sT1}')
    A(f'v_add3_u32 v{vKM}, v127, v126, s{sT0}')
    A('v_lshrrev_b32 v126, 1, v122'); A('v_lshlrev_b32 v126, 8, v126    ; (g/2)*256')
    A('v_and_b32 v127, 1, v122'); A('v_lshlrev_b32 v127, 5, v127     ; half*32')
    A('v_and_b32 v125, 1, v121'); A('v_lshlrev_b32 v125, 4, v125'); A('v_lshl_add_u32 v125, v123, 6, v125   ; (n/4)*64 + (n&1)*16')
    A(f'v_add3_u32 v{vOW}, v125, v126, v127')
    A(f's_lshl_b32 s{sT0}, s{sW}, 9'); A(f's_add_u32 s{sT0}, s{sT0}, {LDS_O}')
    A(f'v_add_u32 v{vOW}, s{sT0}, v{vOW}')
    A('v_lshrrev_b32 v125, 2, v120'); A('v_and_b32 v126, 1, v120'); A('v_lshl_add_u32 v125, v125, 1, v126')
    A('v_mul_u32_u24 v125, 48, v125')
    A(f's_mul_i32 s{sT0}, s{sW}, 1536'); A(f's_add_u32 s{sT0}, s{sT0}, {LDS_SX}')
    A(f'v_add_u32 v{vSW}, s{sT0}, v125')
    A('v_and_b32 v126, 2, v121')
    A('v_cmp_eq_u32 vcc, 0, v126')
    A(f'v_mov_b32 v126, {LDS_SX}'); A(f'v_mov_b32 v127, {LDS_SX + 16}')
    A('v_cndmask_b32 v126, v126, v127, vcc')
    A(f'v_add_u32 v{vSR}, v125, v126')
    A(f'v_mov_b32 v126, {LDS_SX + 32}'); A(f'v_mov_b32 v127, {LDS_SX + 36}')
    A('v_cndmask_b32 v126, v126, v127, vcc')
    A(f'v_add_u32 v{vSR2T}, v125, v126')

def gen_load_weights(A):
    A('v_and_b32 v120, 63, v0'); A('v_and_b32 v121, 15, v120'); A('v_lshrrev_b32 v122, 4, v120')
    vD = 24
    vDO = 28
    vTQ = 32
    vTO = 33
    vTT = 40
    vW2 = 36
    vDT = 72
    for i in range(4):
        A(f'v_xor_b32 v123, {i << 2}, v121')
        A('v_lshlrev_b32 v123, 4, v123')
        A(f'v_add_u32 v124, {4 * i}, v122')
        A('v_lshlrev_b32 v124, 13, v124')
        A(f's_lshl_b32 s{sT0}, s{sW}, 17'); A(f's_lshl_b32 s{sT1}, s{sH}, 8'); A(f's_add_u32 s{sT0}, s{sT0}, s{sT1}')
        A(f'v_add3_u32 v{vD+i}, v123, v124, s{sT0}')
        A(f'v_lshrrev_b32 v{vW2+i}, 6, v123'); A(f'v_lshlrev_b32 v{vW2+i}, 1, v{vW2+i}')
    for i in range(4):
        sw = (i & 1) | ((i >> 1) << 3)
        A(f'v_xor_b32 v123, {sw}, v121')
        A('v_lshrrev_b32 v125, 3, v123       ; u')
        A('v_and_b32 v123, 7, v123')
        A('v_lshlrev_b32 v123, 4, v123')
        A('v_lshl_add_u32 v123, v125, 8, v123')
        A(f'v_add_u32 v124, {4 * i}, v122')
        A('v_lshlrev_b32 v124, 10, v124')
        A(f's_lshl_b32 s{sT0}, s{sW}, 14'); A(f's_lshl_b32 s{sT1}, s{sH}, 17'); A(f's_add_u32 s{sT0}, s{sT0}, s{sT1}')
        A(f'v_add3_u32 v{vDO+i}, v123, v124, s{sT0}')
    A('v_lshrrev_b32 v123, 2, v121    ; r'); A('v_and_b32 v124, 3, v121   ; q')
    A('v_lshrrev_b32 v125, 1, v122'); A('v_lshlrev_b32 v125, 4, v125'); A('v_and_b32 v126, 1, v122'); A('v_lshlrev_b32 v126, 1, v126')
    A('v_lshlrev_b32 v127, 2, v123    ; 4r = 8(r/2)+4(r%2)')
    A('v_add3_u32 v125, v125, v126, v127   ; row')
    A(f's_lshl_b32 s{sT0}, s{sW}, 2')
    A(f'v_add_u32 v126, s{sT0}, v124      ; chunk = 4w+q')
    A('v_xor_b32 v126, v126, v127         ; ^ (r<<2)')
    A('v_lshlrev_b32 v126, 4, v126')
    A(f'v_lshl_add_u32 v{vTQ}, v125, 8, v126')
    A(f'v_add_u32 v{vTQ}, {LDS_MEM}, v{vTQ}')
    A('v_and_b32 v126, 1, v122    ; g%2'); A('v_lshrrev_b32 v127, 1, v123   ; r/2')
    A('v_lshrrev_b32 v125, 1, v122'); A('v_lshlrev_b32 v125, 4, v125')
    A('v_lshl_add_u32 v125, v126, 2, v125'); A('v_lshl_add_u32 v125, v127, 3, v125')
    A('v_and_b32 v34, 1, v123'); A('v_add_u32 v125, v125, v34     ; row')
    A(f's_and_b32 s{sT0}, s{sW}, 1'); A(f's_lshl_b32 s{sT0}, s{sT0}, 3')
    A(f'v_lshlrev_b32 v34, 1, v124'); A(f'v_add_u32 v34, s{sT0}, v34    ; 8u+2q')
    A('v_lshl_add_u32 v126, v127, 3, v126   ; swz')
    A('v_xor_b32 v34, v34, v126')
    A('v_lshlrev_b32 v34, 4, v34')
    A(f'v_lshl_add_u32 v{vTO}, v125, 8, v34')
    A(f'v_add_u32 v{vTO}, {LDS_MEM}, v{vTO}')
    A(f'v_xor_b32 v{vTO+1}, 16, v{vTO}')
    chunks = [('k', ks) for ks in range(8)] + [('o', c) for c in range(8)] + [('v', ks) for ks in range(8)] + [('q', ks) for ks in range(8)]
    NCH = len(chunks)
    BUFS = [LDS_MEM, LDS_MEM + 16384, 0, 32768, 65536, 98304]
    bufof = [BUFS[ci % 6] if ci < 24 else BUFS[ci % 2] for ci in range(NCH)]
    vB = 76
    for j, v in enumerate((vTQ, vTO, vTO + 1)):
        A(f'v_subrev_u32 v{vB+2*j}, {LDS_MEM}, v{v}'); A(f'v_add_u32 v{vB+2*j+1}, 65536, v{vB+2*j}')
    def base_off(which, buf):
        j = {vTQ: 0, vTO: 1, vTO + 1: 2}[which]
        if buf >= LDS_MEM: return which, buf - LDS_MEM
        if buf >= 65536: return vB + 2 * j + 1, buf - 65536
        return vB + 2 * j, buf
    def dma(ci):
        m, x = chunks[ci]
        buf = bufof[ci]
        for i in range(4):
            A(f's_lshl_b32 s{sT0}, s{sW}, 12')
            A(f's_add_u32 m0, s{sT0}, {buf + 1024 * i}')
            if m != 'o':
                S = {'q': S_WQ, 'k': S_WK, 'v': S_WV}[m]
                A(f's_mov_b32 s{sT1}, {x * 64 * 8192}')
                A(f'buffer_load_dwordx4 v{vD+i}, {srd(S)}, s{sT1} offen lds')
            else:
                ks, ah, wp = x >> 2, (x >> 1) & 1, x & 1
                A(f's_mov_b32 s{sT1}, {ks * 65536 + wp * 512 + ah * 128}')
                A(f'buffer_load_dwordx4 v{vDO+i}, {srd(S_WO)}, s{sT1} offen lds')
    def dest(o, tmpi):
        k, b = LOC[o]
        if k == 'lds': return 'v', vTT + 8 * tmpi
        return k, b
    issued = 0
    def can_issue(j, consumed):
        return all(bufof[p] != bufof[j] for p in range(consumed, j))
    def pump(consumed):
        nonlocal issued
        while issued < NCH and can_issue(issued, consumed):
            dma(issued); issued += 1
    pump(0)
    for ci, (m, x) in enumerate(chunks):
        A(f's_waitcnt vmcnt({4 * (issued - ci - 1)})')
        A('s_barrier')
        skip = None
        homed = []
        if m != 'o':
            vb, boff = base_off(vTQ, bufof[ci])
            lend = A.newlabel('L_wv')
            for wv in range(4):
                lnext = A.newlabel('L_wn')
                if wv < 3:
                    A(f's_cmp_lg_u32 s{sW}, {wv}'); A(f's_cbranch_scc1 {lnext}')
                hm = []
                for a in range(2):
                    o = (m, a, (x - 2 * wv) & 7)
                    k, b = dest(o, a)
                    if LOC[o][0] == 'lds': hm.append((o, b))
                    for p in range(4):
                        A(f'ds_read_b64_tr_b16 {k}[{b+2*p}:{b+2*p+1}], v{vb} offset:{boff + (p >> 1) * 8192 + (p & 1) * 256 + 8 * a}')
                if hm: A('s_waitcnt lgkmcnt(0)')
                for o, b in hm:
                    slot = LOC[o][1]
                    A(f'ds_write_b128 v{vHOME}, {vr(b, 4)} offset:{slot * 2048}')
                    A(f'ds_write_b128 v{vHOME}, {vr(b + 4, 4)} offset:{slot * 2048 + 1024}')
                if wv < 3:
                    A(f's_branch {lend}')
                    A.label(lnext)
            A.label(lend)
        else:
            ks, ah, wp = x >> 2, (x >> 1) & 1, x & 1
            skip = A.newlabel('L_wskip')
            A(f's_lshr_b32 s{sT0}, s{sW}, 1'); A(f's_cmp_lg_u32 s{sT0}, {wp}'); A(f's_cbranch_scc1 {skip}')
            for ap in range(4):
                o = ('o', 4 * ah + ap, ks)
                k, b = dest(o, ap)
                if LOC[o][0] == 'lds': homed.append((o, b))
                vb, boff = base_off(vTO + (ap >> 1), bufof[ci])
                for p in range(4):
                    A(f'ds_read_b64_tr_b16 {k}[{b+2*p}:{b+2*p+1}], v{vb} offset:{boff + (p >> 1) * 8192 + (p & 1) * 512 + 8 * (ap & 1)}')
        A('s_waitcnt lgkmcnt(0)')
        for o, b in homed:
            slot = LOC[o][1]
            A(f'ds_write_b128 v{vHOME}, {vr(b, 4)} offset:{slot * 2048}')
            A(f'ds_write_b128 v{vHOME}, {vr(b + 4, 4)} offset:{slot * 2048 + 1024}')
        if skip: A.label(skip)
        A('s_barrier')
        pump(ci + 1)
    A('s_waitcnt lgkmcnt(0)')

def st_mode(A, ins):
    return ins

def gen_stores(A, lst, tag):
    l1 = A.newlabel('L_sslow'); l2 = A.newlabel('L_sdone')
    A(f's_cmp_lg_u32 s{sMODE}, 0'); A(f's_cbranch_scc1 {l1}')
    for s in lst: A(s)
    A(f's_branch {l2}')
    A.label(l1)
    for s in lst:
        A(s + ' sc1' if s.startswith('buffer_store') else s)
    A.label(l2)

def gen_init_exchange(A):
    for r in range(4): A(f'v_mov_b32 v{vTMP+r}, -1')
    lst = []
    for sl in range(1):
        for i in range(2):
            lst.append(f's_mov_b32 s{sT0}, {WS_PX + sl * 262144 + i * 4096}')
            lst.append(f'buffer_store_dwordx4 {vr(vTMP,4)}, v{vPLD}, {srd(S_WS)}, s{sT0} offen')
    lst.append('s_mov_b64 exec, 0xf000f')
    for sl in range(4):
        lst.append(f's_mov_b32 s{sT0}, {WS_MX + sl * 8192}')
        lst.append(f'buffer_store_dword v{vNEG1}, v{vMPUB}, {srd(S_WS)}, s{sT0} offen')
        lst.append(f'buffer_store_dword v{vNEG1}, v{vMPUB}, {srd(S_WS)}, s{sT0} offen offset:16')
    lst.append('s_mov_b64 exec, -1')
    gen_stores(A, lst, 'init')
    A(f's_lshl_b32 s{sT0}, s{sH}, 7'); A(f's_add_u32 s{sT0}, s{sT0}, {WS_PROG}'); A(f'v_mov_b32 v{vT2+1}, s{sT0}'); A(f'v_mov_b32 v{vT2}, 0')
    A(f'buffer_store_dword v{vT2}, v{vT2+1}, {srd(S_WS)}, 0 offen sc1')
    A('s_waitcnt vmcnt(0)')
    A('s_barrier')
    l = A.newlabel('L_noarr')
    A(f's_cmp_lg_u32 s{sW}, 0'); A(f's_cbranch_scc1 {l}')
    A(f'v_mov_b32 v{vTMP}, 1'); A(f'v_mov_b32 v{vTMP+1}, {4 * DBG_RINIT}')
    A('s_mov_b64 exec, 1')
    A(f'buffer_atomic_add v{vTMP}, v{vTMP+1}, {srd(S_DBG)}, 0 offen')
    A('s_mov_b64 exec, -1')
    A.label(l)

def gen_wait_init(A):
    l = A.newlabel('L_winit')
    A(f'v_mov_b32 v{vTMP+1}, {4 * DBG_RINIT}')
    A.label(l)
    A(f'buffer_load_dword v{vTMP}, v{vTMP+1}, {srd(S_DBG)}, 0 offen sc1')
    A('s_waitcnt vmcnt(0)')
    A(f'v_cmp_gt_u32 vcc, 32, v{vTMP}')
    A(f's_cbranch_vccnz {l}')

def gen_mem0(A):
    A('v_and_b32 v120, 63, v0'); A('v_and_b32 v121, 15, v120'); A('v_lshrrev_b32 v122, 4, v120')
    A('v_lshrrev_b32 v123, 2, v121'); A('v_and_b32 v124, 1, v121'); A('v_lshl_add_u32 v123, v123, 1, v124'); A('v_lshlrev_b32 v123, 10, v123')
    A('v_and_b32 v124, 2, v121'); A('v_lshlrev_b32 v124, 3, v124'); A('v_lshlrev_b32 v125, 5, v122')
    A('v_add3_u32 v123, v123, v124, v125')
    A(f's_lshl_b32 s{sT0}, s{sW}, 8')
    A(f'buffer_load_dwordx4 {vr(vFR+8,4)}, v123, {srd(S_MEM0)}, s{sT0} offen')
    A(f'buffer_load_dwordx4 {vr(vFR+12,4)}, v123, {srd(S_MEM0)}, s{sT0} offen offset:128')
    A('s_waitcnt vmcnt(0)')
    A(f's_mov_b32 s{sT0}, 0x05040100'); A(f's_mov_b32 s{sT1}, 0x07060302')
    for i in range(2):
        s = vFR + 8 + 4 * i; d = vPB + 4 * i
        A(f'v_perm_b32 v{d}, v{s+2}, v{s}, s{sT0}')
        A(f'v_perm_b32 v{d+1}, v{s+2}, v{s}, s{sT1}')
        A(f'v_perm_b32 v{d+2}, v{s+3}, v{s+1}, s{sT0}')
        A(f'v_perm_b32 v{d+3}, v{s+3}, v{s+1}, s{sT1}')


def gen_setup2(A):
    A('v_and_b32 v121, 15, v0')
    A('v_cmp_lt_u32 vcc, 7, v121')
    A('v_mov_b32 v122, 0x3f803f80')
    for r in range(4): A(f'v_cndmask_b32 v{vSEL+r}, v{vSEL+r}, v122, vcc')
    A(f'v_mov_b32 v{vSR2}, v{vSR2T}')

def gen_steps(A, mode, nsteps=64, prof=None, flag=True, opt=(), kvwait=None):
    X = '' if mode == 'f' else ' sc1'
    L = lambda n: f'L_rec{mode}_{n}'
    lg = Cnt(A, 'lgkmcnt', 15)
    SC = 128 ** -0.5 * math.log2(math.e)
    import struct
    SCBITS = struct.unpack('<I', struct.pack('<f', SC))[0]
    homed_seq = [OPS[i] for i in HOMED]
    slot_of = {o: i % NSTG for i, o in enumerate(homed_seq)}
    sTAG = sPSL
    QP = 'quad_perm:[2,3,0,1] row_mask:0xf bank_mask:0xf'
    def breg(o):
        k, b = LOC[o]
        if k == 'lds':
            b = vSTG + 8 * slot_of[o]
            return f'v[{b}:{b+7}]'
        return f'{k}[{b}:{b+7}]'
    def stage(i):
        if i >= len(homed_seq): return
        o = homed_seq[i]; b = vSTG + 8 * slot_of[o]; slot = LOC[o][1]
        A(f'ds_read_b128 {vr(b,4)}, v{vHOME} offset:{slot*2048}'); lg.issue()
        A(f'ds_read_b128 {vr(b+4,4)}, v{vHOME} offset:{slot*2048+1024}'); lg.issue(('stg', i))
    def smf(acc, areg, o):
        if LOC[o][0] == 'lds':
            lg.wait(('stg', homed_seq.index(o)))
        A(f'v_smfmac_f32_16x16x64_bf16 {vr(acc,4)}, {vr(areg,4)}, {breg(o)}, v{vIDX}')
    def P(i):
        if prof is not None: A(f's_memtime s[{prof+2*i}:{prof+2*i+1}]')
    def zero(b, n):
        for r in range(0, n, 2): A(f'v_mov_b64 v[{b+r}:{b+r+1}], 0')
    def kvdma(lst):
        A(f's_mov_b32 m0, s{sT3}')
        for i in lst:
            if 'nodma' in opt: continue
            A(f'buffer_load_dwordx4 v{vKX}, {srd(S_WS)}, s{sKXO} offen offset:{1024*i} sc1 lds')
    def kvread():
        for i in range(4): A(f'ds_read_b128 {vr(vKXR+4*i,4)}, v{vVX} offset:{1024*i}')
    def hadd(b): return f'v_pk_add_f32 v[{b}:{b+1}], v[{b}:{b+1}], v[{b+2}:{b+3}]'
    A(f's_mov_b32 s{sSTEP}, 0')
    A(f's_mov_b32 s{sTAG}, 0')
    A(f's_mov_b32 s{sMCUR}, {WS_MX}')
    A(f's_mov_b32 s{sKXO}, {WS_KVF}')
    A(f's_mov_b32 s{sKMO}, 0')
    A(f's_mov_b32 s{sT2}, {SCBITS}')
    A(f's_mov_b32 s{sVXO}, {WS_PX}')
    A(f's_lshl_b32 s{sT3}, s{sW}, 12'); A(f's_add_u32 s{sT3}, s{sT3}, {LDS_KV}')
    for i in range(2, 8):
        A(f's_lshl_b32 s{sFO+i}, s{sW}, 1'); A(f's_add_u32 s{sFO+i}, s{sFO+i}, {i}'); A(f's_and_b32 s{sFO+i}, s{sFO+i}, 7'); A(f's_lshl_b32 s{sFO+i}, s{sFO+i}, 10')
    if kvwait: kvwait(A, first=True)
    kvdma(range(4))
    for i in range(NSTG): stage(i)
    lg.q = []
    zero(vQK, 24)
    A('s_waitcnt vmcnt(0)')
    kvread()
    A(f's_add_u32 s{sKXO}, s{sKXO}, {32*16384}')
    A(f's_branch {L("have_mem")}')
    A.label(L('step'))
    P(0)
    A(f's_sub_u32 s{sT0}, s{sMCUR}, {LDS_MEM}')
    B2 = [int(o[3:]) for o in opt if o.startswith('b2_')]
    if B2 and B2[0] == 99: A('s_waitcnt vmcnt(0)')
    elif B2 and B2[0]: A(f's_sleep {B2[0]}')
    A.label(L('poll2'))
    A(f'buffer_load_dwordx4 {vr(vPB,4)}, v{vMP}, {srd(S_WS)}, s{sT0} offen sc1')
    A(f'buffer_load_dwordx4 {vr(vPB+4,4)}, v{vMP}, {srd(S_WS)}, s{sT0} offen offset:1024 sc1')
    A('s_waitcnt vmcnt(0)')
    A(f'v_max3_u32 v{vTMP}, v{vPB}, v{vPB+1}, v{vPB+2}'); A(f'v_max3_u32 v{vTMP+1}, v{vPB+3}, v{vPB+4}, v{vPB+5}')
    A(f'v_max3_u32 v{vTMP}, v{vTMP}, v{vPB+6}, v{vPB+7}'); A(f'v_max_u32 v{vTMP}, v{vTMP}, v{vTMP+1}')
    A(f'v_cmp_eq_u32 vcc, -1, v{vTMP}')
    A('s_mov_b64 exec, vcc')
    A(f's_cbranch_execnz {L("poll2")}')
    A('s_mov_b64 exec, -1')
    A.label(L('have_mem'))
    P(1)
    A(f'ds_write_b128 v{vMP}, {vr(vPB,4)}'); A(f'ds_write_b128 v{vMP}, {vr(vPB+4,4)} offset:1024')
    nstaged = NSTG
    def acc_of(m, a): return (vVA + 4 * a) if m == 'v' else vQK + 8 * a + (4 if m == 'q' else 0)
    pre = [o for o in OPS[:12]]
    for o in pre[:3]: smf(acc_of(o[0], o[1]), vFR + 4 * o[2], o)
    if kvwait: kvwait(A, first=False)
    for i in range(2, 8): A(f'v_add_u32 v{vFR+4*i}, s{sFO+i}, v{vL16H}')
    A('s_waitcnt lgkmcnt(0)')
    A('s_barrier')
    P(2)
    for i in range(2, 8):
        A(f'ds_read_b128 {vr(vFR+4*i,4)}, v{vFR+4*i}'); lg.issue(('fr', i))
    n_ = 0
    for o in pre[3:]:
        smf(acc_of(o[0], o[1]), vFR + 4 * o[2], o)
        if LOC[o][0] == 'lds':
            stage(nstaged); nstaged += 1
        n_ += 1
        if n_ in (2, 4, 6, 8): kvdma([n_ // 2 - 1])
    A(f's_add_u32 s{sKXO}, s{sKXO}, {32*16384}')
    if kvwait:
        A(f's_cmp_lt_u32 s{sRDY}, 16'); A(f's_cbranch_scc1 {L("rdy1")}')
        A.label(L('rdy1b'))
    vAP = vT2; vDP = vTMP; vX = vTMP + 4
    bg = []
    def post_qk_list(a):
        k = vQK + 8 * a; q = k + 4
        return [hadd(k), hadd(q),
                f'v_cvt_pk_bf16_f32 v{vAP}, v{k}, v{k+1}', f'v_cvt_pk_bf16_f32 v{vAP+1}, v{q}, v{q+1}',
                f'v_mfma_f32_16x16x16_bf16 {vr(vDP,4)}, {vr(vAP,2)}, {vr(vID,2)}, 0']
    def post_qk2_list(a):
        return [f'v_cvt_pk_bf16_f32 v{vX+2*a}, v{vDP}, v{vDP+1}', f'v_cvt_pk_bf16_f32 v{vX+2*a+1}, v{vDP+2}, v{vDP+3}']
    if flag:
        fl = A.newlabel('L_nofl')
        A(f's_cmp_lg_u32 s{sW}, 0'); A(f's_cbranch_scc1 {fl}')
        A(f'v_mov_b32 v{vT2}, s{sSTEP}')
        A(f's_lshl_b32 s{sT0}, s{sH}, 7'); A(f's_add_u32 s{sT0}, s{sT0}, {WS_PROG}'); A(f'v_mov_b32 v{vT2+1}, s{sT0}')
        A('s_mov_b64 exec, 1')
        A(f'buffer_store_dword v{vT2}, v{vT2+1}, {srd(S_WS)}, 0 offen sc1')
        A('s_mov_b64 exec, -1')
        A.label(fl)
    cnt = 0
    for a in range(2):
        for ks in range(2, 8):
            if a == 0: lg.wait(('fr', ks))
            for m in 'kq':
                o = (m, a, ks)
                smf(acc_of(m, a), vFR + 4 * ks, o)
                if LOC[o][0] == 'lds':
                    stage(nstaged); nstaged += 1
                cnt += 1
                if cnt == 14: bg = post_qk_list(0)
                if cnt == 22: bg += post_qk2_list(0)
                if bg: A(bg.pop(0))
    assert not bg
    P(3)
    vops = [('v', a, ks) for ks in range(2, 8) for a in range(2)]
    vi = [0]
    def vstep(n=1):
        for _ in range(n):
            if vi[0] >= 12: return
            o = vops[vi[0]]; vi[0] += 1
            smf(vVA + 4 * o[1], vFR + 4 * o[2], o)
    VS = [o[3:] for o in opt if o.startswith('vs_')]
    VS = [int(c) for c in (VS[0] if VS else '12135')]
    vstep(VS[0])
    for i_ in post_qk_list(1): A(i_)
    vstep(VS[1])
    for i_ in post_qk2_list(1): A(i_)
    vS = vQK
    A(f'v_mfma_f32_16x16x32_bf16 {vr(vS,4)}, {vr(vKXR,4)}, {vr(vX,4)}, 0')
    A(f'v_mfma_f32_16x16x32_bf16 {vr(vS+4,4)}, {vr(vKXR+4,4)}, {vr(vX,4)}, 0')
    A(f'v_mfma_f32_16x16x32_bf16 {vr(vS+8,4)}, {vr(vX,4)}, {vr(vX,4)}, 0')
    vstep(VS[2])
    A(f's_add_u32 s{sT0}, s{sKMO}, {WS_KM}')
    A('s_mov_b64 exec, s[6:7]')
    A(f'ds_write_b128 v{vSW}, {vr(vS,4)}'); lg.issue()
    A(f'ds_write_b128 v{vSW}, {vr(vS+4,4)} offset:16'); lg.issue()
    A(f'ds_write_b64 v{vSW}, {vr(vS+8,2)} offset:32'); lg.issue()
    A('s_mov_b64 exec, s[4:5]')
    if 'nokm' not in opt: A(f'buffer_store_dwordx4 {vr(vX,4)}, v{vKM}, {srd(S_WS)}, s{sT0} offen sc1')
    A('s_mov_b64 exec, -1')
    vstep(VS[3])
    lg.all()
    A('s_barrier')
    P(4)
    E = [vS, vS + 4, vS + 8, vKXR]
    Em = [vS + 12, vS + 13, vS + 14, vS + 15]
    for w in range(4):
        A(f'ds_read_b128 {vr(E[w],4)}, v{vSR} offset:{1536*w}'); lg.issue(('e', w))
    for w in range(4):
        A(f'ds_read_b32 v{Em[w]}, v{vSR2} offset:{1536*w}'); lg.issue(('em', w))
    vstep(VS[4])
    lg.wait(('e', 1))
    for r in (0, 2): A(f'v_pk_add_f32 v[{E[0]+r}:{E[0]+r+1}], v[{E[0]+r}:{E[0]+r+1}], v[{E[1]+r}:{E[1]+r+1}]')
    vstep(1)
    lg.wait(('e', 3))
    for r in (0, 2): A(f'v_pk_add_f32 v[{E[2]+r}:{E[2]+r+1}], v[{E[2]+r}:{E[2]+r+1}], v[{E[3]+r}:{E[3]+r+1}]')
    vstep(1)
    lg.wait(('em', 3))
    A(f'v_pk_add_f32 v[{Em[0]}:{Em[1]}], v[{Em[0]}:{Em[1]}], v[{Em[2]}:{Em[3]}]')
    for r in (0, 2): A(f'v_pk_add_f32 v[{E[0]+r}:{E[0]+r+1}], v[{E[0]+r}:{E[0]+r+1}], v[{E[2]+r}:{E[2]+r+1}]')
    vstep(1)
    e4 = vS + 4
    A(f'v_add_f32 v{e4}, v{Em[0]}, v{Em[1]}')
    vM = vTMP; vM2 = vTMP + 1
    A(f'v_max3_f32 v{vM}, v{vS}, v{vS+1}, v{vS+2}'); A(f'v_max3_f32 v{vM}, v{vM}, v{vS+3}, v{e4}')
    vstep(1)
    stage(nstaged); nstaged += 1
    A(f'v_max_f32_dpp v{vM}, v{vM}, v{vM} {QP}')
    A(f'v_mov_b32 v{vM2}, v{vM}')
    vstep(1)
    assert vi[0] == 12, vi
    stage(nstaged); nstaged += 1
    A(f'v_permlane16_swap_b32 v{vM}, v{vM2}')
    A(f'v_max_f32 v{vM}, v{vM}, v{vM2}')
    A(f'v_mov_b32 v{vM2}, v{vM}')
    A(f'v_permlane32_swap_b32 v{vM}, v{vM2}')
    A(f'v_max_f32 v{vM}, v{vM}, v{vM2}')
    A(f'v_mul_f32 v{vM}, s{sT2}, v{vM}')
    for r in range(5): A(f'v_fma_f32 v{vS+r}, v{vS+r}, s{sT2}, -v{vM}')
    for r in range(5): A(f'v_exp_f32 v{vS+r}, v{vS+r}')
    A(hadd(vVA)); A(hadd(vVA + 4))
    vPx = vTMP
    vVM0 = vTMP + 4
    for a in range(2):
        b = vVA + 4 * a
        A(f'v_cvt_pk_bf16_f32 v{vVM0+2*a}, v{b}, v{b+1}'); A(f'v_mov_b32 v{vVM0+2*a+1}, 0')
    A(f'v_cvt_pk_bf16_f32 v{vPx}, v{vS}, v{vS+1}'); A(f'v_cvt_pk_bf16_f32 v{vPx+1}, v{vS+2}, v{vS+3}')
    A(f'v_mov_b32_dpp v{e4+1}, v{e4} {QP}')
    A(f'v_mov_b32 v{vS+13}, 0')
    A(f'v_mov_b32_dpp v{vPx+2}, v{vPx} {QP}'); A(f'v_mov_b32_dpp v{vPx+3}, v{vPx+1} {QP}')
    A(f'v_cvt_pk_bf16_f32 v{vS+12}, v{e4}, v{e4+1}')
    vO = vS
    A(f's_add_u32 s{sT0}, s{sKMO}, {WS_VMT}')
    A(f'v_mfma_f32_16x16x32_bf16 {vr(vS+8,4)}, {vr(vSEL,4)}, {vr(vPx,4)}, 0')
    for a in range(2):
        A(f'v_mfma_f32_16x16x32_bf16 {vr(vO+4*a,4)}, {vr(vVXR+4*a,4)}, {vr(vPx,4)}, 0')
    if 'novm' not in opt:
        A(f'buffer_store_dword v{vVM0}, v{vVM}, {srd(S_WS)}, s{sT0} offen sc1')
        A(f'buffer_store_dword v{vVM0+2}, v{vVM}, {srd(S_WS)}, s{sT0} offen offset:64 sc1')
    A(f's_cmp_eq_u32 s{sSTEP}, {nsteps-1}')
    A(f's_cbranch_scc1 {L("done")}')
    A(f'v_mfma_f32_16x16x16_bf16 {vr(vS+8,4)}, {vr(vSEL,2)}, {vr(vS+12,2)}, {vr(vS+8,4)}')
    for a in range(2):
        A(f'v_mfma_f32_16x16x16_bf16 {vr(vO+4*a,4)}, {vr(vVM0+2*a,2)}, {vr(vS+12,2)}, {vr(vO+4*a,4)}')
    zero(vFR, 8)
    vL = vT2; vL2 = vT2 + 1
    A(f'v_rcp_f32 v{vL}, v{vS+8}')
    zero(vFR + 8, 2)
    A(f'v_mov_b32 v{vL2}, v{vL}')
    zero(vFR + 10, 4)
    A(f'v_permlane32_swap_b32 v{vL}, v{vL2}')
    for r in range(0, 8, 2): A(f'v_pk_mul_f32 v[{vO+r}:{vO+r+1}], v[{vO+r}:{vO+r+1}], v[{vL}:{vL+1}] op_sel:[0,1] op_sel_hi:[1,1]')
    for r in range(4): A(f'v_cvt_pk_bf16_f32 v{vTMP+r}, v{vO+2*r}, v{vO+2*r+1}')
    A('s_mov_b64 exec, s[6:7]')
    A(f'ds_write_b128 v{vOW}, {vr(vTMP,4)}')
    A('s_mov_b64 exec, -1')
    vWA = vFR
    zero(vFR + 14, 10)
    A('s_waitcnt lgkmcnt(0)'); lg.q = []
    A('s_barrier')
    P(5)
    vOF = vQK
    A(f'ds_read_b128 {vr(vOF,4)}, v{vL16H} offset:{LDS_O-LDS_MEM}'); lg.issue('of0')
    A(f'ds_read_b128 {vr(vOF+4,4)}, v{vL16H} offset:{LDS_O-LDS_MEM+1024}'); lg.issue('of1')
    zero(vFR + 24, 8)
    A(f's_add_u32 s{sT0}, s{sVXO}, 32768')
    lg.wait('of0')
    vPK = vVA
    def post_o(a):
        b = vWA + 4 * a
        return [hadd(b), f'v_cvt_pk_bf16_f32 v{vPK+a}, v{b}, v{b+1}', f'v_bfi_b32 v{vPK+a}, 1, s{sTAG}, v{vPK+a}']
    bg = []
    for a in range(8):
        for ks in range(2):
            if a == 0 and ks == 1: lg.wait('of1')
            o = ('o', a, ks)
            smf(vWA + 4 * a, vOF + 4 * ks, o)
            if LOC[o][0] == 'lds':
                stage(nstaged); nstaged += 1
            for _ in range(1 + ks):
                if bg: A(bg.pop(0))
        if a >= 1: bg += post_o(a - 1)
        if a == 5: A(f'buffer_store_dwordx4 {vr(vPK,4)}, v{vPST}, {srd(S_WS)}, s{sVXO} offen{X}')
    for i_ in bg + post_o(7): A(i_)
    A(f'buffer_store_dwordx4 {vr(vPK+4,4)}, v{vPST}, {srd(S_WS)}, s{sT0} offen{X}')
    P(6)
    A(f's_add_u32 s{sT0}, s{sVXO}, 4096')
    B1 = [int(o[3:]) for o in opt if o.startswith('b1_')] or [99]
    if not B1:
        A(f'buffer_load_dwordx4 {vr(vPB,4)}, v{vPLD}, {srd(S_WS)}, s{sVXO} offen sc1')
        A(f'buffer_load_dwordx4 {vr(vPB+4,4)}, v{vPLD}, {srd(S_WS)}, s{sT0} offen sc1')
    for i in range(NSTG): stage(i)
    lg.q = []
    zero(vQK, 16)
    A(f's_add_u32 s{sMNXT}, s{sMCUR}, 8192'); A(f's_and_b32 s{sMNXT}, s{sMNXT}, 32767'); A(f's_add_u32 s{sMNXT}, s{sMNXT}, {WS_MX}')
    if not B1: A(f's_branch {L("poll1c")}')
    elif B1[0] == 99: A('s_waitcnt vmcnt(0)')
    elif B1[0]: A(f's_sleep {B1[0]}')
    A.label(L('poll1'))
    A(f'buffer_load_dwordx4 {vr(vPB,4)}, v{vPLD}, {srd(S_WS)}, s{sVXO} offen sc1')
    A(f'buffer_load_dwordx4 {vr(vPB+4,4)}, v{vPLD}, {srd(S_WS)}, s{sT0} offen sc1')
    A.label(L('poll1c'))
    A('s_waitcnt vmcnt(0)')
    tt = 0
    for a_ in range(2):
        for b_ in range(2):
            for t_ in range(2):
                if (a_ ^ t_) | (b_ ^ t_): tt |= 1 << (a_ * 4 + b_ * 2 + t_)
    for i in range(4): A(f'v_bitop3_b32 v{vTMP+i}, v{vPB+2*i}, v{vPB+2*i+1}, s{sTAG} bitop3:{tt}')
    A(f'v_or3_b32 v{vTMP}, v{vTMP}, v{vTMP+1}, v{vTMP+2}')
    A(f'v_bitop3_b32 v{vTMP}, v{vTMP}, v{vTMP+3}, 1 bitop3:0xa8')
    A(f'v_cmp_ne_u32 vcc, 0, v{vTMP}')
    A('s_mov_b64 exec, vcc')
    A(f's_cbranch_execnz {L("poll1")}')
    A('s_mov_b64 exec, -1')
    P(7)
    vR = vTMP
    A(f'v_mfma_f32_16x16x32_bf16 {vr(vR,4)}, {vr(vSEL,4)}, {vr(vPB,4)}, 0')
    A(f'v_mfma_f32_16x16x32_bf16 {vr(vR,4)}, {vr(vSEL,4)}, {vr(vPB+4,4)}, {vr(vR,4)}')
    zero(vVA, 8)
    kvread()
    A(f'v_mov_b32 v{vR+6}, -1')
    for r in range(4): A(f'v_add_f32_dpp v{vR+r}, v{vR+r}, v{vR+r} row_ror:4 row_mask:0xf bank_mask:0xf')
    for r in range(4): A(f'v_add_f32_dpp v{vR+r}, v{vR+r}, v{vR+r} row_ror:8 row_mask:0xf bank_mask:0xf')
    A(f'v_cvt_pk_bf16_f32 v{vR+4}, v{vR}, v{vR+2}'); A(f'v_cvt_pk_bf16_f32 v{vR+5}, v{vR+1}, v{vR+3}')
    A(f'v_min_u32 v{vR+4}, -2, v{vR+4}'); A(f'v_min_u32 v{vR+5}, -2, v{vR+5}')
    A('s_mov_b64 exec, 0xf000f')
    A(f'buffer_store_dword v{vR+4}, v{vMPUB}, {srd(S_WS)}, s{sMNXT} offen{X}')
    A(f'buffer_store_dword v{vR+5}, v{vMPUB}, {srd(S_WS)}, s{sMNXT} offen offset:16{X}')
    A(f'buffer_store_dword v{vR+6}, v{vMPUB}, {srd(S_WS)}, s{sMCUR} offen{X}')
    A(f'buffer_store_dword v{vR+6}, v{vMPUB}, {srd(S_WS)}, s{sMCUR} offen offset:16{X}')
    A('s_mov_b64 exec, -1')
    if kvwait:
        A(f's_cmp_lt_u32 s{sRDY}, 16'); A(f's_cbranch_scc1 {L("rdy2")}')
        A.label(L('rdy2b'))
    P(8)
    A(f's_mov_b32 s{sMCUR}, s{sMNXT}')
    A(f's_xor_b32 s{sTAG}, s{sTAG}, 1')
    A(f's_add_u32 s{sKMO}, s{sKMO}, 65536')
    A(f's_add_u32 s{sSTEP}, s{sSTEP}, 1')
    if prof is not None:
        A('s_memrealtime s[98:99]')
        A('s_waitcnt lgkmcnt(0)')
        A(f'v_writelane_b32 v{vTMP}, s98, 9')
        for i in range(9): A(f'v_writelane_b32 v{vTMP}, s{prof+2*i}, {i}')
        A(f's_lshl_b32 s{sT0}, s{sH}, 2'); A(f's_add_u32 s{sT0}, s{sT0}, s{sW}'); A(f's_lshl_b32 s{sT0}, s{sT0}, 6'); A(f's_add_u32 s{sT0}, s{sT0}, s{sSTEP}'); A(f's_lshl_b32 s{sT0}, s{sT0}, 6')
        A(f's_add_u32 s{sT0}, s{sT0}, {120*MB}')
        A(f'v_mbcnt_lo_u32_b32 v{vTMP+1}, -1, 0'); A(f'v_lshlrev_b32 v{vTMP+1}, 2, v{vTMP+1}')
        A('s_mov_b64 exec, 0xffff')
        A(f'buffer_store_dword v{vTMP}, v{vTMP+1}, {srd(S_WS)}, s{sT0} offen')
        A('s_mov_b64 exec, -1')
    A(f's_branch {L("step")}')
    if kvwait:
        A.label(L('rdy1'))
        A(f'v_mbcnt_lo_u32_b32 v{vNEG1}, -1, 0'); A(f'v_lshlrev_b32 v{vNEG1}, 2, v{vNEG1}')
        A('s_mov_b64 exec, 0xffff')
        A(f'buffer_load_dword v{vNEG1}, v{vNEG1}, {srd(S_DBG)}, 0 offen offset:{4*DBG_KV} sc1')
        A('s_mov_b64 exec, -1')
        A(f's_branch {L("rdy1b")}')
        A.label(L('rdy2'))
        A('s_mov_b64 exec, 0xffff')
        A(f'v_and_b32 v{vNEG1}, 0xffff, v{vNEG1}')
        A(f'v_cmp_gt_u32 vcc, 32, v{vNEG1}')
        A(f's_or_b32 s{sT1}, vcc_lo, 0x10000')
        A(f's_ff1_i32_b32 s{sT1}, s{sT1}')
        A(f's_max_u32 s{sRDY}, s{sRDY}, s{sT1}')
        A('s_mov_b64 exec, -1')
        A(f's_branch {L("rdy2b")}')
    A.label(L('done'))
    A('s_waitcnt vmcnt(0)')
    A('s_barrier')
    if flag:
        fl = A.newlabel('L_nofl')
        A(f's_cmp_lg_u32 s{sW}, 0'); A(f's_cbranch_scc1 {fl}')
        A(f'v_mov_b32 v{vT2}, {nsteps}')
        A(f's_lshl_b32 s{sT0}, s{sH}, 7'); A(f's_add_u32 s{sT0}, s{sT0}, {WS_PROG}'); A(f'v_mov_b32 v{vT2+1}, s{sT0}')
        A('s_mov_b64 exec, 1')
        A(f'buffer_store_dword v{vT2}, v{vT2+1}, {srd(S_WS)}, 0 offen sc1')
        A('s_mov_b64 exec, -1')
        A('s_waitcnt vmcnt(0)')
        A.label(fl)
    A('v_mbcnt_lo_u32_b32 v0, -1, 0'); A('v_mbcnt_hi_u32_b32 v0, -1, v0')
    A(f's_lshl_b32 s{sT0}, s{sW}, 6'); A(f'v_add_u32 v0, s{sT0}, v0')

def kvwait(A, first):
    l = A.newlabel('L_kvw'); l2 = A.newlabel('L_kvd')
    if first:
        A(f's_mov_b32 s{sRDY}, 0')
        A(f'v_mov_b32 v{vT2+1}, {4*DBG_CQ}')
        A.label(l)
        A(f'buffer_load_dword v{vT2}, v{vT2+1}, {srd(S_DBG)}, 0 offen sc1')
        A('s_waitcnt vmcnt(0)')
        A(f'v_cmp_gt_u32 vcc, 32, v{vT2}')
        A(f's_cbranch_vccnz {l}')
        return
    A(f's_add_u32 s{sT1}, s{sSTEP}, 1'); A(f's_lshr_b32 s{sT1}, s{sT1}, 2')
    A(f's_cmp_lt_u32 s{sT1}, s{sRDY}'); A(f's_cbranch_scc1 {l2}')
    A(f's_cmp_ge_u32 s{sT1}, 16'); A(f's_cbranch_scc1 {l2}')
    A(f's_cmp_eq_u32 s{sSTEP}, 0'); A(f's_cbranch_scc1 {l2}')
    A(f'v_mbcnt_lo_u32_b32 v{vT2+1}, -1, 0'); A(f'v_lshlrev_b32 v{vT2+1}, 2, v{vT2+1}')
    A('s_mov_b64 exec, 0xffff')
    A.label(l)
    A(f'buffer_load_dword v{vT2}, v{vT2+1}, {srd(S_DBG)}, 0 offen offset:{4*DBG_KV} sc1')
    A('s_waitcnt vmcnt(0)')
    A(f'v_and_b32 v{vT2}, 0xffff, v{vT2}')
    A(f'v_cmp_gt_u32 vcc, 32, v{vT2}')
    A(f's_or_b32 s{sRDY}, vcc_lo, 0x10000')
    A(f's_ff1_i32_b32 s{sRDY}, s{sRDY}')
    A(f's_cmp_lt_u32 s{sT1}, s{sRDY}'); A(f's_cbranch_scc0 {l}')
    A('s_mov_b64 exec, -1')
    A.label(l2)
```

```python
from asmlib import *
from common import *
from gemm import *
import wsgemm as WS
import math, struct
def fbits(x): return struct.unpack('<I', struct.pack('<f', x))[0]

sTK, sP0, sP1, sP2 = 88, 89, 90, 91
LDS_TICK = 163840 - 64
G128 = Gemm(128, 128, 2, 2, 'g128')
G32 = Gemm(32, 128, 1, 4, 'g32')

NSET = 8
N_KV, N_Q, N_G2, N_SV, N_AT, N_G3 = 192, 64, 24, 16 * NSET, 256, 64
T_KV = 0; T_G2 = T_KV + N_KV; T_Q = T_G2 + N_G2; T_SV = T_Q + N_Q; T_AT = T_SV + N_SV; T_G3 = T_AT + N_AT; T_END = T_G3 + N_G3
KVQ_DONE = 0x100020
def divmod_const(A, src, d, q, r):
    A(f's_mul_hi_u32 s{q}, s{src}, {(1 << 32) // d + 1}')
    A(f's_mul_i32 s{r}, s{q}, {d}'); A(f's_sub_u32 s{r}, s{src}, s{r}')

TRACE = False
LITE = False
def trace(A, slot):
    if not TRACE: return
    A('s_memrealtime s[94:95]'); A('s_waitcnt lgkmcnt(0)')
    A(f's_lshl_b32 s96, s{sTK}, 4'); A(f's_add_u32 s96, s96, {110*MB + 4*slot}')
    A('v_mov_b32 v120, s94'); A('v_mov_b32 v121, s96')
    A(f'buffer_store_dword v120, v121, {srd(S_WS)}, 0 offen')

def copy_srd(A, dst, src):
    for i in range(4): A(f's_mov_b32 s{dst+i}, s{src+i}')

def signal(A, S, off_expr_sgpr=None, off=None):
    A('s_waitcnt vmcnt(0)')
    A('s_barrier')
    l = A.newlabel('L_sig')
    A(f's_cmp_lg_u32 s{sW}, 0'); A(f's_cbranch_scc1 {l}')
    A('v_mov_b32 v120, 1')
    A(f'v_mov_b32 v121, {off}' if off is not None else f'v_mov_b32 v121, s{off_expr_sgpr}')
    A('s_mov_b64 exec, 1')
    A(f'buffer_atomic_add v120, v121, {srd(S)}, 0 offen')
    A('s_mov_b64 exec, -1')
    A.label(l)

def wait_cnt(A, S, target, off=None, off_sgpr=None, sleep=8, adaptive=False):
    l = A.newlabel('L_wt'); l2 = A.newlabel('L_wd')
    A(f'v_mov_b32 v121, {off}' if off is not None else f'v_mov_b32 v121, s{off_sgpr}')
    A.label(l)
    A(f'buffer_load_dword v120, v121, {srd(S)}, 0 offen sc1')
    A('s_waitcnt vmcnt(0)')
    A(f'v_readfirstlane_b32 s{sT0}, v120')
    A(f's_cmp_ge_u32 s{sT0}, {target}')
    A(f's_cbranch_scc1 {l2}')
    if adaptive:
        l3 = A.newlabel('L_wf')
        A(f's_sub_u32 s{sT0}, {target}, s{sT0}')
        A(f's_cmp_lt_u32 s{sT0}, 2'); A(f's_cbranch_scc1 {l3}')
        A('s_sleep 24')
        A(f's_cmp_lt_u32 s{sT0}, 3'); A(f's_cbranch_scc1 {l3}')
        A('s_sleep 48')
        A.label(l3)
    A(f's_sleep {sleep}')
    A(f's_branch {l}')
    A.label(l2)

def lane_consts(A):
    A('v_and_b32 v10, 63, v0'); A('v_and_b32 v11, 15, v10'); A('v_lshrrev_b32 v12, 4, v10')

def atomic_add(A, S, val, off_sgpr):
    A(f'v_mov_b32 v120, {val}'); A(f'v_mov_b32 v121, s{off_sgpr}')
    A('s_mov_b64 exec, 1')
    A(f'buffer_atomic_add v120, v121, {srd(S)}, 0 offen')
    A('s_mov_b64 exec, -1')

def gen_g1(A):
    A.label('L_task_kv')
    A(f's_lshr_b32 s{sT0}, s{sTK}, 5'); A(f's_and_b32 s{sP1}, s{sTK}, 15'); A(f's_bfe_u32 s{sP2}, s{sTK}, 0x10004')
    A(f's_sub_u32 s{sP0}, s{sT0}, 2'); A(f's_lshl_b32 s{sP0}, s{sP0}, 2'); A(f's_mov_b32 s{sKIT}, 4')
    A(f's_cmp_lt_u32 s{sT0}, 3'); A(f's_cselect_b32 s{sP0}, s{sT0}, s{sP0}'); A(f's_cselect_b32 s{sKIT}, 2, s{sKIT}')
    A(f's_cmp_lt_u32 s{sT0}, 2'); A(f's_cselect_b32 s{sKIT}, 1, s{sKIT}')
    l = A.newlabel('L_nz')
    A(f's_cmp_lg_u32 s{sTK}, 0'); A(f's_cbranch_scc1 {l}')
    A('v_lshlrev_b32 v120, 7, v0'); A('v_mov_b32 v122, 0'); A('v_mov_b32 v123, 0'); A(f's_mov_b32 s{sT0}, {WS_CNT}')
    A(f'buffer_store_dwordx2 v[122:123], v120, {srd(S_WS)}, s{sT0} offen sc1')
    A.label(l)
    A(f's_cmp_eq_u32 s{sP2}, 0'); A('s_cbranch_scc1 L_g1_k')
    copy_srd(A, sGB, S_WV); A('s_branch L_g1_go')
    A.label('L_g1_k'); copy_srd(A, sGB, S_WK); A('s_branch L_g1_go')
    A.label('L_task_q')
    A(f's_sub_u32 s{sT0}, s{sTK}, {T_Q}'); A(f's_lshr_b32 s{sP0}, s{sT0}, 4'); A(f's_lshl_b32 s{sP0}, s{sP0}, 2'); A(f's_and_b32 s{sP1}, s{sT0}, 15'); A(f's_mov_b32 s{sP2}, 2'); A(f's_mov_b32 s{sKIT}, 4')
    copy_srd(A, sGB, S_WQ)
    A.label('L_g1_go')
    copy_srd(A, sGA, S_BX)
    A(f's_mov_b32 s{sLDB}, 8192')
    A(f's_lshl_b32 s{sBOFF}, s{sP1}, 9')
    WS.load_w(A)
    trace(A, 3)
    WS.setup_a(A)
    A(f's_lshl_b32 s{sAOFF}, s{sP0}, 17')
    A('v_lshlrev_b32 v1, 4, v10')
    A(f's_lshl_b32 s{sE0}, s{sP0}, 7'); A(f's_lshl_b32 s{sT0}, s{sP1}, 1'); A(f's_add_u32 s{sE0}, s{sE0}, s{sT0}'); A(f's_lshr_b32 s{sT0}, s{sW}, 1'); A(f's_add_u32 s{sE0}, s{sE0}, s{sT0}')
    A(f's_lshl_b32 s{sE0}, s{sE0}, 2'); A(f's_and_b32 s{sT0}, s{sW}, 1'); A(f's_lshl_b32 s{sT0}, s{sT0}, 1'); A(f's_add_u32 s{sE0}, s{sE0}, s{sT0}')
    A(f's_cmp_eq_u32 s{sP2}, 2')
    A(f's_cselect_b32 s{sE1}, 11, 12'); A(f's_cselect_b32 s{sE2}, {WS_QF}, {WS_KVF}'); A(f's_cselect_b32 s{sLDA}, 65536, 1')
    A(f's_lshl_b32 s{sE0}, s{sE0}, s{sE1}'); A(f's_add_u32 s{sE0}, s{sE0}, s{sE2}')
    A(f's_lshl_b32 s{sE3}, 1, s{sE1}    ; stride')
    def sig(A, d):
        A(f's_add_u32 s{sT3}, s{sP0}, s{sAINC}'); A(f's_lshl_b32 s{sT3}, s{sT3}, 2'); A(f's_add_u32 s{sT3}, s{sT3}, {4 * DBG_KV - 4}')
        atomic_add(A, S_DBG, f's{sLDA}', sT3)
    def epi_t(A, half):
        for i in range(2):
            for c in range(2):
                A(f's_mul_i32 s{sT0}, s{sE3}, {i * 128 + c}'); A(f's_add_u32 s{sT0}, s{sT0}, s{sE0}')
                for kt in range(2):
                    tm = 2 * i + kt
                    d = WS.vPKD + 4 * kt
                    WS.pack(A, tm * 4 + 2 * c, tm * 4 + 2 * c + 1, d)
                    A(f'buffer_store_dwordx4 {vr(d,4)}, v1, {srd(S_WS)}, s{sT0} offen offset:{1024*kt} sc1')
        A(f's_lshl_b32 s{sT0}, s{sE3}, 8'); A(f's_add_u32 s{sE0}, s{sE0}, s{sT0}')
    def epi_n(A, half):
        for i in range(2):
            for c in range(2):
                A(f's_add_u32 s{sT0}, s{sE0}, {(i * 128 + c) * 4096}')
                for a in range(2):
                    tn = 2 * c + a
                    d = WS.vPKD + 4 * a
                    WS.pack(A, (2 * i) * 4 + tn, (2 * i + 1) * 4 + tn, d)
                    A(f'buffer_store_dwordx4 {vr(d,4)}, v1, {srd(S_WS)}, s{sT0} offen offset:{2048 + 1024*a} sc1')
        A(f's_add_u32 s{sE0}, s{sE0}, {256 * 4096}')
    def early(A, l):
        A(f's_cmp_ge_u32 s{sTK}, 32'); A(f's_cbranch_scc1 {l}')
        A('s_waitcnt vmcnt(0)')
        A('s_barrier')
        A(f's_cmp_lg_u32 s{sW}, 0'); A(f's_cbranch_scc1 {l}')
        A(f's_mov_b32 s{sT3}, {4 * DBG_CQ}')
        atomic_add(A, S_DBG, 1, sT3)
    A(f's_cmp_eq_u32 s{sP2}, 1'); A('s_cbranch_scc1 L_g1_v')
    WS.run_blocks(A, 'T', epi_t, sig, 'g1t', early)
    A('s_branch L_next')
    A.label('L_g1_v')
    WS.run_blocks(A, 'N', epi_n, sig, 'g1n', early)
    A('s_branch L_next')

def gen_g2(A):
    A.label('L_task_g2')
    A(f's_sub_u32 s{sT0}, s{sTK}, {T_G2}')
    divmod_const(A, sT0, 6, sP0, sP1)
    copy_srd(A, sGA, S_AX); copy_srd(A, sGB, S_AWQKV)
    A(f's_mov_b32 s{sLDB}, 3072'); A(f's_mov_b32 s{sKIT}, 4')
    A(f's_lshl_b32 s{sBOFF}, s{sP1}, 9')
    WS.load_w(A)
    WS.setup_a(A)
    A(f's_lshl_b32 s{sAOFF}, s{sP0}, 19')
    lane_consts(A)
    A(f's_and_b32 s{sT0}, s{sP1}, 1'); A(f's_lshl_b32 s{sT0}, s{sT0}, 4'); A(f's_lshl_b32 s{sT1}, s{sW}, 2'); A(f's_add_u32 s{sT0}, s{sT0}, s{sT1}')
    A(f's_lshl_b32 s{sE0}, s{sT0}, 16'); A(f's_lshl_b32 s{sT0}, s{sP0}, 14'); A(f's_add_u32 s{sE0}, s{sE0}, s{sT0}')
    def sig(A, d):
        A(f's_mov_b32 s{sT3}, {4 * DBG_CG2}')
        atomic_add(A, S_DBG, 1, sT3)
    A(f's_cmp_ge_u32 s{sP1}, 4'); A('s_cbranch_scc1 L_g2_v')
    A('v_lshrrev_b32 v13, 3, v11'); A('v_lshlrev_b32 v13, 4, v13'); A('v_and_b32 v14, 3, v11'); A('v_add_u32 v13, v13, v14')
    A('v_bfe_u32 v14, v11, 2, 1')
    A(f's_cmp_ge_u32 s{sP1}, 2')
    A(f's_cselect_b32 s{sE1}, 2, 3'); A(f's_cselect_b32 s{sE2}, 128, 64'); A(f's_cselect_b32 s{sE3}, {WS_KA - WS_QA}, 0'); A(f's_add_u32 s{sE3}, s{sE3}, {WS_QA}')
    A(f'v_lshlrev_b32 v14, s{sE1}, v14'); A('v_add_u32 v13, v13, v14')
    A('v_and_b32 v14, 1, v12'); A('v_lshl_add_u32 v13, v14, 5, v13')
    A('v_lshlrev_b32 v13, 4, v13')
    A('v_lshrrev_b32 v14, 1, v12'); A('v_lshl_add_u32 v1, v14, 16, v13')
    A(f's_add_u32 s{sE0}, s{sE0}, s{sE3}')
    WS.setup_a(A)
    def epi_t(A, half):
        for i in range(2):
            for c in range(2):
                for kt in range(2):
                    tm = 2 * i + kt
                    d = WS.vPKD + 4 * kt
                    A(f's_add_u32 s{sT0}, s{sE0}, {i * 1024 + c * 131072}')
                    if kt: A(f's_add_u32 s{sT0}, s{sT0}, s{sE2}')
                    WS.pack(A, tm * 4 + 2 * c, tm * 4 + 2 * c + 1, d)
                    A(f'buffer_store_dwordx4 {vr(d,4)}, v1, {srd(S_WS)}, s{sT0} offen sc1')
        A(f's_add_u32 s{sE0}, s{sE0}, 2048')
    WS.run_blocks(A, 'T', epi_t, sig, 'g2t')
    A('s_branch L_next')
    A.label('L_g2_v')
    A('v_and_b32 v13, 7, v11')
    A('v_and_b32 v14, 1, v12'); A('v_lshl_add_u32 v13, v14, 4, v13')
    A('v_lshrrev_b32 v14, 1, v12'); A('v_lshl_add_u32 v13, v14, 5, v13')
    A('v_lshlrev_b32 v13, 4, v13')
    A('v_lshrrev_b32 v14, 3, v11'); A('v_lshl_add_u32 v1, v14, 16, v13')
    A(f's_add_u32 s{sE0}, s{sE0}, {WS_VAT}')
    WS.setup_a(A)
    def epi_n(A, half):
        for i in range(2):
            for c in range(2):
                A(f's_add_u32 s{sT0}, s{sE0}, {i * 1024 + c * 131072}')
                for a in range(2):
                    tn = 2 * c + a
                    d = WS.vPKD + 4 * a
                    WS.pack(A, (2 * i) * 4 + tn, (2 * i + 1) * 4 + tn, d)
                    A(f'buffer_store_dwordx4 {vr(d,4)}, v1, {srd(S_WS)}, s{sT0} offen offset:{128*a} sc1')
        A(f's_add_u32 s{sE0}, s{sE0}, 2048')
    WS.run_blocks(A, 'N', epi_n, sig, 'g2n')
    A('s_branch L_next')

def out_epilogue(A, G):
    lane_consts(A)
    A('v_lshrrev_b32 v13, 2, v11'); A('v_and_b32 v14, 3, v11'); A('v_lshl_add_u32 v13, v13, 3, v14')
    A('v_lshlrev_b32 v13, 11, v13'); A('v_lshl_add_u32 v13, v12, 4, v13')
    if G.WM == 2:
        A(f's_lshr_b32 s{sT0}, s{sW}, 1'); A(f's_lshl_b32 s{sT0}, s{sT0}, 17'); A(f's_add_u32 s{sE0}, s{sE0}, s{sT0}')
        A(f's_and_b32 s{sT0}, s{sW}, 1'); A(f's_lshl_b32 s{sT0}, s{sT0}, 7'); A(f's_add_u32 s{sE0}, s{sE0}, s{sT0}')
    else:
        A(f's_lshl_b32 s{sT0}, s{sW}, 6'); A(f's_add_u32 s{sE0}, s{sE0}, s{sT0}')
    n = 0
    for tm in range(G.TM):
        A(f's_add_u32 s{sT0}, s{sE0}, {(32 * (tm // 2) + 4 * (tm % 2)) * 2048}')
        for c in range(G.TN // 2):
            d = 16 + 4 * n; n += 1
            G.pack(A, tm * G.TN + 2 * c, tm * G.TN + 2 * c + 1, d)
            A(f'buffer_store_dwordx4 {vr(d,4)}, v13, {srd(S_OUT)}, s{sT0} offen offset:{64*c}')

def gen_g3(A):
    G = G128
    A.label('L_task_g3')
    A(f's_sub_u32 s{sT1}, s{sTK}, {T_G3}')
    A(f's_lshr_b32 s{sP0}, s{sT1}, 2'); A(f's_and_b32 s{sP1}, s{sT1}, 3')
    wait_cnt(A, S_DBG, N_AT, off=4 * DBG_CAT, sleep=32)
    copy_srd(A, sGA, S_WS); copy_srd(A, sGB, S_AWO)
    A(f's_mov_b32 s{sLDA}, 1024'); A(f's_mov_b32 s{sLDB}, 1024'); A(f's_mov_b32 s{sKIT}, 2')
    A(f's_lshl_b32 s{sAOFF}, s{sP0}, 17'); A(f's_add_u32 s{sAOFF}, s{sAOFF}, {WS_OA}'); A(f's_lshl_b32 s{sBOFF}, s{sP1}, 8')
    G.setup(A)
    G.mainloop(A, 'T')
    A(f's_lshl_b32 s{sE0}, s{sP0}, 18'); A(f's_lshl_b32 s{sT0}, s{sP1}, 8'); A(f's_add_u32 s{sE0}, s{sE0}, s{sT0}')
    out_epilogue(A, G)
    A('s_branch L_next')

def gen_at(A):
    A.label('L_task_at')
    A(f's_sub_u32 s{sT1}, s{sTK}, {T_AT}')
    A(f's_lshr_b32 s{sP0}, s{sT1}, 3'); A(f's_and_b32 s{sP1}, s{sT1}, 7')
    wait_cnt(A, S_DBG, N_G2 * 4, off=4 * DBG_CG2, sleep=32)
    A(f's_lshl_b32 s{sP1}, s{sP1}, 2'); A(f's_add_u32 s{sP1}, s{sP1}, s{sW}     ; head')
    A(f's_lshl_b32 s{sP0}, s{sP0}, 1')
    A(f's_mov_b32 s{sP2}, 2')
    vQ = 16; vK = 20; vV = 56; vS = 128; vO = 0
    vNEG = 15
    A('v_and_b32 v10, 63, v0'); A('v_lshlrev_b32 v11, 4, v10     ; lane*16')
    A('v_and_b32 v12, 31, v10'); A('v_lshrrev_b32 v13, 5, v10     ; q, hh')
    A('v_lshl_add_u32 v14, v13, 4, v12'); A('v_lshlrev_b32 v14, 4, v14')
    A('v_lshlrev_b32 v9, 3, v13'); A('v_sub_u32 v9, v12, v9')
    A(f'v_mov_b32 v{vNEG}, 0xff800000')
    A('v_lshlrev_b32 v8, 10, v12'); A('v_lshl_add_u32 v8, v13, 4, v8')
    A('v_cmp_eq_u32 vcc, 16, v12'); A('v_cmp_eq_u32 s[98:99], 20, v12'); A('s_or_b64 vcc, vcc, s[98:99]')
    A('v_mov_b32 v7, 0x3f803f80'); A('v_cndmask_b32 v7, 0, v7, vcc')
    for r in range(72): A(f'v_mov_b32 v{vV+r}, v7')
    A('s_mov_b32 s98, 0x0000ffff'); A('s_mov_b32 s99, 0x0000ffff')
    C = fbits(0.25 * math.log2(math.e))
    A(f's_mov_b32 s{sE3}, {C}')
    A.label('L_at_loop')
    A(f's_lshl_b32 s{sE0}, s{sP1}, 6'); A(f's_add_u32 s{sE0}, s{sE0}, s{sP0}'); A(f's_lshl_b32 s{sE0}, s{sE0}, 10')
    A(f's_add_u32 s{sT0}, s{sE0}, {WS_QA}')
    A(f'buffer_load_dwordx4 {vr(vQ,4)}, v11, {srd(S_WS)}, s{sT0} offen sc1')
    def skip_if_invalid(i, tag):
        if i == 8: return None
        l = A.newlabel(f'L_at{tag}')
        A(f's_cmp_lt_u32 s{sP0}, {8 - i}'); A(f's_cbranch_scc1 {l}')
        return l
    for i in range(9):
        l = skip_if_invalid(i, 'l')
        A(f's_add_u32 s{sT0}, s{sE0}, {WS_KA}'); A(f's_sub_u32 s{sT0}, s{sT0}, {(8 - i) * 1024}')
        A(f'buffer_load_dwordx4 {vr(vK+4*i,4)}, v11, {srd(S_WS)}, s{sT0} offen sc1')
        A(f's_add_u32 s{sT0}, s{sT0}, {WS_VAT - WS_KA}')
        A('s_mov_b64 exec, s[98:99]')
        A(f'buffer_load_dwordx4 {vr(vV+8*i,4)}, v14, {srd(S_WS)}, s{sT0} offen sc1')
        A(f'buffer_load_dwordx4 {vr(vV+8*i+4,4)}, v14, {srd(S_WS)}, s{sT0} offen offset:512 sc1')
        A('s_mov_b64 exec, -1')
        if l: A.label(l)
    A('s_waitcnt vmcnt(0)')
    def sreg(i, r): return (vS + 16 * i + r) if i < 8 else (vK + r)
    for i in range(9):
        l = skip_if_invalid(i, 's')
        if i < 8:
            A(f'v_mfma_f32_32x32x16_bf16 {vr(vS+16*i,16)}, {vr(vK+4*i,4)}, {vr(vQ,4)}, 0')
        else:
            A(f'v_mfma_f32_32x32x16_bf16 {vr(vK,16)}, {vr(vK+32,4)}, {vr(vQ,4)}, 0')
        if l:
            l2 = A.newlabel('L_atv')
            A(f's_branch {l2}')
            A.label(l)
            for r in range(16): A(f'v_mov_b32 v{sreg(i,r)}, v{vNEG}')
            A.label(l2)
    A('s_nop 7'); A('s_nop 7')
    for r in range(16):
        c = 16 * (r // 8) + r % 8
        A(f'v_cmp_gt_i32 vcc, {c}, v9')
        A(f'v_cndmask_b32 v{sreg(0,r)}, v{vNEG}, v{sreg(0,r)}, vcc')
        A(f'v_cndmask_b32 v{sreg(8,r)}, v{sreg(8,r)}, v{vNEG}, vcc')
    allr = [sreg(i, r) for i in range(9) for r in range(16)]
    A(f'v_max3_f32 v2, v{allr[0]}, v{allr[1]}, v{allr[2]}'); A(f'v_max3_f32 v3, v{allr[3]}, v{allr[4]}, v{allr[5]}')
    for k in range(6, 144, 4):
        A(f'v_max3_f32 v2, v2, v{allr[k]}, v{allr[k+1]}')
        if k + 3 < 144: A(f'v_max3_f32 v3, v3, v{allr[k+2]}, v{allr[k+3]}')
    A('v_max_f32 v2, v2, v3'); A('v_mov_b32 v3, v2'); A('v_permlane32_swap_b32 v2, v3'); A('v_max_f32 v2, v2, v3')
    A(f'v_mul_f32 v2, s{sE3}, v2')
    for r in range(16): A(f'v_accvgpr_write_b32 a{r}, 0')
    for i in range(9):
        l = skip_if_invalid(i, 'p')
        for r in range(16): A(f'v_fma_f32 v{sreg(i,r)}, v{sreg(i,r)}, s{sE3}, -v2')
        for r in range(16): A(f'v_exp_f32 v{sreg(i,r)}, v{sreg(i,r)}')
        b = sreg(i, 0)
        for r in range(8): A(f'v_cvt_pk_bf16_f32 v{b+r}, v{b+2*r}, v{b+2*r+1}')
        for u in range(2):
            A(f'v_mfma_f32_32x32x16_bf16 a[0:15], {vr(vV+8*i+4*u,4)}, {vr(b+4*u,4)}, a[0:15]')
        if l: A.label(l)
    A('s_nop 7'); A('s_nop 7')
    for r in range(9): A(f'v_accvgpr_read_b32 v{vS+r}, a{r}')
    A(f'v_rcp_f32 v2, v{vS+8}')
    for r in range(8): A(f'v_mul_f32 v{vS+r}, v{vS+r}, v2')
    for r in range(4): A(f'v_cvt_pk_bf16_f32 v{vS+16+r}, v{vS+2*r}, v{vS+2*r+1}')
    A(f's_lshl_b32 s{sT0}, s{sP0}, 15'); A(f's_lshl_b32 s{sT1}, s{sP1}, 5'); A(f's_add_u32 s{sT0}, s{sT0}, s{sT1}'); A(f's_add_u32 s{sT0}, s{sT0}, {WS_OA}')
    A(f'buffer_store_dwordx4 {vr(vS+16,4)}, v8, {srd(S_WS)}, s{sT0} offen sc1')
    A(f's_add_u32 s{sP0}, s{sP0}, 1'); A(f's_sub_u32 s{sP2}, s{sP2}, 1'); A(f's_cmp_lg_u32 s{sP2}, 0'); A('s_cbranch_scc1 L_at_loop')
    signal(A, S_DBG, off=4 * DBG_CAT)
    A('s_branch L_next')

def gen_sv(A):
    sSEG, sHG, sCB, sHD = sP0, sP1, sP2, 92
    A.label('L_task_sv')
    A(f's_sub_u32 s{sT0}, s{sTK}, {T_SV}'); A(f's_lshr_b32 s{sSEG}, s{sT0}, 4'); A(f's_bfe_u32 s{sHG}, s{sT0}, 0x30001'); A(f's_and_b32 s{sCB}, s{sT0}, 1')
    copy_srd(A, sGB, S_WO)
    A(f's_mov_b32 s{sLDB}, 1024')
    A(f's_lshl_b32 s{sBOFF}, s{sHG}, 19'); A(f's_lshl_b32 s{sT0}, s{sCB}, 9'); A(f's_add_u32 s{sBOFF}, s{sBOFF}, s{sT0}')
    WS.load_w(A)
    WS.setup_a(A)
    A(f's_lshl_b32 s{sHD}, s{sHG}, 2'); A(f's_add_u32 s{sHD}, s{sHD}, s{sW}     ; head')
    wait_cnt(A, S_DBG, 32, off=4 * DBG_RINIT, sleep=32)
    for i in range(16): wait_cnt(A, S_DBG, KVQ_DONE, off=4 * (DBG_KV + i), sleep=32)
    vQ = 136; vKV = 168; vKM = 232; vVM = 16; vS = 32; vP = 56; vO = 72; vONE = 248
    vL16, vKMA, vVMA, vD, vNEG, vOW, vPW, vRD = 108, 109, 110, 111, 112, 113, 117, 118
    lane_consts(A)
    A(f'v_lshlrev_b32 v{vL16}, 4, v10')
    A('v_lshrrev_b32 v14, 2, v11'); A('v_and_b32 v15, 1, v11'); A('v_lshl_add_u32 v14, v14, 1, v15'); A('v_lshlrev_b32 v14, 8, v14'); A(f'v_lshl_add_u32 v{vKMA}, v12, 4, v14')
    A('v_lshrrev_b32 v14, 2, v11'); A('v_and_b32 v15, 3, v11'); A('v_lshl_add_u32 v14, v14, 3, v15   ; kappa0(n)')
    A('v_lshlrev_b32 v9, 3, v12'); A(f'v_sub_u32 v{vD}, v14, v9')
    A('v_lshlrev_b32 v9, 4, v14'); A(f'v_lshl_add_u32 v{vVMA}, v12, 2, v9')
    A('v_lshlrev_b32 v13, 10, v14'); A(f's_lshl_b32 s{sT0}, s{sW}, 8'); A(f'v_add_u32 v13, s{sT0}, v13')
    for wp in range(4):
        A(f'v_add_u32 v9, {4 * wp}, v12'); A('v_xor_b32 v9, v9, v11'); A(f'v_lshl_add_u32 v{vOW + wp}, v9, 4, v13')
    A('v_lshlrev_b32 v13, 11, v14'); A(f's_lshl_b32 s{sT0}, s{sW}, 7'); A(f'v_add_u32 v13, s{sT0}, v13'); A(f'v_lshl_add_u32 v{vPW}, v12, 4, v13')
    A(f'v_mov_b32 v{vNEG}, 0xff800000')
    for r in range(4): A(f'v_mov_b32 v{vONE+r}, 0x3f803f80')
    C = fbits(128 ** -0.5 * math.log2(math.e))
    A(f's_mov_b32 s{sE3}, {C}')
    def qkv_loads(segreg):
        A(f's_lshl_b32 s{sT1}, s{segreg}, 5'); A(f's_add_u32 s{sT1}, s{sT1}, s{sHD}')
        A(f's_lshl_b32 s{sT0}, s{sT1}, 13'); A(f's_add_u32 s{sT0}, s{sT0}, {WS_QF}')
        for i in range(8):
            if i == 4: A(f's_add_u32 s{sT0}, s{sT0}, 4096')
            A(f'buffer_load_dwordx4 {vr(vQ+4*i,4)}, v{vL16}, {srd(S_WS)}, s{sT0} offen offset:{1024*(i%4)} sc1')
        A(f's_lshl_b32 s{sT0}, s{sT1}, 14'); A(f's_add_u32 s{sT0}, s{sT0}, {WS_KVF}')
        for i in range(16):
            if i and i % 4 == 0: A(f's_add_u32 s{sT0}, s{sT0}, 4096')
            A(f'buffer_load_dwordx4 {vr(vKV+4*i,4)}, v{vL16}, {srd(S_WS)}, s{sT0} offen offset:{1024*(i%4)} sc1')
    qkv_loads(sSEG)
    def svt(i):
        if not LITE: return
        A('s_memrealtime s[94:95]'); A('s_waitcnt lgkmcnt(0)')
        A(f's_lshl_b32 s96, s{sSEG}, 1'); A(f's_add_u32 s96, s96, s{sCB}'); A('s_lshl_b32 s96, s96, 3'); A(f's_add_u32 s96, s96, s{sHG}'); A('s_lshl_b32 s96, s96, 5'); A(f's_add_u32 s96, s96, {113*MB + 4*i}')
        A('v_mov_b32 v120, s94'); A('v_mov_b32 v121, s96')
        A(f'buffer_store_dword v120, v121, {srd(S_WS)}, 0 offen')
    A.label('L_sv_loop')
    svt(0)
    A(f's_lshl_b32 s{sE0}, s{sSEG}, 5'); A(f's_add_u32 s{sE0}, s{sE0}, s{sHD}     ; seg*32+h')
    A('s_waitcnt vmcnt(0)')
    for qt in range(2):
        for kt in range(2):
            d = vS + 12 * qt + 4 * kt
            for w in range(4):
                A(f'v_mfma_f32_16x16x32_bf16 {vr(d,4)}, {vr(vKV + 16 * w + 4 * kt, 4)}, {vr(vQ+8*w+4*qt,4)}, {vr(d,4) if w else 0}')
    svt(1)
    A(f's_lshl_b32 s{sT3}, s{sHD}, 7'); A(f's_add_u32 s{sT3}, s{sT3}, {WS_PROG}')
    A(f's_add_u32 s{sE1}, s{sSEG}, 1')
    wait_cnt(A, S_WS, f's{sE1}', off_sgpr=sT3, sleep=2, adaptive=True)
    svt(2)
    A(f's_lshl_b32 s{sT0}, s{sE0}, 11'); A(f's_add_u32 s{sT0}, s{sT0}, {WS_KM}')
    for w in range(4): A(f'buffer_load_dwordx4 {vr(vKM+4*w,4)}, v{vKMA}, {srd(S_WS)}, s{sT0} offen offset:{64*w} sc1')
    A(f's_add_u32 s{sT0}, s{sT0}, {WS_VMT - WS_KM}')
    for w in range(4):
        for a in range(2):
            A(f'buffer_load_dword v{vVM+4*w+2*a}, v{vVMA}, {srd(S_WS)}, s{sT0} offen offset:{512*w+64*a} sc1')
            A(f'v_mov_b32 v{vVM+4*w+2*a+1}, 0')
    for qt in range(2):
        b = vS + 12 * qt
        for kt in range(2):
            for r in range(4):
                c = 4 * kt + r - 4 * qt
                A(f'v_cmp_gt_i32 vcc, {c}, v{vD}')
                A(f'v_cndmask_b32 v{b+4*kt+r}, v{b+4*kt+r}, v{vNEG}, vcc')
    A('s_waitcnt vmcnt(8)' if not LITE else 's_waitcnt vmcnt(0)')
    for qt in range(2):
        d = vS + 12 * qt + 8
        for w in range(4):
            A(f'v_mfma_f32_16x16x32_bf16 {vr(d,4)}, {vr(vKM + 4 * w, 4)}, {vr(vQ+8*w+4*qt,4)}, {vr(d,4) if w else 0}')
    A('s_barrier')
    for qt in range(2):
        b = vS + 12 * qt
        A(f'v_max3_f32 v2, v{b}, v{b+1}, v{b+2}'); A(f'v_max3_f32 v3, v{b+3}, v{b+4}, v{b+5}')
        A(f'v_max3_f32 v2, v2, v{b+6}, v{b+7}'); A(f'v_max3_f32 v3, v3, v{b+8}, v{b+9}'); A('v_max_f32 v2, v2, v3')
        A('v_mov_b32 v3, v2'); A('v_permlane16_swap_b32 v2, v3'); A('v_max_f32 v2, v2, v3')
        A('v_mov_b32 v3, v2'); A('v_permlane32_swap_b32 v2, v3'); A('v_max_f32 v2, v2, v3')
        A(f'v_mul_f32 v2, s{sE3}, v2')
        for r in range(10): A(f'v_fma_f32 v{b+r}, v{b+r}, s{sE3}, -v2')
        for r in range(10): A(f'v_exp_f32 v{b+r}, v{b+r}')
        p = vP + 8 * qt
        for r in range(5): A(f'v_cvt_pk_bf16_f32 v{p+r}, v{b+2*r}, v{b+2*r+1}')
        A(f'v_mov_b32 v{p+5}, 0')
        o = vO
        if qt == 0: A('s_waitcnt vmcnt(0)')
        A(f'v_mfma_f32_16x16x32_bf16 {vr(o+32,4)}, {vr(vONE,4)}, {vr(p,4)}, 0')
        for w in range(4):
            for a in range(2):
                d = o + 8 * w + 4 * a
                A(f'v_mfma_f32_16x16x32_bf16 {vr(d,4)}, {vr(vKV+16*w+8+4*a,4)}, {vr(p,4)}, 0')
        A(f'v_mfma_f32_16x16x16_bf16 {vr(o+32,4)}, {vr(vONE,2)}, {vr(p+4,2)}, {vr(o+32,4)}')
        for w in range(4):
            for a in range(2):
                d = o + 8 * w + 4 * a
                A(f'v_mfma_f32_16x16x16_bf16 {vr(d,4)}, {vr(vVM+4*w+2*a,2)}, {vr(p+4,2)}, {vr(d,4)}')
        A(f'v_rcp_f32 v2, v{o+32}')
        for r in range(32): A(f'v_mul_f32 v{o+r}, v{o+r}, v2')
        for w in range(4):
            d = o + 8 * w
            for r in range(4): A(f'v_cvt_pk_bf16_f32 v{d+r}, v{o+8*w+2*r}, v{o+8*w+2*r+1}')
            A(f'ds_write_b128 v{vOW+w}, {vr(d,4)} offset:{4096*qt}')
    svt(3)
    A('s_waitcnt lgkmcnt(0)')
    A('s_barrier')
    WS.compute(A, 0, 'T', TM=2)
    svt(4)
    A(f's_lshl_b32 s{sE2}, s{sSEG}, 1'); A(f's_add_u32 s{sE2}, s{sE2}, s{sCB}      ; seg*2+cb')
    A(f's_lshl_b32 s{sE1}, s{sE2}, 18'); A(f's_add_u32 s{sE1}, s{sE1}, {WS_PART}'); A(f's_lshl_b32 s{sT0}, s{sW}, 13'); A(f's_add_u32 s{sE1}, s{sE1}, s{sT0}')
    A(f's_lshl_b32 s{sT0}, s{sHG}, 15'); A(f's_add_u32 s{sT0}, s{sT0}, s{sE1}')
    for t in range(8):
        if t == 4: A(f's_add_u32 s{sT0}, s{sT0}, 4096')
        A(f'buffer_store_dwordx4 {vr(WS.vACC + 4 * t, 4)}, v{vL16}, {srd(S_WS)}, s{sT0} offen offset:{1024 * (t % 4)} sc1')
    A(f's_lshl_b32 s{sT3}, s{sE2}, 7'); A(f's_add_u32 s{sT3}, s{sT3}, {WS_CNT}')
    signal(A, S_WS, off_expr_sgpr=sT3)
    svt(5)
    wait_cnt(A, S_WS, 8, off_sgpr=sT3, sleep=1)
    svt(6)
    A(f's_lshl_b32 s{sT0}, s{sHG}, 10'); A(f's_add_u32 s{sT0}, s{sT0}, s{sE1}')
    for i in range(8):
        A(f'buffer_load_dwordx4 {vr(vO + 4 * i, 4)}, v{vL16}, {srd(S_WS)}, s{sT0} offen sc1')
        if i < 7: A(f's_add_u32 s{sT0}, s{sT0}, 32768')
    A(f's_add_u32 s93, s{sSEG}, {NSET}'); A('s_min_u32 s93, s93, 63')
    qkv_loads(93)
    A('s_waitcnt vmcnt(24)')
    for st in (16, 8, 4):
        for r in range(st): A(f'v_add_f32 v{vO+r}, v{vO+r}, v{vO+st+r}')
    A(f'v_cvt_pk_bf16_f32 v{vO+4}, v{vO}, v{vO+1}'); A(f'v_cvt_pk_bf16_f32 v{vO+5}, v{vO+2}, v{vO+3}')
    A(f's_lshl_b32 s{sT0}, s{sSEG}, 16'); A(f's_lshr_b32 s{sT1}, s{sHG}, 2'); A(f's_lshl_b32 s{sT1}, s{sT1}, 13'); A(f's_add_u32 s{sT0}, s{sT0}, s{sT1}')
    A(f's_lshl_b32 s{sT1}, s{sCB}, 9'); A(f's_add_u32 s{sT0}, s{sT0}, s{sT1}'); A(f's_add_u32 s{sT0}, s{sT0}, 1024')
    A(f's_bfe_u32 s{sT1}, s{sHG}, 0x10001'); A(f's_lshl_b32 s{sT1}, s{sT1}, 6'); A(f's_add_u32 s{sT0}, s{sT0}, s{sT1}')
    A(f's_and_b32 s{sT1}, s{sHG}, 1'); A(f's_lshl_b32 s{sT1}, s{sT1}, 3'); A(f's_add_u32 s{sT0}, s{sT0}, s{sT1}')
    A(f'buffer_store_dwordx2 {vr(vO+4,2)}, v{vPW}, {srd(S_OUT)}, s{sT0} offen')
    if TRACE or LITE:
        A('s_memrealtime s[94:95]'); A('s_waitcnt lgkmcnt(0)')
        A(f's_lshl_b32 s96, s{sE2}, 3'); A(f's_add_u32 s96, s96, s{sHG}'); A('s_lshl_b32 s96, s96, 2'); A(f's_add_u32 s96, s96, {111*MB}')
        A('v_mov_b32 v120, s94'); A('v_mov_b32 v121, s96')
        A(f'buffer_store_dword v120, v121, {srd(S_WS)}, 0 offen')
    A(f's_add_u32 s{sSEG}, s{sSEG}, {NSET}')
    A(f's_cmp_lt_u32 s{sSEG}, 64'); A('s_cbranch_scc1 L_sv_loop')
    A('s_branch L_next')

def gen_worker(A):
    A.label('L_worker')
    A(f's_mov_b32 s{sTK}, 4000')
    A.label('L_next')
    A('s_barrier')
    trace(A, 2)
    l = A.newlabel('L_ntk')
    A(f's_cmp_lg_u32 s{sW}, 0'); A(f's_cbranch_scc1 {l}')
    A('v_mov_b32 v120, 1'); A(f'v_mov_b32 v121, {4 * DBG_QUEUE}'); A(f'v_mov_b32 v122, {LDS_TICK}')
    A('s_mov_b64 exec, 1')
    A(f'buffer_atomic_add v120, v121, {srd(S_DBG)}, 0 offen sc0')
    A('s_waitcnt vmcnt(0)')
    A('ds_write_b32 v122, v120')
    A('s_mov_b64 exec, -1')
    A('s_waitcnt lgkmcnt(0)')
    A.label(l)
    A('s_barrier')
    A(f'v_mov_b32 v122, {LDS_TICK}')
    A('ds_read_b32 v120, v122')
    A('s_waitcnt lgkmcnt(0)')
    A(f'v_readfirstlane_b32 s{sTK}, v120')
    trace(A, 0)
    A(f's_cmp_lt_u32 s{sTK}, {T_G2}'); A('s_cbranch_scc1 L_task_kv')
    A(f's_cmp_lt_u32 s{sTK}, {T_Q}'); A('s_cbranch_scc1 L_task_g2')
    A(f's_cmp_lt_u32 s{sTK}, {T_SV}'); A('s_cbranch_scc1 L_task_q')
    A(f's_cmp_lt_u32 s{sTK}, {T_AT}'); A('s_cbranch_scc1 L_task_sv')
    A(f's_cmp_lt_u32 s{sTK}, {T_G3}'); A('s_cbranch_scc1 L_task_at')
    A(f's_cmp_lt_u32 s{sTK}, {T_END}'); A('s_cbranch_scc1 L_task_g3')
    A('s_branch L_end0')
    gen_g1(A); gen_g2(A); gen_g3(A); gen_at(A); gen_sv(A)
```

```python
from asmlib import *
from common import *
from gemm import sW, sGA, sGB, sLDA, sLDB, sAOFF, sBOFF, sKIT, sE0, sE1, sE2, sE3, sT0, sT1, sT2, sT3, sM0A, sM0B, sAINC, sBINC, vr, ar

vWD0, vWD1, vWT0, vWT1 = 2, 3, 4, 5
vAD, vADT = 6, 7
vAR = 128
vAF = 16
vACC = 48
vPKD = 112

def wreg(tn, ks): return 4 * (tn * 16 + ks)

def load_w(A):
    A('v_and_b32 v10, 63, v0')
    A('v_lshrrev_b32 v11, 5, v10'); A('v_and_b32 v12, 31, v10')
    A(f's_lshl_b32 s{sT0}, s{sW}, 4')
    A(f'v_add_u32 v13, s{sT0}, v11'); A(f'v_mul_lo_u32 v13, v13, s{sLDB}')
    A('v_lshlrev_b32 v14, 2, v11'); A('v_xor_b32 v14, v14, v12')
    A(f'v_lshl_add_u32 v{vWD0}, v14, 4, v13')
    A(f'v_xor_b32 v{vWD1}, 128, v{vWD0}')
    A(f's_lshl_b32 s{sBINC}, s{sLDB}, 1')
    A(f's_lshl_b32 s{sM0B}, s{sW}, 13')
    A('v_and_b32 v11, 15, v10'); A('v_lshrrev_b32 v12, 4, v10'); A('v_lshrrev_b32 v13, 2, v11'); A('v_and_b32 v14, 3, v11')
    A('v_lshl_add_u32 v15, v12, 3, v13')
    for c in range(2):
        A(f's_lshl_b32 s{sT0}, s{sW}, 1'); A(f's_add_u32 s{sT0}, s{sT0}, {c}')
        A(f'v_xor_b32 v9, s{sT0}, v13'); A('v_lshl_add_u32 v9, v9, 2, v14'); A('v_lshlrev_b32 v9, 4, v9')
        A(f'v_lshl_add_u32 v{vWT0 + c}, v15, 9, v9')
    A(f'v_add_u32 v{vAR}, 65536, v{vWT0}'); A(f'v_add_u32 v{vAR+1}, 65536, v{vWT1}')
    A('s_barrier')
    def dma(ch):
        base = (ch % 4) * 32768
        A(f's_mov_b32 s{sT2}, s{sBOFF}')
        for i in range(8):
            A(f's_add_u32 m0, s{sM0B}, {base + 1024 * i}')
            A(f'buffer_load_dwordx4 v{vWD0 if i % 2 == 0 else vWD1}, {srd(sGB)}, s{sT2} offen lds')
            if i < 7: A(f's_add_u32 s{sT2}, s{sT2}, s{sBINC}')
        A(f's_lshl_b32 s{sT2}, s{sLDB}, 6'); A(f's_add_u32 s{sBOFF}, s{sBOFF}, s{sT2}')
    for ch in range(3): dma(ch)
    for ch in range(8):
        pend = min(7, ch + 2) - ch
        A(f's_waitcnt vmcnt({8 * pend})')
        A('s_barrier')
        if ch + 3 < 8: dma(ch + 3)
        base = (ch % 4) * 32768
        for kk in range(2):
            for tn in range(4):
                c, a = tn // 2, tn % 2
                for half in range(2):
                    off = base + kk * 16384 + half * 2048 + 8 * a
                    v = vWT0 + c
                    if off >= 65536: v = vAR + c; off -= 65536
                    d = wreg(tn, 2 * ch + kk) + 2 * half
                    A(f'ds_read_b64_tr_b16 a[{d}:{d+1}], v{v} offset:{off}')
        A('s_waitcnt lgkmcnt(0)')
    A('s_barrier')

def setup_a(A):
    A('v_and_b32 v10, 63, v0')
    A(f's_lshr_b32 s{sT0}, s{sW}, 1'); A(f's_lshl_b32 s{sT0}, s{sT0}, 15'); A(f's_and_b32 s{sT1}, s{sW}, 1'); A(f's_lshl_b32 s{sT1}, s{sT1}, 12')
    A(f's_add_u32 s{sM0A}, s{sT0}, s{sT1}')
    A(f'v_lshlrev_b32 v{vAD}, 4, v10'); A(f'v_add_u32 v{vAD}, s{sM0A}, v{vAD}')
    A('v_and_b32 v11, 15, v10'); A('v_lshrrev_b32 v12, 4, v10'); A('v_lshrrev_b32 v13, 2, v11'); A('v_and_b32 v14, 3, v11')
    A('v_lshl_add_u32 v15, v13, 3, v14'); A('v_lshlrev_b32 v15, 10, v15')
    for k in range(4):
        A(f'v_add_u32 v9, {4 * k}, v12'); A('v_xor_b32 v9, v9, v11')
        A(f'v_lshl_add_u32 v{vAR + k}, v9, 4, v15')
        A(f'v_add_u32 v{vAR + 4 + k}, 65536, v{vAR + k}')

def a_dma_list(buf):
    out = []
    for i in range(16):
        roff = (8 * (i >> 2) + (i & 3)) * 1024
        g = [f'v_xor_b32 v{vADT}, {i << 4}, v{vAD}',
             f's_add_u32 m0, s{sM0A}, {buf * 65536 + roff}',
             f's_add_u32 s{sT2}, s{sAOFF}, {roff}',
             f'buffer_load_dwordx4 v{vADT}, {srd(sGA)}, s{sT2} offen sc1 lds']
        out.append(g)
    return out

def compute(A, buf, orient, TM=4, bg=None):
    bg = list(bg or [])
    def rd(ks, fs):
        for tm in range(TM):
            off = (32 * (tm // 2) + 4 * (tm % 2)) * 1024 + (ks >> 2) * 256
            A(f'ds_read_b128 {vr(vAF + 16 * fs + 4 * tm, 4)}, v{vAR + 4 * buf + (ks & 3)} offset:{off}')
    rd(0, 0)
    for ks in range(16):
        fs = ks % 2
        if ks + 1 < 16: rd(ks + 1, 1 - fs)
        A(f's_waitcnt lgkmcnt({TM if ks + 1 < 16 else 0})')
        n = 0
        for tm in range(TM):
            for tn in range(4):
                acc = vr(vACC + 4 * (tm * 4 + tn), 4)
                xa = vr(vAF + 16 * fs + 4 * tm, 4); wb = ar(wreg(tn, ks), 4)
                c = acc if ks else '0'
                if orient == 'T': A(f'v_mfma_f32_16x16x32_bf16 {acc}, {wb}, {xa}, {c}')
                else: A(f'v_mfma_f32_16x16x32_bf16 {acc}, {xa}, {wb}, {c}')
                n += 1
                if n == 4 and bg:
                    for i_ in bg.pop(0): A(i_)
    for g in bg:
        for i_ in g: A(i_)

def pack(A, t0, t1, d):
    b0 = vACC + 4 * t0; b1 = vACC + 4 * t1
    A(f'v_cvt_pk_bf16_f32 v{d}, v{b0}, v{b0+1}'); A(f'v_cvt_pk_bf16_f32 v{d+1}, v{b0+2}, v{b0+3}')
    A(f'v_cvt_pk_bf16_f32 v{d+2}, v{b1}, v{b1+1}'); A(f'v_cvt_pk_bf16_f32 v{d+3}, v{b1+2}, v{b1+3}')

def run_blocks(A, orient, epilogue, sig, name, early=None):
    lab = A.newlabel(f'L_ws{name}')
    for g in a_dma_list(0):
        for i_ in g: A(i_)
    A(f's_add_u32 s{sAOFF}, s{sAOFF}, 65536')
    A(f's_mov_b32 s{sAINC}, 0')
    A('s_waitcnt vmcnt(0)')
    A.label(lab)
    for half in range(2):
        A('s_waitcnt vmcnt(8)')
        A('s_barrier')
        if half == 1:
            l = A.newlabel('L_wsg')
            A(f's_cmp_eq_u32 s{sAINC}, 0'); A(f's_cbranch_scc1 {l}')
            A(f's_cmp_lg_u32 s{sW}, 0'); A(f's_cbranch_scc1 {l}')
            sig(A, -1)
            A('s_waitcnt vmcnt(8)' if False else 's_nop 0')
            A.label(l)
        compute(A, half, orient, bg=a_dma_list(1 - half))
        A(f's_add_u32 s{sAOFF}, s{sAOFF}, 65536')
        epilogue(A, half)
        if half == 0 and early is not None:
            l = A.newlabel('L_wse')
            A(f's_cmp_lg_u32 s{sAINC}, 0'); A(f's_cbranch_scc1 {l}')
            early(A, l)
            A.label(l)
    A(f's_add_u32 s{sAINC}, s{sAINC}, 1')
    A(f's_cmp_lt_u32 s{sAINC}, s{sKIT}')
    A(f's_cbranch_scc1 {lab}')
    A('s_waitcnt vmcnt(0)')
    A('s_barrier')
    l = A.newlabel('L_wsg')
    A(f's_cmp_lg_u32 s{sW}, 0'); A(f's_cbranch_scc1 {l}')
    sig(A, -1)
    A.label(l)
```

```python
import sys
from asmlib import *
from common import *
import rec, workers
from rec import sW, sH, sMODE, sT0, sT1, LDS_MISC
OPT = sys.argv[1:]
FORCE_SLOW = 'slow' in OPT
A = Asm()
workers.TRACE = 'trace' in OPT
workers.LITE = 'lite' in OPT
TR = workers.TRACE or workers.LITE
def htrace(slot):
    if not TR: return
    A('s_memrealtime s[94:95]'); A('s_waitcnt lgkmcnt(0)')
    A(f's_lshl_b32 s96, s{sH}, 4'); A(f's_add_u32 s96, s96, {109*MB + 4*slot}')
    A('v_mov_b32 v120, s94'); A('v_mov_b32 v121, s96')
    A(f'buffer_store_dword v120, v121, {srd(S_WS)}, 0 offen')
A('s_cmp_ge_u32 s2, 256'); A('s_cbranch_scc1 L_end')
if TR: A('s_memrealtime s[100:101]')
A('s_load_dwordx16 s[72:87], s[0:1], 0')
A('s_load_dwordx8 s[88:95], s[0:1], 64')
A('s_load_dwordx2 s[96:97], s[0:1], 96')
A('s_waitcnt lgkmcnt(0)')
sizes = {S_AX: (72, 2097152), S_AWQKV: (74, 1572864), S_AWO: (76, 524288), S_BX: (78, 2097152), S_MEM0: (80, 8192),
         S_WQ: (82, 4194304), S_WK: (84, 4194304), S_WV: (86, 4194304), S_WO: (88, 4194304), S_OUT: (92, 4194304),
         S_DBG: (94, 256), S_WS: (96, WS_SIZE)}
for b, (src, sz) in sizes.items():
    A(f's_mov_b32 s{b}, s{src}'); A(f's_mov_b32 s{b+1}, s{src+1}'); A(f's_mov_b32 s{b+2}, {sz}'); A(f's_mov_b32 s{b+3}, 0x20000')
A('v_lshrrev_b32 v1, 6, v0'); A(f'v_readfirstlane_b32 s{sW}, v1')
A(f's_cmp_lg_u32 s{sW}, 0'); A('s_cbranch_scc1 L_role_wait')
A(f's_getreg_b32 s{sT0}, hwreg(HW_REG_XCC_ID)'); A(f's_and_b32 s{sT0}, s{sT0}, 15')
if FORCE_SLOW:
    A(f's_and_b32 s{sT1}, s2, 31'); A(f's_cmp_eq_u32 s{sT1}, 5'); A(f's_cselect_b32 s{sT0}, 0, 1')
A('s_mov_b64 exec, 1')
A('s_mov_b32 s72, 64')
A(f's_cmp_lg_u32 s{sT0}, 0'); A('s_cbranch_scc1 L_role_tot')
A('v_mov_b32 v4, 1'); A(f'v_mov_b32 v3, {4*DBG_TICK0}')
A(f'buffer_atomic_add v4, v3, {srd(S_DBG)}, 0 offen sc0')
A('s_waitcnt vmcnt(0)')
A('v_readfirstlane_b32 s72, v4')
A.label('L_role_tot')
A('v_mov_b32 v4, 1'); A(f'v_mov_b32 v3, {4*DBG_TOTAL}')
A(f'buffer_atomic_add v4, v3, {srd(S_DBG)}, 0 offen')
A('v_mov_b32 v3, 0')
A.label('L_role_poll')
A(f'buffer_load_dwordx2 v[4:5], v3, {srd(S_DBG)}, 0 offen sc1')
A('s_waitcnt vmcnt(0)')
A('v_readfirstlane_b32 s73, v4'); A('v_readfirstlane_b32 s74, v5')
A('s_cmp_ge_u32 s73, 32'); A('s_cbranch_scc1 L_role_fast')
A('s_cmp_ge_u32 s74, 256'); A('s_cbranch_scc1 L_role_slow0')
A('s_sleep 2')
A('s_branch L_role_poll')
A.label('L_role_slow0')
A(f'buffer_load_dword v4, v3, {srd(S_DBG)}, 0 offen sc1')
A('s_waitcnt vmcnt(0)')
A('v_readfirstlane_b32 s73, v4')
A('s_cmp_ge_u32 s73, 32'); A('s_cbranch_scc1 L_role_fast')
A('s_cmp_lt_u32 s72, 32'); A('s_cbranch_scc1 L_role_slowhead')
A('v_mov_b32 v4, 1'); A(f'v_mov_b32 v3, {4*DBG_FALLB}')
A(f'buffer_atomic_add v4, v3, {srd(S_DBG)}, 0 offen sc0')
A('s_waitcnt vmcnt(0)')
A('v_readfirstlane_b32 s72, v4')
A('s_add_u32 s72, s72, s73')
A.label('L_role_slowhead')
A('s_or_b32 s75, s72, 0x300')
A('s_cmp_lt_u32 s72, 32'); A('s_cselect_b32 s75, s75, 0')
A('s_branch L_role_pub')
A.label('L_role_fast')
A('s_or_b32 s75, s72, 0x100')
A('s_cmp_lt_u32 s72, 32'); A('s_cselect_b32 s75, s75, 0')
A.label('L_role_pub')
A('v_mov_b32 v4, s75'); A(f'v_mov_b32 v3, {LDS_MISC}')
A('ds_write_b32 v3, v4')
A('s_mov_b64 exec, -1')
A('s_waitcnt lgkmcnt(0)')
A.label('L_role_wait')
A('s_barrier')
A(f'v_mov_b32 v3, {LDS_MISC}')
A('ds_read_b32 v4, v3')
A('s_waitcnt lgkmcnt(0)')
A('v_readfirstlane_b32 s75, v4')
A('s_barrier')
A('s_bitcmp1_b32 s75, 8'); A('s_cbranch_scc0 L_worker')
A(f's_and_b32 s{sH}, s75, 31'); A(f's_bfe_u32 s{sMODE}, s75, 0x10009')
htrace(0)
if 'clk' in OPT: A('s_memrealtime s[98:99]'); A('s_memtime s[100:101]'); A('s_waitcnt lgkmcnt(0)')
rec.gen_setup(A)
rec.gen_init_exchange(A)
MID = [int(o[4:]) for o in OPT if o.startswith('mid_')]
rec.gen_load_weights(A, mid_at=MID[0] if MID else 27)
htrace(1)
rec.gen_wait_init(A)
rec.gen_mem0(A)
rec.gen_setup2(A)
A(f's_cmp_lg_u32 s{sMODE}, 0'); A('s_cbranch_scc1 L_rec_slow')
rec.gen_steps(A, 'f', 64, kvwait=rec.kvwait, prof=72 if 'prof' in OPT else None, opt=OPT)
htrace(2)
if 'clk' in OPT:
    A('s_memrealtime s[72:73]'); A('s_memtime s[74:75]'); A('s_waitcnt lgkmcnt(0)')
    A('s_sub_u32 s72, s72, s98'); A('s_sub_u32 s74, s74, s100')
    A('v_mov_b32 v120, s72'); A('v_mov_b32 v121, 8'); A(f'buffer_store_dword v120, v121, {srd(S_DBG)}, 0 offen')
    A('v_mov_b32 v120, s74'); A('v_mov_b32 v121, 16'); A(f'buffer_store_dword v120, v121, {srd(S_DBG)}, 0 offen')
A('s_branch L_worker')
A.label('L_rec_slow')
rec.gen_steps(A, 's', 64, kvwait=rec.kvwait)
A('s_branch L_worker')
workers.gen_worker(A)
A.label('L_end0')
if TR:
    A('s_memrealtime s[94:95]'); A('s_waitcnt lgkmcnt(0)')
    A('s_lshl_b32 s96, s2, 3'); A(f's_add_u32 s96, s96, {112*MB}')
    A('v_mov_b32 v120, s100'); A('v_mov_b32 v121, s94'); A('v_mov_b32 v122, s96')
    A(f'buffer_store_dwordx2 v[120:121], v122, {srd(S_WS)}, 0 offen')
A.label('L_end')
A('s_endpgm')
body = A.finalize()
hdr = open('concat_heads__sliding_block__memory_aug_recurrent_mem_tr__prompt.s.ref').read().split('; Override launch')[0]
print(f'''{hdr}; @launch grid=(256,1,1) block=(256,1,1) lds=163840
.amdgcn_target "amdgcn-amd-amdhsa--gfx950"
.text
.globl {KNAME}
.p2align 8
.type {KNAME},@function
{KNAME}:
{body}
.section .rodata,"a"
.p2align 6
.amdhsa_kernel {KNAME}
  .amdhsa_next_free_vgpr 512
  .amdhsa_next_free_sgpr 102
  .amdhsa_accum_offset 256
  .amdhsa_group_segment_fixed_size 0
  .amdhsa_kernarg_size 104
  .amdhsa_user_sgpr_count 2
  .amdhsa_user_sgpr_kernarg_segment_ptr 1
  .amdhsa_system_sgpr_workgroup_id_x 1
.end_amdhsa_kernel
''')
```

```python
from asmlib import *
from common import *
import math

sW, sH, sSTEP, sPSL, sMCUR, sMNXT, sT0, sT1, sT2, sKXO, sVXO, sKMO, sMODE, sT3 = range(56, 70)
sRDY = 70
vIDX = 1; vID = 2; vSEL = 4
vL16H, vHOME, vMP, vPST, vPLD, vMPUB, vKX, vVX, vKM, vVM, vSW, vSR, vOW = range(8, 21)
vNEG1 = 21
vFR = 24
vQK = 56
vVA = 72
vSTG = 80
vKXR = 104
vVXR = 112
vTMP = 120
vT2 = 22
vSR2T = 119
vSR2 = 0
LDS_MEM = 131072
LDS_SX = LDS_MEM + 8192
LDS_O = LDS_SX + 6144
LDS_KV = LDS_O + 2048
LDS_MISC = LDS_SX
NSTG = 3
assert LDS_KV + 16384 == 163840
vPB = vFR
sFO = 90
sFLA = 71
sFLX = 90

def vr(b, n): return f'v[{b}:{b+n-1}]'

def operand_order():
    ops = []
    for i in range(2):
        for m, a in (('k', 0), ('q', 0), ('k', 1), ('q', 1), ('v', 0), ('v', 1)): ops.append((m, a, i))
    for a in range(2):
        for i in range(2, 8):
            ops.append(('k', a, i)); ops.append(('q', a, i))
    for i in range(2, 8):
        ops.append(('v', 0, i)); ops.append(('v', 1, i))
    for a in range(8):
        for ks in range(2):
            ops.append(('o', a, ks))
    return ops
OPS = operand_order()
HOMED = [3, 7, 11] + [15, 19, 23, 27, 31, 35] + [36, 38] + [48 + i for i in (1, 4, 7, 10, 13)]
assert len(HOMED) == 16
LOC = {}
_r = 0
for i, o in enumerate(OPS):
    if i in HOMED:
        _qs = [j for j in HOMED if OPS[j][0] == 'q']; _os = [j for j in HOMED if OPS[j][0] != 'q']
        assert len(_qs) == 8
        LOC[o] = ('lds', _qs.index(i) if o[0] == 'q' else 8 + _os.index(i))
    else:
        LOC[o] = ('a', 8 * _r) if _r < 32 else ('v', 128 + 8 * (_r - 32))
        _r += 1
assert _r == 48

class Cnt:
    def __init__(self, A, name, maxv): self.A = A; self.name = name; self.maxv = maxv; self.q = []
    def issue(self, tag=None): self.q.append(tag)
    def wait(self, tag):
        if tag not in self.q: return
        idx = len(self.q) - 1 - self.q[::-1].index(tag)
        n = len(self.q) - 1 - idx
        n = min(n, self.maxv)
        self.A(f's_waitcnt {self.name}({n})')
        self.q = self.q[len(self.q) - n:] if n else []
    def all(self):
        self.A(f's_waitcnt {self.name}(0)'); self.q = []

def gen_setup(A):
    A('s_mov_b32 s4, 0x33333333'); A('s_mov_b32 s5, 0x33333333'); A('s_mov_b32 s6, 0xcccccccc'); A('s_mov_b32 s7, 0xcccccccc')
    A('v_and_b32 v120, 63, v0            ; lane')
    A('v_and_b32 v121, 15, v120          ; n = lane%16')
    A('v_lshrrev_b32 v122, 4, v120       ; g = lane/16')
    A(f'v_mov_b32 v{vNEG1}, -1')
    A('v_and_b32 v123, 2, v121')
    A('v_cmp_eq_u32 vcc, 0, v123')
    A(f'v_mov_b32 v124, 0xeeeeeeee')
    A(f'v_mov_b32 v125, 0x44444444')
    A(f'v_cndmask_b32 v{vIDX}, v124, v125, vcc')
    A('v_lshrrev_b32 v123, 2, v121')
    A('v_and_b32 v124, 3, v121           ; e')
    A('v_and_b32 v125, 1, v124')
    A('v_lshlrev_b32 v125, 4, v125       ; shift 0/16')
    A('v_mov_b32 v126, 0x3f80')
    A('v_lshlrev_b32 v126, v125, v126')
    A('v_cmp_eq_u32 vcc, v123, v122')
    A('v_cndmask_b32 v126, 0, v126, vcc')
    A('v_cmp_gt_u32 vcc, 2, v124')
    A(f'v_cndmask_b32 v{vID}, 0, v126, vcc')
    A(f'v_cndmask_b32 v{vID+1}, v126, 0, vcc')
    A('v_and_b32 v125, 1, v121')
    A('v_lshlrev_b32 v125, 4, v125')
    A('v_mov_b32 v126, 0x3f80')
    A('v_lshlrev_b32 v126, v125, v126')
    A('v_lshrrev_b32 v123, 1, v121       ; m/2 (0..7)')
    for r in range(4):
        A(f'v_cmp_eq_u32 vcc, {r}, v123')
        A(f'v_cndmask_b32 v{vSEL+r}, 0, v126, vcc')
    A(f'v_lshlrev_b32 v123, 4, v120      ; lane*16')
    A(f'v_add_u32 v{vL16H}, {LDS_MEM}, v123')
    A(f's_lshl_b32 s{sT0}, s{sW}, 15')
    A(f'v_add_u32 v{vHOME}, s{sT0}, v123')
    A(f's_lshl_b32 s{sT0}, s{sW}, 11')
    A(f'v_add_u32 v{vMP}, s{sT0}, v{vL16H}')
    A('v_lshrrev_b32 v123, 2, v121       ; q')
    A('v_and_b32 v124, 3, v121           ; e')
    A(f's_lshl_b32 s{sT0}, s{sW}, 16'); A(f's_lshl_b32 s{sT1}, s{sH}, 8'); A(f's_add_u32 s{sT0}, s{sT0}, s{sT1}')
    A('v_lshlrev_b32 v125, 13, v123'); A('v_lshlrev_b32 v126, 6, v122'); A('v_lshlrev_b32 v127, 4, v124')
    A(f'v_add3_u32 v{vPST}, v125, v126, v127'); A(f'v_add_u32 v{vPST}, s{sT0}, v{vPST}')
    A(f's_lshl_b32 s{sT0}, s{sH}, 13'); A(f's_lshl_b32 s{sT1}, s{sW}, 6'); A(f's_add_u32 s{sT0}, s{sT0}, s{sT1}')
    A('v_lshlrev_b32 v125, 10, v123'); A('v_lshlrev_b32 v126, 8, v122')
    A(f'v_add3_u32 v{vPLD}, v125, v126, v127'); A(f'v_add_u32 v{vPLD}, s{sT0}, v{vPLD}')
    A(f's_lshl_b32 s{sT0}, s{sH}, 8'); A(f's_lshl_b32 s{sT1}, s{sW}, 6'); A(f's_add_u32 s{sT0}, s{sT0}, s{sT1}')
    A('v_lshlrev_b32 v125, 5, v122'); A('v_lshlrev_b32 v126, 2, v121')
    A(f'v_add3_u32 v{vMPUB}, v125, v126, s{sT0}')
    A('v_lshlrev_b32 v126, 4, v120')
    A(f's_lshl_b32 s{sT0}, s{sH}, 14'); A(f's_lshl_b32 s{sT1}, s{sW}, 12'); A(f's_add_u32 s{sT0}, s{sT0}, s{sT1}')
    A(f'v_add_u32 v{vKX}, s{sT0}, v126')
    A(f's_add_u32 s{sT1}, s{sT1}, {LDS_KV}')
    A(f'v_add_u32 v{vVX}, s{sT1}, v126')
    A('v_lshlrev_b32 v125, 3, v123'); A('v_add_u32 v125, v125, v124   ; 8(m/4)+m%4')
    A('v_lshlrev_b32 v127, 4, v125'); A('v_lshlrev_b32 v126, 2, v122')
    A(f's_lshl_b32 s{sT0}, s{sH}, 11'); A(f's_lshl_b32 s{sT1}, s{sW}, 9'); A(f's_add_u32 s{sT0}, s{sT0}, s{sT1}')
    A(f'v_add3_u32 v{vVM}, v127, v126, s{sT0}')
    A('v_and_b32 v125, 1, v121'); A('v_lshl_add_u32 v125, v123, 1, v125   ; t')
    A('v_lshlrev_b32 v127, 8, v125'); A('v_lshlrev_b32 v126, 4, v122')
    A(f's_lshl_b32 s{sT0}, s{sH}, 11'); A(f's_lshl_b32 s{sT1}, s{sW}, 6'); A(f's_add_u32 s{sT0}, s{sT0}, s{sT1}')
    A(f'v_add3_u32 v{vKM}, v127, v126, s{sT0}')
    A('v_lshrrev_b32 v126, 1, v122'); A('v_lshlrev_b32 v126, 8, v126    ; (g/2)*256')
    A('v_and_b32 v127, 1, v122'); A('v_lshlrev_b32 v127, 5, v127     ; half*32')
    A('v_and_b32 v125, 1, v121'); A('v_lshlrev_b32 v125, 4, v125'); A('v_lshl_add_u32 v125, v123, 6, v125   ; (n/4)*64 + (n&1)*16')
    A(f'v_add3_u32 v{vOW}, v125, v126, v127')
    A(f's_lshl_b32 s{sT0}, s{sW}, 9'); A(f's_add_u32 s{sT0}, s{sT0}, {LDS_O}')
    A(f'v_add_u32 v{vOW}, s{sT0}, v{vOW}')
    A('v_lshrrev_b32 v125, 2, v120'); A('v_and_b32 v126, 1, v120'); A('v_lshl_add_u32 v125, v125, 1, v126')
    A('v_mul_u32_u24 v125, 48, v125')
    A(f's_mul_i32 s{sT0}, s{sW}, 1536'); A(f's_add_u32 s{sT0}, s{sT0}, {LDS_SX}')
    A(f'v_add_u32 v{vSW}, s{sT0}, v125')
    A('v_and_b32 v126, 2, v121')
    A('v_cmp_eq_u32 vcc, 0, v126')
    A(f'v_mov_b32 v126, {LDS_SX}'); A(f'v_mov_b32 v127, {LDS_SX + 16}')
    A('v_cndmask_b32 v126, v126, v127, vcc')
    A(f'v_add_u32 v{vSR}, v125, v126')
    A(f'v_mov_b32 v126, {LDS_SX + 32}'); A(f'v_mov_b32 v127, {LDS_SX + 36}')
    A('v_cndmask_b32 v126, v126, v127, vcc')
    A(f'v_add_u32 v{vSR2T}, v125, v126')

def gen_load_weights(A):
    A('v_and_b32 v120, 63, v0'); A('v_and_b32 v121, 15, v120'); A('v_lshrrev_b32 v122, 4, v120')
    vD = 24
    vDO = 28
    vTQ = 32
    vTO = 33
    vTT = 40
    vW2 = 36
    vDT = 72
    for i in range(4):
        A(f'v_xor_b32 v123, {i << 2}, v121')
        A('v_lshlrev_b32 v123, 4, v123')
        A(f'v_add_u32 v124, {4 * i}, v122')
        A('v_lshlrev_b32 v124, 13, v124')
        A(f's_lshl_b32 s{sT0}, s{sW}, 17'); A(f's_lshl_b32 s{sT1}, s{sH}, 8'); A(f's_add_u32 s{sT0}, s{sT0}, s{sT1}')
        A(f'v_add3_u32 v{vD+i}, v123, v124, s{sT0}')
        A(f'v_lshrrev_b32 v{vW2+i}, 6, v123'); A(f'v_lshlrev_b32 v{vW2+i}, 1, v{vW2+i}')
    for i in range(4):
        sw = (i & 1) | ((i >> 1) << 3)
        A(f'v_xor_b32 v123, {sw}, v121')
        A('v_lshrrev_b32 v125, 3, v123       ; u')
        A('v_and_b32 v123, 7, v123')
        A('v_lshlrev_b32 v123, 4, v123')
        A('v_lshl_add_u32 v123, v125, 8, v123')
        A(f'v_add_u32 v124, {4 * i}, v122')
        A('v_lshlrev_b32 v124, 10, v124')
        A(f's_lshl_b32 s{sT0}, s{sW}, 14'); A(f's_lshl_b32 s{sT1}, s{sH}, 17'); A(f's_add_u32 s{sT0}, s{sT0}, s{sT1}')
        A(f'v_add3_u32 v{vDO+i}, v123, v124, s{sT0}')
    A('v_lshrrev_b32 v123, 2, v121    ; r'); A('v_and_b32 v124, 3, v121   ; q')
    A('v_lshrrev_b32 v125, 1, v122'); A('v_lshlrev_b32 v125, 4, v125'); A('v_and_b32 v126, 1, v122'); A('v_lshlrev_b32 v126, 1, v126')
    A('v_lshlrev_b32 v127, 2, v123    ; 4r = 8(r/2)+4(r%2)')
    A('v_add3_u32 v125, v125, v126, v127   ; row')
    A(f's_lshl_b32 s{sT0}, s{sW}, 2')
    A(f'v_add_u32 v126, s{sT0}, v124      ; chunk = 4w+q')
    A('v_xor_b32 v126, v126, v127         ; ^ (r<<2)')
    A('v_lshlrev_b32 v126, 4, v126')
    A(f'v_lshl_add_u32 v{vTQ}, v125, 8, v126')
    A(f'v_add_u32 v{vTQ}, {LDS_MEM}, v{vTQ}')
    A('v_and_b32 v126, 1, v122    ; g%2'); A('v_lshrrev_b32 v127, 1, v123   ; r/2')
    A('v_lshrrev_b32 v125, 1, v122'); A('v_lshlrev_b32 v125, 4, v125')
    A('v_lshl_add_u32 v125, v126, 2, v125'); A('v_lshl_add_u32 v125, v127, 3, v125')
    A('v_and_b32 v34, 1, v123'); A('v_add_u32 v125, v125, v34     ; row')
    A(f's_and_b32 s{sT0}, s{sW}, 1'); A(f's_lshl_b32 s{sT0}, s{sT0}, 3')
    A(f'v_lshlrev_b32 v34, 1, v124'); A(f'v_add_u32 v34, s{sT0}, v34    ; 8u+2q')
    A('v_lshl_add_u32 v126, v127, 3, v126   ; swz')
    A('v_xor_b32 v34, v34, v126')
    A('v_lshlrev_b32 v34, 4, v34')
    A(f'v_lshl_add_u32 v{vTO}, v125, 8, v34')
    A(f'v_add_u32 v{vTO}, {LDS_MEM}, v{vTO}')
    A(f'v_xor_b32 v{vTO+1}, 16, v{vTO}')
    chunks = [('k', ks) for ks in range(8)] + [('o', c) for c in range(8)] + [('v', ks) for ks in range(8)] + [('q', ks) for ks in range(8)]
    NCH = len(chunks)
    BUFS = [LDS_MEM, LDS_MEM + 16384, 0, 32768, 65536, 98304]
    bufof = [BUFS[ci % 6] if ci < 24 else BUFS[ci % 2] for ci in range(NCH)]
    vB = 76
    for j, v in enumerate((vTQ, vTO, vTO + 1)):
        A(f'v_subrev_u32 v{vB+2*j}, {LDS_MEM}, v{v}'); A(f'v_add_u32 v{vB+2*j+1}, 65536, v{vB+2*j}')
    def base_off(which, buf):
        j = {vTQ: 0, vTO: 1, vTO + 1: 2}[which]
        if buf >= LDS_MEM: return which, buf - LDS_MEM
        if buf >= 65536: return vB + 2 * j + 1, buf - 65536
        return vB + 2 * j, buf
    def dma(ci):
        m, x = chunks[ci]
        buf = bufof[ci]
        for i in range(4):
            A(f's_lshl_b32 s{sT0}, s{sW}, 12')
            A(f's_add_u32 m0, s{sT0}, {buf + 1024 * i}')
            if m != 'o':
                S = {'q': S_WQ, 'k': S_WK, 'v': S_WV}[m]
                A(f's_mov_b32 s{sT1}, {x * 64 * 8192}')
                A(f'buffer_load_dwordx4 v{vD+i}, {srd(S)}, s{sT1} offen lds')
            else:
                ks, ah, wp = x >> 2, (x >> 1) & 1, x & 1
                A(f's_mov_b32 s{sT1}, {ks * 65536 + wp * 512 + ah * 128}')
                A(f'buffer_load_dwordx4 v{vDO+i}, {srd(S_WO)}, s{sT1} offen lds')
    def dest(o, tmpi):
        k, b = LOC[o]
        if k == 'lds': return 'v', vTT + 8 * tmpi
        return k, b
    issued = 0
    def can_issue(j, consumed):
        return all(bufof[p] != bufof[j] for p in range(consumed, j))
    def pump(consumed):
        nonlocal issued
        while issued < NCH and can_issue(issued, consumed):
            dma(issued); issued += 1
    pump(0)
    for ci, (m, x) in enumerate(chunks):
        A(f's_waitcnt vmcnt({4 * (issued - ci - 1)})')
        A('s_barrier')
        skip = None
        homed = []
        if m != 'o':
            vb, boff = base_off(vTQ, bufof[ci])
            lend = A.newlabel('L_wv')
            for wv in range(4):
                lnext = A.newlabel('L_wn')
                if wv < 3:
                    A(f's_cmp_lg_u32 s{sW}, {wv}'); A(f's_cbranch_scc1 {lnext}')
                hm = []
                for a in range(2):
                    o = (m, a, (x - 2 * wv) & 7)
                    k, b = dest(o, a)
                    if LOC[o][0] == 'lds': hm.append((o, b))
                    for p in range(4):
                        A(f'ds_read_b64_tr_b16 {k}[{b+2*p}:{b+2*p+1}], v{vb} offset:{boff + (p >> 1) * 8192 + (p & 1) * 256 + 8 * a}')
                if hm: A('s_waitcnt lgkmcnt(0)')
                for o, b in hm:
                    slot = LOC[o][1]
                    A(f'ds_write_b128 v{vHOME}, {vr(b, 4)} offset:{slot * 2048}')
                    A(f'ds_write_b128 v{vHOME}, {vr(b + 4, 4)} offset:{slot * 2048 + 1024}')
                if wv < 3:
                    A(f's_branch {lend}')
                    A.label(lnext)
            A.label(lend)
        else:
            ks, ah, wp = x >> 2, (x >> 1) & 1, x & 1
            skip = A.newlabel('L_wskip')
            A(f's_lshr_b32 s{sT0}, s{sW}, 1'); A(f's_cmp_lg_u32 s{sT0}, {wp}'); A(f's_cbranch_scc1 {skip}')
            for ap in range(4):
                o = ('o', 4 * ah + ap, ks)
                k, b = dest(o, ap)
                if LOC[o][0] == 'lds': homed.append((o, b))
                vb, boff = base_off(vTO + (ap >> 1), bufof[ci])
                for p in range(4):
                    A(f'ds_read_b64_tr_b16 {k}[{b+2*p}:{b+2*p+1}], v{vb} offset:{boff + (p >> 1) * 8192 + (p & 1) * 512 + 8 * (ap & 1)}')
        A('s_waitcnt lgkmcnt(0)')
        for o, b in homed:
            slot = LOC[o][1]
            A(f'ds_write_b128 v{vHOME}, {vr(b, 4)} offset:{slot * 2048}')
            A(f'ds_write_b128 v{vHOME}, {vr(b + 4, 4)} offset:{slot * 2048 + 1024}')
        if skip: A.label(skip)
        A('s_barrier')
        pump(ci + 1)
    A('s_waitcnt lgkmcnt(0)')

def st_mode(A, ins):
    return ins

def gen_stores(A, lst, tag):
    l1 = A.newlabel('L_sslow'); l2 = A.newlabel('L_sdone')
    A(f's_cmp_lg_u32 s{sMODE}, 0'); A(f's_cbranch_scc1 {l1}')
    for s in lst: A(s)
    A(f's_branch {l2}')
    A.label(l1)
    for s in lst:
        A(s + ' sc1' if s.startswith('buffer_store') else s)
    A.label(l2)

def gen_init_exchange(A):
    for r in range(4): A(f'v_mov_b32 v{vTMP+r}, -1')
    lst = []
    for sl in range(1):
        for i in range(2):
            lst.append(f's_mov_b32 s{sT0}, {WS_PX + sl * 262144 + i * 4096}')
            lst.append(f'buffer_store_dwordx4 {vr(vTMP,4)}, v{vPLD}, {srd(S_WS)}, s{sT0} offen')
    lst.append('s_mov_b64 exec, 0xf000f')
    for sl in range(4):
        lst.append(f's_mov_b32 s{sT0}, {WS_MX + sl * 8192}')
        lst.append(f'buffer_store_dword v{vNEG1}, v{vMPUB}, {srd(S_WS)}, s{sT0} offen')
        lst.append(f'buffer_store_dword v{vNEG1}, v{vMPUB}, {srd(S_WS)}, s{sT0} offen offset:16')
    lst.append('s_mov_b64 exec, -1')
    gen_stores(A, lst, 'init')
    A(f's_lshl_b32 s{sT0}, s{sH}, 7'); A(f's_add_u32 s{sT0}, s{sT0}, {WS_PROG}'); A(f'v_mov_b32 v{vT2+1}, s{sT0}'); A(f'v_mov_b32 v{vT2}, 0')
    A(f'buffer_store_dword v{vT2}, v{vT2+1}, {srd(S_WS)}, 0 offen sc1')
    A('s_waitcnt vmcnt(0)')
    A('s_barrier')
    l = A.newlabel('L_noarr')
    A(f's_cmp_lg_u32 s{sW}, 0'); A(f's_cbranch_scc1 {l}')
    A(f'v_mov_b32 v{vTMP}, 1'); A(f'v_mov_b32 v{vTMP+1}, {4 * DBG_RINIT}')
    A('s_mov_b64 exec, 1')
    A(f'buffer_atomic_add v{vTMP}, v{vTMP+1}, {srd(S_DBG)}, 0 offen')
    A('s_mov_b64 exec, -1')
    A.label(l)

def gen_wait_init(A):
    l = A.newlabel('L_winit')
    A(f'v_mov_b32 v{vTMP+1}, {4 * DBG_RINIT}')
    A.label(l)
    A(f'buffer_load_dword v{vTMP}, v{vTMP+1}, {srd(S_DBG)}, 0 offen sc1')
    A('s_waitcnt vmcnt(0)')
    A(f'v_cmp_gt_u32 vcc, 32, v{vTMP}')
    A(f's_cbranch_vccnz {l}')

def gen_mem0(A):
    A('v_and_b32 v120, 63, v0'); A('v_and_b32 v121, 15, v120'); A('v_lshrrev_b32 v122, 4, v120')
    A('v_lshrrev_b32 v123, 2, v121'); A('v_and_b32 v124, 1, v121'); A('v_lshl_add_u32 v123, v123, 1, v124'); A('v_lshlrev_b32 v123, 10, v123')
    A('v_and_b32 v124, 2, v121'); A('v_lshlrev_b32 v124, 3, v124'); A('v_lshlrev_b32 v125, 5, v122')
    A('v_add3_u32 v123, v123, v124, v125')
    A(f's_lshl_b32 s{sT0}, s{sW}, 8')
    A(f'buffer_load_dwordx4 {vr(vFR+8,4)}, v123, {srd(S_MEM0)}, s{sT0} offen')
    A(f'buffer_load_dwordx4 {vr(vFR+12,4)}, v123, {srd(S_MEM0)}, s{sT0} offen offset:128')
    A('s_waitcnt vmcnt(0)')
    A(f's_mov_b32 s{sT0}, 0x05040100'); A(f's_mov_b32 s{sT1}, 0x07060302')
    for i in range(2):
        s = vFR + 8 + 4 * i; d = vPB + 4 * i
        A(f'v_perm_b32 v{d}, v{s+2}, v{s}, s{sT0}')
        A(f'v_perm_b32 v{d+1}, v{s+2}, v{s}, s{sT1}')
        A(f'v_perm_b32 v{d+2}, v{s+3}, v{s+1}, s{sT0}')
        A(f'v_perm_b32 v{d+3}, v{s+3}, v{s+1}, s{sT1}')


def gen_setup2(A):
    A('v_and_b32 v121, 15, v0')
    A('v_cmp_lt_u32 vcc, 7, v121')
    A('v_mov_b32 v122, 0x3f803f80')
    for r in range(4): A(f'v_cndmask_b32 v{vSEL+r}, v{vSEL+r}, v122, vcc')
    A(f'v_mov_b32 v{vSR2}, v{vSR2T}')

def gen_steps(A, mode, nsteps=64, prof=None, flag=True, opt=(), kvwait=None):
    X = '' if mode == 'f' else ' sc1'
    L = lambda n: f'L_rec{mode}_{n}'
    lg = Cnt(A, 'lgkmcnt', 15)
    SC = 128 ** -0.5 * math.log2(math.e)
    import struct
    SCBITS = struct.unpack('<I', struct.pack('<f', SC))[0]
    homed_seq = [OPS[i] for i in HOMED]
    slot_of = {o: i % NSTG for i, o in enumerate(homed_seq)}
    sTAG = sPSL
    QP = 'quad_perm:[2,3,0,1] row_mask:0xf bank_mask:0xf'
    def breg(o):
        k, b = LOC[o]
        if k == 'lds':
            b = vSTG + 8 * slot_of[o]
            return f'v[{b}:{b+7}]'
        return f'{k}[{b}:{b+7}]'
    def stage(i):
        if i >= len(homed_seq): return
        o = homed_seq[i]; b = vSTG + 8 * slot_of[o]; slot = LOC[o][1]
        A(f'ds_read_b128 {vr(b,4)}, v{vHOME} offset:{slot*2048}'); lg.issue()
        A(f'ds_read_b128 {vr(b+4,4)}, v{vHOME} offset:{slot*2048+1024}'); lg.issue(('stg', i))
    def smf(acc, areg, o):
        if LOC[o][0] == 'lds':
            lg.wait(('stg', homed_seq.index(o)))
        A(f'v_smfmac_f32_16x16x64_bf16 {vr(acc,4)}, {vr(areg,4)}, {breg(o)}, v{vIDX}')
    def P(i):
        if prof is not None: A(f's_memtime s[{prof+2*i}:{prof+2*i+1}]')
    def zero(b, n):
        for r in range(0, n, 2): A(f'v_mov_b64 v[{b+r}:{b+r+1}], 0')
    def kvdma(lst):
        A(f's_mov_b32 m0, s{sT3}')
        for i in lst:
            if 'nodma' in opt: continue
            A(f'buffer_load_dwordx4 v{vKX}, {srd(S_WS)}, s{sKXO} offen offset:{1024*i} sc1 lds')
    def kvread():
        for i in range(4): A(f'ds_read_b128 {vr(vKXR+4*i,4)}, v{vVX} offset:{1024*i}')
    def hadd(b): return f'v_pk_add_f32 v[{b}:{b+1}], v[{b}:{b+1}], v[{b+2}:{b+3}]'
    A(f's_mov_b32 s{sSTEP}, 0')
    A(f's_mov_b32 s{sTAG}, 0')
    A(f's_mov_b32 s{sMCUR}, {WS_MX}')
    A(f's_mov_b32 s{sKXO}, {WS_KVF}')
    A(f's_mov_b32 s{sKMO}, 0')
    A(f's_mov_b32 s{sT2}, {SCBITS}')
    A(f's_mov_b32 s{sVXO}, {WS_PX}')
    A(f's_lshl_b32 s{sT3}, s{sW}, 12'); A(f's_add_u32 s{sT3}, s{sT3}, {LDS_KV}')
    A(f's_lshl_b32 s{sFLA}, s{sH}, 7'); A(f's_add_u32 s{sFLA}, s{sFLA}, {WS_PROG - LDS_MEM}')
    A(f's_cmp_eq_u32 s{sW}, 0'); A(f's_cselect_b32 s{sFLX}, 1, 0'); A(f's_mov_b32 s{sFLX+1}, 0')
    for i in range(2, 8):
        A(f's_lshl_b32 s{sFO+i}, s{sW}, 1'); A(f's_add_u32 s{sFO+i}, s{sFO+i}, {i}'); A(f's_and_b32 s{sFO+i}, s{sFO+i}, 7'); A(f's_lshl_b32 s{sFO+i}, s{sFO+i}, 10')
    if kvwait: kvwait(A, first=True)
    kvdma(range(4))
    for i in range(NSTG): stage(i)
    lg.q = []
    zero(vQK, 24)
    A('s_waitcnt vmcnt(0)')
    kvread()
    A(f's_add_u32 s{sKXO}, s{sKXO}, {32*16384}')
    A(f's_branch {L("have_mem")}')
    A.label(L('step'))
    P(0)
    A(f's_sub_u32 s{sT0}, s{sMCUR}, {LDS_MEM}')
    B2 = [int(o[3:]) for o in opt if o.startswith('b2_')]
    if B2 and B2[0] == 99: A('s_waitcnt vmcnt(0)')
    elif B2 and B2[0]: A(f's_sleep {B2[0]}')
    A.label(L('poll2'))
    A(f'buffer_load_dwordx4 {vr(vPB,4)}, v{vMP}, {srd(S_WS)}, s{sT0} offen sc1')
    A(f'buffer_load_dwordx4 {vr(vPB+4,4)}, v{vMP}, {srd(S_WS)}, s{sT0} offen offset:1024 sc1')
    A('s_waitcnt vmcnt(0)')
    A(f'v_max3_u32 v{vTMP}, v{vPB}, v{vPB+1}, v{vPB+2}'); A(f'v_max3_u32 v{vTMP+1}, v{vPB+3}, v{vPB+4}, v{vPB+5}')
    A(f'v_max3_u32 v{vTMP}, v{vTMP}, v{vPB+6}, v{vPB+7}'); A(f'v_max_u32 v{vTMP}, v{vTMP}, v{vTMP+1}')
    A(f'v_cmp_eq_u32 vcc, -1, v{vTMP}')
    A('s_mov_b64 exec, vcc')
    A(f's_cbranch_execnz {L("poll2")}')
    A('s_mov_b64 exec, -1')
    A.label(L('have_mem'))
    P(1)
    A(f'ds_write_b128 v{vMP}, {vr(vPB,4)}'); A(f'ds_write_b128 v{vMP}, {vr(vPB+4,4)} offset:1024')
    nstaged = NSTG
    def acc_of(m, a): return (vVA + 4 * a) if m == 'v' else vQK + 8 * a + (4 if m == 'q' else 0)
    pre = [o for o in OPS[:12]]
    for o in pre[:3]: smf(acc_of(o[0], o[1]), vFR + 4 * o[2], o)
    if kvwait: kvwait(A, first=False)
    for i in range(2, 8): A(f'v_add_u32 v{vFR+4*i}, s{sFO+i}, v{vL16H}')
    A('s_waitcnt lgkmcnt(0)')
    A('s_barrier')
    P(2)
    for i in range(2, 8):
        A(f'ds_read_b128 {vr(vFR+4*i,4)}, v{vFR+4*i}'); lg.issue(('fr', i))
    n_ = 0
    for o in pre[3:]:
        smf(acc_of(o[0], o[1]), vFR + 4 * o[2], o)
        if LOC[o][0] == 'lds':
            stage(nstaged); nstaged += 1
        n_ += 1
        if n_ in (2, 4, 6, 8): kvdma([n_ // 2 - 1])
    A(f's_add_u32 s{sKXO}, s{sKXO}, {32*16384}')
    if kvwait:
        A(f's_cmp_lt_u32 s{sRDY}, 16'); A(f's_cbranch_scc1 {L("rdy1")}')
        A.label(L('rdy1b'))
    vAP = vT2; vDP = vTMP; vX = vTMP + 4
    bg = []
    def post_qk_list(a):
        k = vQK + 8 * a; q = k + 4
        return [hadd(k), hadd(q),
                f'v_cvt_pk_bf16_f32 v{vAP}, v{k}, v{k+1}', f'v_cvt_pk_bf16_f32 v{vAP+1}, v{q}, v{q+1}',
                f'v_mfma_f32_16x16x16_bf16 {vr(vDP,4)}, {vr(vAP,2)}, {vr(vID,2)}, 0']
    def post_qk2_list(a):
        return [f'v_cvt_pk_bf16_f32 v{vX+2*a}, v{vDP}, v{vDP+1}', f'v_cvt_pk_bf16_f32 v{vX+2*a+1}, v{vDP+2}, v{vDP+3}']
    if flag:
        A(f'v_mov_b32 v{vT2}, s{sSTEP}')
        A(f's_mov_b64 exec, s[{sFLX}:{sFLX+1}]')
        A(f'buffer_store_dword v{vT2}, v{vL16H}, {srd(S_WS)}, s{sFLA} offen sc1')
        A('s_mov_b64 exec, -1')
    cnt = 0
    for a in range(2):
        for ks in range(2, 8):
            if a == 0: lg.wait(('fr', ks))
            for m in 'kq':
                o = (m, a, ks)
                smf(acc_of(m, a), vFR + 4 * ks, o)
                if LOC[o][0] == 'lds':
                    stage(nstaged); nstaged += 1
                cnt += 1
                if cnt == 14: bg = post_qk_list(0)
                if cnt == 22: bg += post_qk2_list(0)
                if bg: A(bg.pop(0))
    assert not bg
    P(3)
    vops = [('v', a, ks) for ks in range(2, 8) for a in range(2)]
    vi = [0]
    def vstep(n=1):
        for _ in range(n):
            if vi[0] >= 12: return
            o = vops[vi[0]]; vi[0] += 1
            smf(vVA + 4 * o[1], vFR + 4 * o[2], o)
    VS = [o[3:] for o in opt if o.startswith('vs_')]
    VS = [int(c) for c in (VS[0] if VS else '12135')]
    vstep(VS[0])
    for i_ in post_qk_list(1): A(i_)
    vstep(VS[1])
    for i_ in post_qk2_list(1): A(i_)
    vS = vQK
    A(f'v_mfma_f32_16x16x32_bf16 {vr(vS,4)}, {vr(vKXR,4)}, {vr(vX,4)}, 0')
    A(f'v_mfma_f32_16x16x32_bf16 {vr(vS+4,4)}, {vr(vKXR+4,4)}, {vr(vX,4)}, 0')
    A(f'v_mfma_f32_16x16x32_bf16 {vr(vS+8,4)}, {vr(vX,4)}, {vr(vX,4)}, 0')
    vstep(VS[2])
    A(f's_add_u32 s{sT0}, s{sKMO}, {WS_KM}')
    A('s_mov_b64 exec, s[6:7]')
    A(f'ds_write_b128 v{vSW}, {vr(vS,4)}'); lg.issue()
    A(f'ds_write_b128 v{vSW}, {vr(vS+4,4)} offset:16'); lg.issue()
    A(f'ds_write_b64 v{vSW}, {vr(vS+8,2)} offset:32'); lg.issue()
    A('s_mov_b64 exec, s[4:5]')
    if 'nokm' not in opt: A(f'buffer_store_dwordx4 {vr(vX,4)}, v{vKM}, {srd(S_WS)}, s{sT0} offen sc1')
    A('s_mov_b64 exec, -1')
    vstep(VS[3])
    lg.all()
    A('s_barrier')
    P(4)
    E = [vS, vS + 4, vS + 8, vKXR]
    Em = [vS + 12, vS + 13, vS + 14, vS + 15]
    for w in range(4):
        A(f'ds_read_b128 {vr(E[w],4)}, v{vSR} offset:{1536*w}'); lg.issue(('e', w))
    for w in range(4):
        A(f'ds_read_b32 v{Em[w]}, v{vSR2} offset:{1536*w}'); lg.issue(('em', w))
    vstep(VS[4])
    lg.wait(('e', 1))
    for r in (0, 2): A(f'v_pk_add_f32 v[{E[0]+r}:{E[0]+r+1}], v[{E[0]+r}:{E[0]+r+1}], v[{E[1]+r}:{E[1]+r+1}]')
    vstep(1)
    lg.wait(('e', 3))
    for r in (0, 2): A(f'v_pk_add_f32 v[{E[2]+r}:{E[2]+r+1}], v[{E[2]+r}:{E[2]+r+1}], v[{E[3]+r}:{E[3]+r+1}]')
    vstep(1)
    lg.wait(('em', 3))
    A(f'v_pk_add_f32 v[{Em[0]}:{Em[1]}], v[{Em[0]}:{Em[1]}], v[{Em[2]}:{Em[3]}]')
    for r in (0, 2): A(f'v_pk_add_f32 v[{E[0]+r}:{E[0]+r+1}], v[{E[0]+r}:{E[0]+r+1}], v[{E[2]+r}:{E[2]+r+1}]')
    vstep(1)
    e4 = vS + 4
    A(f'v_add_f32 v{e4}, v{Em[0]}, v{Em[1]}')
    vM = vTMP; vM2 = vTMP + 1
    A(f'v_max3_f32 v{vM}, v{vS}, v{vS+1}, v{vS+2}'); A(f'v_max3_f32 v{vM}, v{vM}, v{vS+3}, v{e4}')
    vstep(1)
    stage(nstaged); nstaged += 1
    A(f'v_max_f32_dpp v{vM}, v{vM}, v{vM} {QP}')
    A(f'v_mov_b32 v{vM2}, v{vM}')
    vstep(1)
    assert vi[0] == 12, vi
    stage(nstaged); nstaged += 1
    A(f'v_permlane16_swap_b32 v{vM}, v{vM2}')
    A(f'v_max_f32 v{vM}, v{vM}, v{vM2}')
    A(f'v_mov_b32 v{vM2}, v{vM}')
    A(f'v_permlane32_swap_b32 v{vM}, v{vM2}')
    A(f'v_max_f32 v{vM}, v{vM}, v{vM2}')
    A(f'v_mul_f32 v{vM}, s{sT2}, v{vM}')
    for r in range(5): A(f'v_fma_f32 v{vS+r}, v{vS+r}, s{sT2}, -v{vM}')
    for r in range(5): A(f'v_exp_f32 v{vS+r}, v{vS+r}')
    A(hadd(vVA)); A(hadd(vVA + 4))
    vPx = vTMP
    vVM0 = vTMP + 4
    for a in range(2):
        b = vVA + 4 * a
        A(f'v_cvt_pk_bf16_f32 v{vVM0+2*a}, v{b}, v{b+1}'); A(f'v_mov_b32 v{vVM0+2*a+1}, 0')
    A(f'v_cvt_pk_bf16_f32 v{vPx}, v{vS}, v{vS+1}'); A(f'v_cvt_pk_bf16_f32 v{vPx+1}, v{vS+2}, v{vS+3}')
    A(f'v_mov_b32_dpp v{e4+1}, v{e4} {QP}')
    A(f'v_mov_b32 v{vS+13}, 0')
    A(f'v_mov_b32_dpp v{vPx+2}, v{vPx} {QP}'); A(f'v_mov_b32_dpp v{vPx+3}, v{vPx+1} {QP}')
    A(f'v_cvt_pk_bf16_f32 v{vS+12}, v{e4}, v{e4+1}')
    vO = vS
    A(f's_add_u32 s{sT0}, s{sKMO}, {WS_VMT}')
    A(f'v_mfma_f32_16x16x32_bf16 {vr(vS+8,4)}, {vr(vSEL,4)}, {vr(vPx,4)}, 0')
    for a in range(2):
        A(f'v_mfma_f32_16x16x32_bf16 {vr(vO+4*a,4)}, {vr(vVXR+4*a,4)}, {vr(vPx,4)}, 0')
    if 'novm' not in opt:
        A(f'buffer_store_dword v{vVM0}, v{vVM}, {srd(S_WS)}, s{sT0} offen sc1')
        A(f'buffer_store_dword v{vVM0+2}, v{vVM}, {srd(S_WS)}, s{sT0} offen offset:64 sc1')
    A(f's_cmp_eq_u32 s{sSTEP}, {nsteps-1}')
    A(f's_cbranch_scc1 {L("done")}')
    A(f'v_mfma_f32_16x16x16_bf16 {vr(vS+8,4)}, {vr(vSEL,2)}, {vr(vS+12,2)}, {vr(vS+8,4)}')
    for a in range(2):
        A(f'v_mfma_f32_16x16x16_bf16 {vr(vO+4*a,4)}, {vr(vVM0+2*a,2)}, {vr(vS+12,2)}, {vr(vO+4*a,4)}')
    zero(vFR, 8)
    vL = vT2; vL2 = vT2 + 1
    A(f'v_rcp_f32 v{vL}, v{vS+8}')
    zero(vFR + 8, 2)
    A(f'v_mov_b32 v{vL2}, v{vL}')
    zero(vFR + 10, 4)
    A(f'v_permlane32_swap_b32 v{vL}, v{vL2}')
    for r in range(0, 8, 2): A(f'v_pk_mul_f32 v[{vO+r}:{vO+r+1}], v[{vO+r}:{vO+r+1}], v[{vL}:{vL+1}] op_sel:[0,1] op_sel_hi:[1,1]')
    for r in range(4): A(f'v_cvt_pk_bf16_f32 v{vTMP+r}, v{vO+2*r}, v{vO+2*r+1}')
    A('s_mov_b64 exec, s[6:7]')
    A(f'ds_write_b128 v{vOW}, {vr(vTMP,4)}')
    A('s_mov_b64 exec, -1')
    vWA = vFR
    zero(vFR + 14, 10)
    A('s_waitcnt lgkmcnt(0)'); lg.q = []
    A('s_barrier')
    P(5)
    vOF = vQK
    A(f'ds_read_b128 {vr(vOF,4)}, v{vL16H} offset:{LDS_O-LDS_MEM}'); lg.issue('of0')
    A(f'ds_read_b128 {vr(vOF+4,4)}, v{vL16H} offset:{LDS_O-LDS_MEM+1024}'); lg.issue('of1')
    zero(vFR + 24, 8)
    A(f's_add_u32 s{sT0}, s{sVXO}, 32768')
    lg.wait('of0')
    vPK = vVA
    def post_o(a):
        b = vWA + 4 * a
        return [hadd(b), f'v_cvt_pk_bf16_f32 v{vPK+a}, v{b}, v{b+1}', f'v_bfi_b32 v{vPK+a}, 1, s{sTAG}, v{vPK+a}']
    bg = []
    WO = [o[3:] for o in opt if o.startswith('wo_')]
    WO = WO[0] if WO else 'a'
    for a in range(8):
        for ks in range(2):
            if a == 0 and ks == 1: lg.wait('of1')
            o = ('o', a, ks)
            smf(vWA + 4 * a, vOF + 4 * ks, o)
            if LOC[o][0] == 'lds':
                stage(nstaged); nstaged += 1
            if WO == 'b' and ks == 1 and a >= 1: bg += post_o(a - 1)
            for _ in range((1 + ks) if WO == 'a' else (3 if ks == 1 else 0)):
                if bg: A(bg.pop(0))
        if WO == 'a' and a >= 1: bg += post_o(a - 1)
        if a == (5 if WO == 'a' else 4): A(f'buffer_store_dwordx4 {vr(vPK,4)}, v{vPST}, {srd(S_WS)}, s{sVXO} offen{X}')
    for i_ in bg + post_o(7): A(i_)
    A(f'buffer_store_dwordx4 {vr(vPK+4,4)}, v{vPST}, {srd(S_WS)}, s{sT0} offen{X}')
    P(6)
    A(f's_add_u32 s{sT0}, s{sVXO}, 4096')
    B1 = [int(o[3:]) for o in opt if o.startswith('b1_')] or [99]
    if not B1:
        A(f'buffer_load_dwordx4 {vr(vPB,4)}, v{vPLD}, {srd(S_WS)}, s{sVXO} offen sc1')
        A(f'buffer_load_dwordx4 {vr(vPB+4,4)}, v{vPLD}, {srd(S_WS)}, s{sT0} offen sc1')
    for i in range(NSTG): stage(i)
    lg.q = []
    zero(vQK, 16)
    A(f's_add_u32 s{sMNXT}, s{sMCUR}, 8192'); A(f's_and_b32 s{sMNXT}, s{sMNXT}, 32767'); A(f's_add_u32 s{sMNXT}, s{sMNXT}, {WS_MX}')
    if not B1: A(f's_branch {L("poll1c")}')
    elif B1[0] == 99: A('s_waitcnt vmcnt(0)')
    elif B1[0]: A(f's_sleep {B1[0]}')
    A.label(L('poll1'))
    A(f'buffer_load_dwordx4 {vr(vPB,4)}, v{vPLD}, {srd(S_WS)}, s{sVXO} offen sc1')
    A(f'buffer_load_dwordx4 {vr(vPB+4,4)}, v{vPLD}, {srd(S_WS)}, s{sT0} offen sc1')
    A.label(L('poll1c'))
    A('s_waitcnt vmcnt(0)')
    tt = 0
    for a_ in range(2):
        for b_ in range(2):
            for t_ in range(2):
                if (a_ ^ t_) | (b_ ^ t_): tt |= 1 << (a_ * 4 + b_ * 2 + t_)
    for i in range(4): A(f'v_bitop3_b32 v{vTMP+i}, v{vPB+2*i}, v{vPB+2*i+1}, s{sTAG} bitop3:{tt}')
    A(f'v_or3_b32 v{vTMP}, v{vTMP}, v{vTMP+1}, v{vTMP+2}')
    A(f'v_bitop3_b32 v{vTMP}, v{vTMP}, v{vTMP+3}, 1 bitop3:0xa8')
    A(f'v_cmp_ne_u32 vcc, 0, v{vTMP}')
    A('s_mov_b64 exec, vcc')
    A(f's_cbranch_execnz {L("poll1")}')
    A('s_mov_b64 exec, -1')
    P(7)
    vR = vTMP
    A(f'v_mfma_f32_16x16x32_bf16 {vr(vR,4)}, {vr(vSEL,4)}, {vr(vPB,4)}, 0')
    A(f'v_mfma_f32_16x16x32_bf16 {vr(vR,4)}, {vr(vSEL,4)}, {vr(vPB+4,4)}, {vr(vR,4)}')
    zero(vVA, 8)
    kvread()
    A(f'v_mov_b32 v{vR+6}, -1')
    for r in range(4): A(f'v_add_f32_dpp v{vR+r}, v{vR+r}, v{vR+r} row_ror:4 row_mask:0xf bank_mask:0xf')
    for r in range(4): A(f'v_add_f32_dpp v{vR+r}, v{vR+r}, v{vR+r} row_ror:8 row_mask:0xf bank_mask:0xf')
    A(f'v_cvt_pk_bf16_f32 v{vR+4}, v{vR}, v{vR+2}'); A(f'v_cvt_pk_bf16_f32 v{vR+5}, v{vR+1}, v{vR+3}')
    A(f'v_min_u32 v{vR+4}, -2, v{vR+4}'); A(f'v_min_u32 v{vR+5}, -2, v{vR+5}')
    A('s_mov_b64 exec, 0xf000f')
    A(f'buffer_store_dword v{vR+4}, v{vMPUB}, {srd(S_WS)}, s{sMNXT} offen{X}')
    A(f'buffer_store_dword v{vR+5}, v{vMPUB}, {srd(S_WS)}, s{sMNXT} offen offset:16{X}')
    A(f'buffer_store_dword v{vR+6}, v{vMPUB}, {srd(S_WS)}, s{sMCUR} offen{X}')
    A(f'buffer_store_dword v{vR+6}, v{vMPUB}, {srd(S_WS)}, s{sMCUR} offen offset:16{X}')
    A('s_mov_b64 exec, -1')
    if kvwait:
        A(f's_cmp_lt_u32 s{sRDY}, 16'); A(f's_cbranch_scc1 {L("rdy2")}')
        A.label(L('rdy2b'))
    P(8)
    A(f's_mov_b32 s{sMCUR}, s{sMNXT}')
    A(f's_xor_b32 s{sTAG}, s{sTAG}, 1')
    A(f's_add_u32 s{sKMO}, s{sKMO}, 65536')
    A(f's_add_u32 s{sSTEP}, s{sSTEP}, 1')
    if prof is not None:
        A('s_memrealtime s[98:99]')
        A('s_waitcnt lgkmcnt(0)')
        A(f'v_writelane_b32 v{vTMP}, s98, 9')
        for i in range(9): A(f'v_writelane_b32 v{vTMP}, s{prof+2*i}, {i}')
        A(f's_lshl_b32 s{sT0}, s{sH}, 2'); A(f's_add_u32 s{sT0}, s{sT0}, s{sW}'); A(f's_lshl_b32 s{sT0}, s{sT0}, 6'); A(f's_add_u32 s{sT0}, s{sT0}, s{sSTEP}'); A(f's_lshl_b32 s{sT0}, s{sT0}, 6')
        A(f's_add_u32 s{sT0}, s{sT0}, {120*MB}')
        A(f'v_mbcnt_lo_u32_b32 v{vTMP+1}, -1, 0'); A(f'v_lshlrev_b32 v{vTMP+1}, 2, v{vTMP+1}')
        A('s_mov_b64 exec, 0xffff')
        A(f'buffer_store_dword v{vTMP}, v{vTMP+1}, {srd(S_WS)}, s{sT0} offen')
        A('s_mov_b64 exec, -1')
    A(f's_branch {L("step")}')
    if kvwait:
        A.label(L('rdy1'))
        A(f'v_mbcnt_lo_u32_b32 v{vNEG1}, -1, 0'); A(f'v_lshlrev_b32 v{vNEG1}, 2, v{vNEG1}')
        A('s_mov_b64 exec, 0xffff')
        A(f'buffer_load_dword v{vNEG1}, v{vNEG1}, {srd(S_DBG)}, 0 offen offset:{4*DBG_KV} sc1')
        A('s_mov_b64 exec, -1')
        A(f's_branch {L("rdy1b")}')
        A.label(L('rdy2'))
        A('s_mov_b64 exec, 0xffff')
        A(f'v_and_b32 v{vNEG1}, 0xffff, v{vNEG1}')
        A(f'v_cmp_gt_u32 vcc, 32, v{vNEG1}')
        A(f's_or_b32 s{sT1}, vcc_lo, 0x10000')
        A(f's_ff1_i32_b32 s{sT1}, s{sT1}')
        A(f's_max_u32 s{sRDY}, s{sRDY}, s{sT1}')
        A('s_mov_b64 exec, -1')
        A(f's_branch {L("rdy2b")}')
    A.label(L('done'))
    A('s_waitcnt vmcnt(0)')
    A('s_barrier')
    if flag:
        fl = A.newlabel('L_nofl')
        A(f's_cmp_lg_u32 s{sW}, 0'); A(f's_cbranch_scc1 {fl}')
        A(f'v_mov_b32 v{vT2}, {nsteps}')
        A(f's_lshl_b32 s{sT0}, s{sH}, 7'); A(f's_add_u32 s{sT0}, s{sT0}, {WS_PROG}'); A(f'v_mov_b32 v{vT2+1}, s{sT0}')
        A('s_mov_b64 exec, 1')
        A(f'buffer_store_dword v{vT2}, v{vT2+1}, {srd(S_WS)}, 0 offen sc1')
        A('s_mov_b64 exec, -1')
        A('s_waitcnt vmcnt(0)')
        A.label(fl)
    A('v_mbcnt_lo_u32_b32 v0, -1, 0'); A('v_mbcnt_hi_u32_b32 v0, -1, v0')
    A(f's_lshl_b32 s{sT0}, s{sW}, 6'); A(f'v_add_u32 v0, s{sT0}, v0')

def kvwait(A, first):
    l = A.newlabel('L_kvw'); l2 = A.newlabel('L_kvd')
    if first:
        A(f's_mov_b32 s{sRDY}, 0')
        A(f'v_mov_b32 v{vT2+1}, {4*DBG_CQ}')
        A.label(l)
        A(f'buffer_load_dword v{vT2}, v{vT2+1}, {srd(S_DBG)}, 0 offen sc1')
        A('s_waitcnt vmcnt(0)')
        A(f'v_cmp_gt_u32 vcc, 32, v{vT2}')
        A(f's_cbranch_vccnz {l}')
        return
    A(f's_add_u32 s{sT1}, s{sSTEP}, 1'); A(f's_lshr_b32 s{sT1}, s{sT1}, 2')
    A(f's_cmp_lt_u32 s{sT1}, s{sRDY}'); A(f's_cbranch_scc1 {l2}')
    A(f's_cmp_ge_u32 s{sT1}, 16'); A(f's_cbranch_scc1 {l2}')
    A(f's_cmp_eq_u32 s{sSTEP}, 0'); A(f's_cbranch_scc1 {l2}')
    A(f'v_mbcnt_lo_u32_b32 v{vT2+1}, -1, 0'); A(f'v_lshlrev_b32 v{vT2+1}, 2, v{vT2+1}')
    A('s_mov_b64 exec, 0xffff')
    A.label(l)
    A(f'buffer_load_dword v{vT2}, v{vT2+1}, {srd(S_DBG)}, 0 offen offset:{4*DBG_KV} sc1')
    A('s_waitcnt vmcnt(0)')
    A(f'v_and_b32 v{vT2}, 0xffff, v{vT2}')
    A(f'v_cmp_gt_u32 vcc, 32, v{vT2}')
    A(f's_or_b32 s{sRDY}, vcc_lo, 0x10000')
    A(f's_ff1_i32_b32 s{sRDY}, s{sRDY}')
    A(f's_cmp_lt_u32 s{sT1}, s{sRDY}'); A(f's_cbranch_scc0 {l}')
    A('s_mov_b64 exec, -1')
    A.label(l2)
```

```python
from asmlib import *
from common import *
import math

sW, sH, sSTEP, sPSL, sMCUR, sMNXT, sT0, sT1, sT2, sKXO, sVXO, sKMO, sMODE, sT3 = range(56, 70)
sRDY = 70
vIDX = 1; vID = 2; vSEL = 4
vL16H, vHOME, vMP, vPST, vPLD, vMPUB, vKX, vVX, vKM, vVM, vSW, vSR, vOW = range(8, 21)
vNEG1 = 21
vFR = 24
vQK = 56
vVA = 72
vSTG = 80
vKXR = 104
vVXR = 112
vTMP = 120
vT2 = 22
vSR2T = 119
vSR2 = 0
LDS_MEM = 131072
LDS_SX = LDS_MEM + 8192
LDS_O = LDS_SX + 6144
LDS_KV = LDS_O + 2048
LDS_MISC = LDS_SX
NSTG = 3
assert LDS_KV + 16384 == 163840
vPB = vFR
sFO = 90
sFLA = 71
sFLX = 90

def vr(b, n): return f'v[{b}:{b+n-1}]'

def operand_order():
    ops = []
    for i in range(2):
        for m, a in (('k', 0), ('q', 0), ('k', 1), ('q', 1), ('v', 0), ('v', 1)): ops.append((m, a, i))
    for a in range(2):
        for i in range(2, 8):
            ops.append(('k', a, i)); ops.append(('q', a, i))
    for i in range(2, 8):
        ops.append(('v', 0, i)); ops.append(('v', 1, i))
    for a in range(8):
        for ks in range(2):
            ops.append(('o', a, ks))
    return ops
OPS = operand_order()
HOMED = [3, 7, 11] + [15, 19, 23, 27, 31, 35] + [36, 38] + [48 + i for i in (1, 4, 7, 10, 13)]
assert len(HOMED) == 16
LOC = {}
_r = 0
for i, o in enumerate(OPS):
    if i in HOMED:
        _qs = [j for j in HOMED if OPS[j][0] == 'q']; _os = [j for j in HOMED if OPS[j][0] != 'q']
        assert len(_qs) == 8
        LOC[o] = ('lds', _qs.index(i) if o[0] == 'q' else 8 + _os.index(i))
    else:
        LOC[o] = ('a', 8 * _r) if _r < 32 else ('v', 128 + 8 * (_r - 32))
        _r += 1
assert _r == 48

class Cnt:
    def __init__(self, A, name, maxv): self.A = A; self.name = name; self.maxv = maxv; self.q = []
    def issue(self, tag=None): self.q.append(tag)
    def wait(self, tag):
        if tag not in self.q: return
        idx = len(self.q) - 1 - self.q[::-1].index(tag)
        n = len(self.q) - 1 - idx
        n = min(n, self.maxv)
        self.A(f's_waitcnt {self.name}({n})')
        self.q = self.q[len(self.q) - n:] if n else []
    def all(self):
        self.A(f's_waitcnt {self.name}(0)'); self.q = []

def gen_setup(A):
    A('s_mov_b32 s4, 0x33333333'); A('s_mov_b32 s5, 0x33333333'); A('s_mov_b32 s6, 0xcccccccc'); A('s_mov_b32 s7, 0xcccccccc')
    A('v_and_b32 v120, 63, v0            ; lane')
    A('v_and_b32 v121, 15, v120          ; n = lane%16')
    A('v_lshrrev_b32 v122, 4, v120       ; g = lane/16')
    A(f'v_mov_b32 v{vNEG1}, -1')
    A('v_and_b32 v123, 2, v121')
    A('v_cmp_eq_u32 vcc, 0, v123')
    A(f'v_mov_b32 v124, 0xeeeeeeee')
    A(f'v_mov_b32 v125, 0x44444444')
    A(f'v_cndmask_b32 v{vIDX}, v124, v125, vcc')
    A('v_lshrrev_b32 v123, 2, v121')
    A('v_and_b32 v124, 3, v121           ; e')
    A('v_and_b32 v125, 1, v124')
    A('v_lshlrev_b32 v125, 4, v125       ; shift 0/16')
    A('v_mov_b32 v126, 0x3f80')
    A('v_lshlrev_b32 v126, v125, v126')
    A('v_cmp_eq_u32 vcc, v123, v122')
    A('v_cndmask_b32 v126, 0, v126, vcc')
    A('v_cmp_gt_u32 vcc, 2, v124')
    A(f'v_cndmask_b32 v{vID}, 0, v126, vcc')
    A(f'v_cndmask_b32 v{vID+1}, v126, 0, vcc')
    A('v_and_b32 v125, 1, v121')
    A('v_lshlrev_b32 v125, 4, v125')
    A('v_mov_b32 v126, 0x3f80')
    A('v_lshlrev_b32 v126, v125, v126')
    A('v_lshrrev_b32 v123, 1, v121       ; m/2 (0..7)')
    for r in range(4):
        A(f'v_cmp_eq_u32 vcc, {r}, v123')
        A(f'v_cndmask_b32 v{vSEL+r}, 0, v126, vcc')
    A(f'v_lshlrev_b32 v123, 4, v120      ; lane*16')
    A(f'v_add_u32 v{vL16H}, {LDS_MEM}, v123')
    A(f's_lshl_b32 s{sT0}, s{sW}, 15')
    A(f'v_add_u32 v{vHOME}, s{sT0}, v123')
    A(f's_lshl_b32 s{sT0}, s{sW}, 11')
    A(f'v_add_u32 v{vMP}, s{sT0}, v{vL16H}')
    A('v_lshrrev_b32 v123, 2, v121       ; q')
    A('v_and_b32 v124, 3, v121           ; e')
    A(f's_lshl_b32 s{sT0}, s{sW}, 16'); A(f's_lshl_b32 s{sT1}, s{sH}, 8'); A(f's_add_u32 s{sT0}, s{sT0}, s{sT1}')
    A('v_lshlrev_b32 v125, 13, v123'); A('v_lshlrev_b32 v126, 6, v122'); A('v_lshlrev_b32 v127, 4, v124')
    A(f'v_add3_u32 v{vPST}, v125, v126, v127'); A(f'v_add_u32 v{vPST}, s{sT0}, v{vPST}')
    A(f's_lshl_b32 s{sT0}, s{sH}, 13'); A(f's_lshl_b32 s{sT1}, s{sW}, 6'); A(f's_add_u32 s{sT0}, s{sT0}, s{sT1}')
    A('v_lshlrev_b32 v125, 10, v123'); A('v_lshlrev_b32 v126, 8, v122')
    A(f'v_add3_u32 v{vPLD}, v125, v126, v127'); A(f'v_add_u32 v{vPLD}, s{sT0}, v{vPLD}')
    A(f's_lshl_b32 s{sT0}, s{sH}, 8'); A(f's_lshl_b32 s{sT1}, s{sW}, 6'); A(f's_add_u32 s{sT0}, s{sT0}, s{sT1}')
    A('v_lshlrev_b32 v125, 5, v122'); A('v_lshlrev_b32 v126, 2, v121')
    A(f'v_add3_u32 v{vMPUB}, v125, v126, s{sT0}')
    A('v_lshlrev_b32 v126, 4, v120')
    A(f's_lshl_b32 s{sT0}, s{sH}, 14'); A(f's_lshl_b32 s{sT1}, s{sW}, 12'); A(f's_add_u32 s{sT0}, s{sT0}, s{sT1}')
    A(f'v_add_u32 v{vKX}, s{sT0}, v126')
    A(f's_add_u32 s{sT1}, s{sT1}, {LDS_KV}')
    A(f'v_add_u32 v{vVX}, s{sT1}, v126')
    A('v_lshlrev_b32 v125, 3, v123'); A('v_add_u32 v125, v125, v124   ; 8(m/4)+m%4')
    A('v_lshlrev_b32 v127, 4, v125'); A('v_lshlrev_b32 v126, 2, v122')
    A(f's_lshl_b32 s{sT0}, s{sH}, 11'); A(f's_lshl_b32 s{sT1}, s{sW}, 9'); A(f's_add_u32 s{sT0}, s{sT0}, s{sT1}')
    A(f'v_add3_u32 v{vVM}, v127, v126, s{sT0}')
    A('v_and_b32 v125, 1, v121'); A('v_lshl_add_u32 v125, v123, 1, v125   ; t')
    A('v_lshlrev_b32 v127, 8, v125'); A('v_lshlrev_b32 v126, 4, v122')
    A(f's_lshl_b32 s{sT0}, s{sH}, 11'); A(f's_lshl_b32 s{sT1}, s{sW}, 6'); A(f's_add_u32 s{sT0}, s{sT0}, s{sT1}')
    A(f'v_add3_u32 v{vKM}, v127, v126, s{sT0}')
    A('v_lshrrev_b32 v126, 1, v122'); A('v_lshlrev_b32 v126, 8, v126    ; (g/2)*256')
    A('v_and_b32 v127, 1, v122'); A('v_lshlrev_b32 v127, 5, v127     ; half*32')
    A('v_and_b32 v125, 1, v121'); A('v_lshlrev_b32 v125, 4, v125'); A('v_lshl_add_u32 v125, v123, 6, v125   ; (n/4)*64 + (n&1)*16')
    A(f'v_add3_u32 v{vOW}, v125, v126, v127')
    A(f's_lshl_b32 s{sT0}, s{sW}, 9'); A(f's_add_u32 s{sT0}, s{sT0}, {LDS_O}')
    A(f'v_add_u32 v{vOW}, s{sT0}, v{vOW}')
    A('v_lshrrev_b32 v125, 2, v120'); A('v_and_b32 v126, 1, v120'); A('v_lshl_add_u32 v125, v125, 1, v126')
    A('v_mul_u32_u24 v125, 48, v125')
    A(f's_mul_i32 s{sT0}, s{sW}, 1536'); A(f's_add_u32 s{sT0}, s{sT0}, {LDS_SX}')
    A(f'v_add_u32 v{vSW}, s{sT0}, v125')
    A('v_and_b32 v126, 2, v121')
    A('v_cmp_eq_u32 vcc, 0, v126')
    A(f'v_mov_b32 v126, {LDS_SX}'); A(f'v_mov_b32 v127, {LDS_SX + 16}')
    A('v_cndmask_b32 v126, v126, v127, vcc')
    A(f'v_add_u32 v{vSR}, v125, v126')
    A(f'v_mov_b32 v126, {LDS_SX + 32}'); A(f'v_mov_b32 v127, {LDS_SX + 36}')
    A('v_cndmask_b32 v126, v126, v127, vcc')
    A(f'v_add_u32 v{vSR2T}, v125, v126')

def gen_load_weights(A, mid_at=None, mid=None):
    A('v_and_b32 v120, 63, v0'); A('v_and_b32 v121, 15, v120'); A('v_lshrrev_b32 v122, 4, v120')
    vD = 24
    vDO = 28
    vTQ = 32
    vTO = 33
    vTT = 40
    vW2 = 36
    vDT = 72
    for i in range(4):
        A(f'v_xor_b32 v123, {i << 2}, v121')
        A('v_lshlrev_b32 v123, 4, v123')
        A(f'v_add_u32 v124, {4 * i}, v122')
        A('v_lshlrev_b32 v124, 13, v124')
        A(f's_lshl_b32 s{sT0}, s{sW}, 17'); A(f's_lshl_b32 s{sT1}, s{sH}, 8'); A(f's_add_u32 s{sT0}, s{sT0}, s{sT1}')
        A(f'v_add3_u32 v{vD+i}, v123, v124, s{sT0}')
        A(f'v_lshrrev_b32 v{vW2+i}, 6, v123'); A(f'v_lshlrev_b32 v{vW2+i}, 1, v{vW2+i}')
    for i in range(4):
        sw = (i & 1) | ((i >> 1) << 3)
        A(f'v_xor_b32 v123, {sw}, v121')
        A('v_lshrrev_b32 v125, 3, v123       ; u')
        A('v_and_b32 v123, 7, v123')
        A('v_lshlrev_b32 v123, 4, v123')
        A('v_lshl_add_u32 v123, v125, 8, v123')
        A(f'v_add_u32 v124, {4 * i}, v122')
        A('v_lshlrev_b32 v124, 10, v124')
        A(f's_lshl_b32 s{sT0}, s{sW}, 14'); A(f's_lshl_b32 s{sT1}, s{sH}, 17'); A(f's_add_u32 s{sT0}, s{sT0}, s{sT1}')
        A(f'v_add3_u32 v{vDO+i}, v123, v124, s{sT0}')
    A('v_lshrrev_b32 v123, 2, v121    ; r'); A('v_and_b32 v124, 3, v121   ; q')
    A('v_lshrrev_b32 v125, 1, v122'); A('v_lshlrev_b32 v125, 4, v125'); A('v_and_b32 v126, 1, v122'); A('v_lshlrev_b32 v126, 1, v126')
    A('v_lshlrev_b32 v127, 2, v123    ; 4r = 8(r/2)+4(r%2)')
    A('v_add3_u32 v125, v125, v126, v127   ; row')
    A(f's_lshl_b32 s{sT0}, s{sW}, 2')
    A(f'v_add_u32 v126, s{sT0}, v124      ; chunk = 4w+q')
    A('v_xor_b32 v126, v126, v127         ; ^ (r<<2)')
    A('v_lshlrev_b32 v126, 4, v126')
    A(f'v_lshl_add_u32 v{vTQ}, v125, 8, v126')
    A(f'v_add_u32 v{vTQ}, {LDS_MEM}, v{vTQ}')
    A('v_and_b32 v126, 1, v122    ; g%2'); A('v_lshrrev_b32 v127, 1, v123   ; r/2')
    A('v_lshrrev_b32 v125, 1, v122'); A('v_lshlrev_b32 v125, 4, v125')
    A('v_lshl_add_u32 v125, v126, 2, v125'); A('v_lshl_add_u32 v125, v127, 3, v125')
    A('v_and_b32 v34, 1, v123'); A('v_add_u32 v125, v125, v34     ; row')
    A(f's_and_b32 s{sT0}, s{sW}, 1'); A(f's_lshl_b32 s{sT0}, s{sT0}, 3')
    A(f'v_lshlrev_b32 v34, 1, v124'); A(f'v_add_u32 v34, s{sT0}, v34    ; 8u+2q')
    A('v_lshl_add_u32 v126, v127, 3, v126   ; swz')
    A('v_xor_b32 v34, v34, v126')
    A('v_lshlrev_b32 v34, 4, v34')
    A(f'v_lshl_add_u32 v{vTO}, v125, 8, v34')
    A(f'v_add_u32 v{vTO}, {LDS_MEM}, v{vTO}')
    A(f'v_xor_b32 v{vTO+1}, 16, v{vTO}')
    chunks = [('k', ks) for ks in range(8)] + [('o', c) for c in range(8)] + [('v', ks) for ks in range(8)] + [('q', ks) for ks in range(8)]
    NCH = len(chunks)
    BUFS = [LDS_MEM, LDS_MEM + 16384, 0, 32768, 65536, 98304]
    bufof = [BUFS[ci % 6] if ci < 24 else BUFS[ci % 2] for ci in range(NCH)]
    vB = 76
    for j, v in enumerate((vTQ, vTO, vTO + 1)):
        A(f'v_subrev_u32 v{vB+2*j}, {LDS_MEM}, v{v}'); A(f'v_add_u32 v{vB+2*j+1}, 65536, v{vB+2*j}')
    def base_off(which, buf):
        j = {vTQ: 0, vTO: 1, vTO + 1: 2}[which]
        if buf >= LDS_MEM: return which, buf - LDS_MEM
        if buf >= 65536: return vB + 2 * j + 1, buf - 65536
        return vB + 2 * j, buf
    def dma(ci):
        m, x = chunks[ci]
        buf = bufof[ci]
        for i in range(4):
            A(f's_lshl_b32 s{sT0}, s{sW}, 12')
            A(f's_add_u32 m0, s{sT0}, {buf + 1024 * i}')
            if m != 'o':
                S = {'q': S_WQ, 'k': S_WK, 'v': S_WV}[m]
                A(f's_mov_b32 s{sT1}, {x * 64 * 8192}')
                A(f'buffer_load_dwordx4 v{vD+i}, {srd(S)}, s{sT1} offen lds')
            else:
                ks, ah, wp = x >> 2, (x >> 1) & 1, x & 1
                A(f's_mov_b32 s{sT1}, {ks * 65536 + wp * 512 + ah * 128}')
                A(f'buffer_load_dwordx4 v{vDO+i}, {srd(S_WO)}, s{sT1} offen lds')
    def dest(o, tmpi):
        k, b = LOC[o]
        if k == 'lds': return 'v', vTT + 8 * tmpi
        return k, b
    issued = 0
    def can_issue(j, consumed):
        return all(bufof[p] != bufof[j] for p in range(consumed, j))
    def pump(consumed):
        nonlocal issued
        while issued < NCH and can_issue(issued, consumed):
            dma(issued); issued += 1
    pump(0)
    for ci, (m, x) in enumerate(chunks):
        A(f's_waitcnt vmcnt({4 * (issued - ci - 1)})')
        A('s_barrier')
        skip = None
        homed = []
        if m != 'o':
            vb, boff = base_off(vTQ, bufof[ci])
            lend = A.newlabel('L_wv')
            for wv in range(4):
                lnext = A.newlabel('L_wn')
                if wv < 3:
                    A(f's_cmp_lg_u32 s{sW}, {wv}'); A(f's_cbranch_scc1 {lnext}')
                hm = []
                for a in range(2):
                    o = (m, a, (x - 2 * wv) & 7)
                    k, b = dest(o, a)
                    if LOC[o][0] == 'lds': hm.append((o, b))
                    for p in range(4):
                        A(f'ds_read_b64_tr_b16 {k}[{b+2*p}:{b+2*p+1}], v{vb} offset:{boff + (p >> 1) * 8192 + (p & 1) * 256 + 8 * a}')
                if hm: A('s_waitcnt lgkmcnt(0)')
                for o, b in hm:
                    slot = LOC[o][1]
                    A(f'ds_write_b128 v{vHOME}, {vr(b, 4)} offset:{slot * 2048}')
                    A(f'ds_write_b128 v{vHOME}, {vr(b + 4, 4)} offset:{slot * 2048 + 1024}')
                if wv < 3:
                    A(f's_branch {lend}')
                    A.label(lnext)
            A.label(lend)
        else:
            ks, ah, wp = x >> 2, (x >> 1) & 1, x & 1
            skip = A.newlabel('L_wskip')
            A(f's_lshr_b32 s{sT0}, s{sW}, 1'); A(f's_cmp_lg_u32 s{sT0}, {wp}'); A(f's_cbranch_scc1 {skip}')
            for ap in range(4):
                o = ('o', 4 * ah + ap, ks)
                k, b = dest(o, ap)
                if LOC[o][0] == 'lds': homed.append((o, b))
                vb, boff = base_off(vTO + (ap >> 1), bufof[ci])
                for p in range(4):
                    A(f'ds_read_b64_tr_b16 {k}[{b+2*p}:{b+2*p+1}], v{vb} offset:{boff + (p >> 1) * 8192 + (p & 1) * 512 + 8 * (ap & 1)}')
        A('s_waitcnt lgkmcnt(0)')
        for o, b in homed:
            slot = LOC[o][1]
            A(f'ds_write_b128 v{vHOME}, {vr(b, 4)} offset:{slot * 2048}')
            A(f'ds_write_b128 v{vHOME}, {vr(b + 4, 4)} offset:{slot * 2048 + 1024}')
        if skip: A.label(skip)
        A('s_barrier')
        if ci == 23 and mid is not None: mid(A)
        pump(ci + 1)
        if ci == mid_at:
            l = A.newlabel('L_mid')
            A(f's_cmp_lg_u32 s{sW}, 3'); A(f's_cbranch_scc1 {l}')
            A('v_mov_b32 v120, 1'); A(f'v_mov_b32 v121, {4 * DBG_WTK}')
            A('s_mov_b64 exec, 1')
            A(f'buffer_atomic_add v120, v121, {srd(S_DBG)}, 0 offen')
            A('s_mov_b64 exec, -1')
            A('s_waitcnt vmcnt(0)')
            A.label(l)
    A('s_waitcnt lgkmcnt(0)')

def st_mode(A, ins):
    return ins

def gen_stores(A, lst, tag):
    l1 = A.newlabel('L_sslow'); l2 = A.newlabel('L_sdone')
    A(f's_cmp_lg_u32 s{sMODE}, 0'); A(f's_cbranch_scc1 {l1}')
    for s in lst: A(s)
    A(f's_branch {l2}')
    A.label(l1)
    for s in lst:
        A(s + ' sc1' if s.startswith('buffer_store') else s)
    A.label(l2)

def gen_init_exchange(A):
    for r in range(4): A(f'v_mov_b32 v{vTMP+r}, -1')
    lst = []
    for sl in range(1):
        for i in range(2):
            lst.append(f's_mov_b32 s{sT0}, {WS_PX + sl * 262144 + i * 4096}')
            lst.append(f'buffer_store_dwordx4 {vr(vTMP,4)}, v{vPLD}, {srd(S_WS)}, s{sT0} offen')
    lst.append('s_mov_b64 exec, 0xf000f')
    for sl in range(4):
        lst.append(f's_mov_b32 s{sT0}, {WS_MX + sl * 8192}')
        lst.append(f'buffer_store_dword v{vNEG1}, v{vMPUB}, {srd(S_WS)}, s{sT0} offen')
        lst.append(f'buffer_store_dword v{vNEG1}, v{vMPUB}, {srd(S_WS)}, s{sT0} offen offset:16')
    lst.append('s_mov_b64 exec, -1')
    gen_stores(A, lst, 'init')
    A(f's_lshl_b32 s{sT0}, s{sH}, 7'); A(f's_add_u32 s{sT0}, s{sT0}, {WS_PROG}'); A(f'v_mov_b32 v{vT2+1}, s{sT0}'); A(f'v_mov_b32 v{vT2}, 0')
    A(f'buffer_store_dword v{vT2}, v{vT2+1}, {srd(S_WS)}, 0 offen sc1')
    A('s_waitcnt vmcnt(0)')
    A('s_barrier')
    l = A.newlabel('L_noarr')
    A(f's_cmp_lg_u32 s{sW}, 0'); A(f's_cbranch_scc1 {l}')
    A(f'v_mov_b32 v{vTMP}, 1'); A(f'v_mov_b32 v{vTMP+1}, {4 * DBG_RINIT}')
    A('s_mov_b64 exec, 1')
    A(f'buffer_atomic_add v{vTMP}, v{vTMP+1}, {srd(S_DBG)}, 0 offen')
    A('s_mov_b64 exec, -1')
    A.label(l)

def gen_wait_init(A):
    l = A.newlabel('L_winit')
    A(f'v_mov_b32 v{vTMP+1}, {4 * DBG_RINIT}')
    A.label(l)
    A(f'buffer_load_dword v{vTMP}, v{vTMP+1}, {srd(S_DBG)}, 0 offen sc1')
    A('s_waitcnt vmcnt(0)')
    A(f'v_cmp_gt_u32 vcc, 32, v{vTMP}')
    A(f's_cbranch_vccnz {l}')

def gen_mem0(A):
    A('v_and_b32 v120, 63, v0'); A('v_and_b32 v121, 15, v120'); A('v_lshrrev_b32 v122, 4, v120')
    A('v_lshrrev_b32 v123, 2, v121'); A('v_and_b32 v124, 1, v121'); A('v_lshl_add_u32 v123, v123, 1, v124'); A('v_lshlrev_b32 v123, 10, v123')
    A('v_and_b32 v124, 2, v121'); A('v_lshlrev_b32 v124, 3, v124'); A('v_lshlrev_b32 v125, 5, v122')
    A('v_add3_u32 v123, v123, v124, v125')
    A(f's_lshl_b32 s{sT0}, s{sW}, 8')
    A(f'buffer_load_dwordx4 {vr(vFR+8,4)}, v123, {srd(S_MEM0)}, s{sT0} offen')
    A(f'buffer_load_dwordx4 {vr(vFR+12,4)}, v123, {srd(S_MEM0)}, s{sT0} offen offset:128')
    A('s_waitcnt vmcnt(0)')
    A(f's_mov_b32 s{sT0}, 0x05040100'); A(f's_mov_b32 s{sT1}, 0x07060302')
    for i in range(2):
        s = vFR + 8 + 4 * i; d = vPB + 4 * i
        A(f'v_perm_b32 v{d}, v{s+2}, v{s}, s{sT0}')
        A(f'v_perm_b32 v{d+1}, v{s+2}, v{s}, s{sT1}')
        A(f'v_perm_b32 v{d+2}, v{s+3}, v{s+1}, s{sT0}')
        A(f'v_perm_b32 v{d+3}, v{s+3}, v{s+1}, s{sT1}')


def gen_setup2(A):
    A('v_and_b32 v121, 15, v0')
    A('v_cmp_lt_u32 vcc, 7, v121')
    A('v_mov_b32 v122, 0x3f803f80')
    for r in range(4): A(f'v_cndmask_b32 v{vSEL+r}, v{vSEL+r}, v122, vcc')
    A(f'v_mov_b32 v{vSR2}, v{vSR2T}')

def gen_steps(A, mode, nsteps=64, prof=None, flag=True, opt=(), kvwait=None):
    X = '' if mode == 'f' else ' sc1'
    L = lambda n: f'L_rec{mode}_{n}'
    lg = Cnt(A, 'lgkmcnt', 15)
    SC = 128 ** -0.5 * math.log2(math.e)
    import struct
    SCBITS = struct.unpack('<I', struct.pack('<f', SC))[0]
    homed_seq = [OPS[i] for i in HOMED]
    slot_of = {o: i % NSTG for i, o in enumerate(homed_seq)}
    sTAG = sPSL
    QP = 'quad_perm:[2,3,0,1] row_mask:0xf bank_mask:0xf'
    def breg(o):
        k, b = LOC[o]
        if k == 'lds':
            b = vSTG + 8 * slot_of[o]
            return f'v[{b}:{b+7}]'
        return f'{k}[{b}:{b+7}]'
    def stage(i):
        if i >= len(homed_seq): return
        o = homed_seq[i]; b = vSTG + 8 * slot_of[o]; slot = LOC[o][1]
        A(f'ds_read_b128 {vr(b,4)}, v{vHOME} offset:{slot*2048}'); lg.issue()
        A(f'ds_read_b128 {vr(b+4,4)}, v{vHOME} offset:{slot*2048+1024}'); lg.issue(('stg', i))
    def smf(acc, areg, o):
        if LOC[o][0] == 'lds':
            lg.wait(('stg', homed_seq.index(o)))
        A(f'v_smfmac_f32_16x16x64_bf16 {vr(acc,4)}, {vr(areg,4)}, {breg(o)}, v{vIDX}')
    def P(i):
        if prof is not None: A(f's_memtime s[{prof+2*i}:{prof+2*i+1}]')
    def zero(b, n):
        for r in range(0, n, 2): A(f'v_mov_b64 v[{b+r}:{b+r+1}], 0')
    def kvdma(lst):
        A(f's_mov_b32 m0, s{sT3}')
        for i in lst:
            if 'nodma' in opt: continue
            A(f'buffer_load_dwordx4 v{vKX}, {srd(S_WS)}, s{sKXO} offen offset:{1024*i} sc1 lds')
    def kvread():
        for i in range(4): A(f'ds_read_b128 {vr(vKXR+4*i,4)}, v{vVX} offset:{1024*i}')
    def hadd(b): return f'v_pk_add_f32 v[{b}:{b+1}], v[{b}:{b+1}], v[{b+2}:{b+3}]'
    A(f's_mov_b32 s{sSTEP}, 0')
    A(f's_mov_b32 s{sTAG}, 0')
    A(f's_mov_b32 s{sMCUR}, {WS_MX}')
    A(f's_mov_b32 s{sKXO}, {WS_KVF}')
    A(f's_mov_b32 s{sKMO}, 0')
    A(f's_mov_b32 s{sT2}, {SCBITS}')
    A(f's_mov_b32 s{sVXO}, {WS_PX}')
    A(f's_lshl_b32 s{sT3}, s{sW}, 12'); A(f's_add_u32 s{sT3}, s{sT3}, {LDS_KV}')
    A(f's_lshl_b32 s{sFLA}, s{sH}, 7'); A(f's_add_u32 s{sFLA}, s{sFLA}, {WS_PROG - LDS_MEM}')
    A(f's_cmp_eq_u32 s{sW}, 0'); A(f's_cselect_b32 s{sFLX}, 1, 0'); A(f's_mov_b32 s{sFLX+1}, 0')
    for i in range(2, 8):
        A(f's_lshl_b32 s{sFO+i}, s{sW}, 1'); A(f's_add_u32 s{sFO+i}, s{sFO+i}, {i}'); A(f's_and_b32 s{sFO+i}, s{sFO+i}, 7'); A(f's_lshl_b32 s{sFO+i}, s{sFO+i}, 10')
    if kvwait: kvwait(A, first=True)
    kvdma(range(4))
    for i in range(NSTG): stage(i)
    lg.q = []
    zero(vQK, 24)
    A('s_waitcnt vmcnt(0)')
    kvread()
    A(f's_add_u32 s{sKXO}, s{sKXO}, {32*16384}')
    A(f's_branch {L("have_mem")}')
    A.label(L('step'))
    P(0)
    A(f's_sub_u32 s{sT0}, s{sMCUR}, {LDS_MEM}')
    B2 = [int(o[3:]) for o in opt if o.startswith('b2_')]
    if B2 and B2[0] == 99: A('s_waitcnt vmcnt(0)')
    elif B2 and B2[0]: A(f's_sleep {B2[0]}')
    A.label(L('poll2'))
    A(f'buffer_load_dwordx4 {vr(vPB,4)}, v{vMP}, {srd(S_WS)}, s{sT0} offen sc1')
    A(f'buffer_load_dwordx4 {vr(vPB+4,4)}, v{vMP}, {srd(S_WS)}, s{sT0} offen offset:1024 sc1')
    A('s_waitcnt vmcnt(0)')
    A(f'v_max3_u32 v{vTMP}, v{vPB}, v{vPB+1}, v{vPB+2}'); A(f'v_max3_u32 v{vTMP+1}, v{vPB+3}, v{vPB+4}, v{vPB+5}')
    A(f'v_max3_u32 v{vTMP}, v{vTMP}, v{vPB+6}, v{vPB+7}'); A(f'v_max_u32 v{vTMP}, v{vTMP}, v{vTMP+1}')
    A(f'v_cmp_eq_u32 vcc, -1, v{vTMP}')
    A('s_mov_b64 exec, vcc')
    A(f's_cbranch_execnz {L("poll2")}')
    A('s_mov_b64 exec, -1')
    A.label(L('have_mem'))
    P(1)
    A(f'ds_write_b128 v{vMP}, {vr(vPB,4)}'); A(f'ds_write_b128 v{vMP}, {vr(vPB+4,4)} offset:1024')
    nstaged = NSTG
    def acc_of(m, a): return (vVA + 4 * a) if m == 'v' else vQK + 8 * a + (4 if m == 'q' else 0)
    pre = [o for o in OPS[:12]]
    for o in pre[:3]: smf(acc_of(o[0], o[1]), vFR + 4 * o[2], o)
    if kvwait: kvwait(A, first=False)
    for i in range(2, 8): A(f'v_add_u32 v{vFR+4*i}, s{sFO+i}, v{vL16H}')
    A('s_waitcnt lgkmcnt(0)')
    A('s_barrier')
    P(2)
    for i in range(2, 8):
        A(f'ds_read_b128 {vr(vFR+4*i,4)}, v{vFR+4*i}'); lg.issue(('fr', i))
    n_ = 0
    for o in pre[3:]:
        smf(acc_of(o[0], o[1]), vFR + 4 * o[2], o)
        if LOC[o][0] == 'lds':
            stage(nstaged); nstaged += 1
        n_ += 1
        if n_ in (2, 4, 6, 8): kvdma([n_ // 2 - 1])
    A(f's_add_u32 s{sKXO}, s{sKXO}, {32*16384}')
    if kvwait:
        A(f's_cmp_lt_u32 s{sRDY}, 16'); A(f's_cbranch_scc1 {L("rdy1")}')
        A.label(L('rdy1b'))
    vAP = vT2; vDP = vTMP; vX = vTMP + 4
    bg = []
    def post_qk_list(a):
        k = vQK + 8 * a; q = k + 4
        return [hadd(k), hadd(q),
                f'v_cvt_pk_bf16_f32 v{vAP}, v{k}, v{k+1}', f'v_cvt_pk_bf16_f32 v{vAP+1}, v{q}, v{q+1}',
                f'v_mfma_f32_16x16x16_bf16 {vr(vDP,4)}, {vr(vAP,2)}, {vr(vID,2)}, 0']
    def post_qk2_list(a):
        return [f'v_cvt_pk_bf16_f32 v{vX+2*a}, v{vDP}, v{vDP+1}', f'v_cvt_pk_bf16_f32 v{vX+2*a+1}, v{vDP+2}, v{vDP+3}']
    if flag:
        A(f'v_mov_b32 v{vT2}, s{sSTEP}')
        A(f's_mov_b64 exec, s[{sFLX}:{sFLX+1}]')
        A(f'buffer_store_dword v{vT2}, v{vL16H}, {srd(S_WS)}, s{sFLA} offen sc1')
        A('s_mov_b64 exec, -1')
    cnt = 0
    for a in range(2):
        for ks in range(2, 8):
            if a == 0: lg.wait(('fr', ks))
            for m in 'kq':
                o = (m, a, ks)
                smf(acc_of(m, a), vFR + 4 * ks, o)
                if LOC[o][0] == 'lds':
                    stage(nstaged); nstaged += 1
                cnt += 1
                if cnt == 14: bg = post_qk_list(0)
                if cnt == 22: bg += post_qk2_list(0)
                if bg: A(bg.pop(0))
    assert not bg
    P(3)
    vops = [('v', a, ks) for ks in range(2, 8) for a in range(2)]
    vi = [0]
    def vstep(n=1):
        for _ in range(n):
            if vi[0] >= 12: return
            o = vops[vi[0]]; vi[0] += 1
            smf(vVA + 4 * o[1], vFR + 4 * o[2], o)
    VS = [o[3:] for o in opt if o.startswith('vs_')]
    VS = [int(c) for c in (VS[0] if VS else '12135')]
    vstep(VS[0])
    for i_ in post_qk_list(1): A(i_)
    vstep(VS[1])
    for i_ in post_qk2_list(1): A(i_)
    vS = vQK
    A(f'v_mfma_f32_16x16x32_bf16 {vr(vS,4)}, {vr(vKXR,4)}, {vr(vX,4)}, 0')
    A(f'v_mfma_f32_16x16x32_bf16 {vr(vS+4,4)}, {vr(vKXR+4,4)}, {vr(vX,4)}, 0')
    A(f'v_mfma_f32_16x16x32_bf16 {vr(vS+8,4)}, {vr(vX,4)}, {vr(vX,4)}, 0')
    vstep(VS[2])
    A(f's_add_u32 s{sT0}, s{sKMO}, {WS_KM}')
    A('s_mov_b64 exec, s[6:7]')
    A(f'ds_write_b128 v{vSW}, {vr(vS,4)}'); lg.issue()
    A(f'ds_write_b128 v{vSW}, {vr(vS+4,4)} offset:16'); lg.issue()
    A(f'ds_write_b64 v{vSW}, {vr(vS+8,2)} offset:32'); lg.issue()
    A('s_mov_b64 exec, s[4:5]')
    if 'nokm' not in opt: A(f'buffer_store_dwordx4 {vr(vX,4)}, v{vKM}, {srd(S_WS)}, s{sT0} offen sc1')
    A('s_mov_b64 exec, -1')
    vstep(VS[3])
    lg.all()
    A('s_barrier')
    P(4)
    E = [vS, vS + 4, vS + 8, vKXR]
    Em = [vS + 12, vS + 13, vS + 14, vS + 15]
    for w in range(4):
        A(f'ds_read_b128 {vr(E[w],4)}, v{vSR} offset:{1536*w}'); lg.issue(('e', w))
    for w in range(4):
        A(f'ds_read_b32 v{Em[w]}, v{vSR2} offset:{1536*w}'); lg.issue(('em', w))
    vstep(VS[4])
    lg.wait(('e', 1))
    for r in (0, 2): A(f'v_pk_add_f32 v[{E[0]+r}:{E[0]+r+1}], v[{E[0]+r}:{E[0]+r+1}], v[{E[1]+r}:{E[1]+r+1}]')
    vstep(1)
    lg.wait(('e', 3))
    for r in (0, 2): A(f'v_pk_add_f32 v[{E[2]+r}:{E[2]+r+1}], v[{E[2]+r}:{E[2]+r+1}], v[{E[3]+r}:{E[3]+r+1}]')
    vstep(1)
    lg.wait(('em', 3))
    A(f'v_pk_add_f32 v[{Em[0]}:{Em[1]}], v[{Em[0]}:{Em[1]}], v[{Em[2]}:{Em[3]}]')
    for r in (0, 2): A(f'v_pk_add_f32 v[{E[0]+r}:{E[0]+r+1}], v[{E[0]+r}:{E[0]+r+1}], v[{E[2]+r}:{E[2]+r+1}]')
    vstep(1)
    e4 = vS + 4
    A(f'v_add_f32 v{e4}, v{Em[0]}, v{Em[1]}')
    vM = vTMP; vM2 = vTMP + 1
    A(f'v_max3_f32 v{vM}, v{vS}, v{vS+1}, v{vS+2}'); A(f'v_max3_f32 v{vM}, v{vM}, v{vS+3}, v{e4}')
    vstep(1)
    stage(nstaged); nstaged += 1
    A(f'v_max_f32_dpp v{vM}, v{vM}, v{vM} {QP}')
    A(f'v_mov_b32 v{vM2}, v{vM}')
    vstep(1)
    assert vi[0] == 12, vi
    stage(nstaged); nstaged += 1
    A(f'v_permlane16_swap_b32 v{vM}, v{vM2}')
    A(f'v_max_f32 v{vM}, v{vM}, v{vM2}')
    A(f'v_mov_b32 v{vM2}, v{vM}')
    A(f'v_permlane32_swap_b32 v{vM}, v{vM2}')
    A(f'v_max_f32 v{vM}, v{vM}, v{vM2}')
    A(f'v_mul_f32 v{vM}, s{sT2}, v{vM}')
    for r in range(5): A(f'v_fma_f32 v{vS+r}, v{vS+r}, s{sT2}, -v{vM}')
    for r in range(5): A(f'v_exp_f32 v{vS+r}, v{vS+r}')
    A(hadd(vVA)); A(hadd(vVA + 4))
    vPx = vTMP
    vVM0 = vTMP + 4
    for a in range(2):
        b = vVA + 4 * a
        A(f'v_cvt_pk_bf16_f32 v{vVM0+2*a}, v{b}, v{b+1}'); A(f'v_mov_b32 v{vVM0+2*a+1}, 0')
    A(f'v_cvt_pk_bf16_f32 v{vPx}, v{vS}, v{vS+1}'); A(f'v_cvt_pk_bf16_f32 v{vPx+1}, v{vS+2}, v{vS+3}')
    A(f'v_mov_b32_dpp v{e4+1}, v{e4} {QP}')
    A(f'v_mov_b32 v{vS+13}, 0')
    A(f'v_mov_b32_dpp v{vPx+2}, v{vPx} {QP}'); A(f'v_mov_b32_dpp v{vPx+3}, v{vPx+1} {QP}')
    A(f'v_cvt_pk_bf16_f32 v{vS+12}, v{e4}, v{e4+1}')
    vO = vS
    A(f's_add_u32 s{sT0}, s{sKMO}, {WS_VMT}')
    A(f'v_mfma_f32_16x16x32_bf16 {vr(vS+8,4)}, {vr(vSEL,4)}, {vr(vPx,4)}, 0')
    for a in range(2):
        A(f'v_mfma_f32_16x16x32_bf16 {vr(vO+4*a,4)}, {vr(vVXR+4*a,4)}, {vr(vPx,4)}, 0')
    if 'novm' not in opt:
        A(f'buffer_store_dword v{vVM0}, v{vVM}, {srd(S_WS)}, s{sT0} offen sc1')
        A(f'buffer_store_dword v{vVM0+2}, v{vVM}, {srd(S_WS)}, s{sT0} offen offset:64 sc1')
    A(f's_cmp_eq_u32 s{sSTEP}, {nsteps-1}')
    A(f's_cbranch_scc1 {L("done")}')
    A(f'v_mfma_f32_16x16x16_bf16 {vr(vS+8,4)}, {vr(vSEL,2)}, {vr(vS+12,2)}, {vr(vS+8,4)}')
    for a in range(2):
        A(f'v_mfma_f32_16x16x16_bf16 {vr(vO+4*a,4)}, {vr(vVM0+2*a,2)}, {vr(vS+12,2)}, {vr(vO+4*a,4)}')
    zero(vFR, 8)
    vL = vT2; vL2 = vT2 + 1
    A(f'v_rcp_f32 v{vL}, v{vS+8}')
    zero(vFR + 8, 2)
    A(f'v_mov_b32 v{vL2}, v{vL}')
    zero(vFR + 10, 4)
    A(f'v_permlane32_swap_b32 v{vL}, v{vL2}')
    for r in range(0, 8, 2): A(f'v_pk_mul_f32 v[{vO+r}:{vO+r+1}], v[{vO+r}:{vO+r+1}], v[{vL}:{vL+1}] op_sel:[0,1] op_sel_hi:[1,1]')
    for r in range(4): A(f'v_cvt_pk_bf16_f32 v{vTMP+r}, v{vO+2*r}, v{vO+2*r+1}')
    A('s_mov_b64 exec, s[6:7]')
    A(f'ds_write_b128 v{vOW}, {vr(vTMP,4)}')
    A('s_mov_b64 exec, -1')
    vWA = vFR
    zero(vFR + 14, 10)
    A('s_waitcnt lgkmcnt(0)'); lg.q = []
    A('s_barrier')
    P(5)
    vOF = vQK
    A(f'ds_read_b128 {vr(vOF,4)}, v{vL16H} offset:{LDS_O-LDS_MEM}'); lg.issue('of0')
    A(f'ds_read_b128 {vr(vOF+4,4)}, v{vL16H} offset:{LDS_O-LDS_MEM+1024}'); lg.issue('of1')
    zero(vFR + 24, 8)
    A(f's_add_u32 s{sT0}, s{sVXO}, 32768')
    lg.wait('of0')
    vPK = vVA
    def post_o(a):
        b = vWA + 4 * a
        return [hadd(b), f'v_cvt_pk_bf16_f32 v{vPK+a}, v{b}, v{b+1}', f'v_bfi_b32 v{vPK+a}, 1, s{sTAG}, v{vPK+a}']
    bg = []
    WO = [o[3:] for o in opt if o.startswith('wo_')]
    WO = WO[0] if WO else 'a'
    for a in range(8):
        for ks in range(2):
            if a == 0 and ks == 1: lg.wait('of1')
            o = ('o', a, ks)
            smf(vWA + 4 * a, vOF + 4 * ks, o)
            if LOC[o][0] == 'lds':
                stage(nstaged); nstaged += 1
            if WO == 'b' and ks == 1 and a >= 1: bg += post_o(a - 1)
            for _ in range((1 + ks) if WO == 'a' else (3 if ks == 1 else 0)):
                if bg: A(bg.pop(0))
        if WO == 'a' and a >= 1: bg += post_o(a - 1)
        if a == (5 if WO == 'a' else 4): A(f'buffer_store_dwordx4 {vr(vPK,4)}, v{vPST}, {srd(S_WS)}, s{sVXO} offen{X}')
    for i_ in bg + post_o(7): A(i_)
    A(f'buffer_store_dwordx4 {vr(vPK+4,4)}, v{vPST}, {srd(S_WS)}, s{sT0} offen{X}')
    P(6)
    A(f's_add_u32 s{sT0}, s{sVXO}, 4096')
    B1 = [int(o[3:]) for o in opt if o.startswith('b1_')] or [99]
    if not B1:
        A(f'buffer_load_dwordx4 {vr(vPB,4)}, v{vPLD}, {srd(S_WS)}, s{sVXO} offen sc1')
        A(f'buffer_load_dwordx4 {vr(vPB+4,4)}, v{vPLD}, {srd(S_WS)}, s{sT0} offen sc1')
    for i in range(NSTG): stage(i)
    lg.q = []
    zero(vQK, 16)
    A(f's_add_u32 s{sMNXT}, s{sMCUR}, 8192'); A(f's_and_b32 s{sMNXT}, s{sMNXT}, 32767'); A(f's_add_u32 s{sMNXT}, s{sMNXT}, {WS_MX}')
    if not B1: A(f's_branch {L("poll1c")}')
    elif B1[0] == 99: A('s_waitcnt vmcnt(0)')
    elif B1[0]: A(f's_sleep {B1[0]}')
    A.label(L('poll1'))
    A(f'buffer_load_dwordx4 {vr(vPB,4)}, v{vPLD}, {srd(S_WS)}, s{sVXO} offen sc1')
    A(f'buffer_load_dwordx4 {vr(vPB+4,4)}, v{vPLD}, {srd(S_WS)}, s{sT0} offen sc1')
    A.label(L('poll1c'))
    A('s_waitcnt vmcnt(0)')
    tt = 0
    for a_ in range(2):
        for b_ in range(2):
            for t_ in range(2):
                if (a_ ^ t_) | (b_ ^ t_): tt |= 1 << (a_ * 4 + b_ * 2 + t_)
    for i in range(4): A(f'v_bitop3_b32 v{vTMP+i}, v{vPB+2*i}, v{vPB+2*i+1}, s{sTAG} bitop3:{tt}')
    A(f'v_or3_b32 v{vTMP}, v{vTMP}, v{vTMP+1}, v{vTMP+2}')
    A(f'v_bitop3_b32 v{vTMP}, v{vTMP}, v{vTMP+3}, 1 bitop3:0xa8')
    A(f'v_cmp_ne_u32 vcc, 0, v{vTMP}')
    A('s_mov_b64 exec, vcc')
    A(f's_cbranch_execnz {L("poll1")}')
    A('s_mov_b64 exec, -1')
    P(7)
    vR = vTMP
    A(f'v_mfma_f32_16x16x32_bf16 {vr(vR,4)}, {vr(vSEL,4)}, {vr(vPB,4)}, 0')
    A(f'v_mfma_f32_16x16x32_bf16 {vr(vR,4)}, {vr(vSEL,4)}, {vr(vPB+4,4)}, {vr(vR,4)}')
    zero(vVA, 8)
    kvread()
    A(f'v_mov_b32 v{vR+6}, -1')
    for r in range(4): A(f'v_add_f32_dpp v{vR+r}, v{vR+r}, v{vR+r} row_ror:4 row_mask:0xf bank_mask:0xf')
    for r in range(4): A(f'v_add_f32_dpp v{vR+r}, v{vR+r}, v{vR+r} row_ror:8 row_mask:0xf bank_mask:0xf')
    A(f'v_cvt_pk_bf16_f32 v{vR+4}, v{vR}, v{vR+2}'); A(f'v_cvt_pk_bf16_f32 v{vR+5}, v{vR+1}, v{vR+3}')
    A(f'v_min_u32 v{vR+4}, -2, v{vR+4}'); A(f'v_min_u32 v{vR+5}, -2, v{vR+5}')
    A('s_mov_b64 exec, 0xf000f')
    A(f'buffer_store_dword v{vR+4}, v{vMPUB}, {srd(S_WS)}, s{sMNXT} offen{X}')
    A(f'buffer_store_dword v{vR+5}, v{vMPUB}, {srd(S_WS)}, s{sMNXT} offen offset:16{X}')
    A(f'buffer_store_dword v{vR+6}, v{vMPUB}, {srd(S_WS)}, s{sMCUR} offen{X}')
    A(f'buffer_store_dword v{vR+6}, v{vMPUB}, {srd(S_WS)}, s{sMCUR} offen offset:16{X}')
    A('s_mov_b64 exec, -1')
    if kvwait:
        A(f's_cmp_lt_u32 s{sRDY}, 16'); A(f's_cbranch_scc1 {L("rdy2")}')
        A.label(L('rdy2b'))
    P(8)
    A(f's_mov_b32 s{sMCUR}, s{sMNXT}')
    A(f's_xor_b32 s{sTAG}, s{sTAG}, 1')
    A(f's_add_u32 s{sKMO}, s{sKMO}, 65536')
    A(f's_add_u32 s{sSTEP}, s{sSTEP}, 1')
    if prof is not None:
        A('s_memrealtime s[98:99]')
        A('s_waitcnt lgkmcnt(0)')
        A(f'v_writelane_b32 v{vTMP}, s98, 9')
        for i in range(9): A(f'v_writelane_b32 v{vTMP}, s{prof+2*i}, {i}')
        A(f's_lshl_b32 s{sT0}, s{sH}, 2'); A(f's_add_u32 s{sT0}, s{sT0}, s{sW}'); A(f's_lshl_b32 s{sT0}, s{sT0}, 6'); A(f's_add_u32 s{sT0}, s{sT0}, s{sSTEP}'); A(f's_lshl_b32 s{sT0}, s{sT0}, 6')
        A(f's_add_u32 s{sT0}, s{sT0}, {120*MB}')
        A(f'v_mbcnt_lo_u32_b32 v{vTMP+1}, -1, 0'); A(f'v_lshlrev_b32 v{vTMP+1}, 2, v{vTMP+1}')
        A('s_mov_b64 exec, 0xffff')
        A(f'buffer_store_dword v{vTMP}, v{vTMP+1}, {srd(S_WS)}, s{sT0} offen')
        A('s_mov_b64 exec, -1')
    A(f's_branch {L("step")}')
    if kvwait:
        A.label(L('rdy1'))
        A(f'v_mbcnt_lo_u32_b32 v{vNEG1}, -1, 0'); A(f'v_lshlrev_b32 v{vNEG1}, 2, v{vNEG1}')
        A('s_mov_b64 exec, 0xffff')
        A(f'buffer_load_dword v{vNEG1}, v{vNEG1}, {srd(S_DBG)}, 0 offen offset:{4*DBG_KV} sc1')
        A('s_mov_b64 exec, -1')
        A(f's_branch {L("rdy1b")}')
        A.label(L('rdy2'))
        A('s_mov_b64 exec, 0xffff')
        A(f'v_and_b32 v{vNEG1}, 0xffff, v{vNEG1}')
        A(f'v_cmp_gt_u32 vcc, 32, v{vNEG1}')
        A(f's_or_b32 s{sT1}, vcc_lo, 0x10000')
        A(f's_ff1_i32_b32 s{sT1}, s{sT1}')
        A(f's_max_u32 s{sRDY}, s{sRDY}, s{sT1}')
        A('s_mov_b64 exec, -1')
        A(f's_branch {L("rdy2b")}')
    A.label(L('done'))
    A('s_waitcnt vmcnt(0)')
    A('s_barrier')
    if flag:
        fl = A.newlabel('L_nofl')
        A(f's_cmp_lg_u32 s{sW}, 0'); A(f's_cbranch_scc1 {fl}')
        A(f'v_mov_b32 v{vT2}, {nsteps}')
        A(f's_lshl_b32 s{sT0}, s{sH}, 7'); A(f's_add_u32 s{sT0}, s{sT0}, {WS_PROG}'); A(f'v_mov_b32 v{vT2+1}, s{sT0}')
        A('s_mov_b64 exec, 1')
        A(f'buffer_store_dword v{vT2}, v{vT2+1}, {srd(S_WS)}, 0 offen sc1')
        A('s_mov_b64 exec, -1')
        A('s_waitcnt vmcnt(0)')
        A.label(fl)
    A('v_mbcnt_lo_u32_b32 v0, -1, 0'); A('v_mbcnt_hi_u32_b32 v0, -1, v0')
    A(f's_lshl_b32 s{sT0}, s{sW}, 6'); A(f'v_add_u32 v0, s{sT0}, v0')

def kvwait(A, first):
    l = A.newlabel('L_kvw'); l2 = A.newlabel('L_kvd')
    if first:
        A(f's_mov_b32 s{sRDY}, 0')
        A(f'v_mov_b32 v{vT2+1}, {4*DBG_CQ}')
        A.label(l)
        A(f'buffer_load_dword v{vT2}, v{vT2+1}, {srd(S_DBG)}, 0 offen sc1')
        A('s_waitcnt vmcnt(0)')
        A(f'v_cmp_gt_u32 vcc, 32, v{vT2}')
        A(f's_cbranch_vccnz {l}')
        return
    A(f's_add_u32 s{sT1}, s{sSTEP}, 1'); A(f's_lshr_b32 s{sT1}, s{sT1}, 2')
    A(f's_cmp_lt_u32 s{sT1}, s{sRDY}'); A(f's_cbranch_scc1 {l2}')
    A(f's_cmp_ge_u32 s{sT1}, 16'); A(f's_cbranch_scc1 {l2}')
    A(f's_cmp_eq_u32 s{sSTEP}, 0'); A(f's_cbranch_scc1 {l2}')
    A(f'v_mbcnt_lo_u32_b32 v{vT2+1}, -1, 0'); A(f'v_lshlrev_b32 v{vT2+1}, 2, v{vT2+1}')
    A('s_mov_b64 exec, 0xffff')
    A.label(l)
    A(f'buffer_load_dword v{vT2}, v{vT2+1}, {srd(S_DBG)}, 0 offen offset:{4*DBG_KV} sc1')
    A('s_waitcnt vmcnt(0)')
    A(f'v_and_b32 v{vT2}, 0xffff, v{vT2}')
    A(f'v_cmp_gt_u32 vcc, 32, v{vT2}')
    A(f's_or_b32 s{sRDY}, vcc_lo, 0x10000')
    A(f's_ff1_i32_b32 s{sRDY}, s{sRDY}')
    A(f's_cmp_lt_u32 s{sT1}, s{sRDY}'); A(f's_cbranch_scc0 {l}')
    A('s_mov_b64 exec, -1')
    A.label(l2)
```

```python
from asmlib import *
from common import *
from gemm import *
import wsgemm as WS
import math, struct
def fbits(x): return struct.unpack('<I', struct.pack('<f', x))[0]

sTK, sP0, sP1, sP2 = 88, 89, 90, 91
LDS_TICK = 163840 - 64
G128 = Gemm(128, 128, 2, 2, 'g128')
G32 = Gemm(32, 128, 1, 4, 'g32')

NSET = 8
N_KV, N_Q, N_G2, N_SV, N_AT, N_G3 = 192, 64, 24, 16 * NSET, 256, 64
T_KV = 0; T_G2 = T_KV + N_KV; T_Q = T_G2 + N_G2; T_SV = T_Q + N_Q; T_AT = T_SV + N_SV; T_G3 = T_AT + N_AT; T_END = T_G3 + N_G3
KVQ_DONE = 0x100020
def divmod_const(A, src, d, q, r):
    A(f's_mul_hi_u32 s{q}, s{src}, {(1 << 32) // d + 1}')
    A(f's_mul_i32 s{r}, s{q}, {d}'); A(f's_sub_u32 s{r}, s{src}, s{r}')

TRACE = False
LITE = False
def trace(A, slot):
    if not TRACE: return
    A('s_memrealtime s[94:95]'); A('s_waitcnt lgkmcnt(0)')
    A(f's_lshl_b32 s96, s{sTK}, 4'); A(f's_add_u32 s96, s96, {110*MB + 4*slot}')
    A('v_mov_b32 v120, s94'); A('v_mov_b32 v121, s96')
    A(f'buffer_store_dword v120, v121, {srd(S_WS)}, 0 offen')

def copy_srd(A, dst, src):
    for i in range(4): A(f's_mov_b32 s{dst+i}, s{src+i}')

def signal(A, S, off_expr_sgpr=None, off=None):
    A('s_waitcnt vmcnt(0)')
    A('s_barrier')
    l = A.newlabel('L_sig')
    A(f's_cmp_lg_u32 s{sW}, 0'); A(f's_cbranch_scc1 {l}')
    A('v_mov_b32 v120, 1')
    A(f'v_mov_b32 v121, {off}' if off is not None else f'v_mov_b32 v121, s{off_expr_sgpr}')
    A('s_mov_b64 exec, 1')
    A(f'buffer_atomic_add v120, v121, {srd(S)}, 0 offen')
    A('s_mov_b64 exec, -1')
    A.label(l)

def wait_cnt(A, S, target, off=None, off_sgpr=None, sleep=8, adaptive=False):
    l = A.newlabel('L_wt'); l2 = A.newlabel('L_wd')
    A(f'v_mov_b32 v121, {off}' if off is not None else f'v_mov_b32 v121, s{off_sgpr}')
    A.label(l)
    A(f'buffer_load_dword v120, v121, {srd(S)}, 0 offen sc1')
    A('s_waitcnt vmcnt(0)')
    A(f'v_readfirstlane_b32 s{sT0}, v120')
    A(f's_cmp_ge_u32 s{sT0}, {target}')
    A(f's_cbranch_scc1 {l2}')
    if adaptive:
        l3 = A.newlabel('L_wf')
        A(f's_sub_u32 s{sT0}, {target}, s{sT0}')
        A(f's_cmp_lt_u32 s{sT0}, 2'); A(f's_cbranch_scc1 {l3}')
        A('s_sleep 24')
        A(f's_cmp_lt_u32 s{sT0}, 3'); A(f's_cbranch_scc1 {l3}')
        A('s_sleep 48')
        A.label(l3)
    A(f's_sleep {sleep}')
    A(f's_branch {l}')
    A.label(l2)

def lane_consts(A):
    A('v_and_b32 v10, 63, v0'); A('v_and_b32 v11, 15, v10'); A('v_lshrrev_b32 v12, 4, v10')

def atomic_add(A, S, val, off_sgpr):
    A(f'v_mov_b32 v120, {val}'); A(f'v_mov_b32 v121, s{off_sgpr}')
    A('s_mov_b64 exec, 1')
    A(f'buffer_atomic_add v120, v121, {srd(S)}, 0 offen')
    A('s_mov_b64 exec, -1')

def gen_g1(A):
    A.label('L_task_kv')
    A(f's_lshr_b32 s{sT0}, s{sTK}, 5'); A(f's_and_b32 s{sP1}, s{sTK}, 15'); A(f's_bfe_u32 s{sP2}, s{sTK}, 0x10004')
    A(f's_sub_u32 s{sP0}, s{sT0}, 2'); A(f's_lshl_b32 s{sP0}, s{sP0}, 2'); A(f's_mov_b32 s{sKIT}, 4')
    A(f's_cmp_lt_u32 s{sT0}, 3'); A(f's_cselect_b32 s{sP0}, s{sT0}, s{sP0}'); A(f's_cselect_b32 s{sKIT}, 2, s{sKIT}')
    A(f's_cmp_lt_u32 s{sT0}, 2'); A(f's_cselect_b32 s{sKIT}, 1, s{sKIT}')
    l = A.newlabel('L_nz')
    A(f's_cmp_lg_u32 s{sTK}, 0'); A(f's_cbranch_scc1 {l}')
    A('v_lshlrev_b32 v120, 7, v0'); A('v_mov_b32 v122, 0'); A('v_mov_b32 v123, 0'); A(f's_mov_b32 s{sT0}, {WS_CNT}')
    A(f'buffer_store_dwordx2 v[122:123], v120, {srd(S_WS)}, s{sT0} offen sc1')
    A.label(l)
    A(f's_cmp_eq_u32 s{sP2}, 0'); A('s_cbranch_scc1 L_g1_k')
    copy_srd(A, sGB, S_WV); A('s_branch L_g1_go')
    A.label('L_g1_k'); copy_srd(A, sGB, S_WK); A('s_branch L_g1_go')
    A.label('L_task_q')
    A(f's_sub_u32 s{sT0}, s{sTK}, {T_Q}'); A(f's_lshr_b32 s{sP0}, s{sT0}, 4'); A(f's_lshl_b32 s{sP0}, s{sP0}, 2'); A(f's_and_b32 s{sP1}, s{sT0}, 15'); A(f's_mov_b32 s{sP2}, 2'); A(f's_mov_b32 s{sKIT}, 4')
    copy_srd(A, sGB, S_WQ)
    A.label('L_g1_go')
    copy_srd(A, sGA, S_BX)
    A(f's_mov_b32 s{sLDB}, 8192')
    A(f's_lshl_b32 s{sBOFF}, s{sP1}, 9')
    l = A.newlabel('L_urg')
    A(f's_cmp_lt_u32 s{sTK}, 96'); A(f's_cbranch_scc1 {l}')
    wait_cnt(A, S_DBG, 32, off=4 * DBG_WTK, sleep=16)
    A.label(l)
    WS.load_w(A)
    trace(A, 3)
    WS.setup_a(A)
    A(f's_lshl_b32 s{sAOFF}, s{sP0}, 17')
    A('v_lshlrev_b32 v1, 4, v10')
    A(f's_lshl_b32 s{sE0}, s{sP0}, 7'); A(f's_lshl_b32 s{sT0}, s{sP1}, 1'); A(f's_add_u32 s{sE0}, s{sE0}, s{sT0}'); A(f's_lshr_b32 s{sT0}, s{sW}, 1'); A(f's_add_u32 s{sE0}, s{sE0}, s{sT0}')
    A(f's_lshl_b32 s{sE0}, s{sE0}, 2'); A(f's_and_b32 s{sT0}, s{sW}, 1'); A(f's_lshl_b32 s{sT0}, s{sT0}, 1'); A(f's_add_u32 s{sE0}, s{sE0}, s{sT0}')
    A(f's_cmp_eq_u32 s{sP2}, 2')
    A(f's_cselect_b32 s{sE1}, 11, 12'); A(f's_cselect_b32 s{sE2}, {WS_QF}, {WS_KVF}'); A(f's_cselect_b32 s{sLDA}, 65536, 1')
    A(f's_lshl_b32 s{sE0}, s{sE0}, s{sE1}'); A(f's_add_u32 s{sE0}, s{sE0}, s{sE2}')
    A(f's_lshl_b32 s{sE3}, 1, s{sE1}    ; stride')
    def sig(A, d):
        A(f's_add_u32 s{sT3}, s{sP0}, s{sAINC}'); A(f's_lshl_b32 s{sT3}, s{sT3}, 2'); A(f's_add_u32 s{sT3}, s{sT3}, {4 * DBG_KV - 4}')
        atomic_add(A, S_DBG, f's{sLDA}', sT3)
    def epi_t(A, half):
        for i in range(2):
            for c in range(2):
                A(f's_mul_i32 s{sT0}, s{sE3}, {i * 128 + c}'); A(f's_add_u32 s{sT0}, s{sT0}, s{sE0}')
                for kt in range(2):
                    tm = 2 * i + kt
                    d = WS.vPKD + 4 * kt
                    WS.pack(A, tm * 4 + 2 * c, tm * 4 + 2 * c + 1, d)
                    A(f'buffer_store_dwordx4 {vr(d,4)}, v1, {srd(S_WS)}, s{sT0} offen offset:{1024*kt} sc1')
        A(f's_lshl_b32 s{sT0}, s{sE3}, 8'); A(f's_add_u32 s{sE0}, s{sE0}, s{sT0}')
    def epi_n(A, half):
        for i in range(2):
            for c in range(2):
                A(f's_add_u32 s{sT0}, s{sE0}, {(i * 128 + c) * 4096}')
                for a in range(2):
                    tn = 2 * c + a
                    d = WS.vPKD + 4 * a
                    WS.pack(A, (2 * i) * 4 + tn, (2 * i + 1) * 4 + tn, d)
                    A(f'buffer_store_dwordx4 {vr(d,4)}, v1, {srd(S_WS)}, s{sT0} offen offset:{2048 + 1024*a} sc1')
        A(f's_add_u32 s{sE0}, s{sE0}, {256 * 4096}')
    def early(A, l):
        A(f's_cmp_ge_u32 s{sTK}, 32'); A(f's_cbranch_scc1 {l}')
        A('s_waitcnt vmcnt(0)')
        A('s_barrier')
        A(f's_cmp_lg_u32 s{sW}, 0'); A(f's_cbranch_scc1 {l}')
        A(f's_mov_b32 s{sT3}, {4 * DBG_CQ}')
        atomic_add(A, S_DBG, 1, sT3)
    A(f's_cmp_eq_u32 s{sP2}, 1'); A('s_cbranch_scc1 L_g1_v')
    WS.run_blocks(A, 'T', epi_t, sig, 'g1t', early)
    A('s_branch L_next')
    A.label('L_g1_v')
    WS.run_blocks(A, 'N', epi_n, sig, 'g1n', early)
    A('s_branch L_next')

def gen_g2(A):
    A.label('L_task_g2')
    A(f's_sub_u32 s{sT0}, s{sTK}, {T_G2}')
    divmod_const(A, sT0, 6, sP0, sP1)
    copy_srd(A, sGA, S_AX); copy_srd(A, sGB, S_AWQKV)
    A(f's_mov_b32 s{sLDB}, 3072'); A(f's_mov_b32 s{sKIT}, 4')
    A(f's_lshl_b32 s{sBOFF}, s{sP1}, 9')
    wait_cnt(A, S_DBG, 32, off=4 * DBG_WTK, sleep=16)
    WS.load_w(A)
    WS.setup_a(A)
    A(f's_lshl_b32 s{sAOFF}, s{sP0}, 19')
    lane_consts(A)
    A(f's_and_b32 s{sT0}, s{sP1}, 1'); A(f's_lshl_b32 s{sT0}, s{sT0}, 4'); A(f's_lshl_b32 s{sT1}, s{sW}, 2'); A(f's_add_u32 s{sT0}, s{sT0}, s{sT1}')
    A(f's_lshl_b32 s{sE0}, s{sT0}, 16'); A(f's_lshl_b32 s{sT0}, s{sP0}, 14'); A(f's_add_u32 s{sE0}, s{sE0}, s{sT0}')
    def sig(A, d):
        A(f's_mov_b32 s{sT3}, {4 * DBG_CG2}')
        atomic_add(A, S_DBG, 1, sT3)
    A(f's_cmp_ge_u32 s{sP1}, 4'); A('s_cbranch_scc1 L_g2_v')
    A('v_lshrrev_b32 v13, 3, v11'); A('v_lshlrev_b32 v13, 4, v13'); A('v_and_b32 v14, 3, v11'); A('v_add_u32 v13, v13, v14')
    A('v_bfe_u32 v14, v11, 2, 1')
    A(f's_cmp_ge_u32 s{sP1}, 2')
    A(f's_cselect_b32 s{sE1}, 2, 3'); A(f's_cselect_b32 s{sE2}, 128, 64'); A(f's_cselect_b32 s{sE3}, {WS_KA - WS_QA}, 0'); A(f's_add_u32 s{sE3}, s{sE3}, {WS_QA}')
    A(f'v_lshlrev_b32 v14, s{sE1}, v14'); A('v_add_u32 v13, v13, v14')
    A('v_and_b32 v14, 1, v12'); A('v_lshl_add_u32 v13, v14, 5, v13')
    A('v_lshlrev_b32 v13, 4, v13')
    A('v_lshrrev_b32 v14, 1, v12'); A('v_lshl_add_u32 v1, v14, 16, v13')
    A(f's_add_u32 s{sE0}, s{sE0}, s{sE3}')
    WS.setup_a(A)
    def epi_t(A, half):
        for i in range(2):
            for c in range(2):
                for kt in range(2):
                    tm = 2 * i + kt
                    d = WS.vPKD + 4 * kt
                    A(f's_add_u32 s{sT0}, s{sE0}, {i * 1024 + c * 131072}')
                    if kt: A(f's_add_u32 s{sT0}, s{sT0}, s{sE2}')
                    WS.pack(A, tm * 4 + 2 * c, tm * 4 + 2 * c + 1, d)
                    A(f'buffer_store_dwordx4 {vr(d,4)}, v1, {srd(S_WS)}, s{sT0} offen sc1')
        A(f's_add_u32 s{sE0}, s{sE0}, 2048')
    WS.run_blocks(A, 'T', epi_t, sig, 'g2t')
    A('s_branch L_next')
    A.label('L_g2_v')
    A('v_and_b32 v13, 7, v11')
    A('v_and_b32 v14, 1, v12'); A('v_lshl_add_u32 v13, v14, 4, v13')
    A('v_lshrrev_b32 v14, 1, v12'); A('v_lshl_add_u32 v13, v14, 5, v13')
    A('v_lshlrev_b32 v13, 4, v13')
    A('v_lshrrev_b32 v14, 3, v11'); A('v_lshl_add_u32 v1, v14, 16, v13')
    A(f's_add_u32 s{sE0}, s{sE0}, {WS_VAT}')
    WS.setup_a(A)
    def epi_n(A, half):
        for i in range(2):
            for c in range(2):
                A(f's_add_u32 s{sT0}, s{sE0}, {i * 1024 + c * 131072}')
                for a in range(2):
                    tn = 2 * c + a
                    d = WS.vPKD + 4 * a
                    WS.pack(A, (2 * i) * 4 + tn, (2 * i + 1) * 4 + tn, d)
                    A(f'buffer_store_dwordx4 {vr(d,4)}, v1, {srd(S_WS)}, s{sT0} offen offset:{128*a} sc1')
        A(f's_add_u32 s{sE0}, s{sE0}, 2048')
    WS.run_blocks(A, 'N', epi_n, sig, 'g2n')
    A('s_branch L_next')

def out_epilogue(A, G):
    lane_consts(A)
    A('v_lshrrev_b32 v13, 2, v11'); A('v_and_b32 v14, 3, v11'); A('v_lshl_add_u32 v13, v13, 3, v14')
    A('v_lshlrev_b32 v13, 11, v13'); A('v_lshl_add_u32 v13, v12, 4, v13')
    if G.WM == 2:
        A(f's_lshr_b32 s{sT0}, s{sW}, 1'); A(f's_lshl_b32 s{sT0}, s{sT0}, 17'); A(f's_add_u32 s{sE0}, s{sE0}, s{sT0}')
        A(f's_and_b32 s{sT0}, s{sW}, 1'); A(f's_lshl_b32 s{sT0}, s{sT0}, 7'); A(f's_add_u32 s{sE0}, s{sE0}, s{sT0}')
    else:
        A(f's_lshl_b32 s{sT0}, s{sW}, 6'); A(f's_add_u32 s{sE0}, s{sE0}, s{sT0}')
    n = 0
    for tm in range(G.TM):
        A(f's_add_u32 s{sT0}, s{sE0}, {(32 * (tm // 2) + 4 * (tm % 2)) * 2048}')
        for c in range(G.TN // 2):
            d = 16 + 4 * n; n += 1
            G.pack(A, tm * G.TN + 2 * c, tm * G.TN + 2 * c + 1, d)
            A(f'buffer_store_dwordx4 {vr(d,4)}, v13, {srd(S_OUT)}, s{sT0} offen offset:{64*c}')

def gen_g3(A):
    G = G128
    A.label('L_task_g3')
    A(f's_sub_u32 s{sT1}, s{sTK}, {T_G3}')
    A(f's_lshr_b32 s{sP0}, s{sT1}, 2'); A(f's_and_b32 s{sP1}, s{sT1}, 3')
    wait_cnt(A, S_DBG, N_AT, off=4 * DBG_CAT, sleep=32)
    copy_srd(A, sGA, S_WS); copy_srd(A, sGB, S_AWO)
    A(f's_mov_b32 s{sLDA}, 1024'); A(f's_mov_b32 s{sLDB}, 1024'); A(f's_mov_b32 s{sKIT}, 2')
    A(f's_lshl_b32 s{sAOFF}, s{sP0}, 17'); A(f's_add_u32 s{sAOFF}, s{sAOFF}, {WS_OA}'); A(f's_lshl_b32 s{sBOFF}, s{sP1}, 8')
    G.setup(A)
    G.mainloop(A, 'T')
    A(f's_lshl_b32 s{sE0}, s{sP0}, 18'); A(f's_lshl_b32 s{sT0}, s{sP1}, 8'); A(f's_add_u32 s{sE0}, s{sE0}, s{sT0}')
    out_epilogue(A, G)
    A('s_branch L_next')

def gen_at(A):
    A.label('L_task_at')
    A(f's_sub_u32 s{sT1}, s{sTK}, {T_AT}')
    A(f's_lshr_b32 s{sP0}, s{sT1}, 3'); A(f's_and_b32 s{sP1}, s{sT1}, 7')
    wait_cnt(A, S_DBG, N_G2 * 4, off=4 * DBG_CG2, sleep=32)
    A(f's_lshl_b32 s{sP1}, s{sP1}, 2'); A(f's_add_u32 s{sP1}, s{sP1}, s{sW}     ; head')
    A(f's_lshl_b32 s{sP0}, s{sP0}, 1')
    A(f's_mov_b32 s{sP2}, 2')
    vQ = 16; vK = 20; vV = 56; vS = 128; vO = 0
    vNEG = 15
    A('v_and_b32 v10, 63, v0'); A('v_lshlrev_b32 v11, 4, v10     ; lane*16')
    A('v_and_b32 v12, 31, v10'); A('v_lshrrev_b32 v13, 5, v10     ; q, hh')
    A('v_lshl_add_u32 v14, v13, 4, v12'); A('v_lshlrev_b32 v14, 4, v14')
    A('v_lshlrev_b32 v9, 3, v13'); A('v_sub_u32 v9, v12, v9')
    A(f'v_mov_b32 v{vNEG}, 0xff800000')
    A('v_lshlrev_b32 v8, 10, v12'); A('v_lshl_add_u32 v8, v13, 4, v8')
    A('v_cmp_eq_u32 vcc, 16, v12'); A('v_cmp_eq_u32 s[98:99], 20, v12'); A('s_or_b64 vcc, vcc, s[98:99]')
    A('v_mov_b32 v7, 0x3f803f80'); A('v_cndmask_b32 v7, 0, v7, vcc')
    for r in range(72): A(f'v_mov_b32 v{vV+r}, v7')
    A('s_mov_b32 s98, 0x0000ffff'); A('s_mov_b32 s99, 0x0000ffff')
    C = fbits(0.25 * math.log2(math.e))
    A(f's_mov_b32 s{sE3}, {C}')
    A.label('L_at_loop')
    A(f's_lshl_b32 s{sE0}, s{sP1}, 6'); A(f's_add_u32 s{sE0}, s{sE0}, s{sP0}'); A(f's_lshl_b32 s{sE0}, s{sE0}, 10')
    A(f's_add_u32 s{sT0}, s{sE0}, {WS_QA}')
    A(f'buffer_load_dwordx4 {vr(vQ,4)}, v11, {srd(S_WS)}, s{sT0} offen sc1')
    def skip_if_invalid(i, tag):
        if i == 8: return None
        l = A.newlabel(f'L_at{tag}')
        A(f's_cmp_lt_u32 s{sP0}, {8 - i}'); A(f's_cbranch_scc1 {l}')
        return l
    for i in range(9):
        l = skip_if_invalid(i, 'l')
        A(f's_add_u32 s{sT0}, s{sE0}, {WS_KA}'); A(f's_sub_u32 s{sT0}, s{sT0}, {(8 - i) * 1024}')
        A(f'buffer_load_dwordx4 {vr(vK+4*i,4)}, v11, {srd(S_WS)}, s{sT0} offen sc1')
        A(f's_add_u32 s{sT0}, s{sT0}, {WS_VAT - WS_KA}')
        A('s_mov_b64 exec, s[98:99]')
        A(f'buffer_load_dwordx4 {vr(vV+8*i,4)}, v14, {srd(S_WS)}, s{sT0} offen sc1')
        A(f'buffer_load_dwordx4 {vr(vV+8*i+4,4)}, v14, {srd(S_WS)}, s{sT0} offen offset:512 sc1')
        A('s_mov_b64 exec, -1')
        if l: A.label(l)
    A('s_waitcnt vmcnt(0)')
    def sreg(i, r): return (vS + 16 * i + r) if i < 8 else (vK + r)
    for i in range(9):
        l = skip_if_invalid(i, 's')
        if i < 8:
            A(f'v_mfma_f32_32x32x16_bf16 {vr(vS+16*i,16)}, {vr(vK+4*i,4)}, {vr(vQ,4)}, 0')
        else:
            A(f'v_mfma_f32_32x32x16_bf16 {vr(vK,16)}, {vr(vK+32,4)}, {vr(vQ,4)}, 0')
        if l:
            l2 = A.newlabel('L_atv')
            A(f's_branch {l2}')
            A.label(l)
            for r in range(16): A(f'v_mov_b32 v{sreg(i,r)}, v{vNEG}')
            A.label(l2)
    A('s_nop 7'); A('s_nop 7')
    for r in range(16):
        c = 16 * (r // 8) + r % 8
        A(f'v_cmp_gt_i32 vcc, {c}, v9')
        A(f'v_cndmask_b32 v{sreg(0,r)}, v{vNEG}, v{sreg(0,r)}, vcc')
        A(f'v_cndmask_b32 v{sreg(8,r)}, v{sreg(8,r)}, v{vNEG}, vcc')
    allr = [sreg(i, r) for i in range(9) for r in range(16)]
    A(f'v_max3_f32 v2, v{allr[0]}, v{allr[1]}, v{allr[2]}'); A(f'v_max3_f32 v3, v{allr[3]}, v{allr[4]}, v{allr[5]}')
    for k in range(6, 144, 4):
        A(f'v_max3_f32 v2, v2, v{allr[k]}, v{allr[k+1]}')
        if k + 3 < 144: A(f'v_max3_f32 v3, v3, v{allr[k+2]}, v{allr[k+3]}')
    A('v_max_f32 v2, v2, v3'); A('v_mov_b32 v3, v2'); A('v_permlane32_swap_b32 v2, v3'); A('v_max_f32 v2, v2, v3')
    A(f'v_mul_f32 v2, s{sE3}, v2')
    for r in range(16): A(f'v_accvgpr_write_b32 a{r}, 0')
    for i in range(9):
        l = skip_if_invalid(i, 'p')
        for r in range(16): A(f'v_fma_f32 v{sreg(i,r)}, v{sreg(i,r)}, s{sE3}, -v2')
        for r in range(16): A(f'v_exp_f32 v{sreg(i,r)}, v{sreg(i,r)}')
        b = sreg(i, 0)
        for r in range(8): A(f'v_cvt_pk_bf16_f32 v{b+r}, v{b+2*r}, v{b+2*r+1}')
        for u in range(2):
            A(f'v_mfma_f32_32x32x16_bf16 a[0:15], {vr(vV+8*i+4*u,4)}, {vr(b+4*u,4)}, a[0:15]')
        if l: A.label(l)
    A('s_nop 7'); A('s_nop 7')
    for r in range(9): A(f'v_accvgpr_read_b32 v{vS+r}, a{r}')
    A(f'v_rcp_f32 v2, v{vS+8}')
    for r in range(8): A(f'v_mul_f32 v{vS+r}, v{vS+r}, v2')
    for r in range(4): A(f'v_cvt_pk_bf16_f32 v{vS+16+r}, v{vS+2*r}, v{vS+2*r+1}')
    A(f's_lshl_b32 s{sT0}, s{sP0}, 15'); A(f's_lshl_b32 s{sT1}, s{sP1}, 5'); A(f's_add_u32 s{sT0}, s{sT0}, s{sT1}'); A(f's_add_u32 s{sT0}, s{sT0}, {WS_OA}')
    A(f'buffer_store_dwordx4 {vr(vS+16,4)}, v8, {srd(S_WS)}, s{sT0} offen sc1')
    A(f's_add_u32 s{sP0}, s{sP0}, 1'); A(f's_sub_u32 s{sP2}, s{sP2}, 1'); A(f's_cmp_lg_u32 s{sP2}, 0'); A('s_cbranch_scc1 L_at_loop')
    signal(A, S_DBG, off=4 * DBG_CAT)
    A('s_branch L_next')

def gen_sv(A):
    sSEG, sHG, sCB, sHD = sP0, sP1, sP2, 92
    A.label('L_task_sv')
    A(f's_sub_u32 s{sT0}, s{sTK}, {T_SV}'); A(f's_lshr_b32 s{sSEG}, s{sT0}, 4'); A(f's_bfe_u32 s{sHG}, s{sT0}, 0x30001'); A(f's_and_b32 s{sCB}, s{sT0}, 1')
    copy_srd(A, sGB, S_WO)
    A(f's_mov_b32 s{sLDB}, 1024')
    A(f's_lshl_b32 s{sBOFF}, s{sHG}, 19'); A(f's_lshl_b32 s{sT0}, s{sCB}, 9'); A(f's_add_u32 s{sBOFF}, s{sBOFF}, s{sT0}')
    WS.load_w(A)
    WS.setup_a(A)
    A(f's_lshl_b32 s{sHD}, s{sHG}, 2'); A(f's_add_u32 s{sHD}, s{sHD}, s{sW}     ; head')
    wait_cnt(A, S_DBG, 32, off=4 * DBG_RINIT, sleep=32)
    wait_cnt(A, S_DBG, KVQ_DONE, off=4 * DBG_KV, sleep=32)
    vQ = 136; vKV = 168; vKM = 232; vVM = 16; vS = 32; vP = 56; vO = 72; vONE = 248
    vL16, vKMA, vVMA, vD, vNEG, vOW, vPW, vRD = 108, 109, 110, 111, 112, 113, 117, 118
    lane_consts(A)
    A(f'v_lshlrev_b32 v{vL16}, 4, v10')
    A('v_lshrrev_b32 v14, 2, v11'); A('v_and_b32 v15, 1, v11'); A('v_lshl_add_u32 v14, v14, 1, v15'); A('v_lshlrev_b32 v14, 8, v14'); A(f'v_lshl_add_u32 v{vKMA}, v12, 4, v14')
    A('v_lshrrev_b32 v14, 2, v11'); A('v_and_b32 v15, 3, v11'); A('v_lshl_add_u32 v14, v14, 3, v15   ; kappa0(n)')
    A('v_lshlrev_b32 v9, 3, v12'); A(f'v_sub_u32 v{vD}, v14, v9')
    A('v_lshlrev_b32 v9, 4, v14'); A(f'v_lshl_add_u32 v{vVMA}, v12, 2, v9')
    A('v_lshlrev_b32 v13, 10, v14'); A(f's_lshl_b32 s{sT0}, s{sW}, 8'); A(f'v_add_u32 v13, s{sT0}, v13')
    for wp in range(4):
        A(f'v_add_u32 v9, {4 * wp}, v12'); A('v_xor_b32 v9, v9, v11'); A(f'v_lshl_add_u32 v{vOW + wp}, v9, 4, v13')
    A('v_lshlrev_b32 v13, 11, v14'); A(f's_lshl_b32 s{sT0}, s{sW}, 7'); A(f'v_add_u32 v13, s{sT0}, v13'); A(f'v_lshl_add_u32 v{vPW}, v12, 4, v13')
    A(f'v_mov_b32 v{vNEG}, 0xff800000')
    for r in range(4): A(f'v_mov_b32 v{vONE+r}, 0x3f803f80')
    C = fbits(128 ** -0.5 * math.log2(math.e))
    A(f's_mov_b32 s{sE3}, {C}')
    def qkv_loads(segreg):
        A(f's_lshr_b32 s{sT3}, s{segreg}, 2'); A(f's_lshl_b32 s{sT3}, s{sT3}, 2'); A(f's_add_u32 s{sT3}, s{sT3}, {4 * DBG_KV}')
        wait_cnt(A, S_DBG, KVQ_DONE, off_sgpr=sT3, sleep=16)
        A(f's_lshl_b32 s{sT1}, s{segreg}, 5'); A(f's_add_u32 s{sT1}, s{sT1}, s{sHD}')
        A(f's_lshl_b32 s{sT0}, s{sT1}, 13'); A(f's_add_u32 s{sT0}, s{sT0}, {WS_QF}')
        for i in range(8):
            if i == 4: A(f's_add_u32 s{sT0}, s{sT0}, 4096')
            A(f'buffer_load_dwordx4 {vr(vQ+4*i,4)}, v{vL16}, {srd(S_WS)}, s{sT0} offen offset:{1024*(i%4)} sc1')
        A(f's_lshl_b32 s{sT0}, s{sT1}, 14'); A(f's_add_u32 s{sT0}, s{sT0}, {WS_KVF}')
        for i in range(16):
            if i and i % 4 == 0: A(f's_add_u32 s{sT0}, s{sT0}, 4096')
            A(f'buffer_load_dwordx4 {vr(vKV+4*i,4)}, v{vL16}, {srd(S_WS)}, s{sT0} offen offset:{1024*(i%4)} sc1')
    qkv_loads(sSEG)
    def svt(i):
        if not LITE: return
        A('s_memrealtime s[94:95]'); A('s_waitcnt lgkmcnt(0)')
        A(f's_lshl_b32 s96, s{sSEG}, 1'); A(f's_add_u32 s96, s96, s{sCB}'); A('s_lshl_b32 s96, s96, 3'); A(f's_add_u32 s96, s96, s{sHG}'); A('s_lshl_b32 s96, s96, 5'); A(f's_add_u32 s96, s96, {113*MB + 4*i}')
        A('v_mov_b32 v120, s94'); A('v_mov_b32 v121, s96')
        A(f'buffer_store_dword v120, v121, {srd(S_WS)}, 0 offen')
    A.label('L_sv_loop')
    svt(0)
    A(f's_lshl_b32 s{sE0}, s{sSEG}, 5'); A(f's_add_u32 s{sE0}, s{sE0}, s{sHD}     ; seg*32+h')
    A('s_waitcnt vmcnt(0)')
    for qt in range(2):
        for kt in range(2):
            d = vS + 12 * qt + 4 * kt
            for w in range(4):
                A(f'v_mfma_f32_16x16x32_bf16 {vr(d,4)}, {vr(vKV + 16 * w + 4 * kt, 4)}, {vr(vQ+8*w+4*qt,4)}, {vr(d,4) if w else 0}')
    svt(1)
    A(f's_lshl_b32 s{sT3}, s{sHD}, 7'); A(f's_add_u32 s{sT3}, s{sT3}, {WS_PROG}')
    A(f's_add_u32 s{sE1}, s{sSEG}, 1')
    wait_cnt(A, S_WS, f's{sE1}', off_sgpr=sT3, sleep=2, adaptive=True)
    svt(2)
    A(f's_lshl_b32 s{sT0}, s{sE0}, 11'); A(f's_add_u32 s{sT0}, s{sT0}, {WS_KM}')
    for w in range(4): A(f'buffer_load_dwordx4 {vr(vKM+4*w,4)}, v{vKMA}, {srd(S_WS)}, s{sT0} offen offset:{64*w} sc1')
    A(f's_add_u32 s{sT0}, s{sT0}, {WS_VMT - WS_KM}')
    for w in range(4):
        for a in range(2):
            A(f'buffer_load_dword v{vVM+4*w+2*a}, v{vVMA}, {srd(S_WS)}, s{sT0} offen offset:{512*w+64*a} sc1')
            A(f'v_mov_b32 v{vVM+4*w+2*a+1}, 0')
    for qt in range(2):
        b = vS + 12 * qt
        for kt in range(2):
            for r in range(4):
                c = 4 * kt + r - 4 * qt
                A(f'v_cmp_gt_i32 vcc, {c}, v{vD}')
                A(f'v_cndmask_b32 v{b+4*kt+r}, v{b+4*kt+r}, v{vNEG}, vcc')
    A('s_waitcnt vmcnt(8)' if not LITE else 's_waitcnt vmcnt(0)')
    for qt in range(2):
        d = vS + 12 * qt + 8
        for w in range(4):
            A(f'v_mfma_f32_16x16x32_bf16 {vr(d,4)}, {vr(vKM + 4 * w, 4)}, {vr(vQ+8*w+4*qt,4)}, {vr(d,4) if w else 0}')
    A('s_barrier')
    for qt in range(2):
        b = vS + 12 * qt
        A(f'v_max3_f32 v2, v{b}, v{b+1}, v{b+2}'); A(f'v_max3_f32 v3, v{b+3}, v{b+4}, v{b+5}')
        A(f'v_max3_f32 v2, v2, v{b+6}, v{b+7}'); A(f'v_max3_f32 v3, v3, v{b+8}, v{b+9}'); A('v_max_f32 v2, v2, v3')
        A('v_mov_b32 v3, v2'); A('v_permlane16_swap_b32 v2, v3'); A('v_max_f32 v2, v2, v3')
        A('v_mov_b32 v3, v2'); A('v_permlane32_swap_b32 v2, v3'); A('v_max_f32 v2, v2, v3')
        A(f'v_mul_f32 v2, s{sE3}, v2')
        for r in range(10): A(f'v_fma_f32 v{b+r}, v{b+r}, s{sE3}, -v2')
        for r in range(10): A(f'v_exp_f32 v{b+r}, v{b+r}')
        p = vP + 8 * qt
        for r in range(5): A(f'v_cvt_pk_bf16_f32 v{p+r}, v{b+2*r}, v{b+2*r+1}')
        A(f'v_mov_b32 v{p+5}, 0')
        o = vO
        if qt == 0: A('s_waitcnt vmcnt(0)')
        A(f'v_mfma_f32_16x16x32_bf16 {vr(o+32,4)}, {vr(vONE,4)}, {vr(p,4)}, 0')
        for w in range(4):
            for a in range(2):
                d = o + 8 * w + 4 * a
                A(f'v_mfma_f32_16x16x32_bf16 {vr(d,4)}, {vr(vKV+16*w+8+4*a,4)}, {vr(p,4)}, 0')
        A(f'v_mfma_f32_16x16x16_bf16 {vr(o+32,4)}, {vr(vONE,2)}, {vr(p+4,2)}, {vr(o+32,4)}')
        for w in range(4):
            for a in range(2):
                d = o + 8 * w + 4 * a
                A(f'v_mfma_f32_16x16x16_bf16 {vr(d,4)}, {vr(vVM+4*w+2*a,2)}, {vr(p+4,2)}, {vr(d,4)}')
        A(f'v_rcp_f32 v2, v{o+32}')
        for r in range(32): A(f'v_mul_f32 v{o+r}, v{o+r}, v2')
        for w in range(4):
            d = o + 8 * w
            for r in range(4): A(f'v_cvt_pk_bf16_f32 v{d+r}, v{o+8*w+2*r}, v{o+8*w+2*r+1}')
            A(f'ds_write_b128 v{vOW+w}, {vr(d,4)} offset:{4096*qt}')
    svt(3)
    A('s_waitcnt lgkmcnt(0)')
    A('s_barrier')
    WS.compute(A, 0, 'T', TM=2)
    svt(4)
    A(f's_lshl_b32 s{sE2}, s{sSEG}, 1'); A(f's_add_u32 s{sE2}, s{sE2}, s{sCB}      ; seg*2+cb')
    A(f's_lshl_b32 s{sE1}, s{sE2}, 18'); A(f's_add_u32 s{sE1}, s{sE1}, {WS_PART}'); A(f's_lshl_b32 s{sT0}, s{sW}, 13'); A(f's_add_u32 s{sE1}, s{sE1}, s{sT0}')
    A(f's_lshl_b32 s{sT0}, s{sHG}, 15'); A(f's_add_u32 s{sT0}, s{sT0}, s{sE1}')
    for t in range(8):
        if t == 4: A(f's_add_u32 s{sT0}, s{sT0}, 4096')
        A(f'buffer_store_dwordx4 {vr(WS.vACC + 4 * t, 4)}, v{vL16}, {srd(S_WS)}, s{sT0} offen offset:{1024 * (t % 4)} sc1')
    A(f's_lshl_b32 s{sT3}, s{sE2}, 7'); A(f's_add_u32 s{sT3}, s{sT3}, {WS_CNT}')
    signal(A, S_WS, off_expr_sgpr=sT3)
    svt(5)
    wait_cnt(A, S_WS, 8, off_sgpr=sT3, sleep=1)
    svt(6)
    A(f's_lshl_b32 s{sT0}, s{sHG}, 10'); A(f's_add_u32 s{sT0}, s{sT0}, s{sE1}')
    for i in range(8):
        A(f'buffer_load_dwordx4 {vr(vO + 4 * i, 4)}, v{vL16}, {srd(S_WS)}, s{sT0} offen sc1')
        if i < 7: A(f's_add_u32 s{sT0}, s{sT0}, 32768')
    A('s_waitcnt vmcnt(0)')
    for st in (16, 8, 4):
        for r in range(st): A(f'v_add_f32 v{vO+r}, v{vO+r}, v{vO+st+r}')
    A(f'v_cvt_pk_bf16_f32 v{vO+4}, v{vO}, v{vO+1}'); A(f'v_cvt_pk_bf16_f32 v{vO+5}, v{vO+2}, v{vO+3}')
    A(f's_lshl_b32 s{sT0}, s{sSEG}, 16'); A(f's_lshr_b32 s{sT1}, s{sHG}, 2'); A(f's_lshl_b32 s{sT1}, s{sT1}, 13'); A(f's_add_u32 s{sT0}, s{sT0}, s{sT1}')
    A(f's_lshl_b32 s{sT1}, s{sCB}, 9'); A(f's_add_u32 s{sT0}, s{sT0}, s{sT1}'); A(f's_add_u32 s{sT0}, s{sT0}, 1024')
    A(f's_bfe_u32 s{sT1}, s{sHG}, 0x10001'); A(f's_lshl_b32 s{sT1}, s{sT1}, 6'); A(f's_add_u32 s{sT0}, s{sT0}, s{sT1}')
    A(f's_and_b32 s{sT1}, s{sHG}, 1'); A(f's_lshl_b32 s{sT1}, s{sT1}, 3'); A(f's_add_u32 s{sT0}, s{sT0}, s{sT1}')
    A(f'buffer_store_dwordx2 {vr(vO+4,2)}, v{vPW}, {srd(S_OUT)}, s{sT0} offen')
    if TRACE or LITE:
        A('s_memrealtime s[94:95]'); A('s_waitcnt lgkmcnt(0)')
        A(f's_lshl_b32 s96, s{sE2}, 3'); A(f's_add_u32 s96, s96, s{sHG}'); A('s_lshl_b32 s96, s96, 2'); A(f's_add_u32 s96, s96, {111*MB}')
        A('v_mov_b32 v120, s94'); A('v_mov_b32 v121, s96')
        A(f'buffer_store_dword v120, v121, {srd(S_WS)}, 0 offen')
    A(f's_add_u32 s{sSEG}, s{sSEG}, {NSET}')
    A(f's_cmp_ge_u32 s{sSEG}, 64'); A('s_cbranch_scc1 L_next')
    qkv_loads(sSEG)
    A('s_branch L_sv_loop')

def gen_worker(A):
    A.label('L_worker')
    A(f's_mov_b32 s{sTK}, 4000')
    A.label('L_next')
    A('s_barrier')
    trace(A, 2)
    l = A.newlabel('L_ntk')
    A(f's_cmp_lg_u32 s{sW}, 0'); A(f's_cbranch_scc1 {l}')
    A('v_mov_b32 v120, 1'); A(f'v_mov_b32 v121, {4 * DBG_QUEUE}'); A(f'v_mov_b32 v122, {LDS_TICK}')
    A('s_mov_b64 exec, 1')
    A(f'buffer_atomic_add v120, v121, {srd(S_DBG)}, 0 offen sc0')
    A('s_waitcnt vmcnt(0)')
    A('ds_write_b32 v122, v120')
    A('s_mov_b64 exec, -1')
    A('s_waitcnt lgkmcnt(0)')
    A.label(l)
    A('s_barrier')
    A(f'v_mov_b32 v122, {LDS_TICK}')
    A('ds_read_b32 v120, v122')
    A('s_waitcnt lgkmcnt(0)')
    A(f'v_readfirstlane_b32 s{sTK}, v120')
    trace(A, 0)
    A(f's_cmp_lt_u32 s{sTK}, {T_G2}'); A('s_cbranch_scc1 L_task_kv')
    A(f's_cmp_lt_u32 s{sTK}, {T_Q}'); A('s_cbranch_scc1 L_task_g2')
    A(f's_cmp_lt_u32 s{sTK}, {T_SV}'); A('s_cbranch_scc1 L_task_q')
    A(f's_cmp_lt_u32 s{sTK}, {T_AT}'); A('s_cbranch_scc1 L_task_sv')
    A(f's_cmp_lt_u32 s{sTK}, {T_G3}'); A('s_cbranch_scc1 L_task_at')
    A(f's_cmp_lt_u32 s{sTK}, {T_END}'); A('s_cbranch_scc1 L_task_g3')
    A('s_branch L_end0')
    gen_g1(A); gen_g2(A); gen_g3(A); gen_at(A); gen_sv(A)
```

```python
from asmlib import *
from common import *
from gemm import *
import wsgemm as WS
import math, struct
def fbits(x): return struct.unpack('<I', struct.pack('<f', x))[0]

sTK, sP0, sP1, sP2 = 88, 89, 90, 91
LDS_TICK = 163840 - 64
G128 = Gemm(128, 128, 2, 2, 'g128')
G32 = Gemm(32, 128, 1, 4, 'g32')

import os
NSET = int(os.environ.get('NSET', '8'))
N_KV, N_Q, N_G2, N_SV, N_AT, N_G3 = 192, 64, 24, 16 * NSET, 256, 64
T_KV = 0; T_G2 = T_KV + N_KV; T_Q = T_G2 + N_G2; T_SV = T_Q + N_Q; T_AT = T_SV + N_SV; T_G3 = T_AT + N_AT; T_END = T_G3 + N_G3
KVQ_DONE = 0x100020
def divmod_const(A, src, d, q, r):
    A(f's_mul_hi_u32 s{q}, s{src}, {(1 << 32) // d + 1}')
    A(f's_mul_i32 s{r}, s{q}, {d}'); A(f's_sub_u32 s{r}, s{src}, s{r}')

TRACE = False
THROTTLE = False
LITE = False
def trace(A, slot):
    if not TRACE: return
    A('s_memrealtime s[94:95]'); A('s_waitcnt lgkmcnt(0)')
    A(f's_lshl_b32 s96, s{sTK}, 4'); A(f's_add_u32 s96, s96, {110*MB + 4*slot}')
    A('v_mov_b32 v120, s94'); A('v_mov_b32 v121, s96')
    A(f'buffer_store_dword v120, v121, {srd(S_WS)}, 0 offen')

def copy_srd(A, dst, src):
    for i in range(4): A(f's_mov_b32 s{dst+i}, s{src+i}')

def signal(A, S, off_expr_sgpr=None, off=None):
    A('s_waitcnt vmcnt(0)')
    A('s_barrier')
    l = A.newlabel('L_sig')
    A(f's_cmp_lg_u32 s{sW}, 0'); A(f's_cbranch_scc1 {l}')
    A('v_mov_b32 v120, 1')
    A(f'v_mov_b32 v121, {off}' if off is not None else f'v_mov_b32 v121, s{off_expr_sgpr}')
    A('s_mov_b64 exec, 1')
    A(f'buffer_atomic_add v120, v121, {srd(S)}, 0 offen')
    A('s_mov_b64 exec, -1')
    A.label(l)

def wait_cnt(A, S, target, off=None, off_sgpr=None, sleep=8, adaptive=False):
    l = A.newlabel('L_wt'); l2 = A.newlabel('L_wd')
    A(f'v_mov_b32 v121, {off}' if off is not None else f'v_mov_b32 v121, s{off_sgpr}')
    A.label(l)
    A(f'buffer_load_dword v120, v121, {srd(S)}, 0 offen sc1')
    A('s_waitcnt vmcnt(0)')
    A(f'v_readfirstlane_b32 s{sT0}, v120')
    A(f's_cmp_ge_u32 s{sT0}, {target}')
    A(f's_cbranch_scc1 {l2}')
    if adaptive:
        l3 = A.newlabel('L_wf')
        A(f's_sub_u32 s{sT0}, {target}, s{sT0}')
        A(f's_cmp_lt_u32 s{sT0}, 2'); A(f's_cbranch_scc1 {l3}')
        A('s_sleep 24')
        A(f's_cmp_lt_u32 s{sT0}, 3'); A(f's_cbranch_scc1 {l3}')
        A('s_sleep 48')
        A.label(l3)
    A(f's_sleep {sleep}')
    A(f's_branch {l}')
    A.label(l2)

def lane_consts(A):
    A('v_and_b32 v10, 63, v0'); A('v_and_b32 v11, 15, v10'); A('v_lshrrev_b32 v12, 4, v10')

def atomic_add(A, S, val, off_sgpr):
    A(f'v_mov_b32 v120, {val}'); A(f'v_mov_b32 v121, s{off_sgpr}')
    A('s_mov_b64 exec, 1')
    A(f'buffer_atomic_add v120, v121, {srd(S)}, 0 offen')
    A('s_mov_b64 exec, -1')

def gen_g1(A):
    A.label('L_task_kv')
    A(f's_lshr_b32 s{sT0}, s{sTK}, 5'); A(f's_and_b32 s{sP1}, s{sTK}, 15'); A(f's_bfe_u32 s{sP2}, s{sTK}, 0x10004')
    A(f's_sub_u32 s{sP0}, s{sT0}, 2'); A(f's_lshl_b32 s{sP0}, s{sP0}, 2'); A(f's_mov_b32 s{sKIT}, 4')
    A(f's_cmp_lt_u32 s{sT0}, 3'); A(f's_cselect_b32 s{sP0}, s{sT0}, s{sP0}'); A(f's_cselect_b32 s{sKIT}, 2, s{sKIT}')
    A(f's_cmp_lt_u32 s{sT0}, 2'); A(f's_cselect_b32 s{sKIT}, 1, s{sKIT}')
    l = A.newlabel('L_nz')
    A(f's_cmp_lg_u32 s{sTK}, 0'); A(f's_cbranch_scc1 {l}')
    A('v_lshlrev_b32 v120, 7, v0'); A('v_mov_b32 v122, 0'); A('v_mov_b32 v123, 0'); A(f's_mov_b32 s{sT0}, {WS_CNT}')
    A(f'buffer_store_dwordx2 v[122:123], v120, {srd(S_WS)}, s{sT0} offen sc1')
    A.label(l)
    A(f's_cmp_eq_u32 s{sP2}, 0'); A('s_cbranch_scc1 L_g1_k')
    copy_srd(A, sGB, S_WV); A('s_branch L_g1_go')
    A.label('L_g1_k'); copy_srd(A, sGB, S_WK); A('s_branch L_g1_go')
    A.label('L_task_q')
    A(f's_sub_u32 s{sT0}, s{sTK}, {T_Q}'); A(f's_lshr_b32 s{sP0}, s{sT0}, 4'); A(f's_lshl_b32 s{sP0}, s{sP0}, 2'); A(f's_and_b32 s{sP1}, s{sT0}, 15'); A(f's_mov_b32 s{sP2}, 2'); A(f's_mov_b32 s{sKIT}, 4')
    copy_srd(A, sGB, S_WQ)
    A.label('L_g1_go')
    copy_srd(A, sGA, S_BX)
    A(f's_mov_b32 s{sLDB}, 8192')
    A(f's_lshl_b32 s{sBOFF}, s{sP1}, 9')
    l = A.newlabel('L_urg')
    if THROTTLE:
        A(f's_cmp_lt_u32 s{sTK}, 96'); A(f's_cbranch_scc1 {l}')
        wait_cnt(A, S_DBG, 32, off=4 * DBG_WTK, sleep=16)
    A.label(l)
    WS.load_w(A)
    trace(A, 3)
    WS.setup_a(A)
    A(f's_lshl_b32 s{sAOFF}, s{sP0}, 17')
    A('v_lshlrev_b32 v1, 4, v10')
    A(f's_lshl_b32 s{sE0}, s{sP0}, 7'); A(f's_lshl_b32 s{sT0}, s{sP1}, 1'); A(f's_add_u32 s{sE0}, s{sE0}, s{sT0}'); A(f's_lshr_b32 s{sT0}, s{sW}, 1'); A(f's_add_u32 s{sE0}, s{sE0}, s{sT0}')
    A(f's_lshl_b32 s{sE0}, s{sE0}, 2'); A(f's_and_b32 s{sT0}, s{sW}, 1'); A(f's_lshl_b32 s{sT0}, s{sT0}, 1'); A(f's_add_u32 s{sE0}, s{sE0}, s{sT0}')
    A(f's_cmp_eq_u32 s{sP2}, 2')
    A(f's_cselect_b32 s{sE1}, 11, 12'); A(f's_cselect_b32 s{sE2}, {WS_QF}, {WS_KVF}'); A(f's_cselect_b32 s{sLDA}, 65536, 1')
    A(f's_lshl_b32 s{sE0}, s{sE0}, s{sE1}'); A(f's_add_u32 s{sE0}, s{sE0}, s{sE2}')
    A(f's_lshl_b32 s{sE3}, 1, s{sE1}    ; stride')
    def sig(A, d):
        A(f's_add_u32 s{sT3}, s{sP0}, s{sAINC}'); A(f's_lshl_b32 s{sT3}, s{sT3}, 2'); A(f's_add_u32 s{sT3}, s{sT3}, {4 * DBG_KV - 4}')
        atomic_add(A, S_DBG, f's{sLDA}', sT3)
    def epi_t(A, half):
        for i in range(2):
            for c in range(2):
                A(f's_mul_i32 s{sT0}, s{sE3}, {i * 128 + c}'); A(f's_add_u32 s{sT0}, s{sT0}, s{sE0}')
                for kt in range(2):
                    tm = 2 * i + kt
                    d = WS.vPKD + 4 * kt
                    WS.pack(A, tm * 4 + 2 * c, tm * 4 + 2 * c + 1, d)
                    A(f'buffer_store_dwordx4 {vr(d,4)}, v1, {srd(S_WS)}, s{sT0} offen offset:{1024*kt} sc1')
        A(f's_lshl_b32 s{sT0}, s{sE3}, 8'); A(f's_add_u32 s{sE0}, s{sE0}, s{sT0}')
    def epi_n(A, half):
        for i in range(2):
            for c in range(2):
                A(f's_add_u32 s{sT0}, s{sE0}, {(i * 128 + c) * 4096}')
                for a in range(2):
                    tn = 2 * c + a
                    d = WS.vPKD + 4 * a
                    WS.pack(A, (2 * i) * 4 + tn, (2 * i + 1) * 4 + tn, d)
                    A(f'buffer_store_dwordx4 {vr(d,4)}, v1, {srd(S_WS)}, s{sT0} offen offset:{2048 + 1024*a} sc1')
        A(f's_add_u32 s{sE0}, s{sE0}, {256 * 4096}')
    def early(A, l):
        A(f's_cmp_ge_u32 s{sTK}, 32'); A(f's_cbranch_scc1 {l}')
        A('s_waitcnt vmcnt(0)')
        A('s_barrier')
        A(f's_cmp_lg_u32 s{sW}, 0'); A(f's_cbranch_scc1 {l}')
        A(f's_mov_b32 s{sT3}, {4 * DBG_CQ}')
        atomic_add(A, S_DBG, 1, sT3)
    A(f's_cmp_eq_u32 s{sP2}, 1'); A('s_cbranch_scc1 L_g1_v')
    WS.run_blocks(A, 'T', epi_t, sig, 'g1t', early)
    A('s_branch L_next')
    A.label('L_g1_v')
    WS.run_blocks(A, 'N', epi_n, sig, 'g1n', early)
    A('s_branch L_next')

def gen_g2(A):
    A.label('L_task_g2')
    A(f's_sub_u32 s{sT0}, s{sTK}, {T_G2}')
    divmod_const(A, sT0, 6, sP0, sP1)
    copy_srd(A, sGA, S_AX); copy_srd(A, sGB, S_AWQKV)
    A(f's_mov_b32 s{sLDB}, 3072'); A(f's_mov_b32 s{sKIT}, 4')
    A(f's_lshl_b32 s{sBOFF}, s{sP1}, 9')
    if THROTTLE: wait_cnt(A, S_DBG, 32, off=4 * DBG_WTK, sleep=16)
    WS.load_w(A)
    WS.setup_a(A)
    A(f's_lshl_b32 s{sAOFF}, s{sP0}, 19')
    lane_consts(A)
    A(f's_and_b32 s{sT0}, s{sP1}, 1'); A(f's_lshl_b32 s{sT0}, s{sT0}, 4'); A(f's_lshl_b32 s{sT1}, s{sW}, 2'); A(f's_add_u32 s{sT0}, s{sT0}, s{sT1}')
    A(f's_lshl_b32 s{sE0}, s{sT0}, 16'); A(f's_lshl_b32 s{sT0}, s{sP0}, 14'); A(f's_add_u32 s{sE0}, s{sE0}, s{sT0}')
    def sig(A, d):
        A(f's_mov_b32 s{sT3}, {4 * DBG_CG2}')
        atomic_add(A, S_DBG, 1, sT3)
    A(f's_cmp_ge_u32 s{sP1}, 4'); A('s_cbranch_scc1 L_g2_v')
    A('v_lshrrev_b32 v13, 3, v11'); A('v_lshlrev_b32 v13, 4, v13'); A('v_and_b32 v14, 3, v11'); A('v_add_u32 v13, v13, v14')
    A('v_bfe_u32 v14, v11, 2, 1')
    A(f's_cmp_ge_u32 s{sP1}, 2')
    A(f's_cselect_b32 s{sE1}, 2, 3'); A(f's_cselect_b32 s{sE2}, 128, 64'); A(f's_cselect_b32 s{sE3}, {WS_KA - WS_QA}, 0'); A(f's_add_u32 s{sE3}, s{sE3}, {WS_QA}')
    A(f'v_lshlrev_b32 v14, s{sE1}, v14'); A('v_add_u32 v13, v13, v14')
    A('v_and_b32 v14, 1, v12'); A('v_lshl_add_u32 v13, v14, 5, v13')
    A('v_lshlrev_b32 v13, 4, v13')
    A('v_lshrrev_b32 v14, 1, v12'); A('v_lshl_add_u32 v1, v14, 16, v13')
    A(f's_add_u32 s{sE0}, s{sE0}, s{sE3}')
    WS.setup_a(A)
    def epi_t(A, half):
        for i in range(2):
            for c in range(2):
                for kt in range(2):
                    tm = 2 * i + kt
                    d = WS.vPKD + 4 * kt
                    A(f's_add_u32 s{sT0}, s{sE0}, {i * 1024 + c * 131072}')
                    if kt: A(f's_add_u32 s{sT0}, s{sT0}, s{sE2}')
                    WS.pack(A, tm * 4 + 2 * c, tm * 4 + 2 * c + 1, d)
                    A(f'buffer_store_dwordx4 {vr(d,4)}, v1, {srd(S_WS)}, s{sT0} offen sc1')
        A(f's_add_u32 s{sE0}, s{sE0}, 2048')
    WS.run_blocks(A, 'T', epi_t, sig, 'g2t')
    A('s_branch L_next')
    A.label('L_g2_v')
    A('v_and_b32 v13, 7, v11')
    A('v_and_b32 v14, 1, v12'); A('v_lshl_add_u32 v13, v14, 4, v13')
    A('v_lshrrev_b32 v14, 1, v12'); A('v_lshl_add_u32 v13, v14, 5, v13')
    A('v_lshlrev_b32 v13, 4, v13')
    A('v_lshrrev_b32 v14, 3, v11'); A('v_lshl_add_u32 v1, v14, 16, v13')
    A(f's_add_u32 s{sE0}, s{sE0}, {WS_VAT}')
    WS.setup_a(A)
    def epi_n(A, half):
        for i in range(2):
            for c in range(2):
                A(f's_add_u32 s{sT0}, s{sE0}, {i * 1024 + c * 131072}')
                for a in range(2):
                    tn = 2 * c + a
                    d = WS.vPKD + 4 * a
                    WS.pack(A, (2 * i) * 4 + tn, (2 * i + 1) * 4 + tn, d)
                    A(f'buffer_store_dwordx4 {vr(d,4)}, v1, {srd(S_WS)}, s{sT0} offen offset:{128*a} sc1')
        A(f's_add_u32 s{sE0}, s{sE0}, 2048')
    WS.run_blocks(A, 'N', epi_n, sig, 'g2n')
    A('s_branch L_next')

def out_epilogue(A, G):
    lane_consts(A)
    A('v_lshrrev_b32 v13, 2, v11'); A('v_and_b32 v14, 3, v11'); A('v_lshl_add_u32 v13, v13, 3, v14')
    A('v_lshlrev_b32 v13, 11, v13'); A('v_lshl_add_u32 v13, v12, 4, v13')
    if G.WM == 2:
        A(f's_lshr_b32 s{sT0}, s{sW}, 1'); A(f's_lshl_b32 s{sT0}, s{sT0}, 17'); A(f's_add_u32 s{sE0}, s{sE0}, s{sT0}')
        A(f's_and_b32 s{sT0}, s{sW}, 1'); A(f's_lshl_b32 s{sT0}, s{sT0}, 7'); A(f's_add_u32 s{sE0}, s{sE0}, s{sT0}')
    else:
        A(f's_lshl_b32 s{sT0}, s{sW}, 6'); A(f's_add_u32 s{sE0}, s{sE0}, s{sT0}')
    n = 0
    for tm in range(G.TM):
        A(f's_add_u32 s{sT0}, s{sE0}, {(32 * (tm // 2) + 4 * (tm % 2)) * 2048}')
        for c in range(G.TN // 2):
            d = 16 + 4 * n; n += 1
            G.pack(A, tm * G.TN + 2 * c, tm * G.TN + 2 * c + 1, d)
            A(f'buffer_store_dwordx4 {vr(d,4)}, v13, {srd(S_OUT)}, s{sT0} offen offset:{64*c}')

def gen_g3(A):
    G = G128
    A.label('L_task_g3')
    A(f's_sub_u32 s{sT1}, s{sTK}, {T_G3}')
    A(f's_lshr_b32 s{sP0}, s{sT1}, 2'); A(f's_and_b32 s{sP1}, s{sT1}, 3')
    wait_cnt(A, S_DBG, N_AT, off=4 * DBG_CAT, sleep=32)
    copy_srd(A, sGA, S_WS); copy_srd(A, sGB, S_AWO)
    A(f's_mov_b32 s{sLDA}, 1024'); A(f's_mov_b32 s{sLDB}, 1024'); A(f's_mov_b32 s{sKIT}, 2')
    A(f's_lshl_b32 s{sAOFF}, s{sP0}, 17'); A(f's_add_u32 s{sAOFF}, s{sAOFF}, {WS_OA}'); A(f's_lshl_b32 s{sBOFF}, s{sP1}, 8')
    G.setup(A)
    G.mainloop(A, 'T')
    A(f's_lshl_b32 s{sE0}, s{sP0}, 18'); A(f's_lshl_b32 s{sT0}, s{sP1}, 8'); A(f's_add_u32 s{sE0}, s{sE0}, s{sT0}')
    out_epilogue(A, G)
    A('s_branch L_next')

def gen_at(A):
    A.label('L_task_at')
    A(f's_sub_u32 s{sT1}, s{sTK}, {T_AT}')
    A(f's_lshr_b32 s{sP0}, s{sT1}, 3'); A(f's_and_b32 s{sP1}, s{sT1}, 7')
    wait_cnt(A, S_DBG, N_G2 * 4, off=4 * DBG_CG2, sleep=32)
    A(f's_lshl_b32 s{sP1}, s{sP1}, 2'); A(f's_add_u32 s{sP1}, s{sP1}, s{sW}     ; head')
    A(f's_lshl_b32 s{sP0}, s{sP0}, 1')
    A(f's_mov_b32 s{sP2}, 2')
    vQ = 16; vK = 20; vV = 56; vS = 128; vO = 0
    vNEG = 15
    A('v_and_b32 v10, 63, v0'); A('v_lshlrev_b32 v11, 4, v10     ; lane*16')
    A('v_and_b32 v12, 31, v10'); A('v_lshrrev_b32 v13, 5, v10     ; q, hh')
    A('v_lshl_add_u32 v14, v13, 4, v12'); A('v_lshlrev_b32 v14, 4, v14')
    A('v_lshlrev_b32 v9, 3, v13'); A('v_sub_u32 v9, v12, v9')
    A(f'v_mov_b32 v{vNEG}, 0xff800000')
    A('v_lshlrev_b32 v8, 10, v12'); A('v_lshl_add_u32 v8, v13, 4, v8')
    A('v_cmp_eq_u32 vcc, 16, v12'); A('v_cmp_eq_u32 s[98:99], 20, v12'); A('s_or_b64 vcc, vcc, s[98:99]')
    A('v_mov_b32 v7, 0x3f803f80'); A('v_cndmask_b32 v7, 0, v7, vcc')
    for r in range(72): A(f'v_mov_b32 v{vV+r}, v7')
    A('s_mov_b32 s98, 0x0000ffff'); A('s_mov_b32 s99, 0x0000ffff')
    C = fbits(0.25 * math.log2(math.e))
    A(f's_mov_b32 s{sE3}, {C}')
    A.label('L_at_loop')
    A(f's_lshl_b32 s{sE0}, s{sP1}, 6'); A(f's_add_u32 s{sE0}, s{sE0}, s{sP0}'); A(f's_lshl_b32 s{sE0}, s{sE0}, 10')
    A(f's_add_u32 s{sT0}, s{sE0}, {WS_QA}')
    A(f'buffer_load_dwordx4 {vr(vQ,4)}, v11, {srd(S_WS)}, s{sT0} offen sc1')
    def skip_if_invalid(i, tag):
        if i == 8: return None
        l = A.newlabel(f'L_at{tag}')
        A(f's_cmp_lt_u32 s{sP0}, {8 - i}'); A(f's_cbranch_scc1 {l}')
        return l
    for i in range(9):
        l = skip_if_invalid(i, 'l')
        A(f's_add_u32 s{sT0}, s{sE0}, {WS_KA}'); A(f's_sub_u32 s{sT0}, s{sT0}, {(8 - i) * 1024}')
        A(f'buffer_load_dwordx4 {vr(vK+4*i,4)}, v11, {srd(S_WS)}, s{sT0} offen sc1')
        A(f's_add_u32 s{sT0}, s{sT0}, {WS_VAT - WS_KA}')
        A('s_mov_b64 exec, s[98:99]')
        A(f'buffer_load_dwordx4 {vr(vV+8*i,4)}, v14, {srd(S_WS)}, s{sT0} offen sc1')
        A(f'buffer_load_dwordx4 {vr(vV+8*i+4,4)}, v14, {srd(S_WS)}, s{sT0} offen offset:512 sc1')
        A('s_mov_b64 exec, -1')
        if l: A.label(l)
    A('s_waitcnt vmcnt(0)')
    def sreg(i, r): return (vS + 16 * i + r) if i < 8 else (vK + r)
    for i in range(9):
        l = skip_if_invalid(i, 's')
        if i < 8:
            A(f'v_mfma_f32_32x32x16_bf16 {vr(vS+16*i,16)}, {vr(vK+4*i,4)}, {vr(vQ,4)}, 0')
        else:
            A(f'v_mfma_f32_32x32x16_bf16 {vr(vK,16)}, {vr(vK+32,4)}, {vr(vQ,4)}, 0')
        if l:
            l2 = A.newlabel('L_atv')
            A(f's_branch {l2}')
            A.label(l)
            for r in range(16): A(f'v_mov_b32 v{sreg(i,r)}, v{vNEG}')
            A.label(l2)
    A('s_nop 7'); A('s_nop 7')
    for r in range(16):
        c = 16 * (r // 8) + r % 8
        A(f'v_cmp_gt_i32 vcc, {c}, v9')
        A(f'v_cndmask_b32 v{sreg(0,r)}, v{vNEG}, v{sreg(0,r)}, vcc')
        A(f'v_cndmask_b32 v{sreg(8,r)}, v{sreg(8,r)}, v{vNEG}, vcc')
    allr = [sreg(i, r) for i in range(9) for r in range(16)]
    A(f'v_max3_f32 v2, v{allr[0]}, v{allr[1]}, v{allr[2]}'); A(f'v_max3_f32 v3, v{allr[3]}, v{allr[4]}, v{allr[5]}')
    for k in range(6, 144, 4):
        A(f'v_max3_f32 v2, v2, v{allr[k]}, v{allr[k+1]}')
        if k + 3 < 144: A(f'v_max3_f32 v3, v3, v{allr[k+2]}, v{allr[k+3]}')
    A('v_max_f32 v2, v2, v3'); A('v_mov_b32 v3, v2'); A('v_permlane32_swap_b32 v2, v3'); A('v_max_f32 v2, v2, v3')
    A(f'v_mul_f32 v2, s{sE3}, v2')
    for r in range(16): A(f'v_accvgpr_write_b32 a{r}, 0')
    for i in range(9):
        l = skip_if_invalid(i, 'p')
        for r in range(16): A(f'v_fma_f32 v{sreg(i,r)}, v{sreg(i,r)}, s{sE3}, -v2')
        for r in range(16): A(f'v_exp_f32 v{sreg(i,r)}, v{sreg(i,r)}')
        b = sreg(i, 0)
        for r in range(8): A(f'v_cvt_pk_bf16_f32 v{b+r}, v{b+2*r}, v{b+2*r+1}')
        for u in range(2):
            A(f'v_mfma_f32_32x32x16_bf16 a[0:15], {vr(vV+8*i+4*u,4)}, {vr(b+4*u,4)}, a[0:15]')
        if l: A.label(l)
    A('s_nop 7'); A('s_nop 7')
    for r in range(9): A(f'v_accvgpr_read_b32 v{vS+r}, a{r}')
    A(f'v_rcp_f32 v2, v{vS+8}')
    for r in range(8): A(f'v_mul_f32 v{vS+r}, v{vS+r}, v2')
    for r in range(4): A(f'v_cvt_pk_bf16_f32 v{vS+16+r}, v{vS+2*r}, v{vS+2*r+1}')
    A(f's_lshl_b32 s{sT0}, s{sP0}, 15'); A(f's_lshl_b32 s{sT1}, s{sP1}, 5'); A(f's_add_u32 s{sT0}, s{sT0}, s{sT1}'); A(f's_add_u32 s{sT0}, s{sT0}, {WS_OA}')
    A(f'buffer_store_dwordx4 {vr(vS+16,4)}, v8, {srd(S_WS)}, s{sT0} offen sc1')
    A(f's_add_u32 s{sP0}, s{sP0}, 1'); A(f's_sub_u32 s{sP2}, s{sP2}, 1'); A(f's_cmp_lg_u32 s{sP2}, 0'); A('s_cbranch_scc1 L_at_loop')
    signal(A, S_DBG, off=4 * DBG_CAT)
    A('s_branch L_next')

def gen_sv(A):
    sSEG, sHG, sCB, sHD = sP0, sP1, sP2, 92
    A.label('L_task_sv')
    A(f's_sub_u32 s{sT0}, s{sTK}, {T_SV}'); A(f's_lshr_b32 s{sSEG}, s{sT0}, 4'); A(f's_bfe_u32 s{sHG}, s{sT0}, 0x30001'); A(f's_and_b32 s{sCB}, s{sT0}, 1')
    copy_srd(A, sGB, S_WO)
    A(f's_mov_b32 s{sLDB}, 1024')
    A(f's_lshl_b32 s{sBOFF}, s{sHG}, 19'); A(f's_lshl_b32 s{sT0}, s{sCB}, 9'); A(f's_add_u32 s{sBOFF}, s{sBOFF}, s{sT0}')
    WS.load_w(A)
    WS.setup_a(A)
    A(f's_lshl_b32 s{sHD}, s{sHG}, 2'); A(f's_add_u32 s{sHD}, s{sHD}, s{sW}     ; head')
    wait_cnt(A, S_DBG, 32, off=4 * DBG_RINIT, sleep=32)
    wait_cnt(A, S_DBG, KVQ_DONE, off=4 * DBG_KV, sleep=32)
    vQ = 136; vKV = 168; vKM = 232; vVM = 16; vS = 32; vP = 56; vO = 72; vONE = 248
    vL16, vKMA, vVMA, vD, vNEG, vOW, vPW, vRD = 108, 109, 110, 111, 112, 113, 117, 118
    lane_consts(A)
    A(f'v_lshlrev_b32 v{vL16}, 4, v10')
    A('v_lshrrev_b32 v14, 2, v11'); A('v_and_b32 v15, 1, v11'); A('v_lshl_add_u32 v14, v14, 1, v15'); A('v_lshlrev_b32 v14, 8, v14'); A(f'v_lshl_add_u32 v{vKMA}, v12, 4, v14')
    A('v_lshrrev_b32 v14, 2, v11'); A('v_and_b32 v15, 3, v11'); A('v_lshl_add_u32 v14, v14, 3, v15   ; kappa0(n)')
    A('v_lshlrev_b32 v9, 3, v12'); A(f'v_sub_u32 v{vD}, v14, v9')
    A('v_lshlrev_b32 v9, 4, v14'); A(f'v_lshl_add_u32 v{vVMA}, v12, 2, v9')
    A('v_lshlrev_b32 v13, 10, v14'); A(f's_lshl_b32 s{sT0}, s{sW}, 8'); A(f'v_add_u32 v13, s{sT0}, v13')
    for wp in range(4):
        A(f'v_add_u32 v9, {4 * wp}, v12'); A('v_xor_b32 v9, v9, v11'); A(f'v_lshl_add_u32 v{vOW + wp}, v9, 4, v13')
    A('v_lshlrev_b32 v13, 11, v14'); A(f's_lshl_b32 s{sT0}, s{sW}, 7'); A(f'v_add_u32 v13, s{sT0}, v13'); A(f'v_lshl_add_u32 v{vPW}, v12, 4, v13')
    A(f'v_mov_b32 v{vNEG}, 0xff800000')
    for r in range(4): A(f'v_mov_b32 v{vONE+r}, 0x3f803f80')
    C = fbits(128 ** -0.5 * math.log2(math.e))
    A(f's_mov_b32 s{sE3}, {C}')
    def qkv_loads(segreg):
        A(f's_lshr_b32 s{sT3}, s{segreg}, 2'); A(f's_lshl_b32 s{sT3}, s{sT3}, 2'); A(f's_add_u32 s{sT3}, s{sT3}, {4 * DBG_KV}')
        wait_cnt(A, S_DBG, KVQ_DONE, off_sgpr=sT3, sleep=16)
        A(f's_lshl_b32 s{sT1}, s{segreg}, 5'); A(f's_add_u32 s{sT1}, s{sT1}, s{sHD}')
        A(f's_lshl_b32 s{sT0}, s{sT1}, 13'); A(f's_add_u32 s{sT0}, s{sT0}, {WS_QF}')
        for i in range(8):
            if i == 4: A(f's_add_u32 s{sT0}, s{sT0}, 4096')
            A(f'buffer_load_dwordx4 {vr(vQ+4*i,4)}, v{vL16}, {srd(S_WS)}, s{sT0} offen offset:{1024*(i%4)} sc1')
        A(f's_lshl_b32 s{sT0}, s{sT1}, 14'); A(f's_add_u32 s{sT0}, s{sT0}, {WS_KVF}')
        for i in range(16):
            if i and i % 4 == 0: A(f's_add_u32 s{sT0}, s{sT0}, 4096')
            A(f'buffer_load_dwordx4 {vr(vKV+4*i,4)}, v{vL16}, {srd(S_WS)}, s{sT0} offen offset:{1024*(i%4)} sc1')
    qkv_loads(sSEG)
    def svt(i):
        if not LITE: return
        A('s_memrealtime s[94:95]'); A('s_waitcnt lgkmcnt(0)')
        A(f's_lshl_b32 s96, s{sSEG}, 1'); A(f's_add_u32 s96, s96, s{sCB}'); A('s_lshl_b32 s96, s96, 3'); A(f's_add_u32 s96, s96, s{sHG}'); A('s_lshl_b32 s96, s96, 5'); A(f's_add_u32 s96, s96, {113*MB + 4*i}')
        A('v_mov_b32 v120, s94'); A('v_mov_b32 v121, s96')
        A(f'buffer_store_dword v120, v121, {srd(S_WS)}, 0 offen')
    A.label('L_sv_loop')
    svt(0)
    A(f's_lshl_b32 s{sE0}, s{sSEG}, 5'); A(f's_add_u32 s{sE0}, s{sE0}, s{sHD}     ; seg*32+h')
    A('s_waitcnt vmcnt(0)')
    for qt in range(2):
        for kt in range(2):
            d = vS + 12 * qt + 4 * kt
            for w in range(4):
                A(f'v_mfma_f32_16x16x32_bf16 {vr(d,4)}, {vr(vKV + 16 * w + 4 * kt, 4)}, {vr(vQ+8*w+4*qt,4)}, {vr(d,4) if w else 0}')
    svt(1)
    A(f's_lshl_b32 s{sT3}, s{sHD}, 7'); A(f's_add_u32 s{sT3}, s{sT3}, {WS_PROG}')
    A(f's_add_u32 s{sE1}, s{sSEG}, 1')
    wait_cnt(A, S_WS, f's{sE1}', off_sgpr=sT3, sleep=2, adaptive=True)
    svt(2)
    A(f's_lshl_b32 s{sT0}, s{sE0}, 11'); A(f's_add_u32 s{sT0}, s{sT0}, {WS_KM}')
    for w in range(4): A(f'buffer_load_dwordx4 {vr(vKM+4*w,4)}, v{vKMA}, {srd(S_WS)}, s{sT0} offen offset:{64*w} sc1')
    A(f's_add_u32 s{sT0}, s{sT0}, {WS_VMT - WS_KM}')
    for w in range(4):
        for a in range(2):
            A(f'buffer_load_dword v{vVM+4*w+2*a}, v{vVMA}, {srd(S_WS)}, s{sT0} offen offset:{512*w+64*a} sc1')
            A(f'v_mov_b32 v{vVM+4*w+2*a+1}, 0')
    for qt in range(2):
        b = vS + 12 * qt
        for kt in range(2):
            for r in range(4):
                c = 4 * kt + r - 4 * qt
                A(f'v_cmp_gt_i32 vcc, {c}, v{vD}')
                A(f'v_cndmask_b32 v{b+4*kt+r}, v{b+4*kt+r}, v{vNEG}, vcc')
    A('s_waitcnt vmcnt(8)' if not LITE else 's_waitcnt vmcnt(0)')
    for qt in range(2):
        d = vS + 12 * qt + 8
        for w in range(4):
            A(f'v_mfma_f32_16x16x32_bf16 {vr(d,4)}, {vr(vKM + 4 * w, 4)}, {vr(vQ+8*w+4*qt,4)}, {vr(d,4) if w else 0}')
    A('s_barrier')
    for qt in range(2):
        b = vS + 12 * qt
        A(f'v_max3_f32 v2, v{b}, v{b+1}, v{b+2}'); A(f'v_max3_f32 v3, v{b+3}, v{b+4}, v{b+5}')
        A(f'v_max3_f32 v2, v2, v{b+6}, v{b+7}'); A(f'v_max3_f32 v3, v3, v{b+8}, v{b+9}'); A('v_max_f32 v2, v2, v3')
        A('v_mov_b32 v3, v2'); A('v_permlane16_swap_b32 v2, v3'); A('v_max_f32 v2, v2, v3')
        A('v_mov_b32 v3, v2'); A('v_permlane32_swap_b32 v2, v3'); A('v_max_f32 v2, v2, v3')
        A(f'v_mul_f32 v2, s{sE3}, v2')
        for r in range(10): A(f'v_fma_f32 v{b+r}, v{b+r}, s{sE3}, -v2')
        for r in range(10): A(f'v_exp_f32 v{b+r}, v{b+r}')
        p = vP + 8 * qt
        for r in range(5): A(f'v_cvt_pk_bf16_f32 v{p+r}, v{b+2*r}, v{b+2*r+1}')
        A(f'v_mov_b32 v{p+5}, 0')
        o = vO
        if qt == 0: A('s_waitcnt vmcnt(0)')
        A(f'v_mfma_f32_16x16x32_bf16 {vr(o+32,4)}, {vr(vONE,4)}, {vr(p,4)}, 0')
        for w in range(4):
            for a in range(2):
                d = o + 8 * w + 4 * a
                A(f'v_mfma_f32_16x16x32_bf16 {vr(d,4)}, {vr(vKV+16*w+8+4*a,4)}, {vr(p,4)}, 0')
        A(f'v_mfma_f32_16x16x16_bf16 {vr(o+32,4)}, {vr(vONE,2)}, {vr(p+4,2)}, {vr(o+32,4)}')
        for w in range(4):
            for a in range(2):
                d = o + 8 * w + 4 * a
                A(f'v_mfma_f32_16x16x16_bf16 {vr(d,4)}, {vr(vVM+4*w+2*a,2)}, {vr(p+4,2)}, {vr(d,4)}')
        A(f'v_rcp_f32 v2, v{o+32}')
        for r in range(32): A(f'v_mul_f32 v{o+r}, v{o+r}, v2')
        for w in range(4):
            d = o + 8 * w
            for r in range(4): A(f'v_cvt_pk_bf16_f32 v{d+r}, v{o+8*w+2*r}, v{o+8*w+2*r+1}')
            A(f'ds_write_b128 v{vOW+w}, {vr(d,4)} offset:{4096*qt}')
    svt(3)
    A('s_waitcnt lgkmcnt(0)')
    A('s_barrier')
    WS.compute(A, 0, 'T', TM=2)
    svt(4)
    A(f's_lshl_b32 s{sE2}, s{sSEG}, 1'); A(f's_add_u32 s{sE2}, s{sE2}, s{sCB}      ; seg*2+cb')
    A(f's_lshl_b32 s{sE1}, s{sE2}, 18'); A(f's_add_u32 s{sE1}, s{sE1}, {WS_PART}'); A(f's_lshl_b32 s{sT0}, s{sW}, 13'); A(f's_add_u32 s{sE1}, s{sE1}, s{sT0}')
    A(f's_lshl_b32 s{sT0}, s{sHG}, 15'); A(f's_add_u32 s{sT0}, s{sT0}, s{sE1}')
    for t in range(8):
        if t == 4: A(f's_add_u32 s{sT0}, s{sT0}, 4096')
        A(f'buffer_store_dwordx4 {vr(WS.vACC + 4 * t, 4)}, v{vL16}, {srd(S_WS)}, s{sT0} offen offset:{1024 * (t % 4)} sc1')
    A(f's_lshl_b32 s{sT3}, s{sE2}, 7'); A(f's_add_u32 s{sT3}, s{sT3}, {WS_CNT}')
    signal(A, S_WS, off_expr_sgpr=sT3)
    svt(5)
    wait_cnt(A, S_WS, 8, off_sgpr=sT3, sleep=1)
    svt(6)
    A(f's_lshl_b32 s{sT0}, s{sHG}, 10'); A(f's_add_u32 s{sT0}, s{sT0}, s{sE1}')
    for i in range(8):
        A(f'buffer_load_dwordx4 {vr(vO + 4 * i, 4)}, v{vL16}, {srd(S_WS)}, s{sT0} offen sc1')
        if i < 7: A(f's_add_u32 s{sT0}, s{sT0}, 32768')
    A('s_waitcnt vmcnt(0)')
    for st in (16, 8, 4):
        for r in range(st): A(f'v_add_f32 v{vO+r}, v{vO+r}, v{vO+st+r}')
    A(f'v_cvt_pk_bf16_f32 v{vO+4}, v{vO}, v{vO+1}'); A(f'v_cvt_pk_bf16_f32 v{vO+5}, v{vO+2}, v{vO+3}')
    A(f's_lshl_b32 s{sT0}, s{sSEG}, 16'); A(f's_lshr_b32 s{sT1}, s{sHG}, 2'); A(f's_lshl_b32 s{sT1}, s{sT1}, 13'); A(f's_add_u32 s{sT0}, s{sT0}, s{sT1}')
    A(f's_lshl_b32 s{sT1}, s{sCB}, 9'); A(f's_add_u32 s{sT0}, s{sT0}, s{sT1}'); A(f's_add_u32 s{sT0}, s{sT0}, 1024')
    A(f's_bfe_u32 s{sT1}, s{sHG}, 0x10001'); A(f's_lshl_b32 s{sT1}, s{sT1}, 6'); A(f's_add_u32 s{sT0}, s{sT0}, s{sT1}')
    A(f's_and_b32 s{sT1}, s{sHG}, 1'); A(f's_lshl_b32 s{sT1}, s{sT1}, 3'); A(f's_add_u32 s{sT0}, s{sT0}, s{sT1}')
    A(f'buffer_store_dwordx2 {vr(vO+4,2)}, v{vPW}, {srd(S_OUT)}, s{sT0} offen')
    if TRACE or LITE:
        A('s_memrealtime s[94:95]'); A('s_waitcnt lgkmcnt(0)')
        A(f's_lshl_b32 s96, s{sE2}, 3'); A(f's_add_u32 s96, s96, s{sHG}'); A('s_lshl_b32 s96, s96, 2'); A(f's_add_u32 s96, s96, {111*MB}')
        A('v_mov_b32 v120, s94'); A('v_mov_b32 v121, s96')
        A(f'buffer_store_dword v120, v121, {srd(S_WS)}, 0 offen')
    A(f's_add_u32 s{sSEG}, s{sSEG}, {NSET}')
    A(f's_cmp_ge_u32 s{sSEG}, 64'); A('s_cbranch_scc1 L_next')
    qkv_loads(sSEG)
    A('s_branch L_sv_loop')

def gen_worker(A):
    sDEC = 97
    A.label('L_worker')
    A(f's_mov_b32 s{sTK}, 4000')
    A(f's_mov_b32 s{sDEC}, 0')
    A('s_branch L_next')
    A.label('L_worker2')
    A(f's_mov_b32 s{sTK}, 4000')
    A(f's_mov_b32 s{sDEC}, 2')
    A.label('L_next')
    A('s_barrier')
    trace(A, 2)
    l = A.newlabel('L_ntk')
    A(f's_cmp_lg_u32 s{sW}, 0'); A(f's_cbranch_scc1 {l}')
    A('s_mov_b64 exec, 1')
    A(f'v_mov_b32 v122, {LDS_TICK}')
    A(f's_cmp_lg_u32 s{sDEC}, 1'); A('s_cbranch_scc1 L_take')
    A('v_mov_b32 v123, 0')
    A.label('L_dec')
    A(f'buffer_load_dwordx2 v[120:121], v123, {srd(S_DBG)}, 0 offen sc1')
    A('s_waitcnt vmcnt(0)')
    A(f'v_readfirstlane_b32 s{sT0}, v120'); A(f'v_readfirstlane_b32 s{sT1}, v121')
    A(f's_cmp_ge_u32 s{sT0}, 32'); A('s_cbranch_scc1 L_take')
    A(f's_cmp_ge_u32 s{sT1}, 256'); A('s_cbranch_scc1 L_dec2')
    A('s_sleep 2')
    A('s_branch L_dec')
    A.label('L_dec2')
    A(f'buffer_load_dword v120, v123, {srd(S_DBG)}, 0 offen sc1')
    A('s_waitcnt vmcnt(0)')
    A(f'v_readfirstlane_b32 s{sT0}, v120')
    A(f's_cmp_ge_u32 s{sT0}, 32'); A('s_cbranch_scc1 L_take')
    A('v_mov_b32 v120, 1'); A(f'v_mov_b32 v121, {4 * DBG_FALLB}')
    A(f'buffer_atomic_add v120, v121, {srd(S_DBG)}, 0 offen sc0')
    A('s_waitcnt vmcnt(0)')
    A(f'v_readfirstlane_b32 s{sT1}, v120')
    A(f's_add_u32 s{sT0}, s{sT0}, s{sT1}')
    A(f's_cmp_ge_u32 s{sT0}, 32'); A('s_cbranch_scc1 L_take')
    A(f's_add_u32 s{sT0}, s{sT0}, 0x10000')
    A(f'v_mov_b32 v120, s{sT0}')
    A('s_branch L_pub')
    A.label('L_take')
    A('v_mov_b32 v120, 1'); A(f'v_mov_b32 v121, {4 * DBG_QUEUE}')
    A(f'buffer_atomic_add v120, v121, {srd(S_DBG)}, 0 offen sc0')
    A('s_waitcnt vmcnt(0)')
    A.label('L_pub')
    A('ds_write_b32 v122, v120')
    A('s_mov_b64 exec, -1')
    A('s_waitcnt lgkmcnt(0)')
    A.label(l)
    A('s_barrier')
    A(f'v_mov_b32 v122, {LDS_TICK}')
    A('ds_read_b32 v120, v122')
    A('s_waitcnt lgkmcnt(0)')
    A(f'v_readfirstlane_b32 s{sTK}, v120')
    A(f's_mov_b32 s{sT2}, s{sDEC}')
    A(f's_add_u32 s{sDEC}, s{sDEC}, 1'); A(f's_min_u32 s{sDEC}, s{sDEC}, 2')
    A(f's_cmp_lt_u32 s{sTK}, 0x10000'); A('s_cbranch_scc1 L_disp')
    A(f's_and_b32 s57, s{sTK}, 31')
    A('s_barrier')
    A('s_branch L_head')
    A.label('L_disp')
    trace(A, 0)
    A(f's_cmp_lt_u32 s{sTK}, {T_G2}'); A('s_cbranch_scc1 L_task_kv')
    A(f's_cmp_lt_u32 s{sTK}, {T_Q}'); A('s_cbranch_scc1 L_task_g2')
    A(f's_cmp_lt_u32 s{sTK}, {T_SV}'); A('s_cbranch_scc1 L_task_q')
    A(f's_cmp_lt_u32 s{sTK}, {T_AT}'); A('s_cbranch_scc1 L_task_sv')
    A(f's_cmp_lt_u32 s{sTK}, {T_G3}'); A('s_cbranch_scc1 L_task_at')
    A(f's_cmp_lt_u32 s{sTK}, {T_END}'); A('s_cbranch_scc1 L_task_g3')
    A(f's_cmp_eq_u32 s{sT2}, 0'); A('s_cbranch_scc1 L_next')
    A('s_branch L_end0')
    gen_g1(A); gen_g2(A); gen_g3(A); gen_at(A); gen_sv(A)
```

```python
import sys
from asmlib import *
from common import *
import rec, workers
from rec import sW, sH, sMODE, sT0, sT1, LDS_MISC
OPT = sys.argv[1:]
FORCE_SLOW = 'slow' in OPT
A = Asm()
workers.TRACE = 'trace' in OPT
workers.LITE = 'lite' in OPT
TR = workers.TRACE or workers.LITE
def htrace(slot):
    if not TR: return
    A('s_memrealtime s[94:95]'); A('s_waitcnt lgkmcnt(0)')
    A(f's_lshl_b32 s96, s{sH}, 4'); A(f's_add_u32 s96, s96, {109*MB + 4*slot}')
    A('v_mov_b32 v120, s94'); A('v_mov_b32 v121, s96')
    A(f'buffer_store_dword v120, v121, {srd(S_WS)}, 0 offen')
A('s_cmp_ge_u32 s2, 256'); A('s_cbranch_scc1 L_end')
if TR: A('s_memrealtime s[100:101]')
A('s_load_dwordx16 s[72:87], s[0:1], 0')
A('s_load_dwordx8 s[88:95], s[0:1], 64')
A('s_load_dwordx2 s[96:97], s[0:1], 96')
A('s_waitcnt lgkmcnt(0)')
sizes = {S_AX: (72, 2097152), S_AWQKV: (74, 1572864), S_AWO: (76, 524288), S_BX: (78, 2097152), S_MEM0: (80, 8192),
         S_WQ: (82, 4194304), S_WK: (84, 4194304), S_WV: (86, 4194304), S_WO: (88, 4194304), S_OUT: (92, 4194304),
         S_DBG: (94, 256), S_WS: (96, WS_SIZE)}
for b, (src, sz) in sizes.items():
    A(f's_mov_b32 s{b}, s{src}'); A(f's_mov_b32 s{b+1}, s{src+1}'); A(f's_mov_b32 s{b+2}, {sz}'); A(f's_mov_b32 s{b+3}, 0x20000')
A('v_lshrrev_b32 v1, 6, v0'); A(f'v_readfirstlane_b32 s{sW}, v1')
A(f's_cmp_lg_u32 s{sW}, 0'); A('s_cbranch_scc1 L_role_wait')
A(f's_getreg_b32 s{sT0}, hwreg(HW_REG_XCC_ID)'); A(f's_and_b32 s{sT0}, s{sT0}, 15')
if FORCE_SLOW:
    A(f's_and_b32 s{sT1}, s2, 31'); A(f's_cmp_eq_u32 s{sT1}, 5'); A(f's_cselect_b32 s{sT0}, 0, 1')
A('s_mov_b64 exec, 1')
A('v_mov_b32 v5, 64')
A(f's_cmp_lg_u32 s{sT0}, 0'); A('s_cbranch_scc1 L_role_tot')
A('v_mov_b32 v5, 1'); A(f'v_mov_b32 v3, {4*DBG_TICK0}')
A(f'buffer_atomic_add v5, v3, {srd(S_DBG)}, 0 offen sc0')
A('s_waitcnt vmcnt(0)')
A.label('L_role_tot')
A('v_mov_b32 v4, 1'); A(f'v_mov_b32 v3, {4*DBG_TOTAL}')
A(f'buffer_atomic_add v4, v3, {srd(S_DBG)}, 0 offen')
A(f'v_mov_b32 v3, {LDS_MISC}')
A('ds_write_b32 v3, v5')
A('s_mov_b64 exec, -1')
A('s_waitcnt lgkmcnt(0)')
A.label('L_role_wait')
A('s_barrier')
A(f'v_mov_b32 v3, {LDS_MISC}')
A('ds_read_b32 v4, v3')
A('s_waitcnt lgkmcnt(0)')
A('v_readfirstlane_b32 s75, v4')
A('s_barrier')
A('s_cmp_ge_u32 s75, 32'); A('s_cbranch_scc1 L_worker')
A(f's_mov_b32 s{sH}, s75')
A.label('L_head')
htrace(0)
rec.gen_setup(A)
def resolve(A):
    l = A.newlabel('L_res'); lf = A.newlabel('L_resf'); ls = A.newlabel('L_ress'); ld = A.newlabel('L_resd')
    A('v_mov_b32 v122, 0')
    A.label(l)
    A(f'buffer_load_dwordx2 v[120:121], v122, {srd(S_DBG)}, 0 offen sc1')
    A('s_waitcnt vmcnt(0)')
    A('v_readfirstlane_b32 s73, v120'); A('v_readfirstlane_b32 s74, v121')
    A('s_cmp_ge_u32 s73, 32'); A(f's_cbranch_scc1 {lf}')
    A('s_cmp_ge_u32 s74, 256'); A(f's_cbranch_scc1 {ls}')
    A('s_sleep 2')
    A(f's_branch {l}')
    A.label(ls)
    A(f'buffer_load_dword v120, v122, {srd(S_DBG)}, 0 offen sc1')
    A('s_waitcnt vmcnt(0)')
    A('v_readfirstlane_b32 s73, v120')
    A('s_cmp_ge_u32 s73, 32'); A(f's_cbranch_scc1 {lf}')
    A(f's_mov_b32 s{sMODE}, 1'); A(f's_branch {ld}')
    A.label(lf)
    A(f's_mov_b32 s{sMODE}, 0')
    A.label(ld)
    rec.gen_init_exchange(A)
rec.gen_load_weights(A, mid=resolve)
htrace(1)
rec.gen_wait_init(A)
rec.gen_mem0(A)
rec.gen_setup2(A)
A(f's_cmp_lg_u32 s{sMODE}, 0'); A('s_cbranch_scc1 L_rec_slow')
rec.gen_steps(A, 'f', 64, kvwait=rec.kvwait, prof=72 if 'prof' in OPT else None, opt=OPT)
htrace(2)
if 'clk' in OPT:
    A('s_memrealtime s[72:73]'); A('s_memtime s[74:75]'); A('s_waitcnt lgkmcnt(0)')
    A('s_sub_u32 s72, s72, s98'); A('s_sub_u32 s74, s74, s100')
    A('v_mov_b32 v120, s72'); A('v_mov_b32 v121, 8'); A(f'buffer_store_dword v120, v121, {srd(S_DBG)}, 0 offen')
    A('v_mov_b32 v120, s74'); A('v_mov_b32 v121, 16'); A(f'buffer_store_dword v120, v121, {srd(S_DBG)}, 0 offen')
A('s_branch L_worker2')
A.label('L_rec_slow')
rec.gen_steps(A, 's', 64, kvwait=rec.kvwait)
A('s_branch L_worker2')
workers.gen_worker(A)
A.label('L_end0')
if TR:
    A('s_memrealtime s[94:95]'); A('s_waitcnt lgkmcnt(0)')
    A('s_lshl_b32 s96, s2, 3'); A(f's_add_u32 s96, s96, {112*MB}')
    A('v_mov_b32 v120, s100'); A('v_mov_b32 v121, s94'); A('v_mov_b32 v122, s96')
    A(f'buffer_store_dwordx2 v[120:121], v122, {srd(S_WS)}, 0 offen')
A.label('L_end')
A('s_endpgm')
body = A.finalize()
hdr = open('concat_heads__sliding_block__memory_aug_recurrent_mem_tr__prompt.s.ref').read().split('; Override launch')[0]
print(f'''{hdr}; @launch grid=(256,1,1) block=(256,1,1) lds=163840
.amdgcn_target "amdgcn-amd-amdhsa--gfx950"
.text
.globl {KNAME}
.p2align 8
.type {KNAME},@function
{KNAME}:
{body}
.section .rodata,"a"
.p2align 6
.amdhsa_kernel {KNAME}
  .amdhsa_next_free_vgpr 512
  .amdhsa_next_free_sgpr 102
  .amdhsa_accum_offset 256
  .amdhsa_group_segment_fixed_size 0
  .amdhsa_kernarg_size 104
  .amdhsa_user_sgpr_count 2
  .amdhsa_user_sgpr_kernarg_segment_ptr 1
  .amdhsa_system_sgpr_workgroup_id_x 1
.end_amdhsa_kernel
''')
```

```python
from asmlib import *
from common import *
import math

sW, sH, sSTEP, sPSL, sMCUR, sMNXT, sT0, sT1, sT2, sKXO, sVXO, sKMO, sMODE, sT3 = range(56, 70)
sRDY = 70
vIDX = 1; vID = 2; vSEL = 4
vL16H, vHOME, vMP, vPST, vPLD, vMPUB, vKX, vVX, vKM, vVM, vSW, vSR, vOW = range(8, 21)
vNEG1 = 21
vFR = 24
vQK = 56
vVA = 72
vSTG = 80
vKXR = 104
vVXR = 112
vTMP = 120
vT2 = 22
vSR2T = 119
vSR2 = 0
LDS_MEM = 131072
LDS_SX = LDS_MEM + 8192
LDS_O = LDS_SX + 6144
LDS_KV = LDS_O + 2048
LDS_MISC = LDS_SX
NSTG = 3
assert LDS_KV + 16384 == 163840
vPB = vFR
sFO = 90
sFLA = 71
sFLX = 90

def vr(b, n): return f'v[{b}:{b+n-1}]'

def operand_order():
    ops = []
    for i in range(2):
        for m, a in (('k', 0), ('q', 0), ('k', 1), ('q', 1), ('v', 0), ('v', 1)): ops.append((m, a, i))
    for a in range(2):
        for i in range(2, 8):
            ops.append(('k', a, i)); ops.append(('q', a, i))
    for i in range(2, 8):
        ops.append(('v', 0, i)); ops.append(('v', 1, i))
    for a in range(8):
        for ks in range(2):
            ops.append(('o', a, ks))
    return ops
OPS = operand_order()
HOMED = [3, 7, 11] + [15, 19, 23, 27, 31, 35] + [36, 38] + [48 + i for i in (1, 4, 7, 10, 13)]
assert len(HOMED) == 16
LOC = {}
_r = 0
for i, o in enumerate(OPS):
    if i in HOMED:
        _qs = [j for j in HOMED if OPS[j][0] == 'q']; _os = [j for j in HOMED if OPS[j][0] != 'q']
        assert len(_qs) == 8
        LOC[o] = ('lds', _qs.index(i) if o[0] == 'q' else 8 + _os.index(i))
    else:
        LOC[o] = ('a', 8 * _r) if _r < 32 else ('v', 128 + 8 * (_r - 32))
        _r += 1
assert _r == 48

class Cnt:
    def __init__(self, A, name, maxv): self.A = A; self.name = name; self.maxv = maxv; self.q = []
    def issue(self, tag=None): self.q.append(tag)
    def wait(self, tag):
        if tag not in self.q: return
        idx = len(self.q) - 1 - self.q[::-1].index(tag)
        n = len(self.q) - 1 - idx
        n = min(n, self.maxv)
        self.A(f's_waitcnt {self.name}({n})')
        self.q = self.q[len(self.q) - n:] if n else []
    def all(self):
        self.A(f's_waitcnt {self.name}(0)'); self.q = []

def gen_setup(A):
    A('s_mov_b32 s4, 0x33333333'); A('s_mov_b32 s5, 0x33333333'); A('s_mov_b32 s6, 0xcccccccc'); A('s_mov_b32 s7, 0xcccccccc')
    A('v_and_b32 v120, 63, v0            ; lane')
    A('v_and_b32 v121, 15, v120          ; n = lane%16')
    A('v_lshrrev_b32 v122, 4, v120       ; g = lane/16')
    A(f'v_mov_b32 v{vNEG1}, -1')
    A('v_and_b32 v123, 2, v121')
    A('v_cmp_eq_u32 vcc, 0, v123')
    A(f'v_mov_b32 v124, 0xeeeeeeee')
    A(f'v_mov_b32 v125, 0x44444444')
    A(f'v_cndmask_b32 v{vIDX}, v124, v125, vcc')
    A('v_lshrrev_b32 v123, 2, v121')
    A('v_and_b32 v124, 3, v121           ; e')
    A('v_and_b32 v125, 1, v124')
    A('v_lshlrev_b32 v125, 4, v125       ; shift 0/16')
    A('v_mov_b32 v126, 0x3f80')
    A('v_lshlrev_b32 v126, v125, v126')
    A('v_cmp_eq_u32 vcc, v123, v122')
    A('v_cndmask_b32 v126, 0, v126, vcc')
    A('v_cmp_gt_u32 vcc, 2, v124')
    A(f'v_cndmask_b32 v{vID}, 0, v126, vcc')
    A(f'v_cndmask_b32 v{vID+1}, v126, 0, vcc')
    A('v_and_b32 v125, 1, v121')
    A('v_lshlrev_b32 v125, 4, v125')
    A('v_mov_b32 v126, 0x3f80')
    A('v_lshlrev_b32 v126, v125, v126')
    A('v_lshrrev_b32 v123, 1, v121       ; m/2 (0..7)')
    for r in range(4):
        A(f'v_cmp_eq_u32 vcc, {r}, v123')
        A(f'v_cndmask_b32 v{vSEL+r}, 0, v126, vcc')
    A(f'v_lshlrev_b32 v123, 4, v120      ; lane*16')
    A(f'v_add_u32 v{vL16H}, {LDS_MEM}, v123')
    A(f's_lshl_b32 s{sT0}, s{sW}, 15')
    A(f'v_add_u32 v{vHOME}, s{sT0}, v123')
    A(f's_lshl_b32 s{sT0}, s{sW}, 11')
    A(f'v_add_u32 v{vMP}, s{sT0}, v{vL16H}')
    A('v_lshrrev_b32 v123, 2, v121       ; q')
    A('v_and_b32 v124, 3, v121           ; e')
    A(f's_lshl_b32 s{sT0}, s{sW}, 16'); A(f's_lshl_b32 s{sT1}, s{sH}, 8'); A(f's_add_u32 s{sT0}, s{sT0}, s{sT1}')
    A('v_lshlrev_b32 v125, 13, v123'); A('v_lshlrev_b32 v126, 6, v122'); A('v_lshlrev_b32 v127, 4, v124')
    A(f'v_add3_u32 v{vPST}, v125, v126, v127'); A(f'v_add_u32 v{vPST}, s{sT0}, v{vPST}')
    A(f's_lshl_b32 s{sT0}, s{sH}, 13'); A(f's_lshl_b32 s{sT1}, s{sW}, 6'); A(f's_add_u32 s{sT0}, s{sT0}, s{sT1}')
    A('v_lshlrev_b32 v125, 10, v123'); A('v_lshlrev_b32 v126, 8, v122')
    A(f'v_add3_u32 v{vPLD}, v125, v126, v127'); A(f'v_add_u32 v{vPLD}, s{sT0}, v{vPLD}')
    A(f's_lshl_b32 s{sT0}, s{sH}, 8'); A(f's_lshl_b32 s{sT1}, s{sW}, 6'); A(f's_add_u32 s{sT0}, s{sT0}, s{sT1}')
    A('v_lshlrev_b32 v125, 5, v122'); A('v_lshlrev_b32 v126, 2, v121')
    A(f'v_add3_u32 v{vMPUB}, v125, v126, s{sT0}')
    A('v_lshlrev_b32 v126, 4, v120')
    A(f's_lshl_b32 s{sT0}, s{sH}, 14'); A(f's_lshl_b32 s{sT1}, s{sW}, 12'); A(f's_add_u32 s{sT0}, s{sT0}, s{sT1}')
    A(f'v_add_u32 v{vKX}, s{sT0}, v126')
    A(f's_add_u32 s{sT1}, s{sT1}, {LDS_KV}')
    A(f'v_add_u32 v{vVX}, s{sT1}, v126')
    A('v_lshlrev_b32 v125, 3, v123'); A('v_add_u32 v125, v125, v124   ; 8(m/4)+m%4')
    A('v_lshlrev_b32 v127, 4, v120')
    A(f's_lshl_b32 s{sT0}, s{sH}, 12'); A(f's_lshl_b32 s{sT1}, s{sW}, 10'); A(f's_add_u32 s{sT0}, s{sT0}, s{sT1}')
    A(f'v_add_u32 v{vVM}, s{sT0}, v127')
    A('v_and_b32 v125, 1, v121'); A('v_lshl_add_u32 v125, v123, 1, v125   ; t')
    A('v_lshlrev_b32 v127, 8, v125'); A('v_lshlrev_b32 v126, 4, v122')
    A(f's_lshl_b32 s{sT0}, s{sH}, 11'); A(f's_lshl_b32 s{sT1}, s{sW}, 6'); A(f's_add_u32 s{sT0}, s{sT0}, s{sT1}')
    A(f'v_add3_u32 v{vKM}, v127, v126, s{sT0}')
    A('v_lshrrev_b32 v126, 1, v122'); A('v_lshlrev_b32 v126, 8, v126    ; (g/2)*256')
    A('v_and_b32 v127, 1, v122'); A('v_lshlrev_b32 v127, 5, v127     ; half*32')
    A('v_and_b32 v125, 1, v121'); A('v_lshlrev_b32 v125, 4, v125'); A('v_lshl_add_u32 v125, v123, 6, v125   ; (n/4)*64 + (n&1)*16')
    A(f'v_add3_u32 v{vOW}, v125, v126, v127')
    A(f's_lshl_b32 s{sT0}, s{sW}, 9'); A(f's_add_u32 s{sT0}, s{sT0}, {LDS_O}')
    A(f'v_add_u32 v{vOW}, s{sT0}, v{vOW}')
    A('v_lshrrev_b32 v125, 2, v120'); A('v_and_b32 v126, 1, v120'); A('v_lshl_add_u32 v125, v125, 1, v126')
    A('v_mul_u32_u24 v125, 48, v125')
    A(f's_mul_i32 s{sT0}, s{sW}, 1536'); A(f's_add_u32 s{sT0}, s{sT0}, {LDS_SX}')
    A(f'v_add_u32 v{vSW}, s{sT0}, v125')
    A('v_and_b32 v126, 2, v121')
    A('v_cmp_eq_u32 vcc, 0, v126')
    A(f'v_mov_b32 v126, {LDS_SX}'); A(f'v_mov_b32 v127, {LDS_SX + 16}')
    A('v_cndmask_b32 v126, v126, v127, vcc')
    A(f'v_add_u32 v{vSR}, v125, v126')
    A(f'v_mov_b32 v126, {LDS_SX + 32}'); A(f'v_mov_b32 v127, {LDS_SX + 36}')
    A('v_cndmask_b32 v126, v126, v127, vcc')
    A(f'v_add_u32 v{vSR2T}, v125, v126')

def gen_load_weights(A, mid_at=None, mid=None):
    A('v_and_b32 v120, 63, v0'); A('v_and_b32 v121, 15, v120'); A('v_lshrrev_b32 v122, 4, v120')
    vD = 24
    vDO = 28
    vTQ = 32
    vTO = 33
    vTT = 40
    vW2 = 36
    vDT = 72
    for i in range(4):
        A(f'v_xor_b32 v123, {i << 2}, v121')
        A('v_lshlrev_b32 v123, 4, v123')
        A(f'v_add_u32 v124, {4 * i}, v122')
        A('v_lshlrev_b32 v124, 13, v124')
        A(f's_lshl_b32 s{sT0}, s{sW}, 17'); A(f's_lshl_b32 s{sT1}, s{sH}, 8'); A(f's_add_u32 s{sT0}, s{sT0}, s{sT1}')
        A(f'v_add3_u32 v{vD+i}, v123, v124, s{sT0}')
        A(f'v_lshrrev_b32 v{vW2+i}, 6, v123'); A(f'v_lshlrev_b32 v{vW2+i}, 1, v{vW2+i}')
    for i in range(4):
        sw = (i & 1) | ((i >> 1) << 3)
        A(f'v_xor_b32 v123, {sw}, v121')
        A('v_lshrrev_b32 v125, 3, v123       ; u')
        A('v_and_b32 v123, 7, v123')
        A('v_lshlrev_b32 v123, 4, v123')
        A('v_lshl_add_u32 v123, v125, 8, v123')
        A(f'v_add_u32 v124, {4 * i}, v122')
        A('v_lshlrev_b32 v124, 10, v124')
        A(f's_lshl_b32 s{sT0}, s{sW}, 14'); A(f's_lshl_b32 s{sT1}, s{sH}, 17'); A(f's_add_u32 s{sT0}, s{sT0}, s{sT1}')
        A(f'v_add3_u32 v{vDO+i}, v123, v124, s{sT0}')
    A('v_lshrrev_b32 v123, 2, v121    ; r'); A('v_and_b32 v124, 3, v121   ; q')
    A('v_lshrrev_b32 v125, 1, v122'); A('v_lshlrev_b32 v125, 4, v125'); A('v_and_b32 v126, 1, v122'); A('v_lshlrev_b32 v126, 1, v126')
    A('v_lshlrev_b32 v127, 2, v123    ; 4r = 8(r/2)+4(r%2)')
    A('v_add3_u32 v125, v125, v126, v127   ; row')
    A(f's_lshl_b32 s{sT0}, s{sW}, 2')
    A(f'v_add_u32 v126, s{sT0}, v124      ; chunk = 4w+q')
    A('v_xor_b32 v126, v126, v127         ; ^ (r<<2)')
    A('v_lshlrev_b32 v126, 4, v126')
    A(f'v_lshl_add_u32 v{vTQ}, v125, 8, v126')
    A(f'v_add_u32 v{vTQ}, {LDS_MEM}, v{vTQ}')
    A('v_and_b32 v126, 1, v122    ; g%2'); A('v_lshrrev_b32 v127, 1, v123   ; r/2')
    A('v_lshrrev_b32 v125, 1, v122'); A('v_lshlrev_b32 v125, 4, v125')
    A('v_lshl_add_u32 v125, v126, 2, v125'); A('v_lshl_add_u32 v125, v127, 3, v125')
    A('v_and_b32 v34, 1, v123'); A('v_add_u32 v125, v125, v34     ; row')
    A(f's_and_b32 s{sT0}, s{sW}, 1'); A(f's_lshl_b32 s{sT0}, s{sT0}, 3')
    A(f'v_lshlrev_b32 v34, 1, v124'); A(f'v_add_u32 v34, s{sT0}, v34    ; 8u+2q')
    A('v_lshl_add_u32 v126, v127, 3, v126   ; swz')
    A('v_xor_b32 v34, v34, v126')
    A('v_lshlrev_b32 v34, 4, v34')
    A(f'v_lshl_add_u32 v{vTO}, v125, 8, v34')
    A(f'v_add_u32 v{vTO}, {LDS_MEM}, v{vTO}')
    A(f'v_xor_b32 v{vTO+1}, 16, v{vTO}')
    chunks = [('k', ks) for ks in range(8)] + [('o', c) for c in range(8)] + [('v', ks) for ks in range(8)] + [('q', ks) for ks in range(8)]
    NCH = len(chunks)
    BUFS = [LDS_MEM, LDS_MEM + 16384, 0, 32768, 65536, 98304]
    bufof = [BUFS[ci % 6] if ci < 24 else BUFS[ci % 2] for ci in range(NCH)]
    vB = 76
    for j, v in enumerate((vTQ, vTO, vTO + 1)):
        A(f'v_subrev_u32 v{vB+2*j}, {LDS_MEM}, v{v}'); A(f'v_add_u32 v{vB+2*j+1}, 65536, v{vB+2*j}')
    def base_off(which, buf):
        j = {vTQ: 0, vTO: 1, vTO + 1: 2}[which]
        if buf >= LDS_MEM: return which, buf - LDS_MEM
        if buf >= 65536: return vB + 2 * j + 1, buf - 65536
        return vB + 2 * j, buf
    def dma(ci):
        m, x = chunks[ci]
        buf = bufof[ci]
        for i in range(4):
            A(f's_lshl_b32 s{sT0}, s{sW}, 12')
            A(f's_add_u32 m0, s{sT0}, {buf + 1024 * i}')
            if m != 'o':
                S = {'q': S_WQ, 'k': S_WK, 'v': S_WV}[m]
                A(f's_mov_b32 s{sT1}, {x * 64 * 8192}')
                A(f'buffer_load_dwordx4 v{vD+i}, {srd(S)}, s{sT1} offen lds')
            else:
                ks, ah, wp = x >> 2, (x >> 1) & 1, x & 1
                A(f's_mov_b32 s{sT1}, {ks * 65536 + wp * 512 + ah * 128}')
                A(f'buffer_load_dwordx4 v{vDO+i}, {srd(S_WO)}, s{sT1} offen lds')
    def dest(o, tmpi):
        k, b = LOC[o]
        if k == 'lds': return 'v', vTT + 8 * tmpi
        return k, b
    issued = 0
    def can_issue(j, consumed):
        return all(bufof[p] != bufof[j] for p in range(consumed, j))
    def pump(consumed):
        nonlocal issued
        while issued < NCH and can_issue(issued, consumed):
            dma(issued); issued += 1
    pump(0)
    for ci, (m, x) in enumerate(chunks):
        A(f's_waitcnt vmcnt({4 * (issued - ci - 1)})')
        A('s_barrier')
        skip = None
        homed = []
        if m != 'o':
            vb, boff = base_off(vTQ, bufof[ci])
            lend = A.newlabel('L_wv')
            for wv in range(4):
                lnext = A.newlabel('L_wn')
                if wv < 3:
                    A(f's_cmp_lg_u32 s{sW}, {wv}'); A(f's_cbranch_scc1 {lnext}')
                hm = []
                for a in range(2):
                    o = (m, a, (x - 2 * wv) & 7)
                    k, b = dest(o, a)
                    if LOC[o][0] == 'lds': hm.append((o, b))
                    for p in range(4):
                        A(f'ds_read_b64_tr_b16 {k}[{b+2*p}:{b+2*p+1}], v{vb} offset:{boff + (p >> 1) * 8192 + (p & 1) * 256 + 8 * a}')
                if hm: A('s_waitcnt lgkmcnt(0)')
                for o, b in hm:
                    slot = LOC[o][1]
                    A(f'ds_write_b128 v{vHOME}, {vr(b, 4)} offset:{slot * 2048}')
                    A(f'ds_write_b128 v{vHOME}, {vr(b + 4, 4)} offset:{slot * 2048 + 1024}')
                if wv < 3:
                    A(f's_branch {lend}')
                    A.label(lnext)
            A.label(lend)
        else:
            ks, ah, wp = x >> 2, (x >> 1) & 1, x & 1
            skip = A.newlabel('L_wskip')
            A(f's_lshr_b32 s{sT0}, s{sW}, 1'); A(f's_cmp_lg_u32 s{sT0}, {wp}'); A(f's_cbranch_scc1 {skip}')
            for ap in range(4):
                o = ('o', 4 * ah + ap, ks)
                k, b = dest(o, ap)
                if LOC[o][0] == 'lds': homed.append((o, b))
                vb, boff = base_off(vTO + (ap >> 1), bufof[ci])
                for p in range(4):
                    A(f'ds_read_b64_tr_b16 {k}[{b+2*p}:{b+2*p+1}], v{vb} offset:{boff + (p >> 1) * 8192 + (p & 1) * 512 + 8 * (ap & 1)}')
        A('s_waitcnt lgkmcnt(0)')
        for o, b in homed:
            slot = LOC[o][1]
            A(f'ds_write_b128 v{vHOME}, {vr(b, 4)} offset:{slot * 2048}')
            A(f'ds_write_b128 v{vHOME}, {vr(b + 4, 4)} offset:{slot * 2048 + 1024}')
        if skip: A.label(skip)
        A('s_barrier')
        if ci == 23 and mid is not None: mid(A)
        pump(ci + 1)
        if ci == mid_at:
            l = A.newlabel('L_mid')
            A(f's_cmp_lg_u32 s{sW}, 3'); A(f's_cbranch_scc1 {l}')
            A('v_mov_b32 v120, 1'); A(f'v_mov_b32 v121, {4 * DBG_WTK}')
            A('s_mov_b64 exec, 1')
            A(f'buffer_atomic_add v120, v121, {srd(S_DBG)}, 0 offen')
            A('s_mov_b64 exec, -1')
            A('s_waitcnt vmcnt(0)')
            A.label(l)
    A('s_waitcnt lgkmcnt(0)')

def st_mode(A, ins):
    return ins

def gen_stores(A, lst, tag):
    l1 = A.newlabel('L_sslow'); l2 = A.newlabel('L_sdone')
    A(f's_cmp_lg_u32 s{sMODE}, 0'); A(f's_cbranch_scc1 {l1}')
    for s in lst: A(s)
    A(f's_branch {l2}')
    A.label(l1)
    for s in lst:
        A(s + ' sc1' if s.startswith('buffer_store') else s)
    A.label(l2)

def gen_init_exchange(A):
    for r in range(4): A(f'v_mov_b32 v{vTMP+r}, -1')
    lst = []
    for sl in range(1):
        for i in range(2):
            lst.append(f's_mov_b32 s{sT0}, {WS_PX + sl * 262144 + i * 4096}')
            lst.append(f'buffer_store_dwordx4 {vr(vTMP,4)}, v{vPLD}, {srd(S_WS)}, s{sT0} offen')
    lst.append('s_mov_b64 exec, 0xf000f')
    for sl in range(4):
        lst.append(f's_mov_b32 s{sT0}, {WS_MX + sl * 8192}')
        lst.append(f'buffer_store_dword v{vNEG1}, v{vMPUB}, {srd(S_WS)}, s{sT0} offen')
        lst.append(f'buffer_store_dword v{vNEG1}, v{vMPUB}, {srd(S_WS)}, s{sT0} offen offset:16')
    lst.append('s_mov_b64 exec, -1')
    gen_stores(A, lst, 'init')
    A(f's_lshl_b32 s{sT0}, s{sH}, 7'); A(f's_add_u32 s{sT0}, s{sT0}, {WS_PROG}'); A(f'v_mov_b32 v{vT2+1}, s{sT0}'); A(f'v_mov_b32 v{vT2}, 0')
    A(f'buffer_store_dword v{vT2}, v{vT2+1}, {srd(S_WS)}, 0 offen sc1')
    A('s_waitcnt vmcnt(0)')
    A('s_barrier')
    l = A.newlabel('L_noarr')
    A(f's_cmp_lg_u32 s{sW}, 0'); A(f's_cbranch_scc1 {l}')
    A(f'v_mov_b32 v{vTMP}, 1'); A(f'v_mov_b32 v{vTMP+1}, {4 * DBG_RINIT}')
    A('s_mov_b64 exec, 1')
    A(f'buffer_atomic_add v{vTMP}, v{vTMP+1}, {srd(S_DBG)}, 0 offen')
    A('s_mov_b64 exec, -1')
    A.label(l)

def gen_wait_init(A):
    l = A.newlabel('L_winit')
    A(f'v_mov_b32 v{vTMP+1}, {4 * DBG_RINIT}')
    A.label(l)
    A(f'buffer_load_dword v{vTMP}, v{vTMP+1}, {srd(S_DBG)}, 0 offen sc1')
    A('s_waitcnt vmcnt(0)')
    A(f'v_cmp_gt_u32 vcc, 32, v{vTMP}')
    A(f's_cbranch_vccnz {l}')

def gen_mem0(A):
    A('v_and_b32 v120, 63, v0'); A('v_and_b32 v121, 15, v120'); A('v_lshrrev_b32 v122, 4, v120')
    A('v_lshrrev_b32 v123, 2, v121'); A('v_and_b32 v124, 1, v121'); A('v_lshl_add_u32 v123, v123, 1, v124'); A('v_lshlrev_b32 v123, 10, v123')
    A('v_and_b32 v124, 2, v121'); A('v_lshlrev_b32 v124, 3, v124'); A('v_lshlrev_b32 v125, 5, v122')
    A('v_add3_u32 v123, v123, v124, v125')
    A(f's_lshl_b32 s{sT0}, s{sW}, 8')
    A(f'buffer_load_dwordx4 {vr(vFR+8,4)}, v123, {srd(S_MEM0)}, s{sT0} offen')
    A(f'buffer_load_dwordx4 {vr(vFR+12,4)}, v123, {srd(S_MEM0)}, s{sT0} offen offset:128')
    A('s_waitcnt vmcnt(0)')
    A(f's_mov_b32 s{sT0}, 0x05040100'); A(f's_mov_b32 s{sT1}, 0x07060302')
    for i in range(2):
        s = vFR + 8 + 4 * i; d = vPB + 4 * i
        A(f'v_perm_b32 v{d}, v{s+2}, v{s}, s{sT0}')
        A(f'v_perm_b32 v{d+1}, v{s+2}, v{s}, s{sT1}')
        A(f'v_perm_b32 v{d+2}, v{s+3}, v{s+1}, s{sT0}')
        A(f'v_perm_b32 v{d+3}, v{s+3}, v{s+1}, s{sT1}')


def gen_setup2(A):
    A('v_and_b32 v121, 15, v0')
    A('v_cmp_lt_u32 vcc, 7, v121')
    A('v_mov_b32 v122, 0x3f803f80')
    for r in range(4): A(f'v_cndmask_b32 v{vSEL+r}, v{vSEL+r}, v122, vcc')
    A(f'v_mov_b32 v{vSR2}, v{vSR2T}')

def gen_steps(A, mode, nsteps=64, prof=None, flag=True, opt=(), kvwait=None):
    X = '' if mode == 'f' else ' sc1'
    L = lambda n: f'L_rec{mode}_{n}'
    lg = Cnt(A, 'lgkmcnt', 15)
    SC = 128 ** -0.5 * math.log2(math.e)
    import struct
    SCBITS = struct.unpack('<I', struct.pack('<f', SC))[0]
    homed_seq = [OPS[i] for i in HOMED]
    slot_of = {o: i % NSTG for i, o in enumerate(homed_seq)}
    sTAG = sPSL
    QP = 'quad_perm:[2,3,0,1] row_mask:0xf bank_mask:0xf'
    def breg(o):
        k, b = LOC[o]
        if k == 'lds':
            b = vSTG + 8 * slot_of[o]
            return f'v[{b}:{b+7}]'
        return f'{k}[{b}:{b+7}]'
    def stage(i):
        if i >= len(homed_seq): return
        o = homed_seq[i]; b = vSTG + 8 * slot_of[o]; slot = LOC[o][1]
        A(f'ds_read_b128 {vr(b,4)}, v{vHOME} offset:{slot*2048}'); lg.issue()
        A(f'ds_read_b128 {vr(b+4,4)}, v{vHOME} offset:{slot*2048+1024}'); lg.issue(('stg', i))
    def smf(acc, areg, o):
        if LOC[o][0] == 'lds':
            lg.wait(('stg', homed_seq.index(o)))
        A(f'v_smfmac_f32_16x16x64_bf16 {vr(acc,4)}, {vr(areg,4)}, {breg(o)}, v{vIDX}')
    def P(i):
        if prof is not None: A(f's_memtime s[{prof+2*i}:{prof+2*i+1}]')
    def zero(b, n):
        for r in range(0, n, 2): A(f'v_mov_b64 v[{b+r}:{b+r+1}], 0')
    def kvdma(lst):
        A(f's_mov_b32 m0, s{sT3}')
        for i in lst:
            if 'nodma' in opt: continue
            A(f'buffer_load_dwordx4 v{vKX}, {srd(S_WS)}, s{sKXO} offen offset:{1024*i} sc1 lds')
    def kvread():
        for i in range(4): A(f'ds_read_b128 {vr(vKXR+4*i,4)}, v{vVX} offset:{1024*i}')
    def hadd(b): return f'v_pk_add_f32 v[{b}:{b+1}], v[{b}:{b+1}], v[{b+2}:{b+3}]'
    A(f's_mov_b32 s{sSTEP}, 0')
    A(f's_mov_b32 s{sTAG}, 0')
    A(f's_mov_b32 s{sMCUR}, {WS_MX}')
    A(f's_mov_b32 s{sKXO}, {WS_KVF}')
    A(f's_mov_b32 s{sKMO}, 0')
    A(f's_mov_b32 s{sT2}, {SCBITS}')
    A(f's_mov_b32 s{sVXO}, {WS_PX}')
    A(f's_lshl_b32 s{sT3}, s{sW}, 12'); A(f's_add_u32 s{sT3}, s{sT3}, {LDS_KV}')
    A(f's_lshl_b32 s{sFLA}, s{sH}, 7'); A(f's_add_u32 s{sFLA}, s{sFLA}, {WS_PROG - LDS_MEM}')
    A(f's_cmp_eq_u32 s{sW}, 0'); A(f's_cselect_b32 s{sFLX}, 1, 0'); A(f's_mov_b32 s{sFLX+1}, 0')
    for i in range(2, 8):
        A(f's_lshl_b32 s{sFO+i}, s{sW}, 1'); A(f's_add_u32 s{sFO+i}, s{sFO+i}, {i}'); A(f's_and_b32 s{sFO+i}, s{sFO+i}, 7'); A(f's_lshl_b32 s{sFO+i}, s{sFO+i}, 10')
    if kvwait: kvwait(A, first=True)
    kvdma(range(4))
    for i in range(NSTG): stage(i)
    lg.q = []
    zero(vQK, 24)
    A('s_waitcnt vmcnt(0)')
    kvread()
    A(f's_add_u32 s{sKXO}, s{sKXO}, {32*16384}')
    A(f's_branch {L("have_mem")}')
    A.label(L('step'))
    P(0)
    A(f's_sub_u32 s{sT0}, s{sMCUR}, {LDS_MEM}')
    B2 = [int(o[3:]) for o in opt if o.startswith('b2_')]
    if B2 and B2[0] == 99: A('s_waitcnt vmcnt(0)')
    elif B2 and B2[0]: A(f's_sleep {B2[0]}')
    A.label(L('poll2'))
    A(f'buffer_load_dwordx4 {vr(vPB,4)}, v{vMP}, {srd(S_WS)}, s{sT0} offen sc1')
    A(f'buffer_load_dwordx4 {vr(vPB+4,4)}, v{vMP}, {srd(S_WS)}, s{sT0} offen offset:1024 sc1')
    A('s_waitcnt vmcnt(0)')
    A(f'v_max3_u32 v{vTMP}, v{vPB}, v{vPB+1}, v{vPB+2}'); A(f'v_max3_u32 v{vTMP+1}, v{vPB+3}, v{vPB+4}, v{vPB+5}')
    A(f'v_max3_u32 v{vTMP}, v{vTMP}, v{vPB+6}, v{vPB+7}'); A(f'v_max_u32 v{vTMP}, v{vTMP}, v{vTMP+1}')
    A(f'v_cmp_eq_u32 vcc, -1, v{vTMP}')
    A('s_mov_b64 exec, vcc')
    A(f's_cbranch_execnz {L("poll2")}')
    A('s_mov_b64 exec, -1')
    A.label(L('have_mem'))
    P(1)
    A(f'ds_write_b128 v{vMP}, {vr(vPB,4)}'); A(f'ds_write_b128 v{vMP}, {vr(vPB+4,4)} offset:1024')
    nstaged = NSTG
    def acc_of(m, a): return (vVA + 4 * a) if m == 'v' else vQK + 8 * a + (4 if m == 'q' else 0)
    pre = [o for o in OPS[:12]]
    for o in pre[:3]: smf(acc_of(o[0], o[1]), vFR + 4 * o[2], o)
    if kvwait: kvwait(A, first=False)
    for i in range(2, 8): A(f'v_add_u32 v{vFR+4*i}, s{sFO+i}, v{vL16H}')
    A('s_waitcnt lgkmcnt(0)')
    A('s_barrier')
    P(2)
    for i in range(2, 8):
        A(f'ds_read_b128 {vr(vFR+4*i,4)}, v{vFR+4*i}'); lg.issue(('fr', i))
    n_ = 0
    for o in pre[3:]:
        smf(acc_of(o[0], o[1]), vFR + 4 * o[2], o)
        if LOC[o][0] == 'lds':
            stage(nstaged); nstaged += 1
        n_ += 1
        if n_ in (2, 4, 6, 8): kvdma([n_ // 2 - 1])
    A(f's_add_u32 s{sKXO}, s{sKXO}, {32*16384}')
    if kvwait:
        A(f's_cmp_lt_u32 s{sRDY}, 16'); A(f's_cbranch_scc1 {L("rdy1")}')
        A.label(L('rdy1b'))
    vAP = vT2; vDP = vTMP; vX = vTMP + 4
    bg = []
    def post_qk_list(a):
        k = vQK + 8 * a; q = k + 4
        return [hadd(k), hadd(q),
                f'v_cvt_pk_bf16_f32 v{vAP}, v{k}, v{k+1}', f'v_cvt_pk_bf16_f32 v{vAP+1}, v{q}, v{q+1}',
                f'v_mfma_f32_16x16x16_bf16 {vr(vDP,4)}, {vr(vAP,2)}, {vr(vID,2)}, 0']
    def post_qk2_list(a):
        return [f'v_cvt_pk_bf16_f32 v{vX+2*a}, v{vDP}, v{vDP+1}', f'v_cvt_pk_bf16_f32 v{vX+2*a+1}, v{vDP+2}, v{vDP+3}']
    if flag:
        A(f'v_mov_b32 v{vT2}, s{sSTEP}')
        A(f's_mov_b64 exec, s[{sFLX}:{sFLX+1}]')
        A(f'buffer_store_dword v{vT2}, v{vL16H}, {srd(S_WS)}, s{sFLA} offen sc1')
        A('s_mov_b64 exec, -1')
    cnt = 0
    for a in range(2):
        for ks in range(2, 8):
            if a == 0: lg.wait(('fr', ks))
            for m in 'kq':
                o = (m, a, ks)
                smf(acc_of(m, a), vFR + 4 * ks, o)
                if LOC[o][0] == 'lds':
                    stage(nstaged); nstaged += 1
                cnt += 1
                if cnt == 14: bg = post_qk_list(0)
                if cnt == 22: bg += post_qk2_list(0)
                if bg: A(bg.pop(0))
    assert not bg
    P(3)
    vops = [('v', a, ks) for ks in range(2, 8) for a in range(2)]
    vi = [0]
    def vstep(n=1):
        for _ in range(n):
            if vi[0] >= 12: return
            o = vops[vi[0]]; vi[0] += 1
            smf(vVA + 4 * o[1], vFR + 4 * o[2], o)
    VS = [o[3:] for o in opt if o.startswith('vs_')]
    VS = [int(c) for c in (VS[0] if VS else '12135')]
    vstep(VS[0])
    for i_ in post_qk_list(1): A(i_)
    vstep(VS[1])
    for i_ in post_qk2_list(1): A(i_)
    vS = vQK
    A(f'v_mfma_f32_16x16x32_bf16 {vr(vS,4)}, {vr(vKXR,4)}, {vr(vX,4)}, 0')
    A(f'v_mfma_f32_16x16x32_bf16 {vr(vS+4,4)}, {vr(vKXR+4,4)}, {vr(vX,4)}, 0')
    A(f'v_mfma_f32_16x16x32_bf16 {vr(vS+8,4)}, {vr(vX,4)}, {vr(vX,4)}, 0')
    vstep(VS[2])
    A(f's_lshl_b32 s{sT0}, s{sKMO}, 1'); A(f's_add_u32 s{sT0}, s{sT0}, {WS_KM}')
    A('s_mov_b64 exec, s[6:7]')
    A(f'ds_write_b128 v{vSW}, {vr(vS,4)}'); lg.issue()
    A(f'ds_write_b128 v{vSW}, {vr(vS+4,4)} offset:16'); lg.issue()
    A(f'ds_write_b64 v{vSW}, {vr(vS+8,2)} offset:32'); lg.issue()
    A('s_mov_b64 exec, -1')
    if 'nokm' not in opt: A(f'buffer_store_dwordx4 {vr(vX,4)}, v{vVM}, {srd(S_WS)}, s{sT0} offen sc1')
    vstep(VS[3])
    lg.all()
    A('s_barrier')
    P(4)
    E = [vS, vS + 4, vS + 8, vKXR]
    Em = [vS + 12, vS + 13, vS + 14, vS + 15]
    for w in range(4):
        A(f'ds_read_b128 {vr(E[w],4)}, v{vSR} offset:{1536*w}'); lg.issue(('e', w))
    for w in range(4):
        A(f'ds_read_b32 v{Em[w]}, v{vSR2} offset:{1536*w}'); lg.issue(('em', w))
    vstep(VS[4])
    lg.wait(('e', 1))
    for r in (0, 2): A(f'v_pk_add_f32 v[{E[0]+r}:{E[0]+r+1}], v[{E[0]+r}:{E[0]+r+1}], v[{E[1]+r}:{E[1]+r+1}]')
    vstep(1)
    lg.wait(('e', 3))
    for r in (0, 2): A(f'v_pk_add_f32 v[{E[2]+r}:{E[2]+r+1}], v[{E[2]+r}:{E[2]+r+1}], v[{E[3]+r}:{E[3]+r+1}]')
    vstep(1)
    lg.wait(('em', 3))
    A(f'v_pk_add_f32 v[{Em[0]}:{Em[1]}], v[{Em[0]}:{Em[1]}], v[{Em[2]}:{Em[3]}]')
    for r in (0, 2): A(f'v_pk_add_f32 v[{E[0]+r}:{E[0]+r+1}], v[{E[0]+r}:{E[0]+r+1}], v[{E[2]+r}:{E[2]+r+1}]')
    vstep(1)
    e4 = vS + 4
    A(f'v_add_f32 v{e4}, v{Em[0]}, v{Em[1]}')
    vM = vTMP; vM2 = vTMP + 1
    A(f'v_max3_f32 v{vM}, v{vS}, v{vS+1}, v{vS+2}'); A(f'v_max3_f32 v{vM}, v{vM}, v{vS+3}, v{e4}')
    vstep(1)
    stage(nstaged); nstaged += 1
    A(f'v_max_f32_dpp v{vM}, v{vM}, v{vM} {QP}')
    A(f'v_mov_b32 v{vM2}, v{vM}')
    vstep(1)
    assert vi[0] == 12, vi
    stage(nstaged); nstaged += 1
    A(f'v_permlane16_swap_b32 v{vM}, v{vM2}')
    A(f'v_max_f32 v{vM}, v{vM}, v{vM2}')
    A(f'v_mov_b32 v{vM2}, v{vM}')
    A(f'v_permlane32_swap_b32 v{vM}, v{vM2}')
    A(f'v_max_f32 v{vM}, v{vM}, v{vM2}')
    A(f'v_mul_f32 v{vM}, s{sT2}, v{vM}')
    for r in range(5): A(f'v_fma_f32 v{vS+r}, v{vS+r}, s{sT2}, -v{vM}')
    for r in range(5): A(f'v_exp_f32 v{vS+r}, v{vS+r}')
    A(hadd(vVA)); A(hadd(vVA + 4))
    vPx = vTMP
    vVM0 = vTMP + 4
    for a in range(2):
        b = vVA + 4 * a
        A(f'v_cvt_pk_bf16_f32 v{vVM0+2*a}, v{b}, v{b+1}'); A(f'v_mov_b32 v{vVM0+2*a+1}, 0')
    A(f'v_cvt_pk_bf16_f32 v{vPx}, v{vS}, v{vS+1}'); A(f'v_cvt_pk_bf16_f32 v{vPx+1}, v{vS+2}, v{vS+3}')
    A(f'v_mov_b32_dpp v{e4+1}, v{e4} {QP}')
    A(f'v_mov_b32 v{vS+13}, 0')
    A(f'v_mov_b32_dpp v{vPx+2}, v{vPx} {QP}'); A(f'v_mov_b32_dpp v{vPx+3}, v{vPx+1} {QP}')
    A(f'v_cvt_pk_bf16_f32 v{vS+12}, v{e4}, v{e4+1}')
    vO = vS
    A(f's_lshl_b32 s{sT0}, s{sKMO}, 1'); A(f's_add_u32 s{sT0}, s{sT0}, {WS_VMT}')
    A(f'v_mfma_f32_16x16x32_bf16 {vr(vS+8,4)}, {vr(vSEL,4)}, {vr(vPx,4)}, 0')
    for a in range(2):
        A(f'v_mfma_f32_16x16x32_bf16 {vr(vO+4*a,4)}, {vr(vVXR+4*a,4)}, {vr(vPx,4)}, 0')
    if 'novm' not in opt:
        A(f'buffer_store_dwordx4 {vr(vVM0,4)}, v{vVM}, {srd(S_WS)}, s{sT0} offen sc1')
    A(f's_cmp_eq_u32 s{sSTEP}, {nsteps-1}')
    A(f's_cbranch_scc1 {L("done")}')
    A(f'v_mfma_f32_16x16x16_bf16 {vr(vS+8,4)}, {vr(vSEL,2)}, {vr(vS+12,2)}, {vr(vS+8,4)}')
    for a in range(2):
        A(f'v_mfma_f32_16x16x16_bf16 {vr(vO+4*a,4)}, {vr(vVM0+2*a,2)}, {vr(vS+12,2)}, {vr(vO+4*a,4)}')
    zero(vFR, 8)
    vL = vT2; vL2 = vT2 + 1
    A(f'v_rcp_f32 v{vL}, v{vS+8}')
    zero(vFR + 8, 2)
    A(f'v_mov_b32 v{vL2}, v{vL}')
    zero(vFR + 10, 4)
    A(f'v_permlane32_swap_b32 v{vL}, v{vL2}')
    for r in range(0, 8, 2): A(f'v_pk_mul_f32 v[{vO+r}:{vO+r+1}], v[{vO+r}:{vO+r+1}], v[{vL}:{vL+1}] op_sel:[0,1] op_sel_hi:[1,1]')
    for r in range(4): A(f'v_cvt_pk_bf16_f32 v{vTMP+r}, v{vO+2*r}, v{vO+2*r+1}')
    A('s_mov_b64 exec, s[6:7]')
    A(f'ds_write_b128 v{vOW}, {vr(vTMP,4)}')
    A('s_mov_b64 exec, -1')
    vWA = vFR
    zero(vFR + 14, 10)
    A('s_waitcnt lgkmcnt(0)'); lg.q = []
    A('s_barrier')
    P(5)
    vOF = vQK
    A(f'ds_read_b128 {vr(vOF,4)}, v{vL16H} offset:{LDS_O-LDS_MEM}'); lg.issue('of0')
    A(f'ds_read_b128 {vr(vOF+4,4)}, v{vL16H} offset:{LDS_O-LDS_MEM+1024}'); lg.issue('of1')
    zero(vFR + 24, 8)
    A(f's_add_u32 s{sT0}, s{sVXO}, 32768')
    lg.wait('of0')
    vPK = vVA
    def post_o(a):
        b = vWA + 4 * a
        return [hadd(b), f'v_cvt_pk_bf16_f32 v{vPK+a}, v{b}, v{b+1}', f'v_bfi_b32 v{vPK+a}, 1, s{sTAG}, v{vPK+a}']
    bg = []
    WO = [o[3:] for o in opt if o.startswith('wo_')]
    WO = WO[0] if WO else 'a'
    for a in range(8):
        for ks in range(2):
            if a == 0 and ks == 1: lg.wait('of1')
            o = ('o', a, ks)
            smf(vWA + 4 * a, vOF + 4 * ks, o)
            if LOC[o][0] == 'lds':
                stage(nstaged); nstaged += 1
            if WO == 'b' and ks == 1 and a >= 1: bg += post_o(a - 1)
            for _ in range((1 + ks) if WO == 'a' else (3 if ks == 1 else 0)):
                if bg: A(bg.pop(0))
        if WO == 'a' and a >= 1: bg += post_o(a - 1)
        if a == (5 if WO == 'a' else 4): A(f'buffer_store_dwordx4 {vr(vPK,4)}, v{vPST}, {srd(S_WS)}, s{sVXO} offen{X}')
    for i_ in bg + post_o(7): A(i_)
    A(f'buffer_store_dwordx4 {vr(vPK+4,4)}, v{vPST}, {srd(S_WS)}, s{sT0} offen{X}')
    P(6)
    A(f's_add_u32 s{sT0}, s{sVXO}, 4096')
    B1 = [int(o[3:]) for o in opt if o.startswith('b1_')] or [99]
    if not B1:
        A(f'buffer_load_dwordx4 {vr(vPB,4)}, v{vPLD}, {srd(S_WS)}, s{sVXO} offen sc1')
        A(f'buffer_load_dwordx4 {vr(vPB+4,4)}, v{vPLD}, {srd(S_WS)}, s{sT0} offen sc1')
    for i in range(NSTG): stage(i)
    lg.q = []
    zero(vQK, 16)
    A(f's_add_u32 s{sMNXT}, s{sMCUR}, 8192'); A(f's_and_b32 s{sMNXT}, s{sMNXT}, 32767'); A(f's_add_u32 s{sMNXT}, s{sMNXT}, {WS_MX}')
    if not B1: A(f's_branch {L("poll1c")}')
    elif B1[0] == 99: A('s_waitcnt vmcnt(0)')
    elif B1[0]: A(f's_sleep {B1[0]}')
    A.label(L('poll1'))
    A(f'buffer_load_dwordx4 {vr(vPB,4)}, v{vPLD}, {srd(S_WS)}, s{sVXO} offen sc1')
    A(f'buffer_load_dwordx4 {vr(vPB+4,4)}, v{vPLD}, {srd(S_WS)}, s{sT0} offen sc1')
    A.label(L('poll1c'))
    A('s_waitcnt vmcnt(0)')
    tt = 0
    for a_ in range(2):
        for b_ in range(2):
            for t_ in range(2):
                if (a_ ^ t_) | (b_ ^ t_): tt |= 1 << (a_ * 4 + b_ * 2 + t_)
    for i in range(4): A(f'v_bitop3_b32 v{vTMP+i}, v{vPB+2*i}, v{vPB+2*i+1}, s{sTAG} bitop3:{tt}')
    A(f'v_or3_b32 v{vTMP}, v{vTMP}, v{vTMP+1}, v{vTMP+2}')
    A(f'v_bitop3_b32 v{vTMP}, v{vTMP}, v{vTMP+3}, 1 bitop3:0xa8')
    A(f'v_cmp_ne_u32 vcc, 0, v{vTMP}')
    A('s_mov_b64 exec, vcc')
    A(f's_cbranch_execnz {L("poll1")}')
    A('s_mov_b64 exec, -1')
    P(7)
    vR = vTMP
    A(f'v_mfma_f32_16x16x32_bf16 {vr(vR,4)}, {vr(vSEL,4)}, {vr(vPB,4)}, 0')
    A(f'v_mfma_f32_16x16x32_bf16 {vr(vR,4)}, {vr(vSEL,4)}, {vr(vPB+4,4)}, {vr(vR,4)}')
    zero(vVA, 8)
    kvread()
    A(f'v_mov_b32 v{vR+6}, -1')
    for r in range(4): A(f'v_add_f32_dpp v{vR+r}, v{vR+r}, v{vR+r} row_ror:4 row_mask:0xf bank_mask:0xf')
    for r in range(4): A(f'v_add_f32_dpp v{vR+r}, v{vR+r}, v{vR+r} row_ror:8 row_mask:0xf bank_mask:0xf')
    A(f'v_cvt_pk_bf16_f32 v{vR+4}, v{vR}, v{vR+2}'); A(f'v_cvt_pk_bf16_f32 v{vR+5}, v{vR+1}, v{vR+3}')
    A(f'v_min_u32 v{vR+4}, -2, v{vR+4}'); A(f'v_min_u32 v{vR+5}, -2, v{vR+5}')
    A('s_mov_b64 exec, 0xf000f')
    A(f'buffer_store_dword v{vR+4}, v{vMPUB}, {srd(S_WS)}, s{sMNXT} offen{X}')
    A(f'buffer_store_dword v{vR+5}, v{vMPUB}, {srd(S_WS)}, s{sMNXT} offen offset:16{X}')
    A(f'buffer_store_dword v{vR+6}, v{vMPUB}, {srd(S_WS)}, s{sMCUR} offen{X}')
    A(f'buffer_store_dword v{vR+6}, v{vMPUB}, {srd(S_WS)}, s{sMCUR} offen offset:16{X}')
    A('s_mov_b64 exec, -1')
    if kvwait:
        A(f's_cmp_lt_u32 s{sRDY}, 16'); A(f's_cbranch_scc1 {L("rdy2")}')
        A.label(L('rdy2b'))
    P(8)
    A(f's_mov_b32 s{sMCUR}, s{sMNXT}')
    A(f's_xor_b32 s{sTAG}, s{sTAG}, 1')
    A(f's_add_u32 s{sKMO}, s{sKMO}, 65536')
    A(f's_add_u32 s{sSTEP}, s{sSTEP}, 1')
    if prof is not None:
        A('s_memrealtime s[98:99]')
        A('s_waitcnt lgkmcnt(0)')
        A(f'v_writelane_b32 v{vTMP}, s98, 9')
        for i in range(9): A(f'v_writelane_b32 v{vTMP}, s{prof+2*i}, {i}')
        A(f's_lshl_b32 s{sT0}, s{sH}, 2'); A(f's_add_u32 s{sT0}, s{sT0}, s{sW}'); A(f's_lshl_b32 s{sT0}, s{sT0}, 6'); A(f's_add_u32 s{sT0}, s{sT0}, s{sSTEP}'); A(f's_lshl_b32 s{sT0}, s{sT0}, 6')
        A(f's_add_u32 s{sT0}, s{sT0}, {120*MB}')
        A(f'v_mbcnt_lo_u32_b32 v{vTMP+1}, -1, 0'); A(f'v_lshlrev_b32 v{vTMP+1}, 2, v{vTMP+1}')
        A('s_mov_b64 exec, 0xffff')
        A(f'buffer_store_dword v{vTMP}, v{vTMP+1}, {srd(S_WS)}, s{sT0} offen')
        A('s_mov_b64 exec, -1')
    A(f's_branch {L("step")}')
    if kvwait:
        A.label(L('rdy1'))
        A(f'v_mbcnt_lo_u32_b32 v{vNEG1}, -1, 0'); A(f'v_lshlrev_b32 v{vNEG1}, 2, v{vNEG1}')
        A('s_mov_b64 exec, 0xffff')
        A(f'buffer_load_dword v{vNEG1}, v{vNEG1}, {srd(S_DBG)}, 0 offen offset:{4*DBG_KV} sc1')
        A('s_mov_b64 exec, -1')
        A(f's_branch {L("rdy1b")}')
        A.label(L('rdy2'))
        A('s_mov_b64 exec, 0xffff')
        A(f'v_and_b32 v{vNEG1}, 0xffff, v{vNEG1}')
        A(f'v_cmp_gt_u32 vcc, 32, v{vNEG1}')
        A(f's_or_b32 s{sT1}, vcc_lo, 0x10000')
        A(f's_ff1_i32_b32 s{sT1}, s{sT1}')
        A(f's_max_u32 s{sRDY}, s{sRDY}, s{sT1}')
        A('s_mov_b64 exec, -1')
        A(f's_branch {L("rdy2b")}')
    A.label(L('done'))
    A('s_waitcnt vmcnt(0)')
    A('s_barrier')
    if flag:
        fl = A.newlabel('L_nofl')
        A(f's_cmp_lg_u32 s{sW}, 0'); A(f's_cbranch_scc1 {fl}')
        A(f'v_mov_b32 v{vT2}, {nsteps}')
        A(f's_lshl_b32 s{sT0}, s{sH}, 7'); A(f's_add_u32 s{sT0}, s{sT0}, {WS_PROG}'); A(f'v_mov_b32 v{vT2+1}, s{sT0}')
        A('s_mov_b64 exec, 1')
        A(f'buffer_store_dword v{vT2}, v{vT2+1}, {srd(S_WS)}, 0 offen sc1')
        A('s_mov_b64 exec, -1')
        A('s_waitcnt vmcnt(0)')
        A.label(fl)
    A('v_mbcnt_lo_u32_b32 v0, -1, 0'); A('v_mbcnt_hi_u32_b32 v0, -1, v0')
    A(f's_lshl_b32 s{sT0}, s{sW}, 6'); A(f'v_add_u32 v0, s{sT0}, v0')

def kvwait(A, first):
    l = A.newlabel('L_kvw'); l2 = A.newlabel('L_kvd')
    if first:
        A(f's_mov_b32 s{sRDY}, 0')
        A(f'v_mov_b32 v{vT2+1}, {4*DBG_CQ}')
        A.label(l)
        A(f'buffer_load_dword v{vT2}, v{vT2+1}, {srd(S_DBG)}, 0 offen sc1')
        A('s_waitcnt vmcnt(0)')
        A(f'v_cmp_gt_u32 vcc, 32, v{vT2}')
        A(f's_cbranch_vccnz {l}')
        return
    A(f's_add_u32 s{sT1}, s{sSTEP}, 1'); A(f's_lshr_b32 s{sT1}, s{sT1}, 2')
    A(f's_cmp_lt_u32 s{sT1}, s{sRDY}'); A(f's_cbranch_scc1 {l2}')
    A(f's_cmp_ge_u32 s{sT1}, 16'); A(f's_cbranch_scc1 {l2}')
    A(f's_cmp_eq_u32 s{sSTEP}, 0'); A(f's_cbranch_scc1 {l2}')
    A(f'v_mbcnt_lo_u32_b32 v{vT2+1}, -1, 0'); A(f'v_lshlrev_b32 v{vT2+1}, 2, v{vT2+1}')
    A('s_mov_b64 exec, 0xffff')
    A.label(l)
    A(f'buffer_load_dword v{vT2}, v{vT2+1}, {srd(S_DBG)}, 0 offen offset:{4*DBG_KV} sc1')
    A('s_waitcnt vmcnt(0)')
    A(f'v_and_b32 v{vT2}, 0xffff, v{vT2}')
    A(f'v_cmp_gt_u32 vcc, 32, v{vT2}')
    A(f's_or_b32 s{sRDY}, vcc_lo, 0x10000')
    A(f's_ff1_i32_b32 s{sRDY}, s{sRDY}')
    A(f's_cmp_lt_u32 s{sT1}, s{sRDY}'); A(f's_cbranch_scc0 {l}')
    A('s_mov_b64 exec, -1')
    A.label(l2)
```

```python
from asmlib import *
from common import *
from gemm import *
import wsgemm as WS
import math, struct
def fbits(x): return struct.unpack('<I', struct.pack('<f', x))[0]

sTK, sP0, sP1, sP2 = 88, 89, 90, 91
LDS_TICK = 163840 - 64
G128 = Gemm(128, 128, 2, 2, 'g128')
G32 = Gemm(32, 128, 1, 4, 'g32')

import os
NSET = int(os.environ.get('NSET', '8'))
N_KV, N_Q, N_G2, N_SV, N_AT, N_G3 = 192, 64, 24, 16 * NSET, 256, 64
T_KV = 0; T_G2 = T_KV + N_KV; T_Q = T_G2 + N_G2; T_SV = T_Q + N_Q; T_AT = T_SV + N_SV; T_G3 = T_AT + N_AT; T_END = T_G3 + N_G3
KVQ_DONE = 0x100020
def divmod_const(A, src, d, q, r):
    A(f's_mul_hi_u32 s{q}, s{src}, {(1 << 32) // d + 1}')
    A(f's_mul_i32 s{r}, s{q}, {d}'); A(f's_sub_u32 s{r}, s{src}, s{r}')

TRACE = False
THROTTLE = False
LITE = False
def trace(A, slot):
    if not TRACE: return
    A('s_memrealtime s[94:95]'); A('s_waitcnt lgkmcnt(0)')
    A(f's_lshl_b32 s96, s{sTK}, 4'); A(f's_add_u32 s96, s96, {110*MB + 4*slot}')
    A('v_mov_b32 v120, s94'); A('v_mov_b32 v121, s96')
    A(f'buffer_store_dword v120, v121, {srd(S_WS)}, 0 offen')

def copy_srd(A, dst, src):
    for i in range(4): A(f's_mov_b32 s{dst+i}, s{src+i}')

def signal(A, S, off_expr_sgpr=None, off=None):
    A('s_waitcnt vmcnt(0)')
    A('s_barrier')
    l = A.newlabel('L_sig')
    A(f's_cmp_lg_u32 s{sW}, 0'); A(f's_cbranch_scc1 {l}')
    A('v_mov_b32 v120, 1')
    A(f'v_mov_b32 v121, {off}' if off is not None else f'v_mov_b32 v121, s{off_expr_sgpr}')
    A('s_mov_b64 exec, 1')
    A(f'buffer_atomic_add v120, v121, {srd(S)}, 0 offen')
    A('s_mov_b64 exec, -1')
    A.label(l)

def wait_cnt(A, S, target, off=None, off_sgpr=None, sleep=8, adaptive=False):
    l = A.newlabel('L_wt'); l2 = A.newlabel('L_wd')
    A(f'v_mov_b32 v121, {off}' if off is not None else f'v_mov_b32 v121, s{off_sgpr}')
    A.label(l)
    A(f'buffer_load_dword v120, v121, {srd(S)}, 0 offen sc1')
    A('s_waitcnt vmcnt(0)')
    A(f'v_readfirstlane_b32 s{sT0}, v120')
    A(f's_cmp_ge_u32 s{sT0}, {target}')
    A(f's_cbranch_scc1 {l2}')
    if adaptive:
        l3 = A.newlabel('L_wf')
        A(f's_sub_u32 s{sT0}, {target}, s{sT0}')
        A(f's_cmp_lt_u32 s{sT0}, 2'); A(f's_cbranch_scc1 {l3}')
        A('s_sleep 24')
        A(f's_cmp_lt_u32 s{sT0}, 3'); A(f's_cbranch_scc1 {l3}')
        A('s_sleep 48')
        A.label(l3)
    A(f's_sleep {sleep}')
    A(f's_branch {l}')
    A.label(l2)

def lane_consts(A):
    A('v_and_b32 v10, 63, v0'); A('v_and_b32 v11, 15, v10'); A('v_lshrrev_b32 v12, 4, v10')

def atomic_add(A, S, val, off_sgpr):
    A(f'v_mov_b32 v120, {val}'); A(f'v_mov_b32 v121, s{off_sgpr}')
    A('s_mov_b64 exec, 1')
    A(f'buffer_atomic_add v120, v121, {srd(S)}, 0 offen')
    A('s_mov_b64 exec, -1')

def gen_g1(A):
    A.label('L_task_kv')
    A(f's_lshr_b32 s{sT0}, s{sTK}, 5'); A(f's_and_b32 s{sP1}, s{sTK}, 15'); A(f's_bfe_u32 s{sP2}, s{sTK}, 0x10004')
    A(f's_sub_u32 s{sP0}, s{sT0}, 2'); A(f's_lshl_b32 s{sP0}, s{sP0}, 2'); A(f's_mov_b32 s{sKIT}, 4')
    A(f's_cmp_lt_u32 s{sT0}, 3'); A(f's_cselect_b32 s{sP0}, s{sT0}, s{sP0}'); A(f's_cselect_b32 s{sKIT}, 2, s{sKIT}')
    A(f's_cmp_lt_u32 s{sT0}, 2'); A(f's_cselect_b32 s{sKIT}, 1, s{sKIT}')
    l = A.newlabel('L_nz')
    A(f's_cmp_lg_u32 s{sTK}, 0'); A(f's_cbranch_scc1 {l}')
    A('v_lshlrev_b32 v120, 7, v0'); A('v_mov_b32 v122, 0'); A('v_mov_b32 v123, 0'); A(f's_mov_b32 s{sT0}, {WS_CNT}')
    A(f'buffer_store_dwordx2 v[122:123], v120, {srd(S_WS)}, s{sT0} offen sc1')
    A.label(l)
    A(f's_cmp_eq_u32 s{sP2}, 0'); A('s_cbranch_scc1 L_g1_k')
    copy_srd(A, sGB, S_WV); A('s_branch L_g1_go')
    A.label('L_g1_k'); copy_srd(A, sGB, S_WK); A('s_branch L_g1_go')
    A.label('L_task_q')
    A(f's_sub_u32 s{sT0}, s{sTK}, {T_Q}'); A(f's_lshr_b32 s{sP0}, s{sT0}, 4'); A(f's_lshl_b32 s{sP0}, s{sP0}, 2'); A(f's_and_b32 s{sP1}, s{sT0}, 15'); A(f's_mov_b32 s{sP2}, 2'); A(f's_mov_b32 s{sKIT}, 4')
    copy_srd(A, sGB, S_WQ)
    A.label('L_g1_go')
    copy_srd(A, sGA, S_BX)
    A(f's_mov_b32 s{sLDB}, 8192')
    A(f's_lshl_b32 s{sBOFF}, s{sP1}, 9')
    l = A.newlabel('L_urg')
    if THROTTLE:
        A(f's_cmp_lt_u32 s{sTK}, 96'); A(f's_cbranch_scc1 {l}')
        wait_cnt(A, S_DBG, 32, off=4 * DBG_WTK, sleep=16)
    A.label(l)
    WS.load_w(A)
    trace(A, 3)
    WS.setup_a(A)
    A(f's_lshl_b32 s{sAOFF}, s{sP0}, 17')
    A('v_lshlrev_b32 v1, 4, v10')
    A(f's_lshl_b32 s{sE0}, s{sP0}, 7'); A(f's_lshl_b32 s{sT0}, s{sP1}, 1'); A(f's_add_u32 s{sE0}, s{sE0}, s{sT0}'); A(f's_lshr_b32 s{sT0}, s{sW}, 1'); A(f's_add_u32 s{sE0}, s{sE0}, s{sT0}')
    A(f's_lshl_b32 s{sE0}, s{sE0}, 2'); A(f's_and_b32 s{sT0}, s{sW}, 1'); A(f's_lshl_b32 s{sT0}, s{sT0}, 1'); A(f's_add_u32 s{sE0}, s{sE0}, s{sT0}')
    A(f's_cmp_eq_u32 s{sP2}, 2')
    A(f's_cselect_b32 s{sE1}, 11, 12'); A(f's_cselect_b32 s{sE2}, {WS_QF}, {WS_KVF}'); A(f's_cselect_b32 s{sLDA}, 65536, 1')
    A(f's_lshl_b32 s{sE0}, s{sE0}, s{sE1}'); A(f's_add_u32 s{sE0}, s{sE0}, s{sE2}')
    A(f's_lshl_b32 s{sE3}, 1, s{sE1}    ; stride')
    def sig(A, d):
        A(f's_add_u32 s{sT3}, s{sP0}, s{sAINC}'); A(f's_lshl_b32 s{sT3}, s{sT3}, 2'); A(f's_add_u32 s{sT3}, s{sT3}, {4 * DBG_KV - 4}')
        atomic_add(A, S_DBG, f's{sLDA}', sT3)
    def epi_t(A, half):
        for i in range(2):
            for c in range(2):
                A(f's_mul_i32 s{sT0}, s{sE3}, {i * 128 + c}'); A(f's_add_u32 s{sT0}, s{sT0}, s{sE0}')
                for kt in range(2):
                    tm = 2 * i + kt
                    d = WS.vPKD + 4 * kt
                    WS.pack(A, tm * 4 + 2 * c, tm * 4 + 2 * c + 1, d)
                    A(f'buffer_store_dwordx4 {vr(d,4)}, v1, {srd(S_WS)}, s{sT0} offen offset:{1024*kt} sc1')
        A(f's_lshl_b32 s{sT0}, s{sE3}, 8'); A(f's_add_u32 s{sE0}, s{sE0}, s{sT0}')
    def epi_n(A, half):
        for i in range(2):
            for c in range(2):
                A(f's_add_u32 s{sT0}, s{sE0}, {(i * 128 + c) * 4096}')
                for a in range(2):
                    tn = 2 * c + a
                    d = WS.vPKD + 4 * a
                    WS.pack(A, (2 * i) * 4 + tn, (2 * i + 1) * 4 + tn, d)
                    A(f'buffer_store_dwordx4 {vr(d,4)}, v1, {srd(S_WS)}, s{sT0} offen offset:{2048 + 1024*a} sc1')
        A(f's_add_u32 s{sE0}, s{sE0}, {256 * 4096}')
    def early(A, l):
        A(f's_cmp_ge_u32 s{sTK}, 32'); A(f's_cbranch_scc1 {l}')
        A('s_waitcnt vmcnt(0)')
        A('s_barrier')
        A(f's_cmp_lg_u32 s{sW}, 0'); A(f's_cbranch_scc1 {l}')
        A(f's_mov_b32 s{sT3}, {4 * DBG_CQ}')
        atomic_add(A, S_DBG, 1, sT3)
    A(f's_cmp_eq_u32 s{sP2}, 1'); A('s_cbranch_scc1 L_g1_v')
    WS.run_blocks(A, 'T', epi_t, sig, 'g1t', early)
    A('s_branch L_next')
    A.label('L_g1_v')
    WS.run_blocks(A, 'N', epi_n, sig, 'g1n', early)
    A('s_branch L_next')

def gen_g2(A):
    A.label('L_task_g2')
    A(f's_sub_u32 s{sT0}, s{sTK}, {T_G2}')
    divmod_const(A, sT0, 6, sP0, sP1)
    copy_srd(A, sGA, S_AX); copy_srd(A, sGB, S_AWQKV)
    A(f's_mov_b32 s{sLDB}, 3072'); A(f's_mov_b32 s{sKIT}, 4')
    A(f's_lshl_b32 s{sBOFF}, s{sP1}, 9')
    if THROTTLE: wait_cnt(A, S_DBG, 32, off=4 * DBG_WTK, sleep=16)
    WS.load_w(A)
    WS.setup_a(A)
    A(f's_lshl_b32 s{sAOFF}, s{sP0}, 19')
    lane_consts(A)
    A(f's_and_b32 s{sT0}, s{sP1}, 1'); A(f's_lshl_b32 s{sT0}, s{sT0}, 4'); A(f's_lshl_b32 s{sT1}, s{sW}, 2'); A(f's_add_u32 s{sT0}, s{sT0}, s{sT1}')
    A(f's_lshl_b32 s{sE0}, s{sT0}, 16'); A(f's_lshl_b32 s{sT0}, s{sP0}, 14'); A(f's_add_u32 s{sE0}, s{sE0}, s{sT0}')
    def sig(A, d):
        A(f's_mov_b32 s{sT3}, {4 * DBG_CG2}')
        atomic_add(A, S_DBG, 1, sT3)
    A(f's_cmp_ge_u32 s{sP1}, 4'); A('s_cbranch_scc1 L_g2_v')
    A('v_lshrrev_b32 v13, 3, v11'); A('v_lshlrev_b32 v13, 4, v13'); A('v_and_b32 v14, 3, v11'); A('v_add_u32 v13, v13, v14')
    A('v_bfe_u32 v14, v11, 2, 1')
    A(f's_cmp_ge_u32 s{sP1}, 2')
    A(f's_cselect_b32 s{sE1}, 2, 3'); A(f's_cselect_b32 s{sE2}, 128, 64'); A(f's_cselect_b32 s{sE3}, {WS_KA - WS_QA}, 0'); A(f's_add_u32 s{sE3}, s{sE3}, {WS_QA}')
    A(f'v_lshlrev_b32 v14, s{sE1}, v14'); A('v_add_u32 v13, v13, v14')
    A('v_and_b32 v14, 1, v12'); A('v_lshl_add_u32 v13, v14, 5, v13')
    A('v_lshlrev_b32 v13, 4, v13')
    A('v_lshrrev_b32 v14, 1, v12'); A('v_lshl_add_u32 v1, v14, 16, v13')
    A(f's_add_u32 s{sE0}, s{sE0}, s{sE3}')
    WS.setup_a(A)
    def epi_t(A, half):
        for i in range(2):
            for c in range(2):
                for kt in range(2):
                    tm = 2 * i + kt
                    d = WS.vPKD + 4 * kt
                    A(f's_add_u32 s{sT0}, s{sE0}, {i * 1024 + c * 131072}')
                    if kt: A(f's_add_u32 s{sT0}, s{sT0}, s{sE2}')
                    WS.pack(A, tm * 4 + 2 * c, tm * 4 + 2 * c + 1, d)
                    A(f'buffer_store_dwordx4 {vr(d,4)}, v1, {srd(S_WS)}, s{sT0} offen sc1')
        A(f's_add_u32 s{sE0}, s{sE0}, 2048')
    WS.run_blocks(A, 'T', epi_t, sig, 'g2t')
    A('s_branch L_next')
    A.label('L_g2_v')
    A('v_and_b32 v13, 7, v11')
    A('v_and_b32 v14, 1, v12'); A('v_lshl_add_u32 v13, v14, 4, v13')
    A('v_lshrrev_b32 v14, 1, v12'); A('v_lshl_add_u32 v13, v14, 5, v13')
    A('v_lshlrev_b32 v13, 4, v13')
    A('v_lshrrev_b32 v14, 3, v11'); A('v_lshl_add_u32 v1, v14, 16, v13')
    A(f's_add_u32 s{sE0}, s{sE0}, {WS_VAT}')
    WS.setup_a(A)
    def epi_n(A, half):
        for i in range(2):
            for c in range(2):
                A(f's_add_u32 s{sT0}, s{sE0}, {i * 1024 + c * 131072}')
                for a in range(2):
                    tn = 2 * c + a
                    d = WS.vPKD + 4 * a
                    WS.pack(A, (2 * i) * 4 + tn, (2 * i + 1) * 4 + tn, d)
                    A(f'buffer_store_dwordx4 {vr(d,4)}, v1, {srd(S_WS)}, s{sT0} offen offset:{128*a} sc1')
        A(f's_add_u32 s{sE0}, s{sE0}, 2048')
    WS.run_blocks(A, 'N', epi_n, sig, 'g2n')
    A('s_branch L_next')

def out_epilogue(A, G):
    lane_consts(A)
    A('v_lshrrev_b32 v13, 2, v11'); A('v_and_b32 v14, 3, v11'); A('v_lshl_add_u32 v13, v13, 3, v14')
    A('v_lshlrev_b32 v13, 11, v13'); A('v_lshl_add_u32 v13, v12, 4, v13')
    if G.WM == 2:
        A(f's_lshr_b32 s{sT0}, s{sW}, 1'); A(f's_lshl_b32 s{sT0}, s{sT0}, 17'); A(f's_add_u32 s{sE0}, s{sE0}, s{sT0}')
        A(f's_and_b32 s{sT0}, s{sW}, 1'); A(f's_lshl_b32 s{sT0}, s{sT0}, 7'); A(f's_add_u32 s{sE0}, s{sE0}, s{sT0}')
    else:
        A(f's_lshl_b32 s{sT0}, s{sW}, 6'); A(f's_add_u32 s{sE0}, s{sE0}, s{sT0}')
    n = 0
    for tm in range(G.TM):
        A(f's_add_u32 s{sT0}, s{sE0}, {(32 * (tm // 2) + 4 * (tm % 2)) * 2048}')
        for c in range(G.TN // 2):
            d = 16 + 4 * n; n += 1
            G.pack(A, tm * G.TN + 2 * c, tm * G.TN + 2 * c + 1, d)
            A(f'buffer_store_dwordx4 {vr(d,4)}, v13, {srd(S_OUT)}, s{sT0} offen offset:{64*c}')

def gen_g3(A):
    G = G128
    A.label('L_task_g3')
    A(f's_sub_u32 s{sT1}, s{sTK}, {T_G3}')
    A(f's_lshr_b32 s{sP0}, s{sT1}, 2'); A(f's_and_b32 s{sP1}, s{sT1}, 3')
    wait_cnt(A, S_DBG, N_AT, off=4 * DBG_CAT, sleep=32)
    copy_srd(A, sGA, S_WS); copy_srd(A, sGB, S_AWO)
    A(f's_mov_b32 s{sLDA}, 1024'); A(f's_mov_b32 s{sLDB}, 1024'); A(f's_mov_b32 s{sKIT}, 2')
    A(f's_lshl_b32 s{sAOFF}, s{sP0}, 17'); A(f's_add_u32 s{sAOFF}, s{sAOFF}, {WS_OA}'); A(f's_lshl_b32 s{sBOFF}, s{sP1}, 8')
    G.setup(A)
    G.mainloop(A, 'T')
    A(f's_lshl_b32 s{sE0}, s{sP0}, 18'); A(f's_lshl_b32 s{sT0}, s{sP1}, 8'); A(f's_add_u32 s{sE0}, s{sE0}, s{sT0}')
    out_epilogue(A, G)
    A('s_branch L_next')

def gen_at(A):
    A.label('L_task_at')
    A(f's_sub_u32 s{sT1}, s{sTK}, {T_AT}')
    A(f's_lshr_b32 s{sP0}, s{sT1}, 3'); A(f's_and_b32 s{sP1}, s{sT1}, 7')
    wait_cnt(A, S_DBG, N_G2 * 4, off=4 * DBG_CG2, sleep=32)
    A(f's_lshl_b32 s{sP1}, s{sP1}, 2'); A(f's_add_u32 s{sP1}, s{sP1}, s{sW}     ; head')
    A(f's_lshl_b32 s{sP0}, s{sP0}, 1')
    A(f's_mov_b32 s{sP2}, 2')
    vQ = 16; vK = 20; vV = 56; vS = 128; vO = 0
    vNEG = 15
    A('v_and_b32 v10, 63, v0'); A('v_lshlrev_b32 v11, 4, v10     ; lane*16')
    A('v_and_b32 v12, 31, v10'); A('v_lshrrev_b32 v13, 5, v10     ; q, hh')
    A('v_lshl_add_u32 v14, v13, 4, v12'); A('v_lshlrev_b32 v14, 4, v14')
    A('v_lshlrev_b32 v9, 3, v13'); A('v_sub_u32 v9, v12, v9')
    A(f'v_mov_b32 v{vNEG}, 0xff800000')
    A('v_lshlrev_b32 v8, 10, v12'); A('v_lshl_add_u32 v8, v13, 4, v8')
    A('v_cmp_eq_u32 vcc, 16, v12'); A('v_cmp_eq_u32 s[98:99], 20, v12'); A('s_or_b64 vcc, vcc, s[98:99]')
    A('v_mov_b32 v7, 0x3f803f80'); A('v_cndmask_b32 v7, 0, v7, vcc')
    for r in range(72): A(f'v_mov_b32 v{vV+r}, v7')
    A('s_mov_b32 s98, 0x0000ffff'); A('s_mov_b32 s99, 0x0000ffff')
    C = fbits(0.25 * math.log2(math.e))
    A(f's_mov_b32 s{sE3}, {C}')
    A.label('L_at_loop')
    A(f's_lshl_b32 s{sE0}, s{sP1}, 6'); A(f's_add_u32 s{sE0}, s{sE0}, s{sP0}'); A(f's_lshl_b32 s{sE0}, s{sE0}, 10')
    A(f's_add_u32 s{sT0}, s{sE0}, {WS_QA}')
    A(f'buffer_load_dwordx4 {vr(vQ,4)}, v11, {srd(S_WS)}, s{sT0} offen sc1')
    def skip_if_invalid(i, tag):
        if i == 8: return None
        l = A.newlabel(f'L_at{tag}')
        A(f's_cmp_lt_u32 s{sP0}, {8 - i}'); A(f's_cbranch_scc1 {l}')
        return l
    for i in range(9):
        l = skip_if_invalid(i, 'l')
        A(f's_add_u32 s{sT0}, s{sE0}, {WS_KA}'); A(f's_sub_u32 s{sT0}, s{sT0}, {(8 - i) * 1024}')
        A(f'buffer_load_dwordx4 {vr(vK+4*i,4)}, v11, {srd(S_WS)}, s{sT0} offen sc1')
        A(f's_add_u32 s{sT0}, s{sT0}, {WS_VAT - WS_KA}')
        A('s_mov_b64 exec, s[98:99]')
        A(f'buffer_load_dwordx4 {vr(vV+8*i,4)}, v14, {srd(S_WS)}, s{sT0} offen sc1')
        A(f'buffer_load_dwordx4 {vr(vV+8*i+4,4)}, v14, {srd(S_WS)}, s{sT0} offen offset:512 sc1')
        A('s_mov_b64 exec, -1')
        if l: A.label(l)
    A('s_waitcnt vmcnt(0)')
    def sreg(i, r): return (vS + 16 * i + r) if i < 8 else (vK + r)
    for i in range(9):
        l = skip_if_invalid(i, 's')
        if i < 8:
            A(f'v_mfma_f32_32x32x16_bf16 {vr(vS+16*i,16)}, {vr(vK+4*i,4)}, {vr(vQ,4)}, 0')
        else:
            A(f'v_mfma_f32_32x32x16_bf16 {vr(vK,16)}, {vr(vK+32,4)}, {vr(vQ,4)}, 0')
        if l:
            l2 = A.newlabel('L_atv')
            A(f's_branch {l2}')
            A.label(l)
            for r in range(16): A(f'v_mov_b32 v{sreg(i,r)}, v{vNEG}')
            A.label(l2)
    A('s_nop 7'); A('s_nop 7')
    for r in range(16):
        c = 16 * (r // 8) + r % 8
        A(f'v_cmp_gt_i32 vcc, {c}, v9')
        A(f'v_cndmask_b32 v{sreg(0,r)}, v{vNEG}, v{sreg(0,r)}, vcc')
        A(f'v_cndmask_b32 v{sreg(8,r)}, v{sreg(8,r)}, v{vNEG}, vcc')
    allr = [sreg(i, r) for i in range(9) for r in range(16)]
    A(f'v_max3_f32 v2, v{allr[0]}, v{allr[1]}, v{allr[2]}'); A(f'v_max3_f32 v3, v{allr[3]}, v{allr[4]}, v{allr[5]}')
    for k in range(6, 144, 4):
        A(f'v_max3_f32 v2, v2, v{allr[k]}, v{allr[k+1]}')
        if k + 3 < 144: A(f'v_max3_f32 v3, v3, v{allr[k+2]}, v{allr[k+3]}')
    A('v_max_f32 v2, v2, v3'); A('v_mov_b32 v3, v2'); A('v_permlane32_swap_b32 v2, v3'); A('v_max_f32 v2, v2, v3')
    A(f'v_mul_f32 v2, s{sE3}, v2')
    for r in range(16): A(f'v_accvgpr_write_b32 a{r}, 0')
    for i in range(9):
        l = skip_if_invalid(i, 'p')
        for r in range(16): A(f'v_fma_f32 v{sreg(i,r)}, v{sreg(i,r)}, s{sE3}, -v2')
        for r in range(16): A(f'v_exp_f32 v{sreg(i,r)}, v{sreg(i,r)}')
        b = sreg(i, 0)
        for r in range(8): A(f'v_cvt_pk_bf16_f32 v{b+r}, v{b+2*r}, v{b+2*r+1}')
        for u in range(2):
            A(f'v_mfma_f32_32x32x16_bf16 a[0:15], {vr(vV+8*i+4*u,4)}, {vr(b+4*u,4)}, a[0:15]')
        if l: A.label(l)
    A('s_nop 7'); A('s_nop 7')
    for r in range(9): A(f'v_accvgpr_read_b32 v{vS+r}, a{r}')
    A(f'v_rcp_f32 v2, v{vS+8}')
    for r in range(8): A(f'v_mul_f32 v{vS+r}, v{vS+r}, v2')
    for r in range(4): A(f'v_cvt_pk_bf16_f32 v{vS+16+r}, v{vS+2*r}, v{vS+2*r+1}')
    A(f's_lshl_b32 s{sT0}, s{sP0}, 15'); A(f's_lshl_b32 s{sT1}, s{sP1}, 5'); A(f's_add_u32 s{sT0}, s{sT0}, s{sT1}'); A(f's_add_u32 s{sT0}, s{sT0}, {WS_OA}')
    A(f'buffer_store_dwordx4 {vr(vS+16,4)}, v8, {srd(S_WS)}, s{sT0} offen sc1')
    A(f's_add_u32 s{sP0}, s{sP0}, 1'); A(f's_sub_u32 s{sP2}, s{sP2}, 1'); A(f's_cmp_lg_u32 s{sP2}, 0'); A('s_cbranch_scc1 L_at_loop')
    signal(A, S_DBG, off=4 * DBG_CAT)
    A('s_branch L_next')

def gen_sv(A):
    sSEG, sHG, sCB, sHD = sP0, sP1, sP2, 92
    A.label('L_task_sv')
    A(f's_sub_u32 s{sT0}, s{sTK}, {T_SV}'); A(f's_lshr_b32 s{sSEG}, s{sT0}, 4'); A(f's_bfe_u32 s{sHG}, s{sT0}, 0x30001'); A(f's_and_b32 s{sCB}, s{sT0}, 1')
    copy_srd(A, sGB, S_WO)
    A(f's_mov_b32 s{sLDB}, 1024')
    A(f's_lshl_b32 s{sBOFF}, s{sHG}, 19'); A(f's_lshl_b32 s{sT0}, s{sCB}, 9'); A(f's_add_u32 s{sBOFF}, s{sBOFF}, s{sT0}')
    WS.load_w(A)
    WS.setup_a(A)
    A(f's_lshl_b32 s{sHD}, s{sHG}, 2'); A(f's_add_u32 s{sHD}, s{sHD}, s{sW}     ; head')
    wait_cnt(A, S_DBG, 32, off=4 * DBG_RINIT, sleep=32)
    wait_cnt(A, S_DBG, KVQ_DONE, off=4 * DBG_KV, sleep=32)
    vQ = 136; vKV = 168; vKM = 232; vVM = 16; vS = 32; vP = 56; vO = 72; vONE = 248
    vL16, vKMA, vVMA, vD, vNEG, vOW, vPW, vRD = 108, 109, 110, 111, 112, 113, 117, 118
    lane_consts(A)
    A(f'v_lshlrev_b32 v{vL16}, 4, v10')
    A('v_lshrrev_b32 v14, 2, v11'); A('v_and_b32 v15, 1, v11'); A('v_lshl_add_u32 v14, v14, 1, v15'); A('v_lshlrev_b32 v14, 8, v14'); A(f'v_lshl_add_u32 v{vKMA}, v12, 4, v14')
    A('v_lshrrev_b32 v14, 2, v11'); A('v_and_b32 v15, 3, v11'); A('v_lshl_add_u32 v14, v14, 3, v15   ; kappa0(n)')
    A('v_lshlrev_b32 v9, 3, v12'); A(f'v_sub_u32 v{vD}, v14, v9')
    A('v_lshlrev_b32 v9, 4, v14'); A(f'v_lshl_add_u32 v{vVMA}, v12, 2, v9')
    A('v_lshlrev_b32 v13, 10, v14'); A(f's_lshl_b32 s{sT0}, s{sW}, 8'); A(f'v_add_u32 v13, s{sT0}, v13')
    for wp in range(4):
        A(f'v_add_u32 v9, {4 * wp}, v12'); A('v_xor_b32 v9, v9, v11'); A(f'v_lshl_add_u32 v{vOW + wp}, v9, 4, v13')
    A('v_lshlrev_b32 v13, 11, v14'); A(f's_lshl_b32 s{sT0}, s{sW}, 7'); A(f'v_add_u32 v13, s{sT0}, v13'); A(f'v_lshl_add_u32 v{vPW}, v12, 4, v13')
    A(f'v_mov_b32 v{vNEG}, 0xff800000')
    for r in range(4): A(f'v_mov_b32 v{vONE+r}, 0x3f803f80')
    C = fbits(128 ** -0.5 * math.log2(math.e))
    A(f's_mov_b32 s{sE3}, {C}')
    def qkv_loads(segreg):
        A(f's_lshr_b32 s{sT3}, s{segreg}, 2'); A(f's_lshl_b32 s{sT3}, s{sT3}, 2'); A(f's_add_u32 s{sT3}, s{sT3}, {4 * DBG_KV}')
        wait_cnt(A, S_DBG, KVQ_DONE, off_sgpr=sT3, sleep=16)
        A(f's_lshl_b32 s{sT1}, s{segreg}, 5'); A(f's_add_u32 s{sT1}, s{sT1}, s{sHD}')
        A(f's_lshl_b32 s{sT0}, s{sT1}, 13'); A(f's_add_u32 s{sT0}, s{sT0}, {WS_QF}')
        for i in range(8):
            if i == 4: A(f's_add_u32 s{sT0}, s{sT0}, 4096')
            A(f'buffer_load_dwordx4 {vr(vQ+4*i,4)}, v{vL16}, {srd(S_WS)}, s{sT0} offen offset:{1024*(i%4)} sc1')
        A(f's_lshl_b32 s{sT0}, s{sT1}, 14'); A(f's_add_u32 s{sT0}, s{sT0}, {WS_KVF}')
        for i in range(16):
            if i and i % 4 == 0: A(f's_add_u32 s{sT0}, s{sT0}, 4096')
            A(f'buffer_load_dwordx4 {vr(vKV+4*i,4)}, v{vL16}, {srd(S_WS)}, s{sT0} offen offset:{1024*(i%4)} sc1')
    qkv_loads(sSEG)
    def svt(i):
        if not LITE: return
        A('s_memrealtime s[94:95]'); A('s_waitcnt lgkmcnt(0)')
        A(f's_lshl_b32 s96, s{sSEG}, 1'); A(f's_add_u32 s96, s96, s{sCB}'); A('s_lshl_b32 s96, s96, 3'); A(f's_add_u32 s96, s96, s{sHG}'); A('s_lshl_b32 s96, s96, 5'); A(f's_add_u32 s96, s96, {113*MB + 4*i}')
        A('v_mov_b32 v120, s94'); A('v_mov_b32 v121, s96')
        A(f'buffer_store_dword v120, v121, {srd(S_WS)}, 0 offen')
    A.label('L_sv_loop')
    svt(0)
    A(f's_lshl_b32 s{sE0}, s{sSEG}, 5'); A(f's_add_u32 s{sE0}, s{sE0}, s{sHD}     ; seg*32+h')
    A('s_waitcnt vmcnt(0)')
    for qt in range(2):
        for kt in range(2):
            d = vS + 12 * qt + 4 * kt
            for w in range(4):
                A(f'v_mfma_f32_16x16x32_bf16 {vr(d,4)}, {vr(vKV + 16 * w + 4 * kt, 4)}, {vr(vQ+8*w+4*qt,4)}, {vr(d,4) if w else 0}')
    svt(1)
    A(f's_lshl_b32 s{sT3}, s{sHD}, 7'); A(f's_add_u32 s{sT3}, s{sT3}, {WS_PROG}')
    A(f's_add_u32 s{sE1}, s{sSEG}, 1')
    wait_cnt(A, S_WS, f's{sE1}', off_sgpr=sT3, sleep=2, adaptive=True)
    svt(2)
    A(f's_lshl_b32 s{sT0}, s{sE0}, 12'); A(f's_add_u32 s{sT0}, s{sT0}, {WS_KM}')
    for w in range(4): A(f'buffer_load_dwordx4 {vr(vKM+4*w,4)}, v{vL16}, {srd(S_WS)}, s{sT0} offen offset:{1024*w} sc1')
    A(f's_lshl_b32 s{sT0}, s{sE0}, 12'); A(f's_add_u32 s{sT0}, s{sT0}, {WS_VMT}')
    for w in range(4):
        A(f'buffer_load_dwordx4 {vr(vVM+4*w,4)}, v{vL16}, {srd(S_WS)}, s{sT0} offen offset:{1024*w} sc1')
    for qt in range(2):
        b = vS + 12 * qt
        for kt in range(2):
            for r in range(4):
                c = 4 * kt + r - 4 * qt
                A(f'v_cmp_gt_i32 vcc, {c}, v{vD}')
                A(f'v_cndmask_b32 v{b+4*kt+r}, v{b+4*kt+r}, v{vNEG}, vcc')
    A('s_waitcnt vmcnt(4)' if not LITE else 's_waitcnt vmcnt(0)')
    for qt in range(2):
        d = vS + 12 * qt + 8
        for w in range(4):
            A(f'v_mfma_f32_16x16x32_bf16 {vr(d,4)}, {vr(vKM + 4 * w, 4)}, {vr(vQ+8*w+4*qt,4)}, {vr(d,4) if w else 0}')
    A('s_barrier')
    for qt in range(2):
        b = vS + 12 * qt
        A(f'v_max3_f32 v2, v{b}, v{b+1}, v{b+2}'); A(f'v_max3_f32 v3, v{b+3}, v{b+4}, v{b+5}')
        A(f'v_max3_f32 v2, v2, v{b+6}, v{b+7}'); A(f'v_max3_f32 v3, v3, v{b+8}, v{b+9}'); A('v_max_f32 v2, v2, v3')
        A('v_mov_b32 v3, v2'); A('v_permlane16_swap_b32 v2, v3'); A('v_max_f32 v2, v2, v3')
        A('v_mov_b32 v3, v2'); A('v_permlane32_swap_b32 v2, v3'); A('v_max_f32 v2, v2, v3')
        A(f'v_mul_f32 v2, s{sE3}, v2')
        for r in range(10): A(f'v_fma_f32 v{b+r}, v{b+r}, s{sE3}, -v2')
        for r in range(10): A(f'v_exp_f32 v{b+r}, v{b+r}')
        p = vP + 8 * qt
        for r in range(5): A(f'v_cvt_pk_bf16_f32 v{p+r}, v{b+2*r}, v{b+2*r+1}')
        A(f'v_mov_b32 v{p+5}, 0')
        o = vO
        if qt == 0: A('s_waitcnt vmcnt(0)')
        A(f'v_mfma_f32_16x16x32_bf16 {vr(o+32,4)}, {vr(vONE,4)}, {vr(p,4)}, 0')
        for w in range(4):
            for a in range(2):
                d = o + 8 * w + 4 * a
                A(f'v_mfma_f32_16x16x32_bf16 {vr(d,4)}, {vr(vKV+16*w+8+4*a,4)}, {vr(p,4)}, 0')
        A(f'v_mfma_f32_16x16x16_bf16 {vr(o+32,4)}, {vr(vONE,2)}, {vr(p+4,2)}, {vr(o+32,4)}')
        for w in range(4):
            for a in range(2):
                d = o + 8 * w + 4 * a
                A(f'v_mfma_f32_16x16x16_bf16 {vr(d,4)}, {vr(vVM+4*w+2*a,2)}, {vr(p+4,2)}, {vr(d,4)}')
        A(f'v_rcp_f32 v2, v{o+32}')
        for r in range(32): A(f'v_mul_f32 v{o+r}, v{o+r}, v2')
        for w in range(4):
            d = o + 8 * w
            for r in range(4): A(f'v_cvt_pk_bf16_f32 v{d+r}, v{o+8*w+2*r}, v{o+8*w+2*r+1}')
            A(f'ds_write_b128 v{vOW+w}, {vr(d,4)} offset:{4096*qt}')
    svt(3)
    A('s_waitcnt lgkmcnt(0)')
    A('s_barrier')
    WS.compute(A, 0, 'T', TM=2)
    svt(4)
    A(f's_lshl_b32 s{sE2}, s{sSEG}, 1'); A(f's_add_u32 s{sE2}, s{sE2}, s{sCB}      ; seg*2+cb')
    A(f's_lshl_b32 s{sE1}, s{sE2}, 18'); A(f's_add_u32 s{sE1}, s{sE1}, {WS_PART}'); A(f's_lshl_b32 s{sT0}, s{sW}, 13'); A(f's_add_u32 s{sE1}, s{sE1}, s{sT0}')
    A(f's_lshl_b32 s{sT0}, s{sHG}, 15'); A(f's_add_u32 s{sT0}, s{sT0}, s{sE1}')
    for t in range(8):
        if t == 4: A(f's_add_u32 s{sT0}, s{sT0}, 4096')
        A(f'buffer_store_dwordx4 {vr(WS.vACC + 4 * t, 4)}, v{vL16}, {srd(S_WS)}, s{sT0} offen offset:{1024 * (t % 4)} sc1')
    A(f's_lshl_b32 s{sT3}, s{sE2}, 7'); A(f's_add_u32 s{sT3}, s{sT3}, {WS_CNT}')
    signal(A, S_WS, off_expr_sgpr=sT3)
    svt(5)
    wait_cnt(A, S_WS, 8, off_sgpr=sT3, sleep=1)
    svt(6)
    A(f's_lshl_b32 s{sT0}, s{sHG}, 10'); A(f's_add_u32 s{sT0}, s{sT0}, s{sE1}')
    for i in range(8):
        A(f'buffer_load_dwordx4 {vr(vO + 4 * i, 4)}, v{vL16}, {srd(S_WS)}, s{sT0} offen sc1')
        if i < 7: A(f's_add_u32 s{sT0}, s{sT0}, 32768')
    A('s_waitcnt vmcnt(0)')
    for st in (16, 8, 4):
        for r in range(st): A(f'v_add_f32 v{vO+r}, v{vO+r}, v{vO+st+r}')
    A(f'v_cvt_pk_bf16_f32 v{vO+4}, v{vO}, v{vO+1}'); A(f'v_cvt_pk_bf16_f32 v{vO+5}, v{vO+2}, v{vO+3}')
    A(f's_lshl_b32 s{sT0}, s{sSEG}, 16'); A(f's_lshr_b32 s{sT1}, s{sHG}, 2'); A(f's_lshl_b32 s{sT1}, s{sT1}, 13'); A(f's_add_u32 s{sT0}, s{sT0}, s{sT1}')
    A(f's_lshl_b32 s{sT1}, s{sCB}, 9'); A(f's_add_u32 s{sT0}, s{sT0}, s{sT1}'); A(f's_add_u32 s{sT0}, s{sT0}, 1024')
    A(f's_bfe_u32 s{sT1}, s{sHG}, 0x10001'); A(f's_lshl_b32 s{sT1}, s{sT1}, 6'); A(f's_add_u32 s{sT0}, s{sT0}, s{sT1}')
    A(f's_and_b32 s{sT1}, s{sHG}, 1'); A(f's_lshl_b32 s{sT1}, s{sT1}, 3'); A(f's_add_u32 s{sT0}, s{sT0}, s{sT1}')
    A(f'buffer_store_dwordx2 {vr(vO+4,2)}, v{vPW}, {srd(S_OUT)}, s{sT0} offen')
    if TRACE or LITE:
        A('s_memrealtime s[94:95]'); A('s_waitcnt lgkmcnt(0)')
        A(f's_lshl_b32 s96, s{sE2}, 3'); A(f's_add_u32 s96, s96, s{sHG}'); A('s_lshl_b32 s96, s96, 2'); A(f's_add_u32 s96, s96, {111*MB}')
        A('v_mov_b32 v120, s94'); A('v_mov_b32 v121, s96')
        A(f'buffer_store_dword v120, v121, {srd(S_WS)}, 0 offen')
    A(f's_add_u32 s{sSEG}, s{sSEG}, {NSET}')
    A(f's_cmp_ge_u32 s{sSEG}, 64'); A('s_cbranch_scc1 L_next')
    qkv_loads(sSEG)
    A('s_branch L_sv_loop')

def gen_worker(A):
    sDEC = 97
    A.label('L_worker')
    A(f's_mov_b32 s{sTK}, 4000')
    A(f's_mov_b32 s{sDEC}, 0')
    A('s_branch L_next')
    A.label('L_worker2')
    A(f's_mov_b32 s{sTK}, 4000')
    A(f's_mov_b32 s{sDEC}, 2')
    A.label('L_next')
    A('s_barrier')
    trace(A, 2)
    l = A.newlabel('L_ntk')
    A(f's_cmp_lg_u32 s{sW}, 0'); A(f's_cbranch_scc1 {l}')
    A('s_mov_b64 exec, 1')
    A(f'v_mov_b32 v122, {LDS_TICK}')
    A(f's_cmp_lg_u32 s{sDEC}, 1'); A('s_cbranch_scc1 L_take')
    A('v_mov_b32 v123, 0')
    A.label('L_dec')
    A(f'buffer_load_dwordx2 v[120:121], v123, {srd(S_DBG)}, 0 offen sc1')
    A('s_waitcnt vmcnt(0)')
    A(f'v_readfirstlane_b32 s{sT0}, v120'); A(f'v_readfirstlane_b32 s{sT1}, v121')
    A(f's_cmp_ge_u32 s{sT0}, 32'); A('s_cbranch_scc1 L_take')
    A(f's_cmp_ge_u32 s{sT1}, 256'); A('s_cbranch_scc1 L_dec2')
    A('s_sleep 2')
    A('s_branch L_dec')
    A.label('L_dec2')
    A(f'buffer_load_dword v120, v123, {srd(S_DBG)}, 0 offen sc1')
    A('s_waitcnt vmcnt(0)')
    A(f'v_readfirstlane_b32 s{sT0}, v120')
    A(f's_cmp_ge_u32 s{sT0}, 32'); A('s_cbranch_scc1 L_take')
    A('v_mov_b32 v120, 1'); A(f'v_mov_b32 v121, {4 * DBG_FALLB}')
    A(f'buffer_atomic_add v120, v121, {srd(S_DBG)}, 0 offen sc0')
    A('s_waitcnt vmcnt(0)')
    A(f'v_readfirstlane_b32 s{sT1}, v120')
    A(f's_add_u32 s{sT0}, s{sT0}, s{sT1}')
    A(f's_cmp_ge_u32 s{sT0}, 32'); A('s_cbranch_scc1 L_take')
    A(f's_add_u32 s{sT0}, s{sT0}, 0x10000')
    A(f'v_mov_b32 v120, s{sT0}')
    A('s_branch L_pub')
    A.label('L_take')
    A('v_mov_b32 v120, 1'); A(f'v_mov_b32 v121, {4 * DBG_QUEUE}')
    A(f'buffer_atomic_add v120, v121, {srd(S_DBG)}, 0 offen sc0')
    A('s_waitcnt vmcnt(0)')
    A.label('L_pub')
    A('ds_write_b32 v122, v120')
    A('s_mov_b64 exec, -1')
    A('s_waitcnt lgkmcnt(0)')
    A.label(l)
    A('s_barrier')
    A(f'v_mov_b32 v122, {LDS_TICK}')
    A('ds_read_b32 v120, v122')
    A('s_waitcnt lgkmcnt(0)')
    A(f'v_readfirstlane_b32 s{sTK}, v120')
    A(f's_mov_b32 s{sT2}, s{sDEC}')
    A(f's_add_u32 s{sDEC}, s{sDEC}, 1'); A(f's_min_u32 s{sDEC}, s{sDEC}, 2')
    A(f's_cmp_lt_u32 s{sTK}, 0x10000'); A('s_cbranch_scc1 L_disp')
    A(f's_and_b32 s57, s{sTK}, 31')
    A('s_barrier')
    A('s_branch L_head')
    A.label('L_disp')
    trace(A, 0)
    A(f's_cmp_lt_u32 s{sTK}, {T_G2}'); A('s_cbranch_scc1 L_task_kv')
    A(f's_cmp_lt_u32 s{sTK}, {T_Q}'); A('s_cbranch_scc1 L_task_g2')
    A(f's_cmp_lt_u32 s{sTK}, {T_SV}'); A('s_cbranch_scc1 L_task_q')
    A(f's_cmp_lt_u32 s{sTK}, {T_AT}'); A('s_cbranch_scc1 L_task_sv')
    A(f's_cmp_lt_u32 s{sTK}, {T_G3}'); A('s_cbranch_scc1 L_task_at')
    A(f's_cmp_lt_u32 s{sTK}, {T_END}'); A('s_cbranch_scc1 L_task_g3')
    A(f's_cmp_eq_u32 s{sT2}, 0'); A('s_cbranch_scc1 L_next')
    A('s_branch L_end0')
    gen_g1(A); gen_g2(A); gen_g3(A); gen_at(A); gen_sv(A)
```

```python
from asmlib import *
from common import *
import math

sW, sH, sSTEP, sPSL, sMCUR, sMNXT, sT0, sT1, sT2, sKXO, sVXO, sKMO, sMODE, sT3 = range(56, 70)
sRDY = 70
vIDX = 1; vID = 2; vSEL = 4
vL16H, vHOME, vMP, vPST, vPLD, vMPUB, vKX, vVX, vKM, vVM, vSW, vSR, vOW = range(8, 21)
vNEG1 = 21
vFR = 24
vQK = 56
vVA = 72
vSTG = 80
vKXR = 104
vVXR = 112
vTMP = 120
vT2 = 22
vSR2T = 119
vSR2 = 0
LDS_MEM = 131072
LDS_SX = LDS_MEM + 8192
LDS_O = LDS_SX + 6144
LDS_KV = LDS_O + 2048
LDS_MISC = LDS_SX
NSTG = 3
assert LDS_KV + 16384 == 163840
vPB = vFR
sFO = 90
sFLA = 71
sSC = 4
sFLX = 90

def vr(b, n): return f'v[{b}:{b+n-1}]'

def operand_order():
    ops = []
    for i in range(2):
        for m, a in (('k', 0), ('q', 0), ('k', 1), ('q', 1), ('v', 0), ('v', 1)): ops.append((m, a, i))
    for a in range(2):
        for i in range(2, 8):
            ops.append(('k', a, i)); ops.append(('q', a, i))
    for i in range(2, 8):
        ops.append(('v', 0, i)); ops.append(('v', 1, i))
    for a in range(8):
        for ks in range(2):
            ops.append(('o', a, ks))
    return ops
OPS = operand_order()
HOMED = [3, 7, 11] + [15, 19, 23, 27, 31, 35] + [36, 38] + [48 + i for i in (1, 4, 7, 10, 13)]
assert len(HOMED) == 16
LOC = {}
_r = 0
for i, o in enumerate(OPS):
    if i in HOMED:
        _qs = [j for j in HOMED if OPS[j][0] == 'q']; _os = [j for j in HOMED if OPS[j][0] != 'q']
        assert len(_qs) == 8
        LOC[o] = ('lds', _qs.index(i) if o[0] == 'q' else 8 + _os.index(i))
    else:
        LOC[o] = ('a', 8 * _r) if _r < 32 else ('v', 128 + 8 * (_r - 32))
        _r += 1
assert _r == 48

class Cnt:
    def __init__(self, A, name, maxv): self.A = A; self.name = name; self.maxv = maxv; self.q = []
    def issue(self, tag=None): self.q.append(tag)
    def wait(self, tag):
        if tag not in self.q: return
        idx = len(self.q) - 1 - self.q[::-1].index(tag)
        n = len(self.q) - 1 - idx
        n = min(n, self.maxv)
        self.A(f's_waitcnt {self.name}({n})')
        self.q = self.q[len(self.q) - n:] if n else []
    def all(self):
        self.A(f's_waitcnt {self.name}(0)'); self.q = []

def gen_setup(A):
    A('s_mov_b32 s4, 0x33333333'); A('s_mov_b32 s5, 0x33333333'); A('s_mov_b32 s6, 0xcccccccc'); A('s_mov_b32 s7, 0xcccccccc')
    A('v_and_b32 v120, 63, v0            ; lane')
    A('v_and_b32 v121, 15, v120          ; n = lane%16')
    A('v_lshrrev_b32 v122, 4, v120       ; g = lane/16')
    A(f'v_mov_b32 v{vNEG1}, -1')
    A('v_and_b32 v123, 2, v121')
    A('v_cmp_eq_u32 vcc, 0, v123')
    A(f'v_mov_b32 v124, 0xeeeeeeee')
    A(f'v_mov_b32 v125, 0x44444444')
    A(f'v_cndmask_b32 v{vIDX}, v124, v125, vcc')
    A('v_lshrrev_b32 v123, 2, v121')
    A('v_and_b32 v124, 3, v121           ; e')
    A('v_and_b32 v125, 1, v124')
    A('v_lshlrev_b32 v125, 4, v125       ; shift 0/16')
    A('v_mov_b32 v126, 0x3f80')
    A('v_lshlrev_b32 v126, v125, v126')
    A('v_cmp_eq_u32 vcc, v123, v122')
    A('v_cndmask_b32 v126, 0, v126, vcc')
    A('v_cmp_gt_u32 vcc, 2, v124')
    A(f'v_cndmask_b32 v{vID}, 0, v126, vcc')
    A(f'v_cndmask_b32 v{vID+1}, v126, 0, vcc')
    A('v_and_b32 v125, 1, v121')
    A('v_lshlrev_b32 v125, 4, v125')
    A('v_mov_b32 v126, 0x3f80')
    A('v_lshlrev_b32 v126, v125, v126')
    A('v_lshrrev_b32 v123, 1, v121       ; m/2 (0..7)')
    for r in range(4):
        A(f'v_cmp_eq_u32 vcc, {r}, v123')
        A(f'v_cndmask_b32 v{vSEL+r}, 0, v126, vcc')
    A(f'v_lshlrev_b32 v123, 4, v120      ; lane*16')
    A(f'v_add_u32 v{vL16H}, {LDS_MEM}, v123')
    A(f's_lshl_b32 s{sT0}, s{sW}, 15')
    A(f'v_add_u32 v{vHOME}, s{sT0}, v123')
    A(f's_lshl_b32 s{sT0}, s{sW}, 11')
    A(f'v_add_u32 v{vMP}, s{sT0}, v{vL16H}')
    A('v_lshrrev_b32 v123, 2, v121       ; q')
    A('v_and_b32 v124, 3, v121           ; e')
    A(f's_lshl_b32 s{sT0}, s{sW}, 16'); A(f's_lshl_b32 s{sT1}, s{sH}, 8'); A(f's_add_u32 s{sT0}, s{sT0}, s{sT1}')
    A('v_lshlrev_b32 v125, 13, v123'); A('v_lshlrev_b32 v126, 6, v122'); A('v_lshlrev_b32 v127, 4, v124')
    A(f'v_add3_u32 v{vPST}, v125, v126, v127'); A(f'v_add_u32 v{vPST}, s{sT0}, v{vPST}')
    A(f's_lshl_b32 s{sT0}, s{sH}, 13'); A(f's_lshl_b32 s{sT1}, s{sW}, 6'); A(f's_add_u32 s{sT0}, s{sT0}, s{sT1}')
    A('v_lshlrev_b32 v125, 10, v123'); A('v_lshlrev_b32 v126, 8, v122')
    A(f'v_add3_u32 v{vPLD}, v125, v126, v127'); A(f'v_add_u32 v{vPLD}, s{sT0}, v{vPLD}')
    A(f's_lshl_b32 s{sT0}, s{sH}, 8'); A(f's_lshl_b32 s{sT1}, s{sW}, 6'); A(f's_add_u32 s{sT0}, s{sT0}, s{sT1}')
    A('v_lshlrev_b32 v125, 5, v122'); A('v_lshlrev_b32 v126, 2, v121')
    A(f'v_add3_u32 v{vMPUB}, v125, v126, s{sT0}')
    A('v_lshlrev_b32 v126, 4, v120')
    A(f's_lshl_b32 s{sT0}, s{sH}, 14'); A(f's_lshl_b32 s{sT1}, s{sW}, 12'); A(f's_add_u32 s{sT0}, s{sT0}, s{sT1}')
    A(f'v_add_u32 v{vKX}, s{sT0}, v126')
    A(f's_add_u32 s{sT1}, s{sT1}, {LDS_KV}')
    A(f'v_add_u32 v{vVX}, s{sT1}, v126')
    A('v_lshlrev_b32 v125, 3, v123'); A('v_add_u32 v125, v125, v124   ; 8(m/4)+m%4')
    A('v_lshlrev_b32 v127, 4, v120')
    A(f's_lshl_b32 s{sT0}, s{sH}, 12'); A(f's_lshl_b32 s{sT1}, s{sW}, 10'); A(f's_add_u32 s{sT0}, s{sT0}, s{sT1}')
    A(f'v_add_u32 v{vVM}, s{sT0}, v127')
    A('v_and_b32 v125, 1, v121'); A('v_lshl_add_u32 v125, v123, 1, v125   ; t')
    A('v_lshlrev_b32 v127, 8, v125'); A('v_lshlrev_b32 v126, 4, v122')
    A(f's_lshl_b32 s{sT0}, s{sH}, 11'); A(f's_lshl_b32 s{sT1}, s{sW}, 6'); A(f's_add_u32 s{sT0}, s{sT0}, s{sT1}')
    A(f'v_add3_u32 v{vKM}, v127, v126, s{sT0}')
    A('v_lshrrev_b32 v126, 1, v122'); A('v_lshlrev_b32 v126, 8, v126    ; (g/2)*256')
    A('v_and_b32 v127, 1, v122'); A('v_lshlrev_b32 v127, 5, v127     ; half*32')
    A('v_and_b32 v125, 1, v121'); A('v_lshlrev_b32 v125, 4, v125'); A('v_lshl_add_u32 v125, v123, 6, v125   ; (n/4)*64 + (n&1)*16')
    A(f'v_add3_u32 v{vOW}, v125, v126, v127')
    A(f's_lshl_b32 s{sT0}, s{sW}, 9'); A(f's_add_u32 s{sT0}, s{sT0}, {LDS_O}')
    A(f'v_add_u32 v{vOW}, s{sT0}, v{vOW}')
    A('v_lshlrev_b32 v125, 4, v120')
    A(f's_lshl_b32 s{sT0}, s{sW}, 10'); A(f's_add_u32 s{sT0}, s{sT0}, {LDS_SX - 32}')
    A(f'v_add_u32 v{vSW}, s{sT0}, v125          ; (lane-2)*16 + w*1024')
    A(f'v_add_u32 v{vSR}, {LDS_SX}, v125')
    A(f's_lshl_b32 s{sT0}, s{sW}, 2'); A(f's_add_u32 s{sT0}, s{sT0}, {LDS_SX + 4096 - 32}')
    A(f'v_add_u32 v{vSR2T}, s{sT0}, v125')

def gen_load_weights(A, mid_at=None, mid=None):
    A('v_and_b32 v120, 63, v0'); A('v_and_b32 v121, 15, v120'); A('v_lshrrev_b32 v122, 4, v120')
    vD = 24
    vDO = 28
    vTQ = 32
    vTO = 33
    vTT = 40
    vW2 = 36
    vDT = 72
    for i in range(4):
        A(f'v_xor_b32 v123, {i << 2}, v121')
        A('v_lshlrev_b32 v123, 4, v123')
        A(f'v_add_u32 v124, {4 * i}, v122')
        A('v_lshlrev_b32 v124, 13, v124')
        A(f's_lshl_b32 s{sT0}, s{sW}, 17'); A(f's_lshl_b32 s{sT1}, s{sH}, 8'); A(f's_add_u32 s{sT0}, s{sT0}, s{sT1}')
        A(f'v_add3_u32 v{vD+i}, v123, v124, s{sT0}')
        A(f'v_lshrrev_b32 v{vW2+i}, 6, v123'); A(f'v_lshlrev_b32 v{vW2+i}, 1, v{vW2+i}')
    for i in range(4):
        sw = (i & 1) | ((i >> 1) << 3)
        A(f'v_xor_b32 v123, {sw}, v121')
        A('v_lshrrev_b32 v125, 3, v123       ; u')
        A('v_and_b32 v123, 7, v123')
        A('v_lshlrev_b32 v123, 4, v123')
        A('v_lshl_add_u32 v123, v125, 8, v123')
        A(f'v_add_u32 v124, {4 * i}, v122')
        A('v_lshlrev_b32 v124, 10, v124')
        A(f's_lshl_b32 s{sT0}, s{sW}, 14'); A(f's_lshl_b32 s{sT1}, s{sH}, 17'); A(f's_add_u32 s{sT0}, s{sT0}, s{sT1}')
        A(f'v_add3_u32 v{vDO+i}, v123, v124, s{sT0}')
    A('v_lshrrev_b32 v123, 2, v121    ; r'); A('v_and_b32 v124, 3, v121   ; q')
    A('v_lshrrev_b32 v125, 1, v122'); A('v_lshlrev_b32 v125, 4, v125'); A('v_and_b32 v126, 1, v122'); A('v_lshlrev_b32 v126, 1, v126')
    A('v_lshlrev_b32 v127, 2, v123    ; 4r = 8(r/2)+4(r%2)')
    A('v_add3_u32 v125, v125, v126, v127   ; row')
    A(f's_lshl_b32 s{sT0}, s{sW}, 2')
    A(f'v_add_u32 v126, s{sT0}, v124      ; chunk = 4w+q')
    A('v_xor_b32 v126, v126, v127         ; ^ (r<<2)')
    A('v_lshlrev_b32 v126, 4, v126')
    A(f'v_lshl_add_u32 v{vTQ}, v125, 8, v126')
    A(f'v_add_u32 v{vTQ}, {LDS_MEM}, v{vTQ}')
    A('v_and_b32 v126, 1, v122    ; g%2'); A('v_lshrrev_b32 v127, 1, v123   ; r/2')
    A('v_lshrrev_b32 v125, 1, v122'); A('v_lshlrev_b32 v125, 4, v125')
    A('v_lshl_add_u32 v125, v126, 2, v125'); A('v_lshl_add_u32 v125, v127, 3, v125')
    A('v_and_b32 v34, 1, v123'); A('v_add_u32 v125, v125, v34     ; row')
    A(f's_and_b32 s{sT0}, s{sW}, 1'); A(f's_lshl_b32 s{sT0}, s{sT0}, 3')
    A(f'v_lshlrev_b32 v34, 1, v124'); A(f'v_add_u32 v34, s{sT0}, v34    ; 8u+2q')
    A('v_lshl_add_u32 v126, v127, 3, v126   ; swz')
    A('v_xor_b32 v34, v34, v126')
    A('v_lshlrev_b32 v34, 4, v34')
    A(f'v_lshl_add_u32 v{vTO}, v125, 8, v34')
    A(f'v_add_u32 v{vTO}, {LDS_MEM}, v{vTO}')
    A(f'v_xor_b32 v{vTO+1}, 16, v{vTO}')
    chunks = [('k', ks) for ks in range(8)] + [('o', c) for c in range(8)] + [('v', ks) for ks in range(8)] + [('q', ks) for ks in range(8)]
    NCH = len(chunks)
    BUFS = [LDS_MEM, LDS_MEM + 16384, 0, 32768, 65536, 98304]
    bufof = [BUFS[ci % 6] if ci < 24 else BUFS[ci % 2] for ci in range(NCH)]
    vB = 76
    for j, v in enumerate((vTQ, vTO, vTO + 1)):
        A(f'v_subrev_u32 v{vB+2*j}, {LDS_MEM}, v{v}'); A(f'v_add_u32 v{vB+2*j+1}, 65536, v{vB+2*j}')
    def base_off(which, buf):
        j = {vTQ: 0, vTO: 1, vTO + 1: 2}[which]
        if buf >= LDS_MEM: return which, buf - LDS_MEM
        if buf >= 65536: return vB + 2 * j + 1, buf - 65536
        return vB + 2 * j, buf
    def dma(ci):
        m, x = chunks[ci]
        buf = bufof[ci]
        for i in range(4):
            A(f's_lshl_b32 s{sT0}, s{sW}, 12')
            A(f's_add_u32 m0, s{sT0}, {buf + 1024 * i}')
            if m != 'o':
                S = {'q': S_WQ, 'k': S_WK, 'v': S_WV}[m]
                A(f's_mov_b32 s{sT1}, {x * 64 * 8192}')
                A(f'buffer_load_dwordx4 v{vD+i}, {srd(S)}, s{sT1} offen lds')
            else:
                ks, ah, wp = x >> 2, (x >> 1) & 1, x & 1
                A(f's_mov_b32 s{sT1}, {ks * 65536 + wp * 512 + ah * 128}')
                A(f'buffer_load_dwordx4 v{vDO+i}, {srd(S_WO)}, s{sT1} offen lds')
    def dest(o, tmpi):
        k, b = LOC[o]
        if k == 'lds': return 'v', vTT + 8 * tmpi
        return k, b
    issued = 0
    def can_issue(j, consumed):
        return all(bufof[p] != bufof[j] for p in range(consumed, j))
    def pump(consumed):
        nonlocal issued
        while issued < NCH and can_issue(issued, consumed):
            dma(issued); issued += 1
    pump(0)
    for ci, (m, x) in enumerate(chunks):
        A(f's_waitcnt vmcnt({4 * (issued - ci - 1)})')
        A('s_barrier')
        skip = None
        homed = []
        if m != 'o':
            vb, boff = base_off(vTQ, bufof[ci])
            lend = A.newlabel('L_wv')
            for wv in range(4):
                lnext = A.newlabel('L_wn')
                if wv < 3:
                    A(f's_cmp_lg_u32 s{sW}, {wv}'); A(f's_cbranch_scc1 {lnext}')
                hm = []
                for a in range(2):
                    o = (m, a, (x - 2 * wv) & 7)
                    k, b = dest(o, a)
                    if LOC[o][0] == 'lds': hm.append((o, b))
                    for p in range(4):
                        A(f'ds_read_b64_tr_b16 {k}[{b+2*p}:{b+2*p+1}], v{vb} offset:{boff + (p >> 1) * 8192 + (p & 1) * 256 + 8 * a}')
                if hm: A('s_waitcnt lgkmcnt(0)')
                for o, b in hm:
                    slot = LOC[o][1]
                    A(f'ds_write_b128 v{vHOME}, {vr(b, 4)} offset:{slot * 2048}')
                    A(f'ds_write_b128 v{vHOME}, {vr(b + 4, 4)} offset:{slot * 2048 + 1024}')
                if wv < 3:
                    A(f's_branch {lend}')
                    A.label(lnext)
            A.label(lend)
        else:
            ks, ah, wp = x >> 2, (x >> 1) & 1, x & 1
            skip = A.newlabel('L_wskip')
            A(f's_lshr_b32 s{sT0}, s{sW}, 1'); A(f's_cmp_lg_u32 s{sT0}, {wp}'); A(f's_cbranch_scc1 {skip}')
            for ap in range(4):
                o = ('o', 4 * ah + ap, ks)
                k, b = dest(o, ap)
                if LOC[o][0] == 'lds': homed.append((o, b))
                vb, boff = base_off(vTO + (ap >> 1), bufof[ci])
                for p in range(4):
                    A(f'ds_read_b64_tr_b16 {k}[{b+2*p}:{b+2*p+1}], v{vb} offset:{boff + (p >> 1) * 8192 + (p & 1) * 512 + 8 * (ap & 1)}')
        A('s_waitcnt lgkmcnt(0)')
        for o, b in homed:
            slot = LOC[o][1]
            A(f'ds_write_b128 v{vHOME}, {vr(b, 4)} offset:{slot * 2048}')
            A(f'ds_write_b128 v{vHOME}, {vr(b + 4, 4)} offset:{slot * 2048 + 1024}')
        if skip: A.label(skip)
        A('s_barrier')
        if ci == 23 and mid is not None: mid(A)
        pump(ci + 1)
        if ci == mid_at:
            l = A.newlabel('L_mid')
            A(f's_cmp_lg_u32 s{sW}, 3'); A(f's_cbranch_scc1 {l}')
            A('v_mov_b32 v120, 1'); A(f'v_mov_b32 v121, {4 * DBG_WTK}')
            A('s_mov_b64 exec, 1')
            A(f'buffer_atomic_add v120, v121, {srd(S_DBG)}, 0 offen')
            A('s_mov_b64 exec, -1')
            A('s_waitcnt vmcnt(0)')
            A.label(l)
    A('s_waitcnt lgkmcnt(0)')

def st_mode(A, ins):
    return ins

def gen_stores(A, lst, tag):
    l1 = A.newlabel('L_sslow'); l2 = A.newlabel('L_sdone')
    A(f's_cmp_lg_u32 s{sMODE}, 0'); A(f's_cbranch_scc1 {l1}')
    for s in lst: A(s)
    A(f's_branch {l2}')
    A.label(l1)
    for s in lst:
        A(s + ' sc1' if s.startswith('buffer_store') else s)
    A.label(l2)

def gen_init_exchange(A):
    for r in range(4): A(f'v_mov_b32 v{vTMP+r}, -1')
    lst = []
    for sl in range(1):
        for i in range(2):
            lst.append(f's_mov_b32 s{sT0}, {WS_PX + sl * 262144 + i * 4096}')
            lst.append(f'buffer_store_dwordx4 {vr(vTMP,4)}, v{vPLD}, {srd(S_WS)}, s{sT0} offen')
    lst.append('s_mov_b64 exec, 0xf000f')
    for sl in range(4):
        lst.append(f's_mov_b32 s{sT0}, {WS_MX + sl * 8192}')
        lst.append(f'buffer_store_dword v{vNEG1}, v{vMPUB}, {srd(S_WS)}, s{sT0} offen')
        lst.append(f'buffer_store_dword v{vNEG1}, v{vMPUB}, {srd(S_WS)}, s{sT0} offen offset:16')
    lst.append('s_mov_b64 exec, -1')
    gen_stores(A, lst, 'init')
    A(f's_lshl_b32 s{sT0}, s{sH}, 7'); A(f's_add_u32 s{sT0}, s{sT0}, {WS_PROG}'); A(f'v_mov_b32 v{vT2+1}, s{sT0}'); A(f'v_mov_b32 v{vT2}, 0')
    A(f'buffer_store_dword v{vT2}, v{vT2+1}, {srd(S_WS)}, 0 offen sc1')
    A('s_waitcnt vmcnt(0)')
    A('s_barrier')
    l = A.newlabel('L_noarr')
    A(f's_cmp_lg_u32 s{sW}, 0'); A(f's_cbranch_scc1 {l}')
    A(f'v_mov_b32 v{vTMP}, 1'); A(f'v_mov_b32 v{vTMP+1}, {4 * DBG_RINIT}')
    A('s_mov_b64 exec, 1')
    A(f'buffer_atomic_add v{vTMP}, v{vTMP+1}, {srd(S_DBG)}, 0 offen')
    A('s_mov_b64 exec, -1')
    A.label(l)

def gen_wait_init(A):
    l = A.newlabel('L_winit')
    A(f'v_mov_b32 v{vTMP+1}, {4 * DBG_RINIT}')
    A.label(l)
    A(f'buffer_load_dword v{vTMP}, v{vTMP+1}, {srd(S_DBG)}, 0 offen sc1')
    A('s_waitcnt vmcnt(0)')
    A(f'v_cmp_gt_u32 vcc, 32, v{vTMP}')
    A(f's_cbranch_vccnz {l}')

def gen_mem0(A):
    A('v_and_b32 v120, 63, v0'); A('v_and_b32 v121, 15, v120'); A('v_lshrrev_b32 v122, 4, v120')
    A('v_lshrrev_b32 v123, 2, v121'); A('v_and_b32 v124, 1, v121'); A('v_lshl_add_u32 v123, v123, 1, v124'); A('v_lshlrev_b32 v123, 10, v123')
    A('v_and_b32 v124, 2, v121'); A('v_lshlrev_b32 v124, 3, v124'); A('v_lshlrev_b32 v125, 5, v122')
    A('v_add3_u32 v123, v123, v124, v125')
    A(f's_lshl_b32 s{sT0}, s{sW}, 8')
    A(f'buffer_load_dwordx4 {vr(vFR+8,4)}, v123, {srd(S_MEM0)}, s{sT0} offen')
    A(f'buffer_load_dwordx4 {vr(vFR+12,4)}, v123, {srd(S_MEM0)}, s{sT0} offen offset:128')
    A('s_waitcnt vmcnt(0)')
    A(f's_mov_b32 s{sT0}, 0x05040100'); A(f's_mov_b32 s{sT1}, 0x07060302')
    for i in range(2):
        s = vFR + 8 + 4 * i; d = vPB + 4 * i
        A(f'v_perm_b32 v{d}, v{s+2}, v{s}, s{sT0}')
        A(f'v_perm_b32 v{d+1}, v{s+2}, v{s}, s{sT1}')
        A(f'v_perm_b32 v{d+2}, v{s+3}, v{s+1}, s{sT0}')
        A(f'v_perm_b32 v{d+3}, v{s+3}, v{s+1}, s{sT1}')


def gen_setup2(A):
    A('v_and_b32 v121, 15, v0')
    A('v_cmp_lt_u32 vcc, 7, v121')
    A('v_mov_b32 v122, 0x3f803f80')
    for r in range(4): A(f'v_cndmask_b32 v{vSEL+r}, v{vSEL+r}, v122, vcc')
    A(f'v_mov_b32 v{vSR2}, v{vSR2T}')

def gen_steps(A, mode, nsteps=64, prof=None, flag=True, opt=(), kvwait=None):
    X = '' if mode == 'f' else ' sc1'
    L = lambda n: f'L_rec{mode}_{n}'
    lg = Cnt(A, 'lgkmcnt', 15)
    SC = 128 ** -0.5 * math.log2(math.e)
    import struct
    SCBITS = struct.unpack('<I', struct.pack('<f', SC))[0]
    homed_seq = [OPS[i] for i in HOMED]
    slot_of = {o: i % NSTG for i, o in enumerate(homed_seq)}
    sTAG = sPSL
    KVF_FL = '' if 'kvplain' in opt else (' nt' if 'kvnt' in opt else (' sc1 nt' if 'kvsc1nt' in opt else ' sc1'))
    QP = 'quad_perm:[2,3,0,1] row_mask:0xf bank_mask:0xf'
    def breg(o):
        k, b = LOC[o]
        if k == 'lds':
            b = vSTG + 8 * slot_of[o]
            return f'v[{b}:{b+7}]'
        return f'{k}[{b}:{b+7}]'
    def stage(i):
        if i >= len(homed_seq): return
        o = homed_seq[i]; b = vSTG + 8 * slot_of[o]; slot = LOC[o][1]
        A(f'ds_read_b128 {vr(b,4)}, v{vHOME} offset:{slot*2048}'); lg.issue()
        A(f'ds_read_b128 {vr(b+4,4)}, v{vHOME} offset:{slot*2048+1024}'); lg.issue(('stg', i))
    def smf(acc, areg, o):
        if LOC[o][0] == 'lds':
            lg.wait(('stg', homed_seq.index(o)))
        A(f'v_smfmac_f32_16x16x64_bf16 {vr(acc,4)}, {vr(areg,4)}, {breg(o)}, v{vIDX}')
    FINE = 'fine' in opt
    def P(i):
        if prof is not None and not FINE: A(f's_memtime s[{prof+2*i}:{prof+2*i+1}]')
    def F(i):
        if prof is not None and FINE: A(f's_memtime s[{prof+2*i}:{prof+2*i+1}]')
    def zero(b, n):
        for r in range(0, n, 2): A(f'v_mov_b64 v[{b+r}:{b+r+1}], 0')
    def kvdma(lst):
        A(f's_mov_b32 m0, s{sT3}')
        for i in lst:
            if 'nodma' in opt: continue
            A(f'buffer_load_dwordx4 v{vKX}, {srd(S_WS)}, s{sKXO} offen offset:{1024*i}{KVF_FL} lds')
    def kvread():
        for i in range(4): A(f'ds_read_b128 {vr(vKXR+4*i,4)}, v{vVX} offset:{1024*i}')
    def hadd(b): return f'v_pk_add_f32 v[{b}:{b+1}], v[{b}:{b+1}], v[{b+2}:{b+3}]'
    A(f's_mov_b32 s{sSTEP}, 0')
    A(f's_mov_b32 s{sTAG}, 0')
    A(f's_mov_b32 s{sMCUR}, {WS_MX}')
    A(f's_mov_b32 s{sKXO}, {WS_KVF}')
    A(f's_mov_b32 s{sKMO}, 0')
    A(f's_mov_b32 s{sT2}, {SCBITS}')
    A(f's_mov_b32 s{sSC}, {SCBITS}'); A(f's_mov_b32 s{sSC+1}, {SCBITS}')
    A(f's_mov_b32 s{sVXO}, {WS_PX}')
    A(f's_lshl_b32 s{sT3}, s{sW}, 12'); A(f's_add_u32 s{sT3}, s{sT3}, {LDS_KV}')
    A(f's_lshl_b32 s{sFLA}, s{sH}, 7'); A(f's_add_u32 s{sFLA}, s{sFLA}, {WS_PROG - LDS_MEM}')
    A(f's_cmp_eq_u32 s{sW}, 0'); A(f's_cselect_b32 s{sFLX}, 1, 0'); A(f's_mov_b32 s{sFLX+1}, 0')
    for i in range(2, 8):
        A(f's_lshl_b32 s{sFO+i}, s{sW}, 1'); A(f's_add_u32 s{sFO+i}, s{sFO+i}, {i}'); A(f's_and_b32 s{sFO+i}, s{sFO+i}, 7'); A(f's_lshl_b32 s{sFO+i}, s{sFO+i}, 10')
    if kvwait: kvwait(A, first=True)
    kvdma(range(4))
    for i in range(NSTG): stage(i)
    lg.q = []
    zero(vQK, 24)
    A('s_waitcnt vmcnt(0)')
    kvread()
    A(f's_add_u32 s{sKXO}, s{sKXO}, {32*16384}')
    A(f's_branch {L("have_mem")}')
    A.label(L('step'))
    P(0)
    A(f's_sub_u32 s{sT0}, s{sMCUR}, {LDS_MEM}')
    B2 = [int(o[3:]) for o in opt if o.startswith('b2_')]
    if B2 and B2[0] == 99: A('s_waitcnt vmcnt(0)')
    elif B2 and B2[0]: A(f's_sleep {B2[0]}')
    A.label(L('poll2'))
    A(f'buffer_load_dwordx4 {vr(vPB,4)}, v{vMP}, {srd(S_WS)}, s{sT0} offen sc1')
    A(f'buffer_load_dwordx4 {vr(vPB+4,4)}, v{vMP}, {srd(S_WS)}, s{sT0} offen offset:1024 sc1')
    A('s_waitcnt vmcnt(0)')
    A(f'v_max3_u32 v{vTMP}, v{vPB}, v{vPB+1}, v{vPB+2}'); A(f'v_max3_u32 v{vTMP+1}, v{vPB+3}, v{vPB+4}, v{vPB+5}')
    A(f'v_max3_u32 v{vTMP}, v{vTMP}, v{vPB+6}, v{vPB+7}'); A(f'v_max_u32 v{vTMP}, v{vTMP}, v{vTMP+1}')
    A(f'v_cmp_eq_u32 vcc, -1, v{vTMP}')
    A('s_mov_b64 exec, vcc')
    A(f's_cbranch_execnz {L("poll2")}')
    A('s_mov_b64 exec, -1')
    A.label(L('have_mem'))
    P(1)
    A(f'ds_write_b128 v{vMP}, {vr(vPB,4)}'); A(f'ds_write_b128 v{vMP}, {vr(vPB+4,4)} offset:1024')
    nstaged = NSTG
    def acc_of(m, a): return (vVA + 4 * a) if m == 'v' else vQK + 8 * a + (4 if m == 'q' else 0)
    pre = [o for o in OPS[:12]]
    for o in pre[:3]: smf(acc_of(o[0], o[1]), vFR + 4 * o[2], o)
    if kvwait: kvwait(A, first=False)
    for i in range(2, 8): A(f'v_add_u32 v{vFR+4*i}, s{sFO+i}, v{vL16H}')
    A('s_waitcnt lgkmcnt(0)')
    A('s_barrier')
    P(2)
    for i in range(2, 8):
        A(f'ds_read_b128 {vr(vFR+4*i,4)}, v{vFR+4*i}'); lg.issue(('fr', i))
    n_ = 0
    for o in pre[3:]:
        smf(acc_of(o[0], o[1]), vFR + 4 * o[2], o)
        if LOC[o][0] == 'lds':
            stage(nstaged); nstaged += 1
        n_ += 1
        if n_ in (2, 4, 6, 8): kvdma([n_ // 2 - 1])
    A(f's_add_u32 s{sKXO}, s{sKXO}, {32*16384}')
    if kvwait:
        A(f's_cmp_lt_u32 s{sRDY}, 16'); A(f's_cbranch_scc1 {L("rdy1")}')
        A.label(L('rdy1b'))
    vAP = vT2; vDP = vTMP; vX = vTMP + 4
    bg = []
    def post_qk_list(a):
        k = vQK + 8 * a; q = k + 4
        return [hadd(k), hadd(q),
                f'v_cvt_pk_bf16_f32 v{vAP}, v{k}, v{k+1}', f'v_cvt_pk_bf16_f32 v{vAP+1}, v{q}, v{q+1}',
                f'v_mfma_f32_16x16x16_bf16 {vr(vDP,4)}, {vr(vAP,2)}, {vr(vID,2)}, 0']
    def post_qk2_list(a):
        return [f'v_cvt_pk_bf16_f32 v{vX+2*a}, v{vDP}, v{vDP+1}', f'v_cvt_pk_bf16_f32 v{vX+2*a+1}, v{vDP+2}, v{vDP+3}']
    if flag:
        A(f'v_mov_b32 v{vT2}, s{sSTEP}')
        A(f's_mov_b64 exec, s[{sFLX}:{sFLX+1}]')
        A(f'buffer_store_dword v{vT2}, v{vL16H}, {srd(S_WS)}, s{sFLA} offen sc1')
        A('s_mov_b64 exec, -1')
    cnt = 0
    for a in range(2):
        for ks in range(2, 8):
            if a == 0: lg.wait(('fr', ks))
            for m in 'kq':
                o = (m, a, ks)
                smf(acc_of(m, a), vFR + 4 * ks, o)
                if LOC[o][0] == 'lds':
                    stage(nstaged); nstaged += 1
                cnt += 1
                if cnt == 14: bg = post_qk_list(0)
                if cnt == 22: bg += post_qk2_list(0)
                if bg: A(bg.pop(0))
    assert not bg
    P(3)
    vops = [('v', a, ks) for ks in range(2, 8) for a in range(2)]
    vi = [0]
    def vstep(n=1):
        for _ in range(n):
            if vi[0] >= 12: return
            o = vops[vi[0]]; vi[0] += 1
            smf(vVA + 4 * o[1], vFR + 4 * o[2], o)
    VS = [o[3:] for o in opt if o.startswith('vs_')]
    VS = [int(c) for c in (VS[0] if VS else '12144')]
    vstep(VS[0])
    for i_ in post_qk_list(1): A(i_)
    vstep(VS[1])
    for i_ in post_qk2_list(1): A(i_)
    vS = vQK
    A(f'v_mfma_f32_16x16x32_bf16 {vr(vS,4)}, {vr(vKXR,4)}, {vr(vX,4)}, 0')
    A(f'v_mfma_f32_16x16x32_bf16 {vr(vS+4,4)}, {vr(vKXR+4,4)}, {vr(vX,4)}, 0')
    A(f'v_mfma_f32_16x16x32_bf16 {vr(vS+8,4)}, {vr(vX,4)}, {vr(vX,4)}, 0')
    vstep(VS[2])
    A(f's_lshl_b32 s{sT0}, s{sKMO}, 1'); A(f's_add_u32 s{sT0}, s{sT0}, {WS_KM}')
    A('s_mov_b64 exec, s[6:7]')
    A(f'ds_write_b128 v{vSW}, {vr(vS,4)} offset:32'); lg.issue()
    A(f'ds_write_b128 v{vSW}, {vr(vS+4,4)}'); lg.issue()
    A(f'ds_write2_b32 v{vSR2}, v{vS+9}, v{vS+8} offset0:0 offset1:8'); lg.issue()
    A('s_mov_b64 exec, -1')
    if 'nokm' not in opt: A(f'buffer_store_dwordx4 {vr(vX,4)}, v{vVM}, {srd(S_WS)}, s{sT0} offen sc1')
    vstep(VS[3])
    lg.all()
    A('s_barrier')
    P(4); F(0)
    E = [vS, vS + 4, vS + 8, vKXR]
    Em = [vS + 12, vS + 13, vS + 14, vS + 15]
    for w in range(4):
        A(f'ds_read_b128 {vr(E[w],4)}, v{vSR} offset:{1024*w}'); lg.issue(('e', w))
    A(f'ds_read_b128 {vr(Em[0],4)}, v{vSR} offset:4096'); lg.issue(('em', 3))
    vstep(VS[4])
    F(1)
    lg.wait(('e', 1))
    for r in (0, 2): A(f'v_pk_add_f32 v[{E[0]+r}:{E[0]+r+1}], v[{E[0]+r}:{E[0]+r+1}], v[{E[1]+r}:{E[1]+r+1}]')
    vstep(1)
    lg.wait(('e', 3))
    for r in (0, 2): A(f'v_pk_add_f32 v[{E[2]+r}:{E[2]+r+1}], v[{E[2]+r}:{E[2]+r+1}], v[{E[3]+r}:{E[3]+r+1}]')
    vstep(1)
    lg.wait(('em', 3))
    A(f'v_pk_add_f32 v[{Em[0]}:{Em[1]}], v[{Em[0]}:{Em[1]}], v[{Em[2]}:{Em[3]}]')
    for r in (0, 2): A(f'v_pk_add_f32 v[{E[0]+r}:{E[0]+r+1}], v[{E[0]+r}:{E[0]+r+1}], v[{E[2]+r}:{E[2]+r+1}]')
    vstep(1)
    F(2)
    e4 = vS + 4
    A(f'v_add_f32 v{e4}, v{Em[0]}, v{Em[1]}')
    vM = vTMP; vM2 = vTMP + 1
    A(f'v_max3_f32 v{vM}, v{vS}, v{vS+1}, v{vS+2}'); A(f'v_max3_f32 v{vM}, v{vM}, v{vS+3}, v{e4}')
    vstep(1)
    stage(nstaged); nstaged += 1
    A(f'v_max_f32_dpp v{vM}, v{vM}, v{vM} {QP}')
    A(f'v_mov_b32 v{vM2}, v{vM}')
    vstep(1)
    assert vi[0] == 12, vi
    stage(nstaged); nstaged += 1
    A(f'v_permlane16_swap_b32 v{vM}, v{vM2}')
    A(f'v_max_f32 v{vM}, v{vM}, v{vM2}')
    A(f'v_mov_b32 v{vM2}, v{vM}')
    A(f'v_permlane32_swap_b32 v{vM}, v{vM2}')
    A(f'v_max_f32 v{vM}, v{vM}, v{vM2}')
    A(f'v_mul_f32 v{vM}, s{sT2}, v{vM}')
    F(3)
    for r in (0, 2): A(f'v_pk_fma_f32 v[{vS+r}:{vS+r+1}], v[{vS+r}:{vS+r+1}], s[{sSC}:{sSC+1}], v[{vM}:{vM+1}] op_sel_hi:[1,1,0] neg_lo:[0,0,1] neg_hi:[0,0,1]')
    A(f'v_fma_f32 v{vS+4}, v{vS+4}, s{sT2}, -v{vM}')
    for r in range(5): A(f'v_exp_f32 v{vS+r}, v{vS+r}')
    vPx = vTMP
    vVM0 = vTMP + 4
    A(f'v_cvt_pk_bf16_f32 v{vPx}, v{vS}, v{vS+1}'); A(f'v_cvt_pk_bf16_f32 v{vPx+1}, v{vS+2}, v{vS+3}')
    A(f'v_mov_b32_dpp v{e4+1}, v{e4} {QP}')
    A(f'v_mov_b32_dpp v{vPx+2}, v{vPx} {QP}'); A(f'v_mov_b32_dpp v{vPx+3}, v{vPx+1} {QP}')
    A(f'v_cvt_pk_bf16_f32 v{vS+12}, v{e4}, v{e4+1}')
    A(f'v_mov_b32 v{vS+13}, 0')
    vO = vS
    F(4)
    A(f'v_mfma_f32_16x16x32_bf16 {vr(vS+8,4)}, {vr(vSEL,4)}, {vr(vPx,4)}, 0')
    A(hadd(vVA))
    A(f'v_mfma_f32_16x16x32_bf16 {vr(vO,4)}, {vr(vVXR,4)}, {vr(vPx,4)}, 0')
    A(hadd(vVA + 4))
    A(f'v_mfma_f32_16x16x32_bf16 {vr(vO+4,4)}, {vr(vVXR+4,4)}, {vr(vPx,4)}, 0')
    for a in range(2):
        b = vVA + 4 * a
        A(f'v_cvt_pk_bf16_f32 v{vVM0+2*a}, v{b}, v{b+1}'); A(f'v_mov_b32 v{vVM0+2*a+1}, 0')
    A(f's_cmp_eq_u32 s{sSTEP}, {nsteps-1}')
    A(f's_cbranch_scc1 {L("done")}')
    A(f'v_mfma_f32_16x16x16_bf16 {vr(vS+8,4)}, {vr(vSEL,2)}, {vr(vS+12,2)}, {vr(vS+8,4)}')
    for a in range(2):
        A(f'v_mfma_f32_16x16x16_bf16 {vr(vO+4*a,4)}, {vr(vVM0+2*a,2)}, {vr(vS+12,2)}, {vr(vO+4*a,4)}')
    A(f's_lshl_b32 s{sT0}, s{sKMO}, 1'); A(f's_add_u32 s{sT0}, s{sT0}, {WS_VMT}')
    A(f'buffer_store_dwordx4 {vr(vVM0,4)}, v{vVM}, {srd(S_WS)}, s{sT0} offen sc1')
    zero(vFR, 8)
    vL = vT2; vL2 = vT2 + 1
    F(5)
    A(f'v_rcp_f32 v{vL}, v{vS+8}')
    zero(vFR + 8, 2)
    A(f'v_mov_b32 v{vL2}, v{vL}')
    zero(vFR + 10, 4)
    A(f'v_permlane32_swap_b32 v{vL}, v{vL2}')
    for r in range(0, 8, 2): A(f'v_pk_mul_f32 v[{vO+r}:{vO+r+1}], v[{vO+r}:{vO+r+1}], v[{vL}:{vL+1}] op_sel:[0,1] op_sel_hi:[1,1]')
    for r in range(4): A(f'v_cvt_pk_bf16_f32 v{vTMP+r}, v{vO+2*r}, v{vO+2*r+1}')
    A('s_mov_b64 exec, s[6:7]')
    F(6)
    A(f'ds_write_b128 v{vOW}, {vr(vTMP,4)}')
    A('s_mov_b64 exec, -1')
    vWA = vFR
    zero(vFR + 14, 10)
    A('s_waitcnt lgkmcnt(0)'); lg.q = []
    F(7)
    A('s_barrier')
    P(5); F(8)
    vOF = vQK
    A(f'ds_read_b128 {vr(vOF,4)}, v{vL16H} offset:{LDS_O-LDS_MEM}'); lg.issue('of0')
    A(f'ds_read_b128 {vr(vOF+4,4)}, v{vL16H} offset:{LDS_O-LDS_MEM+1024}'); lg.issue('of1')
    zero(vFR + 24, 8)
    A(f's_add_u32 s{sT0}, s{sVXO}, 32768')
    lg.wait('of0')
    vPK = vVA
    def post_o(a):
        b = vWA + 4 * a
        return [hadd(b), f'v_cvt_pk_bf16_f32 v{vPK+a}, v{b}, v{b+1}', f'v_bfi_b32 v{vPK+a}, 1, s{sTAG}, v{vPK+a}']
    bg = []
    WO = [o[3:] for o in opt if o.startswith('wo_')]
    WO = WO[0] if WO else 'a'
    for a in range(8):
        for ks in range(2):
            if a == 0 and ks == 1: lg.wait('of1')
            o = ('o', a, ks)
            smf(vWA + 4 * a, vOF + 4 * ks, o)
            if LOC[o][0] == 'lds':
                stage(nstaged); nstaged += 1
            if WO == 'b' and ks == 1 and a >= 1: bg += post_o(a - 1)
            for _ in range((1 + ks) if WO == 'a' else (3 if ks == 1 else 0)):
                if bg: A(bg.pop(0))
        if WO == 'a' and a >= 1: bg += post_o(a - 1)
        if a == (5 if WO == 'a' else 4): A(f'buffer_store_dwordx4 {vr(vPK,4)}, v{vPST}, {srd(S_WS)}, s{sVXO} offen{X}')
    for i_ in bg + post_o(7): A(i_)
    A(f'buffer_store_dwordx4 {vr(vPK+4,4)}, v{vPST}, {srd(S_WS)}, s{sT0} offen{X}')
    P(6)
    A(f's_add_u32 s{sT0}, s{sVXO}, 4096')
    B1 = [int(o[3:]) for o in opt if o.startswith('b1_')] or [99]
    if not B1:
        A(f'buffer_load_dwordx4 {vr(vPB,4)}, v{vPLD}, {srd(S_WS)}, s{sVXO} offen sc1')
        A(f'buffer_load_dwordx4 {vr(vPB+4,4)}, v{vPLD}, {srd(S_WS)}, s{sT0} offen sc1')
    for i in range(NSTG): stage(i)
    lg.q = []
    zero(vQK, 16)
    A(f's_add_u32 s{sMNXT}, s{sMCUR}, 8192'); A(f's_and_b32 s{sMNXT}, s{sMNXT}, 32767'); A(f's_add_u32 s{sMNXT}, s{sMNXT}, {WS_MX}')
    if not B1: A(f's_branch {L("poll1c")}')
    elif B1[0] == 99: A('s_waitcnt vmcnt(0)')
    elif B1[0]: A(f's_sleep {B1[0]}')
    A.label(L('poll1'))
    A(f'buffer_load_dwordx4 {vr(vPB,4)}, v{vPLD}, {srd(S_WS)}, s{sVXO} offen sc1')
    A(f'buffer_load_dwordx4 {vr(vPB+4,4)}, v{vPLD}, {srd(S_WS)}, s{sT0} offen sc1')
    A.label(L('poll1c'))
    A('s_waitcnt vmcnt(0)')
    tt = 0
    for a_ in range(2):
        for b_ in range(2):
            for t_ in range(2):
                if (a_ ^ t_) | (b_ ^ t_): tt |= 1 << (a_ * 4 + b_ * 2 + t_)
    for i in range(4): A(f'v_bitop3_b32 v{vTMP+i}, v{vPB+2*i}, v{vPB+2*i+1}, s{sTAG} bitop3:{tt}')
    A(f'v_or3_b32 v{vTMP}, v{vTMP}, v{vTMP+1}, v{vTMP+2}')
    A(f'v_bitop3_b32 v{vTMP}, v{vTMP}, v{vTMP+3}, 1 bitop3:0xa8')
    A(f'v_cmp_ne_u32 vcc, 0, v{vTMP}')
    A('s_mov_b64 exec, vcc')
    A(f's_cbranch_execnz {L("poll1")}')
    A('s_mov_b64 exec, -1')
    P(7)
    vR = vTMP
    A(f'v_mfma_f32_16x16x32_bf16 {vr(vR,4)}, {vr(vSEL,4)}, {vr(vPB,4)}, 0')
    A(f'v_mfma_f32_16x16x32_bf16 {vr(vR,4)}, {vr(vSEL,4)}, {vr(vPB+4,4)}, {vr(vR,4)}')
    zero(vVA, 8)
    kvread()
    A(f'v_mov_b32 v{vR+6}, -1')
    for r in range(4): A(f'v_add_f32_dpp v{vR+r}, v{vR+r}, v{vR+r} row_ror:4 row_mask:0xf bank_mask:0xf')
    for r in range(4): A(f'v_add_f32_dpp v{vR+r}, v{vR+r}, v{vR+r} row_ror:8 row_mask:0xf bank_mask:0xf')
    A(f'v_cvt_pk_bf16_f32 v{vR+4}, v{vR}, v{vR+2}'); A(f'v_cvt_pk_bf16_f32 v{vR+5}, v{vR+1}, v{vR+3}')
    A(f'v_min_u32 v{vR+4}, -2, v{vR+4}'); A(f'v_min_u32 v{vR+5}, -2, v{vR+5}')
    A('s_mov_b64 exec, 0xf000f')
    A(f'buffer_store_dword v{vR+4}, v{vMPUB}, {srd(S_WS)}, s{sMNXT} offen{X}')
    A(f'buffer_store_dword v{vR+5}, v{vMPUB}, {srd(S_WS)}, s{sMNXT} offen offset:16{X}')
    A(f'buffer_store_dword v{vR+6}, v{vMPUB}, {srd(S_WS)}, s{sMCUR} offen{X}')
    A(f'buffer_store_dword v{vR+6}, v{vMPUB}, {srd(S_WS)}, s{sMCUR} offen offset:16{X}')
    A('s_mov_b64 exec, -1')
    if kvwait:
        A(f's_cmp_lt_u32 s{sRDY}, 16'); A(f's_cbranch_scc1 {L("rdy2")}')
        A.label(L('rdy2b'))
    P(8)
    A(f's_mov_b32 s{sMCUR}, s{sMNXT}')
    A(f's_xor_b32 s{sTAG}, s{sTAG}, 1')
    A(f's_add_u32 s{sKMO}, s{sKMO}, 65536')
    A(f's_add_u32 s{sSTEP}, s{sSTEP}, 1')
    if prof is not None:
        A('s_memrealtime s[98:99]')
        A('s_waitcnt lgkmcnt(0)')
        A(f'v_writelane_b32 v{vTMP}, s98, 9')
        for i in range(9): A(f'v_writelane_b32 v{vTMP}, s{prof+2*i}, {i}')
        A(f's_lshl_b32 s{sT0}, s{sH}, 2'); A(f's_add_u32 s{sT0}, s{sT0}, s{sW}'); A(f's_lshl_b32 s{sT0}, s{sT0}, 6'); A(f's_add_u32 s{sT0}, s{sT0}, s{sSTEP}'); A(f's_lshl_b32 s{sT0}, s{sT0}, 6')
        A(f's_add_u32 s{sT0}, s{sT0}, {120*MB}')
        A(f'v_mbcnt_lo_u32_b32 v{vTMP+1}, -1, 0'); A(f'v_lshlrev_b32 v{vTMP+1}, 2, v{vTMP+1}')
        A('s_mov_b64 exec, 0xffff')
        A(f'buffer_store_dword v{vTMP}, v{vTMP+1}, {srd(S_WS)}, s{sT0} offen')
        A('s_mov_b64 exec, -1')
    A(f's_branch {L("step")}')
    if kvwait:
        A.label(L('rdy1'))
        A(f'v_mbcnt_lo_u32_b32 v{vNEG1}, -1, 0'); A(f'v_lshlrev_b32 v{vNEG1}, 2, v{vNEG1}')
        A('s_mov_b64 exec, 0xffff')
        A(f'buffer_load_dword v{vNEG1}, v{vNEG1}, {srd(S_DBG)}, 0 offen offset:{4*DBG_KV} sc1')
        A('s_mov_b64 exec, -1')
        A(f's_branch {L("rdy1b")}')
        A.label(L('rdy2'))
        A('s_mov_b64 exec, 0xffff')
        A(f'v_and_b32 v{vNEG1}, 0xffff, v{vNEG1}')
        A(f'v_cmp_gt_u32 vcc, 32, v{vNEG1}')
        A(f's_or_b32 s{sT1}, vcc_lo, 0x10000')
        A(f's_ff1_i32_b32 s{sT1}, s{sT1}')
        A(f's_max_u32 s{sRDY}, s{sRDY}, s{sT1}')
        A('s_mov_b64 exec, -1')
        A(f's_branch {L("rdy2b")}')
    A.label(L('done'))
    A(f's_lshl_b32 s{sT0}, s{sKMO}, 1'); A(f's_add_u32 s{sT0}, s{sT0}, {WS_VMT}')
    A(f'buffer_store_dwordx4 {vr(vTMP+4,4)}, v{vVM}, {srd(S_WS)}, s{sT0} offen sc1')
    A('s_waitcnt vmcnt(0)')
    A('s_barrier')
    if flag:
        fl = A.newlabel('L_nofl')
        A(f's_cmp_lg_u32 s{sW}, 0'); A(f's_cbranch_scc1 {fl}')
        A(f'v_mov_b32 v{vT2}, {nsteps}')
        A(f's_lshl_b32 s{sT0}, s{sH}, 7'); A(f's_add_u32 s{sT0}, s{sT0}, {WS_PROG}'); A(f'v_mov_b32 v{vT2+1}, s{sT0}')
        A('s_mov_b64 exec, 1')
        A(f'buffer_store_dword v{vT2}, v{vT2+1}, {srd(S_WS)}, 0 offen sc1')
        A('s_mov_b64 exec, -1')
        A('s_waitcnt vmcnt(0)')
        A.label(fl)
    A('v_mbcnt_lo_u32_b32 v0, -1, 0'); A('v_mbcnt_hi_u32_b32 v0, -1, v0')
    A(f's_lshl_b32 s{sT0}, s{sW}, 6'); A(f'v_add_u32 v0, s{sT0}, v0')

def kvwait(A, first):
    l = A.newlabel('L_kvw'); l2 = A.newlabel('L_kvd')
    if first:
        A(f's_mov_b32 s{sRDY}, 0')
        A(f'v_mov_b32 v{vT2+1}, {4*DBG_CQ}')
        A.label(l)
        A(f'buffer_load_dword v{vT2}, v{vT2+1}, {srd(S_DBG)}, 0 offen sc1')
        A('s_waitcnt vmcnt(0)')
        A(f'v_cmp_gt_u32 vcc, 32, v{vT2}')
        A(f's_cbranch_vccnz {l}')
        return
    A(f's_add_u32 s{sT1}, s{sSTEP}, 1'); A(f's_lshr_b32 s{sT1}, s{sT1}, 2')
    A(f's_cmp_lt_u32 s{sT1}, s{sRDY}'); A(f's_cbranch_scc1 {l2}')
    A(f's_cmp_ge_u32 s{sT1}, 16'); A(f's_cbranch_scc1 {l2}')
    A(f's_cmp_eq_u32 s{sSTEP}, 0'); A(f's_cbranch_scc1 {l2}')
    A(f'v_mbcnt_lo_u32_b32 v{vT2+1}, -1, 0'); A(f'v_lshlrev_b32 v{vT2+1}, 2, v{vT2+1}')
    A('s_mov_b64 exec, 0xffff')
    A.label(l)
    A(f'buffer_load_dword v{vT2}, v{vT2+1}, {srd(S_DBG)}, 0 offen offset:{4*DBG_KV} sc1')
    A('s_waitcnt vmcnt(0)')
    A(f'v_and_b32 v{vT2}, 0xffff, v{vT2}')
    A(f'v_cmp_gt_u32 vcc, 32, v{vT2}')
    A(f's_or_b32 s{sRDY}, vcc_lo, 0x10000')
    A(f's_ff1_i32_b32 s{sRDY}, s{sRDY}')
    A(f's_cmp_lt_u32 s{sT1}, s{sRDY}'); A(f's_cbranch_scc0 {l}')
    A('s_mov_b64 exec, -1')
    A.label(l2)
```

```python
from asmlib import *
from common import *
import math

sW, sH, sSTEP, sPSL, sMCUR, sMNXT, sT0, sT1, sT2, sKXO, sVXO, sKMO, sMODE, sT3 = range(56, 70)
sRDY = 70
vIDX = 1; vID = 2; vSEL = 4
vL16H, vHOME, vMP, vPST, vPLD, vMPUB, vKX, vVX, vKM, vVM, vSW, vSR, vOW = range(8, 21)
vNEG1 = 21
vFR = 24
vQK = 56
vVA = 72
vSTG = 80
vKXR = 104
vVXR = 112
vTMP = 120
vT2 = 22
vSR2T = 119
vSR2 = 0
LDS_MEM = 131072
LDS_SX = LDS_MEM + 8192
LDS_O = LDS_SX + 6144
LDS_KV = LDS_O + 2048
LDS_MISC = LDS_SX
NSTG = 3
assert LDS_KV + 16384 == 163840
vPB = vFR
sFO = 90
sFLA = 71
sSC = 4
sFLX = 90

def vr(b, n): return f'v[{b}:{b+n-1}]'

def operand_order():
    ops = []
    for i in range(2):
        for m, a in (('k', 0), ('q', 0), ('k', 1), ('q', 1), ('v', 0), ('v', 1)): ops.append((m, a, i))
    for a in range(2):
        for i in range(2, 8):
            ops.append(('k', a, i)); ops.append(('q', a, i))
    for i in range(2, 8):
        ops.append(('v', 0, i)); ops.append(('v', 1, i))
    for a in range(8):
        for ks in range(2):
            ops.append(('o', a, ks))
    return ops
OPS = operand_order()
HOMED = [3, 7, 11] + [15, 19, 23, 27, 31, 35] + [36, 38] + [48 + i for i in (1, 4, 7, 10, 13)]
assert len(HOMED) == 16
LOC = {}
_r = 0
for i, o in enumerate(OPS):
    if i in HOMED:
        _qs = [j for j in HOMED if OPS[j][0] == 'q']; _os = [j for j in HOMED if OPS[j][0] != 'q']
        assert len(_qs) == 8
        LOC[o] = ('lds', _qs.index(i) if o[0] == 'q' else 8 + _os.index(i))
    else:
        LOC[o] = ('a', 8 * _r) if _r < 32 else ('v', 128 + 8 * (_r - 32))
        _r += 1
assert _r == 48

class Cnt:
    def __init__(self, A, name, maxv): self.A = A; self.name = name; self.maxv = maxv; self.q = []
    def issue(self, tag=None): self.q.append(tag)
    def wait(self, tag):
        if tag not in self.q: return
        idx = len(self.q) - 1 - self.q[::-1].index(tag)
        n = len(self.q) - 1 - idx
        n = min(n, self.maxv)
        self.A(f's_waitcnt {self.name}({n})')
        self.q = self.q[len(self.q) - n:] if n else []
    def all(self):
        self.A(f's_waitcnt {self.name}(0)'); self.q = []

def gen_setup(A):
    A('s_mov_b32 s4, 0x33333333'); A('s_mov_b32 s5, 0x33333333'); A('s_mov_b32 s6, 0xcccccccc'); A('s_mov_b32 s7, 0xcccccccc')
    A('v_and_b32 v120, 63, v0            ; lane')
    A('v_and_b32 v121, 15, v120          ; n = lane%16')
    A('v_lshrrev_b32 v122, 4, v120       ; g = lane/16')
    A(f'v_mov_b32 v{vNEG1}, -1')
    A('v_and_b32 v123, 2, v121')
    A('v_cmp_eq_u32 vcc, 0, v123')
    A(f'v_mov_b32 v124, 0xeeeeeeee')
    A(f'v_mov_b32 v125, 0x44444444')
    A(f'v_cndmask_b32 v{vIDX}, v124, v125, vcc')
    A('v_lshrrev_b32 v123, 2, v121')
    A('v_and_b32 v124, 3, v121           ; e')
    A('v_and_b32 v125, 1, v124')
    A('v_lshlrev_b32 v125, 4, v125       ; shift 0/16')
    A('v_mov_b32 v126, 0x3f80')
    A('v_lshlrev_b32 v126, v125, v126')
    A('v_cmp_eq_u32 vcc, v123, v122')
    A('v_cndmask_b32 v126, 0, v126, vcc')
    A('v_cmp_gt_u32 vcc, 2, v124')
    A(f'v_cndmask_b32 v{vID}, 0, v126, vcc')
    A(f'v_cndmask_b32 v{vID+1}, v126, 0, vcc')
    A('v_and_b32 v125, 1, v121')
    A('v_lshlrev_b32 v125, 4, v125')
    A('v_mov_b32 v126, 0x3f80')
    A('v_lshlrev_b32 v126, v125, v126')
    A('v_lshrrev_b32 v123, 1, v121       ; m/2 (0..7)')
    for r in range(4):
        A(f'v_cmp_eq_u32 vcc, {r}, v123')
        A(f'v_cndmask_b32 v{vSEL+r}, 0, v126, vcc')
    A(f'v_lshlrev_b32 v123, 4, v120      ; lane*16')
    A(f'v_add_u32 v{vL16H}, {LDS_MEM}, v123')
    A(f's_lshl_b32 s{sT0}, s{sW}, 15')
    A(f'v_add_u32 v{vHOME}, s{sT0}, v123')
    A(f's_lshl_b32 s{sT0}, s{sW}, 11')
    A(f'v_add_u32 v{vMP}, s{sT0}, v{vL16H}')
    A('v_lshrrev_b32 v123, 2, v121       ; q')
    A('v_and_b32 v124, 3, v121           ; e')
    A(f's_lshl_b32 s{sT0}, s{sW}, 16'); A(f's_lshl_b32 s{sT1}, s{sH}, 8'); A(f's_add_u32 s{sT0}, s{sT0}, s{sT1}')
    A('v_lshlrev_b32 v125, 13, v123'); A('v_lshlrev_b32 v126, 6, v122'); A('v_lshlrev_b32 v127, 4, v124')
    A(f'v_add3_u32 v{vPST}, v125, v126, v127'); A(f'v_add_u32 v{vPST}, s{sT0}, v{vPST}')
    A(f's_lshl_b32 s{sT0}, s{sH}, 13'); A(f's_lshl_b32 s{sT1}, s{sW}, 6'); A(f's_add_u32 s{sT0}, s{sT0}, s{sT1}')
    A('v_lshlrev_b32 v125, 10, v123'); A('v_lshlrev_b32 v126, 8, v122')
    A(f'v_add3_u32 v{vPLD}, v125, v126, v127'); A(f'v_add_u32 v{vPLD}, s{sT0}, v{vPLD}')
    A(f's_lshl_b32 s{sT0}, s{sH}, 8'); A(f's_lshl_b32 s{sT1}, s{sW}, 6'); A(f's_add_u32 s{sT0}, s{sT0}, s{sT1}')
    A('v_lshlrev_b32 v125, 5, v122'); A('v_lshlrev_b32 v126, 2, v121')
    A(f'v_add3_u32 v{vMPUB}, v125, v126, s{sT0}')
    A('v_lshlrev_b32 v126, 4, v120')
    A(f's_lshl_b32 s{sT0}, s{sH}, 14'); A(f's_lshl_b32 s{sT1}, s{sW}, 12'); A(f's_add_u32 s{sT0}, s{sT0}, s{sT1}')
    A(f'v_add_u32 v{vKX}, s{sT0}, v126')
    A(f's_add_u32 s{sT1}, s{sT1}, {LDS_KV}')
    A(f'v_add_u32 v{vVX}, s{sT1}, v126')
    A('v_lshlrev_b32 v125, 3, v123'); A('v_add_u32 v125, v125, v124   ; 8(m/4)+m%4')
    A('v_lshlrev_b32 v127, 4, v120')
    A(f's_lshl_b32 s{sT0}, s{sH}, 12'); A(f's_lshl_b32 s{sT1}, s{sW}, 10'); A(f's_add_u32 s{sT0}, s{sT0}, s{sT1}')
    A(f'v_add_u32 v{vVM}, s{sT0}, v127')
    A('v_and_b32 v125, 1, v121'); A('v_lshl_add_u32 v125, v123, 1, v125   ; t')
    A('v_lshlrev_b32 v127, 8, v125'); A('v_lshlrev_b32 v126, 4, v122')
    A(f's_lshl_b32 s{sT0}, s{sH}, 11'); A(f's_lshl_b32 s{sT1}, s{sW}, 6'); A(f's_add_u32 s{sT0}, s{sT0}, s{sT1}')
    A(f'v_add3_u32 v{vKM}, v127, v126, s{sT0}')
    A('v_lshrrev_b32 v126, 1, v122'); A('v_lshlrev_b32 v126, 8, v126    ; (g/2)*256')
    A('v_and_b32 v127, 1, v122'); A('v_lshlrev_b32 v127, 5, v127     ; half*32')
    A('v_and_b32 v125, 1, v121'); A('v_lshlrev_b32 v125, 4, v125'); A('v_lshl_add_u32 v125, v123, 6, v125   ; (n/4)*64 + (n&1)*16')
    A(f'v_add3_u32 v{vOW}, v125, v126, v127')
    A(f's_lshl_b32 s{sT0}, s{sW}, 9'); A(f's_add_u32 s{sT0}, s{sT0}, {LDS_O}')
    A(f'v_add_u32 v{vOW}, s{sT0}, v{vOW}')
    A('v_lshlrev_b32 v125, 4, v120')
    A(f's_lshl_b32 s{sT0}, s{sW}, 10'); A(f's_add_u32 s{sT0}, s{sT0}, {LDS_SX - 32}')
    A(f'v_add_u32 v{vSW}, s{sT0}, v125          ; (lane-2)*16 + w*1024')
    A(f'v_add_u32 v{vSR}, {LDS_SX}, v125')
    A(f's_lshl_b32 s{sT0}, s{sW}, 2'); A(f's_add_u32 s{sT0}, s{sT0}, {LDS_SX + 4096 - 32}')
    A(f'v_add_u32 v{vSR2T}, s{sT0}, v125')

def gen_load_weights(A, mid_at=None, mid=None):
    A('v_and_b32 v120, 63, v0'); A('v_and_b32 v121, 15, v120'); A('v_lshrrev_b32 v122, 4, v120')
    vD = 24
    vDO = 28
    vTQ = 32
    vTO = 33
    vTT = 40
    vW2 = 36
    vDT = 72
    for i in range(4):
        A(f'v_xor_b32 v123, {i << 2}, v121')
        A('v_lshlrev_b32 v123, 4, v123')
        A(f'v_add_u32 v124, {4 * i}, v122')
        A('v_lshlrev_b32 v124, 13, v124')
        A(f's_lshl_b32 s{sT0}, s{sW}, 17'); A(f's_lshl_b32 s{sT1}, s{sH}, 8'); A(f's_add_u32 s{sT0}, s{sT0}, s{sT1}')
        A(f'v_add3_u32 v{vD+i}, v123, v124, s{sT0}')
        A(f'v_lshrrev_b32 v{vW2+i}, 6, v123'); A(f'v_lshlrev_b32 v{vW2+i}, 1, v{vW2+i}')
    for i in range(4):
        sw = (i & 1) | ((i >> 1) << 3)
        A(f'v_xor_b32 v123, {sw}, v121')
        A('v_lshrrev_b32 v125, 3, v123       ; u')
        A('v_and_b32 v123, 7, v123')
        A('v_lshlrev_b32 v123, 4, v123')
        A('v_lshl_add_u32 v123, v125, 8, v123')
        A(f'v_add_u32 v124, {4 * i}, v122')
        A('v_lshlrev_b32 v124, 10, v124')
        A(f's_lshl_b32 s{sT0}, s{sW}, 14'); A(f's_lshl_b32 s{sT1}, s{sH}, 17'); A(f's_add_u32 s{sT0}, s{sT0}, s{sT1}')
        A(f'v_add3_u32 v{vDO+i}, v123, v124, s{sT0}')
    A('v_lshrrev_b32 v123, 2, v121    ; r'); A('v_and_b32 v124, 3, v121   ; q')
    A('v_lshrrev_b32 v125, 1, v122'); A('v_lshlrev_b32 v125, 4, v125'); A('v_and_b32 v126, 1, v122'); A('v_lshlrev_b32 v126, 1, v126')
    A('v_lshlrev_b32 v127, 2, v123    ; 4r = 8(r/2)+4(r%2)')
    A('v_add3_u32 v125, v125, v126, v127   ; row')
    A(f's_lshl_b32 s{sT0}, s{sW}, 2')
    A(f'v_add_u32 v126, s{sT0}, v124      ; chunk = 4w+q')
    A('v_xor_b32 v126, v126, v127         ; ^ (r<<2)')
    A('v_lshlrev_b32 v126, 4, v126')
    A(f'v_lshl_add_u32 v{vTQ}, v125, 8, v126')
    A(f'v_add_u32 v{vTQ}, {LDS_MEM}, v{vTQ}')
    A('v_and_b32 v126, 1, v122    ; g%2'); A('v_lshrrev_b32 v127, 1, v123   ; r/2')
    A('v_lshrrev_b32 v125, 1, v122'); A('v_lshlrev_b32 v125, 4, v125')
    A('v_lshl_add_u32 v125, v126, 2, v125'); A('v_lshl_add_u32 v125, v127, 3, v125')
    A('v_and_b32 v34, 1, v123'); A('v_add_u32 v125, v125, v34     ; row')
    A(f's_and_b32 s{sT0}, s{sW}, 1'); A(f's_lshl_b32 s{sT0}, s{sT0}, 3')
    A(f'v_lshlrev_b32 v34, 1, v124'); A(f'v_add_u32 v34, s{sT0}, v34    ; 8u+2q')
    A('v_lshl_add_u32 v126, v127, 3, v126   ; swz')
    A('v_xor_b32 v34, v34, v126')
    A('v_lshlrev_b32 v34, 4, v34')
    A(f'v_lshl_add_u32 v{vTO}, v125, 8, v34')
    A(f'v_add_u32 v{vTO}, {LDS_MEM}, v{vTO}')
    A(f'v_xor_b32 v{vTO+1}, 16, v{vTO}')
    chunks = [('k', ks) for ks in range(8)] + [('o', c) for c in range(8)] + [('v', ks) for ks in range(8)] + [('q', ks) for ks in range(8)]
    NCH = len(chunks)
    BUFS = [LDS_MEM, LDS_MEM + 16384, 0, 32768, 65536, 98304]
    bufof = [BUFS[ci % 6] if ci < 24 else BUFS[ci % 2] for ci in range(NCH)]
    vB = 76
    for j, v in enumerate((vTQ, vTO, vTO + 1)):
        A(f'v_subrev_u32 v{vB+2*j}, {LDS_MEM}, v{v}'); A(f'v_add_u32 v{vB+2*j+1}, 65536, v{vB+2*j}')
    def base_off(which, buf):
        j = {vTQ: 0, vTO: 1, vTO + 1: 2}[which]
        if buf >= LDS_MEM: return which, buf - LDS_MEM
        if buf >= 65536: return vB + 2 * j + 1, buf - 65536
        return vB + 2 * j, buf
    def dma(ci):
        m, x = chunks[ci]
        buf = bufof[ci]
        for i in range(4):
            A(f's_lshl_b32 s{sT0}, s{sW}, 12')
            A(f's_add_u32 m0, s{sT0}, {buf + 1024 * i}')
            if m != 'o':
                S = {'q': S_WQ, 'k': S_WK, 'v': S_WV}[m]
                A(f's_mov_b32 s{sT1}, {x * 64 * 8192}')
                A(f'buffer_load_dwordx4 v{vD+i}, {srd(S)}, s{sT1} offen lds')
            else:
                ks, ah, wp = x >> 2, (x >> 1) & 1, x & 1
                A(f's_mov_b32 s{sT1}, {ks * 65536 + wp * 512 + ah * 128}')
                A(f'buffer_load_dwordx4 v{vDO+i}, {srd(S_WO)}, s{sT1} offen lds')
    def dest(o, tmpi):
        k, b = LOC[o]
        if k == 'lds': return 'v', vTT + 8 * tmpi
        return k, b
    issued = 0
    def can_issue(j, consumed):
        return all(bufof[p] != bufof[j] for p in range(consumed, j))
    def pump(consumed):
        nonlocal issued
        while issued < NCH and can_issue(issued, consumed):
            dma(issued); issued += 1
    pump(0)
    for ci, (m, x) in enumerate(chunks):
        A(f's_waitcnt vmcnt({4 * (issued - ci - 1)})')
        A('s_barrier')
        skip = None
        homed = []
        if m != 'o':
            vb, boff = base_off(vTQ, bufof[ci])
            lend = A.newlabel('L_wv')
            for wv in range(4):
                lnext = A.newlabel('L_wn')
                if wv < 3:
                    A(f's_cmp_lg_u32 s{sW}, {wv}'); A(f's_cbranch_scc1 {lnext}')
                hm = []
                for a in range(2):
                    o = (m, a, (x - 2 * wv) & 7)
                    k, b = dest(o, a)
                    if LOC[o][0] == 'lds': hm.append((o, b))
                    for p in range(4):
                        A(f'ds_read_b64_tr_b16 {k}[{b+2*p}:{b+2*p+1}], v{vb} offset:{boff + (p >> 1) * 8192 + (p & 1) * 256 + 8 * a}')
                if hm: A('s_waitcnt lgkmcnt(0)')
                for o, b in hm:
                    slot = LOC[o][1]
                    A(f'ds_write_b128 v{vHOME}, {vr(b, 4)} offset:{slot * 2048}')
                    A(f'ds_write_b128 v{vHOME}, {vr(b + 4, 4)} offset:{slot * 2048 + 1024}')
                if wv < 3:
                    A(f's_branch {lend}')
                    A.label(lnext)
            A.label(lend)
        else:
            ks, ah, wp = x >> 2, (x >> 1) & 1, x & 1
            skip = A.newlabel('L_wskip')
            A(f's_lshr_b32 s{sT0}, s{sW}, 1'); A(f's_cmp_lg_u32 s{sT0}, {wp}'); A(f's_cbranch_scc1 {skip}')
            for ap in range(4):
                o = ('o', 4 * ah + ap, ks)
                k, b = dest(o, ap)
                if LOC[o][0] == 'lds': homed.append((o, b))
                vb, boff = base_off(vTO + (ap >> 1), bufof[ci])
                for p in range(4):
                    A(f'ds_read_b64_tr_b16 {k}[{b+2*p}:{b+2*p+1}], v{vb} offset:{boff + (p >> 1) * 8192 + (p & 1) * 512 + 8 * (ap & 1)}')
        A('s_waitcnt lgkmcnt(0)')
        for o, b in homed:
            slot = LOC[o][1]
            A(f'ds_write_b128 v{vHOME}, {vr(b, 4)} offset:{slot * 2048}')
            A(f'ds_write_b128 v{vHOME}, {vr(b + 4, 4)} offset:{slot * 2048 + 1024}')
        if skip: A.label(skip)
        A('s_barrier')
        if ci == 23 and mid is not None: mid(A)
        pump(ci + 1)
        if ci == mid_at:
            l = A.newlabel('L_mid')
            A(f's_cmp_lg_u32 s{sW}, 3'); A(f's_cbranch_scc1 {l}')
            A('v_mov_b32 v120, 1'); A(f'v_mov_b32 v121, {4 * DBG_WTK}')
            A('s_mov_b64 exec, 1')
            A(f'buffer_atomic_add v120, v121, {srd(S_DBG)}, 0 offen')
            A('s_mov_b64 exec, -1')
            A('s_waitcnt vmcnt(0)')
            A.label(l)
    A('s_waitcnt lgkmcnt(0)')

def st_mode(A, ins):
    return ins

def gen_stores(A, lst, tag):
    l1 = A.newlabel('L_sslow'); l2 = A.newlabel('L_sdone')
    A(f's_cmp_lg_u32 s{sMODE}, 0'); A(f's_cbranch_scc1 {l1}')
    for s in lst: A(s)
    A(f's_branch {l2}')
    A.label(l1)
    for s in lst:
        A(s + ' sc1' if s.startswith('buffer_store') else s)
    A.label(l2)

def gen_init_exchange(A):
    for r in range(4): A(f'v_mov_b32 v{vTMP+r}, -1')
    lst = []
    for sl in range(1):
        for i in range(2):
            lst.append(f's_mov_b32 s{sT0}, {WS_PX + sl * 262144 + i * 4096}')
            lst.append(f'buffer_store_dwordx4 {vr(vTMP,4)}, v{vPLD}, {srd(S_WS)}, s{sT0} offen')
    lst.append('s_mov_b64 exec, 0xf000f')
    for sl in range(4):
        lst.append(f's_mov_b32 s{sT0}, {WS_MX + sl * 8192}')
        lst.append(f'buffer_store_dword v{vNEG1}, v{vMPUB}, {srd(S_WS)}, s{sT0} offen')
        lst.append(f'buffer_store_dword v{vNEG1}, v{vMPUB}, {srd(S_WS)}, s{sT0} offen offset:16')
    lst.append('s_mov_b64 exec, -1')
    gen_stores(A, lst, 'init')
    A(f's_lshl_b32 s{sT0}, s{sH}, 7'); A(f's_add_u32 s{sT0}, s{sT0}, {WS_PROG}'); A(f'v_mov_b32 v{vT2+1}, s{sT0}'); A(f'v_mov_b32 v{vT2}, 0')
    A(f'buffer_store_dword v{vT2}, v{vT2+1}, {srd(S_WS)}, 0 offen sc1')
    A('s_waitcnt vmcnt(0)')
    A('s_barrier')
    l = A.newlabel('L_noarr')
    A(f's_cmp_lg_u32 s{sW}, 0'); A(f's_cbranch_scc1 {l}')
    A(f'v_mov_b32 v{vTMP}, 1'); A(f'v_mov_b32 v{vTMP+1}, {4 * DBG_RINIT}')
    A('s_mov_b64 exec, 1')
    A(f'buffer_atomic_add v{vTMP}, v{vTMP+1}, {srd(S_DBG)}, 0 offen')
    A('s_mov_b64 exec, -1')
    A.label(l)

def gen_wait_init(A):
    l = A.newlabel('L_winit')
    A(f'v_mov_b32 v{vTMP+1}, {4 * DBG_RINIT}')
    A.label(l)
    A(f'buffer_load_dword v{vTMP}, v{vTMP+1}, {srd(S_DBG)}, 0 offen sc1')
    A('s_waitcnt vmcnt(0)')
    A(f'v_cmp_gt_u32 vcc, 32, v{vTMP}')
    A(f's_cbranch_vccnz {l}')

def gen_mem0(A):
    A('v_and_b32 v120, 63, v0'); A('v_and_b32 v121, 15, v120'); A('v_lshrrev_b32 v122, 4, v120')
    A('v_lshrrev_b32 v123, 2, v121'); A('v_and_b32 v124, 1, v121'); A('v_lshl_add_u32 v123, v123, 1, v124'); A('v_lshlrev_b32 v123, 10, v123')
    A('v_and_b32 v124, 2, v121'); A('v_lshlrev_b32 v124, 3, v124'); A('v_lshlrev_b32 v125, 5, v122')
    A('v_add3_u32 v123, v123, v124, v125')
    A(f's_lshl_b32 s{sT0}, s{sW}, 8')
    A(f'buffer_load_dwordx4 {vr(vFR+8,4)}, v123, {srd(S_MEM0)}, s{sT0} offen')
    A(f'buffer_load_dwordx4 {vr(vFR+12,4)}, v123, {srd(S_MEM0)}, s{sT0} offen offset:128')
    A('s_waitcnt vmcnt(0)')
    A(f's_mov_b32 s{sT0}, 0x05040100'); A(f's_mov_b32 s{sT1}, 0x07060302')
    for i in range(2):
        s = vFR + 8 + 4 * i; d = vPB + 4 * i
        A(f'v_perm_b32 v{d}, v{s+2}, v{s}, s{sT0}')
        A(f'v_perm_b32 v{d+1}, v{s+2}, v{s}, s{sT1}')
        A(f'v_perm_b32 v{d+2}, v{s+3}, v{s+1}, s{sT0}')
        A(f'v_perm_b32 v{d+3}, v{s+3}, v{s+1}, s{sT1}')


def gen_setup2(A):
    A('v_and_b32 v121, 15, v0')
    A('v_cmp_lt_u32 vcc, 7, v121')
    A('v_mov_b32 v122, 0x3f803f80')
    for r in range(4): A(f'v_cndmask_b32 v{vSEL+r}, v{vSEL+r}, v122, vcc')
    A(f'v_mov_b32 v{vSR2}, v{vSR2T}')

def gen_steps(A, mode, nsteps=64, prof=None, flag=True, opt=(), kvwait=None):
    X = '' if mode == 'f' else ' sc1'
    L = lambda n: f'L_rec{mode}_{n}'
    lg = Cnt(A, 'lgkmcnt', 15)
    SC = 128 ** -0.5 * math.log2(math.e)
    import struct
    SCBITS = struct.unpack('<I', struct.pack('<f', SC))[0]
    homed_seq = [OPS[i] for i in HOMED]
    slot_of = {o: i % NSTG for i, o in enumerate(homed_seq)}
    sTAG = sPSL
    KVF_FL = '' if 'kvplain' in opt else (' nt' if 'kvnt' in opt else (' sc1 nt' if 'kvsc1nt' in opt else ' sc1'))
    QP = 'quad_perm:[2,3,0,1] row_mask:0xf bank_mask:0xf'
    def breg(o):
        k, b = LOC[o]
        if k == 'lds':
            b = vSTG + 8 * slot_of[o]
            return f'v[{b}:{b+7}]'
        return f'{k}[{b}:{b+7}]'
    def stage(i):
        if i >= len(homed_seq): return
        o = homed_seq[i]; b = vSTG + 8 * slot_of[o]; slot = LOC[o][1]
        A(f'ds_read_b128 {vr(b,4)}, v{vHOME} offset:{slot*2048}'); lg.issue()
        A(f'ds_read_b128 {vr(b+4,4)}, v{vHOME} offset:{slot*2048+1024}'); lg.issue(('stg', i))
    def smf(acc, areg, o):
        if LOC[o][0] == 'lds':
            lg.wait(('stg', homed_seq.index(o)))
        A(f'v_smfmac_f32_16x16x64_bf16 {vr(acc,4)}, {vr(areg,4)}, {breg(o)}, v{vIDX}')
    FINE = 'fine' in opt or 'fine2' in opt or 'fine3' in opt
    def P(i):
        if prof is not None and not FINE: A(f's_memtime s[{prof+2*i}:{prof+2*i+1}]')
    def F(i):
        if prof is not None and 'fine' in opt: A(f's_memtime s[{prof+2*i}:{prof+2*i+1}]')
    def G(i):
        if prof is not None and 'fine2' in opt: A(f's_memtime s[{prof+2*i}:{prof+2*i+1}]')
    def H(i):
        if prof is not None and 'fine3' in opt: A(f's_memtime s[{prof+2*i}:{prof+2*i+1}]')
    ZM = [o[3:] for o in opt if o.startswith('zm_')]
    ZM = ZM[0] if ZM else 'm'
    KP = [o[3:] for o in opt if o.startswith('kp_')]
    KP = KP[0] if KP else '0'
    def zero(b, n, tag=''):
        if tag and tag in ZM:
            for r in range(n): A(f'v_mov_b32 v{b+r}, 0')
            return
        for r in range(0, n, 2): A(f'v_mov_b64 v[{b+r}:{b+r+1}], 0')
    def kvdma(lst):
        A(f's_mov_b32 m0, s{sT3}')
        for i in lst:
            if 'nodma' in opt: continue
            A(f'buffer_load_dwordx4 v{vKX}, {srd(S_WS)}, s{sKXO} offen offset:{1024*i}{KVF_FL} lds')
    def kvread():
        for i in range(4): A(f'ds_read_b128 {vr(vKXR+4*i,4)}, v{vVX} offset:{1024*i}')
    def hadd(b): return f'v_pk_add_f32 v[{b}:{b+1}], v[{b}:{b+1}], v[{b+2}:{b+3}]'
    def hadd2(b): return [f'v_add_f32 v{b}, v{b}, v{b+2}', f'v_add_f32 v{b+1}, v{b+1}, v{b+3}']
    SCA = [o[3:] for o in opt if o.startswith('sa_')]
    SCA = SCA[0] if SCA else 'woq'
    A(f's_mov_b32 s{sSTEP}, 0')
    A(f's_mov_b32 s{sTAG}, 0')
    A(f's_mov_b32 s{sMCUR}, {WS_MX}')
    A(f's_mov_b32 s{sKXO}, {WS_KVF}')
    A(f's_mov_b32 s{sKMO}, 0')
    A(f's_mov_b32 s{sT2}, {SCBITS}')
    A(f's_mov_b32 s{sSC}, {SCBITS}'); A(f's_mov_b32 s{sSC+1}, {SCBITS}')
    A(f's_mov_b32 s{sVXO}, {WS_PX}')
    A(f's_lshl_b32 s{sT3}, s{sW}, 12'); A(f's_add_u32 s{sT3}, s{sT3}, {LDS_KV}')
    A(f's_lshl_b32 s{sFLA}, s{sH}, 7'); A(f's_add_u32 s{sFLA}, s{sFLA}, {WS_PROG - LDS_MEM}')
    A(f's_cmp_eq_u32 s{sW}, 0'); A(f's_cselect_b32 s{sFLX}, 1, 0'); A(f's_mov_b32 s{sFLX+1}, 0')
    for i in range(2, 8):
        A(f's_lshl_b32 s{sFO+i}, s{sW}, 1'); A(f's_add_u32 s{sFO+i}, s{sFO+i}, {i}'); A(f's_and_b32 s{sFO+i}, s{sFO+i}, 7'); A(f's_lshl_b32 s{sFO+i}, s{sFO+i}, 10')
    if kvwait: kvwait(A, first=True)
    kvdma(range(4))
    for i in range(NSTG): stage(i)
    lg.q = []
    zero(vQK, 24)
    A('s_waitcnt vmcnt(0)')
    kvread()
    A(f's_add_u32 s{sKXO}, s{sKXO}, {32*16384}')
    A(f's_branch {L("have_mem")}')
    A.label(L('step'))
    P(0)
    A(f's_sub_u32 s{sT0}, s{sMCUR}, {LDS_MEM}')
    B2 = [int(o[3:]) for o in opt if o.startswith('b2_')]
    if B2 and B2[0] == 99: A('s_waitcnt vmcnt(0)')
    elif B2 and B2[0]: A(f's_sleep {B2[0]}')
    A.label(L('poll2'))
    A(f'buffer_load_dwordx4 {vr(vPB,4)}, v{vMP}, {srd(S_WS)}, s{sT0} offen sc1')
    A(f'buffer_load_dwordx4 {vr(vPB+4,4)}, v{vMP}, {srd(S_WS)}, s{sT0} offen offset:1024 sc1')
    A('s_waitcnt vmcnt(0)')
    A(f'v_max3_u32 v{vTMP}, v{vPB}, v{vPB+1}, v{vPB+2}'); A(f'v_max3_u32 v{vTMP+1}, v{vPB+3}, v{vPB+4}, v{vPB+5}')
    A(f'v_max3_u32 v{vTMP}, v{vTMP}, v{vPB+6}, v{vPB+7}'); A(f'v_max_u32 v{vTMP}, v{vTMP}, v{vTMP+1}')
    A(f'v_cmp_eq_u32 vcc, -1, v{vTMP}')
    A('s_mov_b64 exec, vcc')
    A(f's_cbranch_execnz {L("poll2")}')
    A('s_mov_b64 exec, -1')
    A.label(L('have_mem'))
    P(1); G(0)
    A(f'ds_write_b128 v{vMP}, {vr(vPB,4)}'); A(f'ds_write_b128 v{vMP}, {vr(vPB+4,4)} offset:1024')
    nstaged = NSTG
    def acc_of(m, a): return (vVA + 4 * a) if m == 'v' else vQK + 8 * a + (4 if m == 'q' else 0)
    pre = [o for o in OPS[:12]]
    for o in pre[:3]: smf(acc_of(o[0], o[1]), vFR + 4 * o[2], o)
    if kvwait: kvwait(A, first=False)
    for i in range(2, 8): A(f'v_add_u32 v{vFR+4*i}, s{sFO+i}, v{vL16H}')
    G(1)
    A('s_waitcnt lgkmcnt(0)')
    A('s_barrier')
    P(2); G(2)
    for i in range(2, 8):
        A(f'ds_read_b128 {vr(vFR+4*i,4)}, v{vFR+4*i}'); lg.issue(('fr', i))
    n_ = 0
    for o in pre[3:]:
        smf(acc_of(o[0], o[1]), vFR + 4 * o[2], o)
        if LOC[o][0] == 'lds':
            stage(nstaged); nstaged += 1
        n_ += 1
        if n_ in (2, 4, 6, 8): kvdma([n_ // 2 - 1])
    A(f's_add_u32 s{sKXO}, s{sKXO}, {32*16384}')
    if kvwait:
        A(f's_cmp_lt_u32 s{sRDY}, 16'); A(f's_cbranch_scc1 {L("rdy1")}')
        A.label(L('rdy1b'))
    G(3)
    vAP = vT2; vDP = vTMP; vX = vTMP + 4
    bg = []
    def post_qk_list(a):
        k = vQK + 8 * a; q = k + 4
        return ((hadd2(k) + hadd2(q)) if 'q' in SCA else [hadd(k), hadd(q)]) + [
                f'v_cvt_pk_bf16_f32 v{vAP}, v{k}, v{k+1}', f'v_cvt_pk_bf16_f32 v{vAP+1}, v{q}, v{q+1}',
                f'v_mfma_f32_16x16x16_bf16 {vr(vDP,4)}, {vr(vAP,2)}, {vr(vID,2)}, 0']
    def post_qk2_list(a):
        return [f'v_cvt_pk_bf16_f32 v{vX+2*a}, v{vDP}, v{vDP+1}', f'v_cvt_pk_bf16_f32 v{vX+2*a+1}, v{vDP+2}, v{vDP+3}']
    if flag:
        A(f'v_mov_b32 v{vT2}, s{sSTEP}')
        A(f's_mov_b64 exec, s[{sFLX}:{sFLX+1}]')
        A(f'buffer_store_dword v{vT2}, v{vL16H}, {srd(S_WS)}, s{sFLA} offen sc1')
        A('s_mov_b64 exec, -1')
    cnt = 0
    for a in range(2):
        G(4 + a)
        for ks in range(2, 8):
            if a == 0: lg.wait(('fr', ks))
            for m in 'kq':
                o = (m, a, ks)
                smf(acc_of(m, a), vFR + 4 * ks, o)
                if LOC[o][0] == 'lds':
                    stage(nstaged); nstaged += 1
                cnt += 1
                if cnt == 13: bg = post_qk_list(0)
                if cnt == 23: bg += post_qk2_list(0)
                if bg: A(bg.pop(0))
    assert not bg
    P(3); G(6)
    vops = [('v', a, ks) for ks in range(2, 8) for a in range(2)]
    vi = [0]
    def vstep(n=1):
        for _ in range(n):
            if vi[0] >= 12: return
            o = vops[vi[0]]; vi[0] += 1
            smf(vVA + 4 * o[1], vFR + 4 * o[2], o)
    VS = [o[3:] for o in opt if o.startswith('vs_')]
    VS = [int(c) for c in (VS[0] if VS else '12144')]
    vstep(VS[0])
    for i_ in post_qk_list(1): A(i_)
    vstep(VS[1])
    for i_ in post_qk2_list(1): A(i_)
    vS = vQK
    G(7)
    A(f'v_mfma_f32_16x16x32_bf16 {vr(vS,4)}, {vr(vKXR,4)}, {vr(vX,4)}, 0')
    A(f'v_mfma_f32_16x16x32_bf16 {vr(vS+4,4)}, {vr(vKXR+4,4)}, {vr(vX,4)}, 0')
    A(f'v_mfma_f32_16x16x32_bf16 {vr(vS+8,4)}, {vr(vX,4)}, {vr(vX,4)}, 0')
    vstep(VS[2])
    A(f's_lshl_b32 s{sT0}, s{sKMO}, 1'); A(f's_add_u32 s{sT0}, s{sT0}, {WS_KM}')
    A('s_mov_b64 exec, s[6:7]')
    A(f'ds_write_b128 v{vSW}, {vr(vS,4)} offset:32'); lg.issue()
    A(f'ds_write_b128 v{vSW}, {vr(vS+4,4)}'); lg.issue()
    A(f'ds_write2_b32 v{vSR2}, v{vS+9}, v{vS+8} offset0:0 offset1:8'); lg.issue()
    A('s_mov_b64 exec, -1')
    if KP == '0': A(f'buffer_store_dwordx4 {vr(vX,4)}, v{vVM}, {srd(S_WS)}, s{sT0} offen sc1')
    vstep(VS[3])
    if KP == '3': A(f'buffer_store_dwordx4 {vr(vX,4)}, v{vVM}, {srd(S_WS)}, s{sT0} offen sc1')
    G(8)
    lg.all()
    A('s_barrier')
    P(4); F(0)
    E = [vS, vS + 4, vS + 8, vKXR]
    Em = [vS + 12, vS + 13, vS + 14, vS + 15]
    for w in range(4):
        A(f'ds_read_b128 {vr(E[w],4)}, v{vSR} offset:{1024*w}'); lg.issue(('e', w))
    A(f'ds_read_b128 {vr(Em[0],4)}, v{vSR} offset:4096'); lg.issue(('em', 3))
    if KP == '2': A(f'buffer_store_dwordx4 {vr(vX,4)}, v{vVM}, {srd(S_WS)}, s{sT0} offen sc1')
    vstep(VS[4])
    F(1)
    lg.wait(('e', 1))
    if 'e' in ZM:
        for r in range(4): A(f'v_add_f32 v{E[0]+r}, v{E[0]+r}, v{E[1]+r}')
    else:
        for r in (0, 2): A(f'v_pk_add_f32 v[{E[0]+r}:{E[0]+r+1}], v[{E[0]+r}:{E[0]+r+1}], v[{E[1]+r}:{E[1]+r+1}]')
    vstep(1)
    lg.wait(('e', 3))
    for r in (0, 2): A(f'v_pk_add_f32 v[{E[2]+r}:{E[2]+r+1}], v[{E[2]+r}:{E[2]+r+1}], v[{E[3]+r}:{E[3]+r+1}]')
    vstep(1)
    lg.wait(('em', 3))
    A(f'v_pk_add_f32 v[{Em[0]}:{Em[1]}], v[{Em[0]}:{Em[1]}], v[{Em[2]}:{Em[3]}]')
    for r in (0, 2): A(f'v_pk_add_f32 v[{E[0]+r}:{E[0]+r+1}], v[{E[0]+r}:{E[0]+r+1}], v[{E[2]+r}:{E[2]+r+1}]')
    vstep(1)
    F(2)
    e4 = vS + 4
    A(f'v_add_f32 v{e4}, v{Em[0]}, v{Em[1]}')
    vM = vTMP; vM2 = vTMP + 1
    A(f'v_max3_f32 v{vM}, v{vS}, v{vS+1}, v{vS+2}'); A(f'v_max3_f32 v{vM}, v{vM}, v{vS+3}, v{e4}')
    vstep(1)
    stage(nstaged); nstaged += 1
    A(f'v_max_f32_dpp v{vM}, v{vM}, v{vM} {QP}')
    A(f'v_mov_b32 v{vM2}, v{vM}')
    vstep(1)
    assert vi[0] == 12, vi
    stage(nstaged); nstaged += 1
    A(f'v_permlane16_swap_b32 v{vM}, v{vM2}')
    A(f'v_max_f32 v{vM}, v{vM}, v{vM2}')
    A(f'v_mov_b32 v{vM2}, v{vM}')
    A(f'v_permlane32_swap_b32 v{vM}, v{vM2}')
    A(f'v_max_f32 v{vM}, v{vM}, v{vM2}')
    A(f'v_mul_f32 v{vM}, s{sT2}, v{vM}')
    F(3)
    for r in (0, 2): A(f'v_pk_fma_f32 v[{vS+r}:{vS+r+1}], v[{vS+r}:{vS+r+1}], s[{sSC}:{sSC+1}], v[{vM}:{vM+1}] op_sel_hi:[1,1,0] neg_lo:[0,0,1] neg_hi:[0,0,1]')
    A(f'v_fma_f32 v{vS+4}, v{vS+4}, s{sT2}, -v{vM}')
    for r in range(5): A(f'v_exp_f32 v{vS+r}, v{vS+r}')
    vPx = vTMP
    vVM0 = vTMP + 4
    A(f'v_cvt_pk_bf16_f32 v{vPx}, v{vS}, v{vS+1}'); A(f'v_cvt_pk_bf16_f32 v{vPx+1}, v{vS+2}, v{vS+3}')
    A(f'v_mov_b32_dpp v{e4+1}, v{e4} {QP}')
    A(f'v_mov_b32_dpp v{vPx+2}, v{vPx} {QP}'); A(f'v_mov_b32_dpp v{vPx+3}, v{vPx+1} {QP}')
    A(f'v_cvt_pk_bf16_f32 v{vS+12}, v{e4}, v{e4+1}')
    A(f'v_mov_b32 v{vS+13}, 0')
    vO = vS
    F(4)
    A(f'v_mfma_f32_16x16x32_bf16 {vr(vS+8,4)}, {vr(vSEL,4)}, {vr(vPx,4)}, 0')
    for i_ in (hadd2(vVA) if 'o' in SCA else [hadd(vVA)]): A(i_)
    A(f'v_mfma_f32_16x16x32_bf16 {vr(vO,4)}, {vr(vVXR,4)}, {vr(vPx,4)}, 0')
    for i_ in (hadd2(vVA + 4) if 'o' in SCA else [hadd(vVA + 4)]): A(i_)
    A(f'v_mfma_f32_16x16x32_bf16 {vr(vO+4,4)}, {vr(vVXR+4,4)}, {vr(vPx,4)}, 0')
    for a in range(2):
        b = vVA + 4 * a
        A(f'v_cvt_pk_bf16_f32 v{vVM0+2*a}, v{b}, v{b+1}'); A(f'v_mov_b32 v{vVM0+2*a+1}, 0')
    A(f's_cmp_eq_u32 s{sSTEP}, {nsteps-1}')
    A(f's_cbranch_scc1 {L("done")}')
    A(f'v_mfma_f32_16x16x16_bf16 {vr(vS+8,4)}, {vr(vSEL,2)}, {vr(vS+12,2)}, {vr(vS+8,4)}')
    for a in range(2):
        A(f'v_mfma_f32_16x16x16_bf16 {vr(vO+4*a,4)}, {vr(vVM0+2*a,2)}, {vr(vS+12,2)}, {vr(vO+4*a,4)}')
    A(f's_lshl_b32 s{sT0}, s{sKMO}, 1'); A(f's_add_u32 s{sT0}, s{sT0}, {WS_VMT}')
    A(f'buffer_store_dwordx4 {vr(vVM0,4)}, v{vVM}, {srd(S_WS)}, s{sT0} offen sc1')
    zero(vFR, 8, 'a')
    vL = vT2; vL2 = vT2 + 1
    F(5)
    A(f'v_rcp_f32 v{vL}, v{vS+8}')
    zero(vFR + 8, 2)
    A(f'v_mov_b32 v{vL2}, v{vL}')
    zero(vFR + 10, 4)
    A(f'v_permlane32_swap_b32 v{vL}, v{vL2}')
    for r in range(0, 8, 2): A(f'v_pk_mul_f32 v[{vO+r}:{vO+r+1}], v[{vO+r}:{vO+r+1}], v[{vL}:{vL+1}] op_sel:[0,1] op_sel_hi:[1,1]')
    for r in range(4): A(f'v_cvt_pk_bf16_f32 v{vTMP+r}, v{vO+2*r}, v{vO+2*r+1}')
    A('s_mov_b64 exec, s[6:7]')
    F(6)
    A(f'ds_write_b128 v{vOW}, {vr(vTMP,4)}')
    A('s_mov_b64 exec, -1')
    vWA = vFR
    zero(vFR + 14, 10)
    A('s_waitcnt lgkmcnt(0)'); lg.q = []
    F(7)
    A('s_barrier')
    P(5); F(8); H(0)
    vOF = vQK
    A(f'ds_read_b128 {vr(vOF,4)}, v{vL16H} offset:{LDS_O-LDS_MEM}'); lg.issue('of0')
    A(f'ds_read_b128 {vr(vOF+4,4)}, v{vL16H} offset:{LDS_O-LDS_MEM+1024}'); lg.issue('of1')
    zero(vFR + 24, 8)
    A(f's_add_u32 s{sT0}, s{sVXO}, 32768')
    lg.wait('of0')
    H(1)
    vPK = vVA
    def post_o(a):
        b = vWA + 4 * a
        return (hadd2(b) if 'w' in SCA else [hadd(b)]) + [f'v_cvt_pk_bf16_f32 v{vPK+a}, v{b}, v{b+1}', f'v_bfi_b32 v{vPK+a}, 1, s{sTAG}, v{vPK+a}']
    bg = []
    WO = [o[3:] for o in opt if o.startswith('wo_')]
    WO = WO[0] if WO else 'a'
    for a in range(8):
        for ks in range(2):
            if a == 0 and ks == 1: lg.wait('of1')
            o = ('o', a, ks)
            smf(vWA + 4 * a, vOF + 4 * ks, o)
            if LOC[o][0] == 'lds':
                stage(nstaged); nstaged += 1
            if WO == 'b' and ks == 1 and a >= 1: bg += post_o(a - 1)
            for _ in range((2 if 'w' in SCA else 1 + ks) if WO == 'a' else (3 if ks == 1 else 0)):
                if bg: A(bg.pop(0))
        if WO == 'a' and a >= 1: bg += post_o(a - 1)
        if a == (5 if WO == 'a' else 4):
            H(2)
            A(f'buffer_store_dwordx4 {vr(vPK,4)}, v{vPST}, {srd(S_WS)}, s{sVXO} offen{X}')
            H(3)
    H(4)
    for i_ in bg + post_o(7): A(i_)
    H(5)
    A(f'buffer_store_dwordx4 {vr(vPK+4,4)}, v{vPST}, {srd(S_WS)}, s{sT0} offen{X}')
    P(6); H(6)
    A(f's_add_u32 s{sT0}, s{sVXO}, 4096')
    B1 = [int(o[3:]) for o in opt if o.startswith('b1_')] or [99]
    if not B1:
        A(f'buffer_load_dwordx4 {vr(vPB,4)}, v{vPLD}, {srd(S_WS)}, s{sVXO} offen sc1')
        A(f'buffer_load_dwordx4 {vr(vPB+4,4)}, v{vPLD}, {srd(S_WS)}, s{sT0} offen sc1')
    for i in range(NSTG): stage(i)
    lg.q = []
    zero(vQK, 16)
    A(f's_add_u32 s{sMNXT}, s{sMCUR}, 8192'); A(f's_and_b32 s{sMNXT}, s{sMNXT}, 32767'); A(f's_add_u32 s{sMNXT}, s{sMNXT}, {WS_MX}')
    if not B1: A(f's_branch {L("poll1c")}')
    elif B1[0] == 99:
        H(7)
        A('s_waitcnt vmcnt(0)')
        H(8)
    elif B1[0]: A(f's_sleep {B1[0]}')
    A.label(L('poll1'))
    A(f'buffer_load_dwordx4 {vr(vPB,4)}, v{vPLD}, {srd(S_WS)}, s{sVXO} offen sc1')
    A(f'buffer_load_dwordx4 {vr(vPB+4,4)}, v{vPLD}, {srd(S_WS)}, s{sT0} offen sc1')
    A.label(L('poll1c'))
    A('s_waitcnt vmcnt(0)')
    tt = 0
    for a_ in range(2):
        for b_ in range(2):
            for t_ in range(2):
                if (a_ ^ t_) | (b_ ^ t_): tt |= 1 << (a_ * 4 + b_ * 2 + t_)
    for i in range(4): A(f'v_bitop3_b32 v{vTMP+i}, v{vPB+2*i}, v{vPB+2*i+1}, s{sTAG} bitop3:{tt}')
    A(f'v_or3_b32 v{vTMP}, v{vTMP}, v{vTMP+1}, v{vTMP+2}')
    A(f'v_bitop3_b32 v{vTMP}, v{vTMP}, v{vTMP+3}, 1 bitop3:0xa8')
    A(f'v_cmp_ne_u32 vcc, 0, v{vTMP}')
    A('s_mov_b64 exec, vcc')
    A(f's_cbranch_execnz {L("poll1")}')
    A('s_mov_b64 exec, -1')
    P(7)
    vR = vTMP
    A(f'v_mfma_f32_16x16x32_bf16 {vr(vR,4)}, {vr(vSEL,4)}, {vr(vPB,4)}, 0')
    A(f'v_mfma_f32_16x16x32_bf16 {vr(vR,4)}, {vr(vSEL,4)}, {vr(vPB+4,4)}, {vr(vR,4)}')
    if 'm' not in ZM: zero(vVA, 8, 'r')
    kvread()
    A(f'v_mov_b32 v{vR+6}, -1')
    for r in range(4): A(f'v_add_f32_dpp v{vR+r}, v{vR+r}, v{vR+r} row_ror:4 row_mask:0xf bank_mask:0xf')
    for r in range(4): A(f'v_add_f32_dpp v{vR+r}, v{vR+r}, v{vR+r} row_ror:8 row_mask:0xf bank_mask:0xf')
    A(f'v_cvt_pk_bf16_f32 v{vR+4}, v{vR}, v{vR+2}'); A(f'v_cvt_pk_bf16_f32 v{vR+5}, v{vR+1}, v{vR+3}')
    A(f'v_min_u32 v{vR+4}, -2, v{vR+4}'); A(f'v_min_u32 v{vR+5}, -2, v{vR+5}')
    A('s_mov_b64 exec, 0xf000f')
    A(f'buffer_store_dword v{vR+4}, v{vMPUB}, {srd(S_WS)}, s{sMNXT} offen{X}')
    A(f'buffer_store_dword v{vR+5}, v{vMPUB}, {srd(S_WS)}, s{sMNXT} offen offset:16{X}')
    A(f'buffer_store_dword v{vR+6}, v{vMPUB}, {srd(S_WS)}, s{sMCUR} offen{X}')
    A(f'buffer_store_dword v{vR+6}, v{vMPUB}, {srd(S_WS)}, s{sMCUR} offen offset:16{X}')
    A('s_mov_b64 exec, -1')
    if 'm' in ZM: zero(vVA, 8)
    if kvwait:
        A(f's_cmp_lt_u32 s{sRDY}, 16'); A(f's_cbranch_scc1 {L("rdy2")}')
        A.label(L('rdy2b'))
    P(8)
    A(f's_mov_b32 s{sMCUR}, s{sMNXT}')
    A(f's_xor_b32 s{sTAG}, s{sTAG}, 1')
    A(f's_add_u32 s{sKMO}, s{sKMO}, 65536')
    A(f's_add_u32 s{sSTEP}, s{sSTEP}, 1')
    if prof is not None:
        A('s_memrealtime s[98:99]')
        A('s_waitcnt lgkmcnt(0)')
        A(f'v_writelane_b32 v{vTMP}, s98, 9')
        for i in range(9): A(f'v_writelane_b32 v{vTMP}, s{prof+2*i}, {i}')
        A(f's_lshl_b32 s{sT0}, s{sH}, 2'); A(f's_add_u32 s{sT0}, s{sT0}, s{sW}'); A(f's_lshl_b32 s{sT0}, s{sT0}, 6'); A(f's_add_u32 s{sT0}, s{sT0}, s{sSTEP}'); A(f's_lshl_b32 s{sT0}, s{sT0}, 6')
        A(f's_add_u32 s{sT0}, s{sT0}, {120*MB}')
        A(f'v_mbcnt_lo_u32_b32 v{vTMP+1}, -1, 0'); A(f'v_lshlrev_b32 v{vTMP+1}, 2, v{vTMP+1}')
        A('s_mov_b64 exec, 0xffff')
        A(f'buffer_store_dword v{vTMP}, v{vTMP+1}, {srd(S_WS)}, s{sT0} offen')
        A('s_mov_b64 exec, -1')
    A(f's_branch {L("step")}')
    if kvwait:
        A.label(L('rdy1'))
        A(f'v_mbcnt_lo_u32_b32 v{vNEG1}, -1, 0'); A(f'v_lshlrev_b32 v{vNEG1}, 2, v{vNEG1}')
        A('s_mov_b64 exec, 0xffff')
        A(f'buffer_load_dword v{vNEG1}, v{vNEG1}, {srd(S_DBG)}, 0 offen offset:{4*DBG_KV} sc1')
        A('s_mov_b64 exec, -1')
        A(f's_branch {L("rdy1b")}')
        A.label(L('rdy2'))
        A('s_mov_b64 exec, 0xffff')
        A(f'v_and_b32 v{vNEG1}, 0xffff, v{vNEG1}')
        A(f'v_cmp_gt_u32 vcc, 32, v{vNEG1}')
        A(f's_or_b32 s{sT1}, vcc_lo, 0x10000')
        A(f's_ff1_i32_b32 s{sT1}, s{sT1}')
        A(f's_max_u32 s{sRDY}, s{sRDY}, s{sT1}')
        A('s_mov_b64 exec, -1')
        A(f's_branch {L("rdy2b")}')
    A.label(L('done'))
    A(f's_lshl_b32 s{sT0}, s{sKMO}, 1'); A(f's_add_u32 s{sT0}, s{sT0}, {WS_VMT}')
    A(f'buffer_store_dwordx4 {vr(vTMP+4,4)}, v{vVM}, {srd(S_WS)}, s{sT0} offen sc1')
    A('s_waitcnt vmcnt(0)')
    A('s_barrier')
    if flag:
        fl = A.newlabel('L_nofl')
        A(f's_cmp_lg_u32 s{sW}, 0'); A(f's_cbranch_scc1 {fl}')
        A(f'v_mov_b32 v{vT2}, {nsteps}')
        A(f's_lshl_b32 s{sT0}, s{sH}, 7'); A(f's_add_u32 s{sT0}, s{sT0}, {WS_PROG}'); A(f'v_mov_b32 v{vT2+1}, s{sT0}')
        A('s_mov_b64 exec, 1')
        A(f'buffer_store_dword v{vT2}, v{vT2+1}, {srd(S_WS)}, 0 offen sc1')
        A('s_mov_b64 exec, -1')
        A('s_waitcnt vmcnt(0)')
        A.label(fl)
    A('v_mbcnt_lo_u32_b32 v0, -1, 0'); A('v_mbcnt_hi_u32_b32 v0, -1, v0')
    A(f's_lshl_b32 s{sT0}, s{sW}, 6'); A(f'v_add_u32 v0, s{sT0}, v0')

def kvwait(A, first):
    l = A.newlabel('L_kvw'); l2 = A.newlabel('L_kvd')
    if first:
        A(f's_mov_b32 s{sRDY}, 0')
        A(f'v_mov_b32 v{vT2+1}, {4*DBG_CQ}')
        A.label(l)
        A(f'buffer_load_dword v{vT2}, v{vT2+1}, {srd(S_DBG)}, 0 offen sc1')
        A('s_waitcnt vmcnt(0)')
        A(f'v_cmp_gt_u32 vcc, 32, v{vT2}')
        A(f's_cbranch_vccnz {l}')
        return
    A(f's_add_u32 s{sT1}, s{sSTEP}, 1'); A(f's_lshr_b32 s{sT1}, s{sT1}, 2')
    A(f's_cmp_lt_u32 s{sT1}, s{sRDY}'); A(f's_cbranch_scc1 {l2}')
    A(f's_cmp_ge_u32 s{sT1}, 16'); A(f's_cbranch_scc1 {l2}')
    A(f's_cmp_eq_u32 s{sSTEP}, 0'); A(f's_cbranch_scc1 {l2}')
    A(f'v_mbcnt_lo_u32_b32 v{vT2+1}, -1, 0'); A(f'v_lshlrev_b32 v{vT2+1}, 2, v{vT2+1}')
    A('s_mov_b64 exec, 0xffff')
    A.label(l)
    A(f'buffer_load_dword v{vT2}, v{vT2+1}, {srd(S_DBG)}, 0 offen offset:{4*DBG_KV} sc1')
    A('s_waitcnt vmcnt(0)')
    A(f'v_and_b32 v{vT2}, 0xffff, v{vT2}')
    A(f'v_cmp_gt_u32 vcc, 32, v{vT2}')
    A(f's_or_b32 s{sRDY}, vcc_lo, 0x10000')
    A(f's_ff1_i32_b32 s{sRDY}, s{sRDY}')
    A(f's_cmp_lt_u32 s{sT1}, s{sRDY}'); A(f's_cbranch_scc0 {l}')
    A('s_mov_b64 exec, -1')
    A.label(l2)
```

```python
from asmlib import *
from common import *
import math, os

sW, sH, sSTEP, sPSL, sMCUR, sMNXT, sT0, sT1, sT2, sKXO, sVXO, sKMO, sMODE, sT3 = range(56, 70)
sRDY = 70
vIDX = 1; vID = 2; vSEL = 4
vL16H, vHOME, vMP, vPST, vPLD, vMPUB, vKX, vVX, vKM, vVM, vSW, vSR, vOW = range(8, 21)
vNEG1 = 21
vFR = 24
vQK = 56
vVA = 72
vSTG = 80
vKXR = 104
vVXR = 112
vTMP = 120
vT2 = 22
vSR2T = 119
vSR2 = 0
LDS_MEM = 131072
LDS_SX = LDS_MEM + 8192
LDS_O = LDS_SX + 6144
LDS_KV = LDS_O + 2048
LDS_MISC = LDS_SX
NSTG = 3
PSEC = 1024 if os.environ.get('PLAY', '3') in ('2', '3') else 4096
assert LDS_KV + 16384 == 163840
vPB = vFR
sFO = 90
sFLA = 71
sSC = 4
sFLX = 90

def vr(b, n): return f'v[{b}:{b+n-1}]'

def operand_order():
    ops = []
    for i in range(2):
        for m, a in (('k', 0), ('q', 0), ('k', 1), ('q', 1), ('v', 0), ('v', 1)): ops.append((m, a, i))
    for a in range(2):
        for i in range(2, 8):
            ops.append(('k', a, i)); ops.append(('q', a, i))
    for i in range(2, 8):
        ops.append(('v', 0, i)); ops.append(('v', 1, i))
    for a in range(8):
        for ks in range(2):
            ops.append(('o', a, ks))
    return ops
OPS = operand_order()
HOMED = [3, 7, 11] + [15, 19, 23, 27, 31, 35] + [36, 38] + [48 + i for i in (1, 4, 7, 10, 13)]
assert len(HOMED) == 16
LOC = {}
_r = 0
for i, o in enumerate(OPS):
    if i in HOMED:
        _qs = [j for j in HOMED if OPS[j][0] == 'q']; _os = [j for j in HOMED if OPS[j][0] != 'q']
        assert len(_qs) == 8
        LOC[o] = ('lds', _qs.index(i) if o[0] == 'q' else 8 + _os.index(i))
    else:
        LOC[o] = ('a', 8 * _r) if _r < 32 else ('v', 128 + 8 * (_r - 32))
        _r += 1
assert _r == 48

class Cnt:
    def __init__(self, A, name, maxv): self.A = A; self.name = name; self.maxv = maxv; self.q = []
    def issue(self, tag=None): self.q.append(tag)
    def wait(self, tag):
        if tag not in self.q: return
        idx = len(self.q) - 1 - self.q[::-1].index(tag)
        n = len(self.q) - 1 - idx
        n = min(n, self.maxv)
        self.A(f's_waitcnt {self.name}({n})')
        self.q = self.q[len(self.q) - n:] if n else []
    def all(self):
        self.A(f's_waitcnt {self.name}(0)'); self.q = []

def gen_setup(A):
    A('s_mov_b32 s4, 0x33333333'); A('s_mov_b32 s5, 0x33333333'); A('s_mov_b32 s6, 0xcccccccc'); A('s_mov_b32 s7, 0xcccccccc')
    A('v_and_b32 v120, 63, v0            ; lane')
    A('v_and_b32 v121, 15, v120          ; n = lane%16')
    A('v_lshrrev_b32 v122, 4, v120       ; g = lane/16')
    A(f'v_mov_b32 v{vNEG1}, -1')
    A('v_and_b32 v123, 2, v121')
    A('v_cmp_eq_u32 vcc, 0, v123')
    A(f'v_mov_b32 v124, 0xeeeeeeee')
    A(f'v_mov_b32 v125, 0x44444444')
    A(f'v_cndmask_b32 v{vIDX}, v124, v125, vcc')
    A('v_lshrrev_b32 v123, 2, v121')
    A('v_and_b32 v124, 3, v121           ; e')
    A('v_and_b32 v125, 1, v124')
    A('v_lshlrev_b32 v125, 4, v125       ; shift 0/16')
    A('v_mov_b32 v126, 0x3f80')
    A('v_lshlrev_b32 v126, v125, v126')
    A('v_cmp_eq_u32 vcc, v123, v122')
    A('v_cndmask_b32 v126, 0, v126, vcc')
    A('v_cmp_gt_u32 vcc, 2, v124')
    A(f'v_cndmask_b32 v{vID}, 0, v126, vcc')
    A(f'v_cndmask_b32 v{vID+1}, v126, 0, vcc')
    A('v_and_b32 v125, 1, v121')
    A('v_lshlrev_b32 v125, 4, v125')
    A('v_mov_b32 v126, 0x3f80')
    A('v_lshlrev_b32 v126, v125, v126')
    A('v_lshrrev_b32 v123, 1, v121       ; m/2 (0..7)')
    for r in range(4):
        A(f'v_cmp_eq_u32 vcc, {r}, v123')
        A(f'v_cndmask_b32 v{vSEL+r}, 0, v126, vcc')
    A(f'v_lshlrev_b32 v123, 4, v120      ; lane*16')
    A(f'v_add_u32 v{vL16H}, {LDS_MEM}, v123')
    A(f's_lshl_b32 s{sT0}, s{sW}, 15')
    A(f'v_add_u32 v{vHOME}, s{sT0}, v123')
    A(f's_lshl_b32 s{sT0}, s{sW}, 11')
    A(f'v_add_u32 v{vMP}, s{sT0}, v{vL16H}')
    A('v_lshrrev_b32 v123, 2, v121       ; q')
    A('v_and_b32 v124, 3, v121           ; e')
    if os.environ.get('PLAY', '3') == '1':
        A(f's_lshl_b32 s{sT0}, s{sW}, 16'); A(f's_lshr_b32 s{sT1}, s{sH}, 1'); A(f's_lshl_b32 s{sT1}, s{sT1}, 9'); A(f's_add_u32 s{sT0}, s{sT0}, s{sT1}')
        A(f's_and_b32 s{sT1}, s{sH}, 1'); A(f's_lshl_b32 s{sT1}, s{sT1}, 6'); A(f's_add_u32 s{sT0}, s{sT0}, s{sT1}')
        A('v_lshlrev_b32 v125, 13, v123'); A('v_lshlrev_b32 v126, 7, v122'); A('v_lshlrev_b32 v127, 4, v124')
        A(f'v_add3_u32 v{vPST}, v125, v126, v127'); A(f'v_add_u32 v{vPST}, s{sT0}, v{vPST}')
        A(f's_lshl_b32 s{sT0}, s{sH}, 13'); A(f's_lshl_b32 s{sT1}, s{sW}, 7'); A(f's_add_u32 s{sT0}, s{sT0}, s{sT1}')
        A('v_lshlrev_b32 v125, 10, v123'); A('v_lshrrev_b32 v126, 1, v122'); A('v_lshlrev_b32 v126, 9, v126')
        A(f'v_add3_u32 v{vPLD}, v125, v126, v127')
        A('v_and_b32 v126, 1, v122'); A('v_lshlrev_b32 v126, 6, v126')
        A(f'v_add3_u32 v{vPLD}, v{vPLD}, v126, s{sT0}')
    elif os.environ.get('PLAY', '3') in ('2', '3'):
        A(f's_lshl_b32 s{sT0}, s{sW}, 16'); A(f's_lshl_b32 s{sT1}, s{sH}, 6'); A(f's_add_u32 s{sT0}, s{sT0}, s{sT1}')
        A('v_lshlrev_b32 v125, 13, v123'); A('v_lshlrev_b32 v126, 11, v122'); A('v_lshlrev_b32 v127, 4, v124')
        A(f'v_add3_u32 v{vPST}, v125, v126, v127'); A(f'v_add_u32 v{vPST}, s{sT0}, v{vPST}')
        A(f's_lshl_b32 s{sT0}, s{sH}, 13'); A(f's_lshl_b32 s{sT1}, s{sW}, 11'); A(f's_add_u32 s{sT0}, s{sT0}, s{sT1}')
        if os.environ.get('PLAY', '3') == '2':
            A('v_lshlrev_b32 v125, 8, v123'); A('v_lshlrev_b32 v126, 6, v122')
        else:
            A('v_lshlrev_b32 v125, 6, v123'); A('v_lshlrev_b32 v126, 8, v122')
        A(f'v_add3_u32 v{vPLD}, v125, v126, v127'); A(f'v_add_u32 v{vPLD}, s{sT0}, v{vPLD}')
    else:
        A(f's_lshl_b32 s{sT0}, s{sW}, 16'); A(f's_lshl_b32 s{sT1}, s{sH}, 8'); A(f's_add_u32 s{sT0}, s{sT0}, s{sT1}')
        A('v_lshlrev_b32 v125, 13, v123'); A('v_lshlrev_b32 v126, 6, v122'); A('v_lshlrev_b32 v127, 4, v124')
        A(f'v_add3_u32 v{vPST}, v125, v126, v127'); A(f'v_add_u32 v{vPST}, s{sT0}, v{vPST}')
        A(f's_lshl_b32 s{sT0}, s{sH}, 13'); A(f's_lshl_b32 s{sT1}, s{sW}, 6'); A(f's_add_u32 s{sT0}, s{sT0}, s{sT1}')
        A('v_lshlrev_b32 v125, 10, v123'); A('v_lshlrev_b32 v126, 8, v122')
        A(f'v_add3_u32 v{vPLD}, v125, v126, v127'); A(f'v_add_u32 v{vPLD}, s{sT0}, v{vPLD}')
    A(f's_lshl_b32 s{sT0}, s{sH}, 8'); A(f's_lshl_b32 s{sT1}, s{sW}, 6'); A(f's_add_u32 s{sT0}, s{sT0}, s{sT1}')
    A('v_lshlrev_b32 v125, 5, v122'); A('v_lshlrev_b32 v126, 2, v121')
    A(f'v_add3_u32 v{vMPUB}, v125, v126, s{sT0}')
    A('v_lshlrev_b32 v126, 4, v120')
    A(f's_lshl_b32 s{sT0}, s{sH}, 14'); A(f's_lshl_b32 s{sT1}, s{sW}, 12'); A(f's_add_u32 s{sT0}, s{sT0}, s{sT1}')
    A(f'v_add_u32 v{vKX}, s{sT0}, v126')
    A(f's_add_u32 s{sT1}, s{sT1}, {LDS_KV}')
    A(f'v_add_u32 v{vVX}, s{sT1}, v126')
    A('v_lshlrev_b32 v125, 3, v123'); A('v_add_u32 v125, v125, v124   ; 8(m/4)+m%4')
    A('v_lshlrev_b32 v127, 4, v120')
    A(f's_lshl_b32 s{sT0}, s{sH}, 12'); A(f's_lshl_b32 s{sT1}, s{sW}, 10'); A(f's_add_u32 s{sT0}, s{sT0}, s{sT1}')
    A(f'v_add_u32 v{vVM}, s{sT0}, v127')
    A('v_and_b32 v125, 1, v121'); A('v_lshl_add_u32 v125, v123, 1, v125   ; t')
    A('v_lshlrev_b32 v127, 8, v125'); A('v_lshlrev_b32 v126, 4, v122')
    A(f's_lshl_b32 s{sT0}, s{sH}, 11'); A(f's_lshl_b32 s{sT1}, s{sW}, 6'); A(f's_add_u32 s{sT0}, s{sT0}, s{sT1}')
    A(f'v_add3_u32 v{vKM}, v127, v126, s{sT0}')
    A('v_lshrrev_b32 v126, 1, v122'); A('v_lshlrev_b32 v126, 8, v126    ; (g/2)*256')
    A('v_and_b32 v127, 1, v122'); A('v_lshlrev_b32 v127, 5, v127     ; half*32')
    A('v_and_b32 v125, 1, v121'); A('v_lshlrev_b32 v125, 4, v125'); A('v_lshl_add_u32 v125, v123, 6, v125   ; (n/4)*64 + (n&1)*16')
    A(f'v_add3_u32 v{vOW}, v125, v126, v127')
    A(f's_lshl_b32 s{sT0}, s{sW}, 9'); A(f's_add_u32 s{sT0}, s{sT0}, {LDS_O}')
    A(f'v_add_u32 v{vOW}, s{sT0}, v{vOW}')
    A('v_lshlrev_b32 v125, 4, v120')
    A(f's_lshl_b32 s{sT0}, s{sW}, 10'); A(f's_add_u32 s{sT0}, s{sT0}, {LDS_SX - 32}')
    A(f'v_add_u32 v{vSW}, s{sT0}, v125          ; (lane-2)*16 + w*1024')
    A(f'v_add_u32 v{vSR}, {LDS_SX}, v125')
    A(f's_lshl_b32 s{sT0}, s{sW}, 2'); A(f's_add_u32 s{sT0}, s{sT0}, {LDS_SX + 4096 - 32}')
    A(f'v_add_u32 v{vSR2T}, s{sT0}, v125')

def gen_load_weights(A, mid_at=None, mid=None):
    A('v_and_b32 v120, 63, v0'); A('v_and_b32 v121, 15, v120'); A('v_lshrrev_b32 v122, 4, v120')
    vD = 24
    vDO = 28
    vTQ = 32
    vTO = 33
    vTT = 40
    vW2 = 36
    vDT = 72
    for i in range(4):
        A(f'v_xor_b32 v123, {i << 2}, v121')
        A('v_lshlrev_b32 v123, 4, v123')
        A(f'v_add_u32 v124, {4 * i}, v122')
        A('v_lshlrev_b32 v124, 13, v124')
        A(f's_lshl_b32 s{sT0}, s{sW}, 17'); A(f's_lshl_b32 s{sT1}, s{sH}, 8'); A(f's_add_u32 s{sT0}, s{sT0}, s{sT1}')
        A(f'v_add3_u32 v{vD+i}, v123, v124, s{sT0}')
        A(f'v_lshrrev_b32 v{vW2+i}, 6, v123'); A(f'v_lshlrev_b32 v{vW2+i}, 1, v{vW2+i}')
    for i in range(4):
        sw = (i & 1) | ((i >> 1) << 3)
        A(f'v_xor_b32 v123, {sw}, v121')
        A('v_lshrrev_b32 v125, 3, v123       ; u')
        A('v_and_b32 v123, 7, v123')
        A('v_lshlrev_b32 v123, 4, v123')
        A('v_lshl_add_u32 v123, v125, 8, v123')
        A(f'v_add_u32 v124, {4 * i}, v122')
        A('v_lshlrev_b32 v124, 10, v124')
        A(f's_lshl_b32 s{sT0}, s{sW}, 14'); A(f's_lshl_b32 s{sT1}, s{sH}, 17'); A(f's_add_u32 s{sT0}, s{sT0}, s{sT1}')
        A(f'v_add3_u32 v{vDO+i}, v123, v124, s{sT0}')
    A('v_lshrrev_b32 v123, 2, v121    ; r'); A('v_and_b32 v124, 3, v121   ; q')
    A('v_lshrrev_b32 v125, 1, v122'); A('v_lshlrev_b32 v125, 4, v125'); A('v_and_b32 v126, 1, v122'); A('v_lshlrev_b32 v126, 1, v126')
    A('v_lshlrev_b32 v127, 2, v123    ; 4r = 8(r/2)+4(r%2)')
    A('v_add3_u32 v125, v125, v126, v127   ; row')
    A(f's_lshl_b32 s{sT0}, s{sW}, 2')
    A(f'v_add_u32 v126, s{sT0}, v124      ; chunk = 4w+q')
    A('v_xor_b32 v126, v126, v127         ; ^ (r<<2)')
    A('v_lshlrev_b32 v126, 4, v126')
    A(f'v_lshl_add_u32 v{vTQ}, v125, 8, v126')
    A(f'v_add_u32 v{vTQ}, {LDS_MEM}, v{vTQ}')
    A('v_and_b32 v126, 1, v122    ; g%2'); A('v_lshrrev_b32 v127, 1, v123   ; r/2')
    A('v_lshrrev_b32 v125, 1, v122'); A('v_lshlrev_b32 v125, 4, v125')
    A('v_lshl_add_u32 v125, v126, 2, v125'); A('v_lshl_add_u32 v125, v127, 3, v125')
    A('v_and_b32 v34, 1, v123'); A('v_add_u32 v125, v125, v34     ; row')
    A(f's_and_b32 s{sT0}, s{sW}, 1'); A(f's_lshl_b32 s{sT0}, s{sT0}, 3')
    A(f'v_lshlrev_b32 v34, 1, v124'); A(f'v_add_u32 v34, s{sT0}, v34    ; 8u+2q')
    A('v_lshl_add_u32 v126, v127, 3, v126   ; swz')
    A('v_xor_b32 v34, v34, v126')
    A('v_lshlrev_b32 v34, 4, v34')
    A(f'v_lshl_add_u32 v{vTO}, v125, 8, v34')
    A(f'v_add_u32 v{vTO}, {LDS_MEM}, v{vTO}')
    A(f'v_xor_b32 v{vTO+1}, 16, v{vTO}')
    chunks = [('k', ks) for ks in range(8)] + [('o', c) for c in range(8)] + [('v', ks) for ks in range(8)] + [('q', ks) for ks in range(8)]
    NCH = len(chunks)
    BUFS = [LDS_MEM, LDS_MEM + 16384, 0, 32768, 65536, 98304]
    bufof = [BUFS[ci % 6] if ci < 24 else BUFS[ci % 2] for ci in range(NCH)]
    vB = 76
    for j, v in enumerate((vTQ, vTO, vTO + 1)):
        A(f'v_subrev_u32 v{vB+2*j}, {LDS_MEM}, v{v}'); A(f'v_add_u32 v{vB+2*j+1}, 65536, v{vB+2*j}')
    def base_off(which, buf):
        j = {vTQ: 0, vTO: 1, vTO + 1: 2}[which]
        if buf >= LDS_MEM: return which, buf - LDS_MEM
        if buf >= 65536: return vB + 2 * j + 1, buf - 65536
        return vB + 2 * j, buf
    def dma(ci):
        m, x = chunks[ci]
        buf = bufof[ci]
        for i in range(4):
            A(f's_lshl_b32 s{sT0}, s{sW}, 12')
            A(f's_add_u32 m0, s{sT0}, {buf + 1024 * i}')
            if m != 'o':
                S = {'q': S_WQ, 'k': S_WK, 'v': S_WV}[m]
                A(f's_mov_b32 s{sT1}, {x * 64 * 8192}')
                A(f'buffer_load_dwordx4 v{vD+i}, {srd(S)}, s{sT1} offen lds')
            else:
                ks, ah, wp = x >> 2, (x >> 1) & 1, x & 1
                A(f's_mov_b32 s{sT1}, {ks * 65536 + wp * 512 + ah * 128}')
                A(f'buffer_load_dwordx4 v{vDO+i}, {srd(S_WO)}, s{sT1} offen lds')
    def dest(o, tmpi):
        k, b = LOC[o]
        if k == 'lds': return 'v', vTT + 8 * tmpi
        return k, b
    issued = 0
    def can_issue(j, consumed):
        return all(bufof[p] != bufof[j] for p in range(consumed, j))
    def pump(consumed):
        nonlocal issued
        while issued < NCH and can_issue(issued, consumed):
            dma(issued); issued += 1
    pump(0)
    for ci, (m, x) in enumerate(chunks):
        A(f's_waitcnt vmcnt({4 * (issued - ci - 1)})')
        A('s_barrier')
        skip = None
        homed = []
        if m != 'o':
            vb, boff = base_off(vTQ, bufof[ci])
            lend = A.newlabel('L_wv')
            for wv in range(4):
                lnext = A.newlabel('L_wn')
                if wv < 3:
                    A(f's_cmp_lg_u32 s{sW}, {wv}'); A(f's_cbranch_scc1 {lnext}')
                hm = []
                for a in range(2):
                    o = (m, a, (x - 2 * wv) & 7)
                    k, b = dest(o, a)
                    if LOC[o][0] == 'lds': hm.append((o, b))
                    for p in range(4):
                        A(f'ds_read_b64_tr_b16 {k}[{b+2*p}:{b+2*p+1}], v{vb} offset:{boff + (p >> 1) * 8192 + (p & 1) * 256 + 8 * a}')
                if hm: A('s_waitcnt lgkmcnt(0)')
                for o, b in hm:
                    slot = LOC[o][1]
                    A(f'ds_write_b128 v{vHOME}, {vr(b, 4)} offset:{slot * 2048}')
                    A(f'ds_write_b128 v{vHOME}, {vr(b + 4, 4)} offset:{slot * 2048 + 1024}')
                if wv < 3:
                    A(f's_branch {lend}')
                    A.label(lnext)
            A.label(lend)
        else:
            ks, ah, wp = x >> 2, (x >> 1) & 1, x & 1
            skip = A.newlabel('L_wskip')
            A(f's_lshr_b32 s{sT0}, s{sW}, 1'); A(f's_cmp_lg_u32 s{sT0}, {wp}'); A(f's_cbranch_scc1 {skip}')
            for ap in range(4):
                o = ('o', 4 * ah + ap, ks)
                k, b = dest(o, ap)
                if LOC[o][0] == 'lds': homed.append((o, b))
                vb, boff = base_off(vTO + (ap >> 1), bufof[ci])
                for p in range(4):
                    A(f'ds_read_b64_tr_b16 {k}[{b+2*p}:{b+2*p+1}], v{vb} offset:{boff + (p >> 1) * 8192 + (p & 1) * 512 + 8 * (ap & 1)}')
        A('s_waitcnt lgkmcnt(0)')
        for o, b in homed:
            slot = LOC[o][1]
            A(f'ds_write_b128 v{vHOME}, {vr(b, 4)} offset:{slot * 2048}')
            A(f'ds_write_b128 v{vHOME}, {vr(b + 4, 4)} offset:{slot * 2048 + 1024}')
        if skip: A.label(skip)
        A('s_barrier')
        if ci == 23 and mid is not None: mid(A)
        pump(ci + 1)
        if ci == mid_at:
            l = A.newlabel('L_mid')
            A(f's_cmp_lg_u32 s{sW}, 3'); A(f's_cbranch_scc1 {l}')
            A('v_mov_b32 v120, 1'); A(f'v_mov_b32 v121, {4 * DBG_WTK}')
            A('s_mov_b64 exec, 1')
            A(f'buffer_atomic_add v120, v121, {srd(S_DBG)}, 0 offen')
            A('s_mov_b64 exec, -1')
            A('s_waitcnt vmcnt(0)')
            A.label(l)
    A('s_waitcnt lgkmcnt(0)')

def st_mode(A, ins):
    return ins

def gen_stores(A, lst, tag):
    l1 = A.newlabel('L_sslow'); l2 = A.newlabel('L_sdone')
    A(f's_cmp_lg_u32 s{sMODE}, 0'); A(f's_cbranch_scc1 {l1}')
    for s in lst: A(s)
    A(f's_branch {l2}')
    A.label(l1)
    for s in lst:
        A(s + ' sc1' if s.startswith('buffer_store') else s)
    A.label(l2)

def gen_init_exchange(A):
    for r in range(4): A(f'v_mov_b32 v{vTMP+r}, -1')
    lst = []
    for sl in range(1):
        for i in range(2):
            lst.append(f's_mov_b32 s{sT0}, {WS_PX + sl * 262144 + i * PSEC}')
            lst.append(f'buffer_store_dwordx4 {vr(vTMP,4)}, v{vPLD}, {srd(S_WS)}, s{sT0} offen')
    lst.append('s_mov_b64 exec, 0xf000f')
    for sl in range(4):
        lst.append(f's_mov_b32 s{sT0}, {WS_MX + sl * 8192}')
        lst.append(f'buffer_store_dword v{vNEG1}, v{vMPUB}, {srd(S_WS)}, s{sT0} offen')
        lst.append(f'buffer_store_dword v{vNEG1}, v{vMPUB}, {srd(S_WS)}, s{sT0} offen offset:16')
    lst.append('s_mov_b64 exec, -1')
    gen_stores(A, lst, 'init')
    A(f's_lshl_b32 s{sT0}, s{sH}, 7'); A(f's_add_u32 s{sT0}, s{sT0}, {WS_PROG}'); A(f'v_mov_b32 v{vT2+1}, s{sT0}'); A(f'v_mov_b32 v{vT2}, 0')
    A(f'buffer_store_dword v{vT2}, v{vT2+1}, {srd(S_WS)}, 0 offen sc1')
    A('s_waitcnt vmcnt(0)')
    A('s_barrier')
    l = A.newlabel('L_noarr')
    A(f's_cmp_lg_u32 s{sW}, 0'); A(f's_cbranch_scc1 {l}')
    A(f'v_mov_b32 v{vTMP}, 1'); A(f'v_mov_b32 v{vTMP+1}, {4 * DBG_RINIT}')
    A('s_mov_b64 exec, 1')
    A(f'buffer_atomic_add v{vTMP}, v{vTMP+1}, {srd(S_DBG)}, 0 offen')
    A('s_mov_b64 exec, -1')
    A.label(l)

def gen_wait_init(A):
    l = A.newlabel('L_winit')
    A(f'v_mov_b32 v{vTMP+1}, {4 * DBG_RINIT}')
    A.label(l)
    A(f'buffer_load_dword v{vTMP}, v{vTMP+1}, {srd(S_DBG)}, 0 offen sc1')
    A('s_waitcnt vmcnt(0)')
    A(f'v_cmp_gt_u32 vcc, 32, v{vTMP}')
    A(f's_cbranch_vccnz {l}')

def gen_mem0(A):
    A('v_and_b32 v120, 63, v0'); A('v_and_b32 v121, 15, v120'); A('v_lshrrev_b32 v122, 4, v120')
    A('v_lshrrev_b32 v123, 2, v121'); A('v_and_b32 v124, 1, v121'); A('v_lshl_add_u32 v123, v123, 1, v124'); A('v_lshlrev_b32 v123, 10, v123')
    A('v_and_b32 v124, 2, v121'); A('v_lshlrev_b32 v124, 3, v124'); A('v_lshlrev_b32 v125, 5, v122')
    A('v_add3_u32 v123, v123, v124, v125')
    A(f's_lshl_b32 s{sT0}, s{sW}, 8')
    A(f'buffer_load_dwordx4 {vr(vFR+8,4)}, v123, {srd(S_MEM0)}, s{sT0} offen')
    A(f'buffer_load_dwordx4 {vr(vFR+12,4)}, v123, {srd(S_MEM0)}, s{sT0} offen offset:128')
    A('s_waitcnt vmcnt(0)')
    A(f's_mov_b32 s{sT0}, 0x05040100'); A(f's_mov_b32 s{sT1}, 0x07060302')
    for i in range(2):
        s = vFR + 8 + 4 * i; d = vPB + 4 * i
        A(f'v_perm_b32 v{d}, v{s+2}, v{s}, s{sT0}')
        A(f'v_perm_b32 v{d+1}, v{s+2}, v{s}, s{sT1}')
        A(f'v_perm_b32 v{d+2}, v{s+3}, v{s+1}, s{sT0}')
        A(f'v_perm_b32 v{d+3}, v{s+3}, v{s+1}, s{sT1}')


def gen_setup2(A):
    A('v_and_b32 v121, 15, v0')
    A('v_cmp_lt_u32 vcc, 7, v121')
    A('v_mov_b32 v122, 0x3f803f80')
    for r in range(4): A(f'v_cndmask_b32 v{vSEL+r}, v{vSEL+r}, v122, vcc')
    A(f'v_mov_b32 v{vSR2}, v{vSR2T}')

def gen_steps(A, mode, nsteps=64, prof=None, flag=True, opt=(), kvwait=None):
    X = '' if mode == 'f' else ' sc1'
    L = lambda n: f'L_rec{mode}_{n}'
    lg = Cnt(A, 'lgkmcnt', 15)
    SC = 128 ** -0.5 * math.log2(math.e)
    import struct
    SCBITS = struct.unpack('<I', struct.pack('<f', SC))[0]
    homed_seq = [OPS[i] for i in HOMED]
    slot_of = {o: i % NSTG for i, o in enumerate(homed_seq)}
    sTAG = sPSL
    KVF_FL = '' if 'kvplain' in opt else (' nt' if 'kvnt' in opt else (' sc1 nt' if 'kvsc1nt' in opt else ' sc1'))
    QP = 'quad_perm:[2,3,0,1] row_mask:0xf bank_mask:0xf'
    def breg(o):
        k, b = LOC[o]
        if k == 'lds':
            b = vSTG + 8 * slot_of[o]
            return f'v[{b}:{b+7}]'
        return f'{k}[{b}:{b+7}]'
    def stage(i):
        if i >= len(homed_seq): return
        o = homed_seq[i]; b = vSTG + 8 * slot_of[o]; slot = LOC[o][1]
        A(f'ds_read_b128 {vr(b,4)}, v{vHOME} offset:{slot*2048}'); lg.issue()
        A(f'ds_read_b128 {vr(b+4,4)}, v{vHOME} offset:{slot*2048+1024}'); lg.issue(('stg', i))
    def smf(acc, areg, o):
        if LOC[o][0] == 'lds':
            lg.wait(('stg', homed_seq.index(o)))
        A(f'v_smfmac_f32_16x16x64_bf16 {vr(acc,4)}, {vr(areg,4)}, {breg(o)}, v{vIDX}')
    FINE = 'fine' in opt or 'fine2' in opt or 'fine3' in opt
    def P(i):
        if prof is not None and not FINE: A(f's_memtime s[{prof+2*i}:{prof+2*i+1}]')
    def F(i):
        if prof is not None and 'fine' in opt: A(f's_memtime s[{prof+2*i}:{prof+2*i+1}]')
    def G(i):
        if prof is not None and 'fine2' in opt: A(f's_memtime s[{prof+2*i}:{prof+2*i+1}]')
    def H(i):
        if prof is not None and 'fine3' in opt: A(f's_memtime s[{prof+2*i}:{prof+2*i+1}]')
    ZM = [o[3:] for o in opt if o.startswith('zm_')]
    ZM = ZM[0] if ZM else 'm'
    KP = [o[3:] for o in opt if o.startswith('kp_')]
    KP = KP[0] if KP else '0'
    def zero(b, n, tag=''):
        if tag and tag in ZM:
            for r in range(n): A(f'v_mov_b32 v{b+r}, 0')
            return
        for r in range(0, n, 2): A(f'v_mov_b64 v[{b+r}:{b+r+1}], 0')
    def kvdma(lst):
        A(f's_mov_b32 m0, s{sT3}')
        for i in lst:
            if 'nodma' in opt: continue
            A(f'buffer_load_dwordx4 v{vKX}, {srd(S_WS)}, s{sKXO} offen offset:{1024*i}{KVF_FL} lds')
    def kvread():
        for i in range(4): A(f'ds_read_b128 {vr(vKXR+4*i,4)}, v{vVX} offset:{1024*i}')
    def hadd(b): return f'v_pk_add_f32 v[{b}:{b+1}], v[{b}:{b+1}], v[{b+2}:{b+3}]'
    def hadd2(b): return [f'v_add_f32 v{b}, v{b}, v{b+2}', f'v_add_f32 v{b+1}, v{b+1}, v{b+3}']
    SCA = [o[3:] for o in opt if o.startswith('sa_')]
    SCA = SCA[0] if SCA else 'woq'
    A(f's_mov_b32 s{sSTEP}, 0')
    A(f's_mov_b32 s{sTAG}, 0')
    A(f's_mov_b32 s{sMCUR}, {WS_MX}')
    A(f's_mov_b32 s{sKXO}, {WS_KVF}')
    A(f's_mov_b32 s{sKMO}, 0')
    A(f's_mov_b32 s{sT2}, {SCBITS}')
    A(f's_mov_b32 s{sSC}, {SCBITS}'); A(f's_mov_b32 s{sSC+1}, {SCBITS}')
    A(f's_mov_b32 s{sVXO}, {WS_PX}')
    A(f's_lshl_b32 s{sT3}, s{sW}, 12'); A(f's_add_u32 s{sT3}, s{sT3}, {LDS_KV}')
    A(f's_lshl_b32 s{sFLA}, s{sH}, 7'); A(f's_add_u32 s{sFLA}, s{sFLA}, {WS_PROG - LDS_MEM}')
    A(f's_cmp_eq_u32 s{sW}, 0'); A(f's_cselect_b32 s{sFLX}, 1, 0'); A(f's_mov_b32 s{sFLX+1}, 0')
    for i in range(2, 8):
        A(f's_lshl_b32 s{sFO+i}, s{sW}, 1'); A(f's_add_u32 s{sFO+i}, s{sFO+i}, {i}'); A(f's_and_b32 s{sFO+i}, s{sFO+i}, 7'); A(f's_lshl_b32 s{sFO+i}, s{sFO+i}, 10')
    if kvwait: kvwait(A, first=True)
    kvdma(range(4))
    for i in range(NSTG): stage(i)
    lg.q = []
    zero(vQK, 24)
    A('s_waitcnt vmcnt(0)')
    kvread()
    A(f's_add_u32 s{sKXO}, s{sKXO}, {32*16384}')
    A(f's_branch {L("have_mem")}')
    A.label(L('step'))
    P(0)
    A(f's_sub_u32 s{sT0}, s{sMCUR}, {LDS_MEM}')
    B2 = [int(o[3:]) for o in opt if o.startswith('b2_')]
    if B2 and B2[0] == 99: A('s_waitcnt vmcnt(0)')
    elif B2 and B2[0]: A(f's_sleep {B2[0]}')
    A.label(L('poll2'))
    A(f'buffer_load_dwordx4 {vr(vPB,4)}, v{vMP}, {srd(S_WS)}, s{sT0} offen sc1')
    A(f'buffer_load_dwordx4 {vr(vPB+4,4)}, v{vMP}, {srd(S_WS)}, s{sT0} offen offset:1024 sc1')
    A('s_waitcnt vmcnt(0)')
    A(f'v_max3_u32 v{vTMP}, v{vPB}, v{vPB+1}, v{vPB+2}'); A(f'v_max3_u32 v{vTMP+1}, v{vPB+3}, v{vPB+4}, v{vPB+5}')
    A(f'v_max3_u32 v{vTMP}, v{vTMP}, v{vPB+6}, v{vPB+7}'); A(f'v_max_u32 v{vTMP}, v{vTMP}, v{vTMP+1}')
    A(f'v_cmp_eq_u32 vcc, -1, v{vTMP}')
    A('s_mov_b64 exec, vcc')
    A(f's_cbranch_execnz {L("poll2")}')
    A('s_mov_b64 exec, -1')
    A.label(L('have_mem'))
    P(1); G(0)
    A(f'ds_write_b128 v{vMP}, {vr(vPB,4)}'); A(f'ds_write_b128 v{vMP}, {vr(vPB+4,4)} offset:1024')
    nstaged = NSTG
    def acc_of(m, a): return (vVA + 4 * a) if m == 'v' else vQK + 8 * a + (4 if m == 'q' else 0)
    pre = [o for o in OPS[:12]]
    for o in pre[:3]: smf(acc_of(o[0], o[1]), vFR + 4 * o[2], o)
    if kvwait: kvwait(A, first=False)
    for i in range(2, 8): A(f'v_add_u32 v{vFR+4*i}, s{sFO+i}, v{vL16H}')
    G(1)
    A('s_waitcnt lgkmcnt(0)')
    A('s_barrier')
    P(2); G(2)
    for i in range(2, 8):
        A(f'ds_read_b128 {vr(vFR+4*i,4)}, v{vFR+4*i}'); lg.issue(('fr', i))
    n_ = 0
    for o in pre[3:]:
        smf(acc_of(o[0], o[1]), vFR + 4 * o[2], o)
        if LOC[o][0] == 'lds':
            stage(nstaged); nstaged += 1
        n_ += 1
        if n_ in (2, 4, 6, 8): kvdma([n_ // 2 - 1])
    A(f's_add_u32 s{sKXO}, s{sKXO}, {32*16384}')
    if kvwait:
        A(f's_cmp_lt_u32 s{sRDY}, 16'); A(f's_cbranch_scc1 {L("rdy1")}')
        A.label(L('rdy1b'))
    G(3)
    vAP = vT2; vDP = vTMP; vX = vTMP + 4
    bg = []
    def post_qk_list(a):
        k = vQK + 8 * a; q = k + 4
        return ((hadd2(k) + hadd2(q)) if 'q' in SCA else [hadd(k), hadd(q)]) + [
                f'v_cvt_pk_bf16_f32 v{vAP}, v{k}, v{k+1}', f'v_cvt_pk_bf16_f32 v{vAP+1}, v{q}, v{q+1}',
                f'v_mfma_f32_16x16x16_bf16 {vr(vDP,4)}, {vr(vAP,2)}, {vr(vID,2)}, 0']
    def post_qk2_list(a):
        return [f'v_cvt_pk_bf16_f32 v{vX+2*a}, v{vDP}, v{vDP+1}', f'v_cvt_pk_bf16_f32 v{vX+2*a+1}, v{vDP+2}, v{vDP+3}']
    if flag:
        A(f'v_mov_b32 v{vT2}, s{sSTEP}')
        A(f's_mov_b64 exec, s[{sFLX}:{sFLX+1}]')
        A(f'buffer_store_dword v{vT2}, v{vL16H}, {srd(S_WS)}, s{sFLA} offen sc1')
        A('s_mov_b64 exec, -1')
    cnt = 0
    for a in range(2):
        G(4 + a)
        for ks in range(2, 8):
            if a == 0: lg.wait(('fr', ks))
            for m in 'kq':
                o = (m, a, ks)
                smf(acc_of(m, a), vFR + 4 * ks, o)
                if LOC[o][0] == 'lds':
                    stage(nstaged); nstaged += 1
                cnt += 1
                if cnt == 13: bg = post_qk_list(0)
                if cnt == 23: bg += post_qk2_list(0)
                if bg: A(bg.pop(0))
    assert not bg
    P(3); G(6)
    vops = [('v', a, ks) for ks in range(2, 8) for a in range(2)]
    vi = [0]
    def vstep(n=1):
        for _ in range(n):
            if vi[0] >= 12: return
            o = vops[vi[0]]; vi[0] += 1
            smf(vVA + 4 * o[1], vFR + 4 * o[2], o)
    VS = [o[3:] for o in opt if o.startswith('vs_')]
    VS = [int(c) for c in (VS[0] if VS else '12144')]
    vstep(VS[0])
    for i_ in post_qk_list(1): A(i_)
    vstep(VS[1])
    for i_ in post_qk2_list(1): A(i_)
    vS = vQK
    G(7)
    A(f'v_mfma_f32_16x16x32_bf16 {vr(vS,4)}, {vr(vKXR,4)}, {vr(vX,4)}, 0')
    A(f'v_mfma_f32_16x16x32_bf16 {vr(vS+4,4)}, {vr(vKXR+4,4)}, {vr(vX,4)}, 0')
    A(f'v_mfma_f32_16x16x32_bf16 {vr(vS+8,4)}, {vr(vX,4)}, {vr(vX,4)}, 0')
    vstep(VS[2])
    A(f's_lshl_b32 s{sT0}, s{sKMO}, 1'); A(f's_add_u32 s{sT0}, s{sT0}, {WS_KM}')
    A('s_mov_b64 exec, s[6:7]')
    A(f'ds_write_b128 v{vSW}, {vr(vS,4)} offset:32'); lg.issue()
    A(f'ds_write_b128 v{vSW}, {vr(vS+4,4)}'); lg.issue()
    A(f'ds_write2_b32 v{vSR2}, v{vS+9}, v{vS+8} offset0:0 offset1:8'); lg.issue()
    A('s_mov_b64 exec, -1')
    if KP == '0': A(f'buffer_store_dwordx4 {vr(vX,4)}, v{vVM}, {srd(S_WS)}, s{sT0} offen sc1')
    vstep(VS[3])
    if KP == '3': A(f'buffer_store_dwordx4 {vr(vX,4)}, v{vVM}, {srd(S_WS)}, s{sT0} offen sc1')
    G(8)
    lg.all()
    A('s_barrier')
    P(4); F(0)
    E = [vS, vS + 4, vS + 8, vKXR]
    Em = [vS + 12, vS + 13, vS + 14, vS + 15]
    for w in range(4):
        A(f'ds_read_b128 {vr(E[w],4)}, v{vSR} offset:{1024*w}'); lg.issue(('e', w))
    A(f'ds_read_b128 {vr(Em[0],4)}, v{vSR} offset:4096'); lg.issue(('em', 3))
    if KP == '2': A(f'buffer_store_dwordx4 {vr(vX,4)}, v{vVM}, {srd(S_WS)}, s{sT0} offen sc1')
    vstep(VS[4])
    F(1)
    lg.wait(('e', 1))
    if 'e' in ZM:
        for r in range(4): A(f'v_add_f32 v{E[0]+r}, v{E[0]+r}, v{E[1]+r}')
    else:
        for r in (0, 2): A(f'v_pk_add_f32 v[{E[0]+r}:{E[0]+r+1}], v[{E[0]+r}:{E[0]+r+1}], v[{E[1]+r}:{E[1]+r+1}]')
    vstep(1)
    lg.wait(('e', 3))
    for r in (0, 2): A(f'v_pk_add_f32 v[{E[2]+r}:{E[2]+r+1}], v[{E[2]+r}:{E[2]+r+1}], v[{E[3]+r}:{E[3]+r+1}]')
    vstep(1)
    lg.wait(('em', 3))
    A(f'v_pk_add_f32 v[{Em[0]}:{Em[1]}], v[{Em[0]}:{Em[1]}], v[{Em[2]}:{Em[3]}]')
    for r in (0, 2): A(f'v_pk_add_f32 v[{E[0]+r}:{E[0]+r+1}], v[{E[0]+r}:{E[0]+r+1}], v[{E[2]+r}:{E[2]+r+1}]')
    vstep(1)
    F(2)
    e4 = vS + 4
    A(f'v_add_f32 v{e4}, v{Em[0]}, v{Em[1]}')
    vM = vTMP; vM2 = vTMP + 1
    A(f'v_max3_f32 v{vM}, v{vS}, v{vS+1}, v{vS+2}'); A(f'v_max3_f32 v{vM}, v{vM}, v{vS+3}, v{e4}')
    vstep(1)
    stage(nstaged); nstaged += 1
    A(f'v_max_f32_dpp v{vM}, v{vM}, v{vM} {QP}')
    A(f'v_mov_b32 v{vM2}, v{vM}')
    vstep(1)
    assert vi[0] == 12, vi
    stage(nstaged); nstaged += 1
    A(f'v_permlane16_swap_b32 v{vM}, v{vM2}')
    A(f'v_max_f32 v{vM}, v{vM}, v{vM2}')
    A(f'v_mov_b32 v{vM2}, v{vM}')
    A(f'v_permlane32_swap_b32 v{vM}, v{vM2}')
    A(f'v_max_f32 v{vM}, v{vM}, v{vM2}')
    A(f'v_mul_f32 v{vM}, s{sT2}, v{vM}')
    F(3)
    for r in (0, 2): A(f'v_pk_fma_f32 v[{vS+r}:{vS+r+1}], v[{vS+r}:{vS+r+1}], s[{sSC}:{sSC+1}], v[{vM}:{vM+1}] op_sel_hi:[1,1,0] neg_lo:[0,0,1] neg_hi:[0,0,1]')
    A(f'v_fma_f32 v{vS+4}, v{vS+4}, s{sT2}, -v{vM}')
    for r in range(5): A(f'v_exp_f32 v{vS+r}, v{vS+r}')
    vPx = vTMP
    vVM0 = vTMP + 4
    A(f'v_cvt_pk_bf16_f32 v{vPx}, v{vS}, v{vS+1}'); A(f'v_cvt_pk_bf16_f32 v{vPx+1}, v{vS+2}, v{vS+3}')
    A(f'v_mov_b32_dpp v{e4+1}, v{e4} {QP}')
    A(f'v_mov_b32_dpp v{vPx+2}, v{vPx} {QP}'); A(f'v_mov_b32_dpp v{vPx+3}, v{vPx+1} {QP}')
    A(f'v_cvt_pk_bf16_f32 v{vS+12}, v{e4}, v{e4+1}')
    A(f'v_mov_b32 v{vS+13}, 0')
    vO = vS
    F(4)
    A(f'v_mfma_f32_16x16x32_bf16 {vr(vS+8,4)}, {vr(vSEL,4)}, {vr(vPx,4)}, 0')
    for i_ in (hadd2(vVA) if 'o' in SCA else [hadd(vVA)]): A(i_)
    A(f'v_mfma_f32_16x16x32_bf16 {vr(vO,4)}, {vr(vVXR,4)}, {vr(vPx,4)}, 0')
    for i_ in (hadd2(vVA + 4) if 'o' in SCA else [hadd(vVA + 4)]): A(i_)
    A(f'v_mfma_f32_16x16x32_bf16 {vr(vO+4,4)}, {vr(vVXR+4,4)}, {vr(vPx,4)}, 0')
    for a in range(2):
        b = vVA + 4 * a
        A(f'v_cvt_pk_bf16_f32 v{vVM0+2*a}, v{b}, v{b+1}'); A(f'v_mov_b32 v{vVM0+2*a+1}, 0')
    A(f's_cmp_eq_u32 s{sSTEP}, {nsteps-1}')
    A(f's_cbranch_scc1 {L("done")}')
    A(f'v_mfma_f32_16x16x16_bf16 {vr(vS+8,4)}, {vr(vSEL,2)}, {vr(vS+12,2)}, {vr(vS+8,4)}')
    for a in range(2):
        A(f'v_mfma_f32_16x16x16_bf16 {vr(vO+4*a,4)}, {vr(vVM0+2*a,2)}, {vr(vS+12,2)}, {vr(vO+4*a,4)}')
    A(f's_lshl_b32 s{sT0}, s{sKMO}, 1'); A(f's_add_u32 s{sT0}, s{sT0}, {WS_VMT}')
    A(f'buffer_store_dwordx4 {vr(vVM0,4)}, v{vVM}, {srd(S_WS)}, s{sT0} offen sc1')
    zero(vFR, 8, 'a')
    vL = vT2; vL2 = vT2 + 1
    F(5)
    A(f'v_rcp_f32 v{vL}, v{vS+8}')
    zero(vFR + 8, 2)
    A(f'v_mov_b32 v{vL2}, v{vL}')
    zero(vFR + 10, 4)
    A(f'v_permlane32_swap_b32 v{vL}, v{vL2}')
    for r in range(0, 8, 2): A(f'v_pk_mul_f32 v[{vO+r}:{vO+r+1}], v[{vO+r}:{vO+r+1}], v[{vL}:{vL+1}] op_sel:[0,1] op_sel_hi:[1,1]')
    for r in range(4): A(f'v_cvt_pk_bf16_f32 v{vTMP+r}, v{vO+2*r}, v{vO+2*r+1}')
    A('s_mov_b64 exec, s[6:7]')
    F(6)
    A(f'ds_write_b128 v{vOW}, {vr(vTMP,4)}')
    A('s_mov_b64 exec, -1')
    vWA = vFR
    zero(vFR + 14, 10)
    A('s_waitcnt lgkmcnt(0)'); lg.q = []
    F(7)
    A('s_barrier')
    P(5); F(8); H(0)
    vOF = vQK
    A(f'ds_read_b128 {vr(vOF,4)}, v{vL16H} offset:{LDS_O-LDS_MEM}'); lg.issue('of0')
    A(f'ds_read_b128 {vr(vOF+4,4)}, v{vL16H} offset:{LDS_O-LDS_MEM+1024}'); lg.issue('of1')
    zero(vFR + 24, 8)
    A(f's_add_u32 s{sT0}, s{sVXO}, 32768')
    lg.wait('of0')
    H(1)
    vPK = vVA
    def post_o(a):
        b = vWA + 4 * a
        return (hadd2(b) if 'w' in SCA else [hadd(b)]) + [f'v_cvt_pk_bf16_f32 v{vPK+a}, v{b}, v{b+1}', f'v_bfi_b32 v{vPK+a}, 1, s{sTAG}, v{vPK+a}']
    bg = []
    WO = [o[3:] for o in opt if o.startswith('wo_')]
    WO = WO[0] if WO else 'a'
    for a in range(8):
        for ks in range(2):
            if a == 0 and ks == 1: lg.wait('of1')
            o = ('o', a, ks)
            smf(vWA + 4 * a, vOF + 4 * ks, o)
            if LOC[o][0] == 'lds':
                stage(nstaged); nstaged += 1
            if WO == 'b' and ks == 1 and a >= 1: bg += post_o(a - 1)
            for _ in range((2 if 'w' in SCA else 1 + ks) if WO == 'a' else (3 if ks == 1 else 0)):
                if bg: A(bg.pop(0))
        if WO == 'a' and a >= 1: bg += post_o(a - 1)
        if a == (5 if WO == 'a' else 4):
            H(2)
            A(f'buffer_store_dwordx4 {vr(vPK,4)}, v{vPST}, {srd(S_WS)}, s{sVXO} offen{X}')
            H(3)
    H(4)
    for i_ in bg + post_o(7): A(i_)
    H(5)
    A(f'buffer_store_dwordx4 {vr(vPK+4,4)}, v{vPST}, {srd(S_WS)}, s{sT0} offen{X}')
    P(6); H(6)
    A(f's_add_u32 s{sT0}, s{sVXO}, {PSEC}')
    B1 = [int(o[3:]) for o in opt if o.startswith('b1_')] or [99]
    if not B1:
        A(f'buffer_load_dwordx4 {vr(vPB,4)}, v{vPLD}, {srd(S_WS)}, s{sVXO} offen sc1')
        A(f'buffer_load_dwordx4 {vr(vPB+4,4)}, v{vPLD}, {srd(S_WS)}, s{sT0} offen sc1')
    for i in range(NSTG): stage(i)
    lg.q = []
    zero(vQK, 16)
    A(f's_add_u32 s{sMNXT}, s{sMCUR}, 8192'); A(f's_and_b32 s{sMNXT}, s{sMNXT}, 32767'); A(f's_add_u32 s{sMNXT}, s{sMNXT}, {WS_MX}')
    if not B1: A(f's_branch {L("poll1c")}')
    elif B1[0] == 99:
        H(7)
        A('s_waitcnt vmcnt(0)')
        H(8)
    elif B1[0]: A(f's_sleep {B1[0]}')
    A.label(L('poll1'))
    A(f'buffer_load_dwordx4 {vr(vPB,4)}, v{vPLD}, {srd(S_WS)}, s{sVXO} offen sc1')
    A(f'buffer_load_dwordx4 {vr(vPB+4,4)}, v{vPLD}, {srd(S_WS)}, s{sT0} offen sc1')
    A.label(L('poll1c'))
    A('s_waitcnt vmcnt(0)')
    tt = 0
    for a_ in range(2):
        for b_ in range(2):
            for t_ in range(2):
                if (a_ ^ t_) | (b_ ^ t_): tt |= 1 << (a_ * 4 + b_ * 2 + t_)
    for i in range(4): A(f'v_bitop3_b32 v{vTMP+i}, v{vPB+2*i}, v{vPB+2*i+1}, s{sTAG} bitop3:{tt}')
    A(f'v_or3_b32 v{vTMP}, v{vTMP}, v{vTMP+1}, v{vTMP+2}')
    A(f'v_bitop3_b32 v{vTMP}, v{vTMP}, v{vTMP+3}, 1 bitop3:0xa8')
    A(f'v_cmp_ne_u32 vcc, 0, v{vTMP}')
    A('s_mov_b64 exec, vcc')
    A(f's_cbranch_execnz {L("poll1")}')
    A('s_mov_b64 exec, -1')
    P(7)
    vR = vTMP
    A(f'v_mfma_f32_16x16x32_bf16 {vr(vR,4)}, {vr(vSEL,4)}, {vr(vPB,4)}, 0')
    A(f'v_mfma_f32_16x16x32_bf16 {vr(vR,4)}, {vr(vSEL,4)}, {vr(vPB+4,4)}, {vr(vR,4)}')
    if 'm' not in ZM: zero(vVA, 8, 'r')
    kvread()
    A(f'v_mov_b32 v{vR+6}, -1')
    for r in range(4): A(f'v_add_f32_dpp v{vR+r}, v{vR+r}, v{vR+r} row_ror:4 row_mask:0xf bank_mask:0xf')
    for r in range(4): A(f'v_add_f32_dpp v{vR+r}, v{vR+r}, v{vR+r} row_ror:8 row_mask:0xf bank_mask:0xf')
    A(f'v_cvt_pk_bf16_f32 v{vR+4}, v{vR}, v{vR+2}'); A(f'v_cvt_pk_bf16_f32 v{vR+5}, v{vR+1}, v{vR+3}')
    A(f'v_min_u32 v{vR+4}, -2, v{vR+4}'); A(f'v_min_u32 v{vR+5}, -2, v{vR+5}')
    A('s_mov_b64 exec, 0xf000f')
    A(f'buffer_store_dword v{vR+4}, v{vMPUB}, {srd(S_WS)}, s{sMNXT} offen{X}')
    A(f'buffer_store_dword v{vR+5}, v{vMPUB}, {srd(S_WS)}, s{sMNXT} offen offset:16{X}')
    A(f'buffer_store_dword v{vR+6}, v{vMPUB}, {srd(S_WS)}, s{sMCUR} offen{X}')
    A(f'buffer_store_dword v{vR+6}, v{vMPUB}, {srd(S_WS)}, s{sMCUR} offen offset:16{X}')
    A('s_mov_b64 exec, -1')
    if 'm' in ZM: zero(vVA, 8)
    if kvwait:
        A(f's_cmp_lt_u32 s{sRDY}, 16'); A(f's_cbranch_scc1 {L("rdy2")}')
        A.label(L('rdy2b'))
    P(8)
    A(f's_mov_b32 s{sMCUR}, s{sMNXT}')
    A(f's_xor_b32 s{sTAG}, s{sTAG}, 1')
    A(f's_add_u32 s{sKMO}, s{sKMO}, 65536')
    A(f's_add_u32 s{sSTEP}, s{sSTEP}, 1')
    if prof is not None:
        A('s_memrealtime s[98:99]')
        A('s_waitcnt lgkmcnt(0)')
        A(f'v_writelane_b32 v{vTMP}, s98, 9')
        for i in range(9): A(f'v_writelane_b32 v{vTMP}, s{prof+2*i}, {i}')
        A(f's_lshl_b32 s{sT0}, s{sH}, 2'); A(f's_add_u32 s{sT0}, s{sT0}, s{sW}'); A(f's_lshl_b32 s{sT0}, s{sT0}, 6'); A(f's_add_u32 s{sT0}, s{sT0}, s{sSTEP}'); A(f's_lshl_b32 s{sT0}, s{sT0}, 6')
        A(f's_add_u32 s{sT0}, s{sT0}, {120*MB}')
        A(f'v_mbcnt_lo_u32_b32 v{vTMP+1}, -1, 0'); A(f'v_lshlrev_b32 v{vTMP+1}, 2, v{vTMP+1}')
        A('s_mov_b64 exec, 0xffff')
        A(f'buffer_store_dword v{vTMP}, v{vTMP+1}, {srd(S_WS)}, s{sT0} offen')
        A('s_mov_b64 exec, -1')
    A(f's_branch {L("step")}')
    if kvwait:
        A.label(L('rdy1'))
        A(f'v_mbcnt_lo_u32_b32 v{vNEG1}, -1, 0'); A(f'v_lshlrev_b32 v{vNEG1}, 2, v{vNEG1}')
        A('s_mov_b64 exec, 0xffff')
        A(f'buffer_load_dword v{vNEG1}, v{vNEG1}, {srd(S_DBG)}, 0 offen offset:{4*DBG_KV} sc1')
        A('s_mov_b64 exec, -1')
        A(f's_branch {L("rdy1b")}')
        A.label(L('rdy2'))
        A('s_mov_b64 exec, 0xffff')
        A(f'v_and_b32 v{vNEG1}, 0xffff, v{vNEG1}')
        A(f'v_cmp_gt_u32 vcc, 32, v{vNEG1}')
        A(f's_or_b32 s{sT1}, vcc_lo, 0x10000')
        A(f's_ff1_i32_b32 s{sT1}, s{sT1}')
        A(f's_max_u32 s{sRDY}, s{sRDY}, s{sT1}')
        A('s_mov_b64 exec, -1')
        A(f's_branch {L("rdy2b")}')
    A.label(L('done'))
    A(f's_lshl_b32 s{sT0}, s{sKMO}, 1'); A(f's_add_u32 s{sT0}, s{sT0}, {WS_VMT}')
    A(f'buffer_store_dwordx4 {vr(vTMP+4,4)}, v{vVM}, {srd(S_WS)}, s{sT0} offen sc1')
    A('s_waitcnt vmcnt(0)')
    A('s_barrier')
    if flag:
        fl = A.newlabel('L_nofl')
        A(f's_cmp_lg_u32 s{sW}, 0'); A(f's_cbranch_scc1 {fl}')
        A(f'v_mov_b32 v{vT2}, {nsteps}')
        A(f's_lshl_b32 s{sT0}, s{sH}, 7'); A(f's_add_u32 s{sT0}, s{sT0}, {WS_PROG}'); A(f'v_mov_b32 v{vT2+1}, s{sT0}')
        A('s_mov_b64 exec, 1')
        A(f'buffer_store_dword v{vT2}, v{vT2+1}, {srd(S_WS)}, 0 offen sc1')
        A('s_mov_b64 exec, -1')
        A('s_waitcnt vmcnt(0)')
        A.label(fl)
    A('v_mbcnt_lo_u32_b32 v0, -1, 0'); A('v_mbcnt_hi_u32_b32 v0, -1, v0')
    A(f's_lshl_b32 s{sT0}, s{sW}, 6'); A(f'v_add_u32 v0, s{sT0}, v0')

def kvwait(A, first):
    l = A.newlabel('L_kvw'); l2 = A.newlabel('L_kvd')
    if first:
        A(f's_mov_b32 s{sRDY}, 0')
        A(f'v_mov_b32 v{vT2+1}, {4*DBG_CQ}')
        A.label(l)
        A(f'buffer_load_dword v{vT2}, v{vT2+1}, {srd(S_DBG)}, 0 offen sc1')
        A('s_waitcnt vmcnt(0)')
        A(f'v_cmp_gt_u32 vcc, 32, v{vT2}')
        A(f's_cbranch_vccnz {l}')
        return
    A(f's_add_u32 s{sT1}, s{sSTEP}, 1'); A(f's_lshr_b32 s{sT1}, s{sT1}, 2')
    A(f's_cmp_lt_u32 s{sT1}, s{sRDY}'); A(f's_cbranch_scc1 {l2}')
    A(f's_cmp_ge_u32 s{sT1}, 16'); A(f's_cbranch_scc1 {l2}')
    A(f's_cmp_eq_u32 s{sSTEP}, 0'); A(f's_cbranch_scc1 {l2}')
    A(f'v_mbcnt_lo_u32_b32 v{vT2+1}, -1, 0'); A(f'v_lshlrev_b32 v{vT2+1}, 2, v{vT2+1}')
    A('s_mov_b64 exec, 0xffff')
    A.label(l)
    A(f'buffer_load_dword v{vT2}, v{vT2+1}, {srd(S_DBG)}, 0 offen offset:{4*DBG_KV} sc1')
    A('s_waitcnt vmcnt(0)')
    A(f'v_and_b32 v{vT2}, 0xffff, v{vT2}')
    A(f'v_cmp_gt_u32 vcc, 32, v{vT2}')
    A(f's_or_b32 s{sRDY}, vcc_lo, 0x10000')
    A(f's_ff1_i32_b32 s{sRDY}, s{sRDY}')
    A(f's_cmp_lt_u32 s{sT1}, s{sRDY}'); A(f's_cbranch_scc0 {l}')
    A('s_mov_b64 exec, -1')
    A.label(l2)
```

```python
from asmlib import *
from common import *
import math, os

sW, sH, sSTEP, sPSL, sMCUR, sMNXT, sT0, sT1, sT2, sKXO, sVXO, sKMO, sMODE, sT3 = range(56, 70)
sRDY = 70
vIDX = 1; vID = 2; vSEL = 4
vL16H, vHOME, vMP, vPST, vPLD, vMPUB, vKX, vVX, vKM, vVM, vSW, vSR, vOW = range(8, 21)
vNEG1 = 21
vFR = 24
vQK = 56
vVA = 72
vSTG = 80
vKXR = 104
vVXR = 112
vTMP = 120
vT2 = 22
vSR2T = 119
vSR2 = 0
LDS_MEM = 131072
LDS_SX = LDS_MEM + 8192
LDS_O = LDS_SX + 6144
LDS_KV = LDS_O + 2048
LDS_MISC = LDS_SX
NSTG = 3
PSEC = 1024 if os.environ.get('PLAY', '3') in ('2', '3') else 4096
assert LDS_KV + 16384 == 163840
vPB = vFR
sFO = 90
sFLA = 71
sPM = 98
sSC = 4
sFLX = 90

def vr(b, n): return f'v[{b}:{b+n-1}]'

def operand_order():
    ops = []
    for i in range(2):
        for m, a in (('k', 0), ('q', 0), ('k', 1), ('q', 1), ('v', 0), ('v', 1)): ops.append((m, a, i))
    for a in range(2):
        for i in range(2, 8):
            ops.append(('k', a, i)); ops.append(('q', a, i))
    for i in range(2, 8):
        ops.append(('v', 0, i)); ops.append(('v', 1, i))
    for a in range(8):
        for ks in range(2):
            ops.append(('o', a, ks))
    return ops
OPS = operand_order()
HOMED = [3, 7, 11] + [15, 19, 23, 27, 31, 35] + [36, 38] + [48 + i for i in (1, 4, 7, 10, 13)]
assert len(HOMED) == 16
LOC = {}
_r = 0
for i, o in enumerate(OPS):
    if i in HOMED:
        _qs = [j for j in HOMED if OPS[j][0] == 'q']; _os = [j for j in HOMED if OPS[j][0] != 'q']
        assert len(_qs) == 8
        LOC[o] = ('lds', _qs.index(i) if o[0] == 'q' else 8 + _os.index(i))
    else:
        LOC[o] = ('a', 8 * _r) if _r < 32 else ('v', 128 + 8 * (_r - 32))
        _r += 1
assert _r == 48

class Cnt:
    def __init__(self, A, name, maxv): self.A = A; self.name = name; self.maxv = maxv; self.q = []
    def issue(self, tag=None): self.q.append(tag)
    def wait(self, tag):
        if tag not in self.q: return
        idx = len(self.q) - 1 - self.q[::-1].index(tag)
        n = len(self.q) - 1 - idx
        n = min(n, self.maxv)
        self.A(f's_waitcnt {self.name}({n})')
        self.q = self.q[len(self.q) - n:] if n else []
    def all(self):
        self.A(f's_waitcnt {self.name}(0)'); self.q = []

def gen_setup(A):
    A('s_mov_b32 s4, 0x33333333'); A('s_mov_b32 s5, 0x33333333'); A('s_mov_b32 s6, 0xcccccccc'); A('s_mov_b32 s7, 0xcccccccc')
    A('v_and_b32 v120, 63, v0            ; lane')
    A('v_and_b32 v121, 15, v120          ; n = lane%16')
    A('v_lshrrev_b32 v122, 4, v120       ; g = lane/16')
    A(f'v_mov_b32 v{vNEG1}, -1')
    A('v_and_b32 v123, 2, v121')
    A('v_cmp_eq_u32 vcc, 0, v123')
    A(f'v_mov_b32 v124, 0xeeeeeeee')
    A(f'v_mov_b32 v125, 0x44444444')
    A(f'v_cndmask_b32 v{vIDX}, v124, v125, vcc')
    A('v_lshrrev_b32 v123, 2, v121')
    A('v_and_b32 v124, 3, v121           ; e')
    A('v_and_b32 v125, 1, v124')
    A('v_lshlrev_b32 v125, 4, v125       ; shift 0/16')
    A('v_mov_b32 v126, 0x3f80')
    A('v_lshlrev_b32 v126, v125, v126')
    A('v_cmp_eq_u32 vcc, v123, v122')
    A('v_cndmask_b32 v126, 0, v126, vcc')
    A('v_cmp_gt_u32 vcc, 2, v124')
    A(f'v_cndmask_b32 v{vID}, 0, v126, vcc')
    A(f'v_cndmask_b32 v{vID+1}, v126, 0, vcc')
    A('v_and_b32 v125, 1, v121')
    A('v_lshlrev_b32 v125, 4, v125')
    A('v_mov_b32 v126, 0x3f80')
    A('v_lshlrev_b32 v126, v125, v126')
    A('v_lshrrev_b32 v123, 1, v121       ; m/2 (0..7)')
    for r in range(4):
        A(f'v_cmp_eq_u32 vcc, {r}, v123')
        A(f'v_cndmask_b32 v{vSEL+r}, 0, v126, vcc')
    A(f'v_lshlrev_b32 v123, 4, v120      ; lane*16')
    A(f'v_add_u32 v{vL16H}, {LDS_MEM}, v123')
    A(f's_lshl_b32 s{sT0}, s{sW}, 15')
    A(f'v_add_u32 v{vHOME}, s{sT0}, v123')
    A(f's_lshl_b32 s{sT0}, s{sW}, 11')
    A(f'v_add_u32 v{vMP}, s{sT0}, v{vL16H}')
    A('v_lshrrev_b32 v123, 2, v121       ; q')
    A('v_and_b32 v124, 3, v121           ; e')
    if os.environ.get('PLAY', '3') == '1':
        A(f's_lshl_b32 s{sT0}, s{sW}, 16'); A(f's_lshr_b32 s{sT1}, s{sH}, 1'); A(f's_lshl_b32 s{sT1}, s{sT1}, 9'); A(f's_add_u32 s{sT0}, s{sT0}, s{sT1}')
        A(f's_and_b32 s{sT1}, s{sH}, 1'); A(f's_lshl_b32 s{sT1}, s{sT1}, 6'); A(f's_add_u32 s{sT0}, s{sT0}, s{sT1}')
        A('v_lshlrev_b32 v125, 13, v123'); A('v_lshlrev_b32 v126, 7, v122'); A('v_lshlrev_b32 v127, 4, v124')
        A(f'v_add3_u32 v{vPST}, v125, v126, v127'); A(f'v_add_u32 v{vPST}, s{sT0}, v{vPST}')
        A(f's_lshl_b32 s{sT0}, s{sH}, 13'); A(f's_lshl_b32 s{sT1}, s{sW}, 7'); A(f's_add_u32 s{sT0}, s{sT0}, s{sT1}')
        A('v_lshlrev_b32 v125, 10, v123'); A('v_lshrrev_b32 v126, 1, v122'); A('v_lshlrev_b32 v126, 9, v126')
        A(f'v_add3_u32 v{vPLD}, v125, v126, v127')
        A('v_and_b32 v126, 1, v122'); A('v_lshlrev_b32 v126, 6, v126')
        A(f'v_add3_u32 v{vPLD}, v{vPLD}, v126, s{sT0}')
    elif os.environ.get('PLAY', '3') in ('2', '3'):
        A(f's_lshl_b32 s{sT0}, s{sW}, 16'); A(f's_lshl_b32 s{sT1}, s{sH}, 6'); A(f's_add_u32 s{sT0}, s{sT0}, s{sT1}')
        A('v_lshlrev_b32 v125, 13, v123'); A('v_lshlrev_b32 v126, 11, v122'); A('v_lshlrev_b32 v127, 4, v124')
        A(f'v_add3_u32 v{vPST}, v125, v126, v127'); A(f'v_add_u32 v{vPST}, s{sT0}, v{vPST}')
        A(f's_lshl_b32 s{sT0}, s{sH}, 13'); A(f's_lshl_b32 s{sT1}, s{sW}, 11'); A(f's_add_u32 s{sT0}, s{sT0}, s{sT1}')
        if os.environ.get('PLAY', '3') == '2':
            A('v_lshlrev_b32 v125, 8, v123'); A('v_lshlrev_b32 v126, 6, v122')
        else:
            A('v_lshlrev_b32 v125, 6, v123'); A('v_lshlrev_b32 v126, 8, v122')
        A(f'v_add3_u32 v{vPLD}, v125, v126, v127'); A(f'v_add_u32 v{vPLD}, s{sT0}, v{vPLD}')
    else:
        A(f's_lshl_b32 s{sT0}, s{sW}, 16'); A(f's_lshl_b32 s{sT1}, s{sH}, 8'); A(f's_add_u32 s{sT0}, s{sT0}, s{sT1}')
        A('v_lshlrev_b32 v125, 13, v123'); A('v_lshlrev_b32 v126, 6, v122'); A('v_lshlrev_b32 v127, 4, v124')
        A(f'v_add3_u32 v{vPST}, v125, v126, v127'); A(f'v_add_u32 v{vPST}, s{sT0}, v{vPST}')
        A(f's_lshl_b32 s{sT0}, s{sH}, 13'); A(f's_lshl_b32 s{sT1}, s{sW}, 6'); A(f's_add_u32 s{sT0}, s{sT0}, s{sT1}')
        A('v_lshlrev_b32 v125, 10, v123'); A('v_lshlrev_b32 v126, 8, v122')
        A(f'v_add3_u32 v{vPLD}, v125, v126, v127'); A(f'v_add_u32 v{vPLD}, s{sT0}, v{vPLD}')
    A(f's_lshl_b32 s{sT0}, s{sH}, 8'); A(f's_lshl_b32 s{sT1}, s{sW}, 6'); A(f's_add_u32 s{sT0}, s{sT0}, s{sT1}')
    A('v_lshlrev_b32 v125, 5, v122'); A('v_lshlrev_b32 v126, 2, v121')
    A(f'v_add3_u32 v{vMPUB}, v125, v126, s{sT0}')
    A('v_lshlrev_b32 v126, 4, v120')
    A(f's_lshl_b32 s{sT0}, s{sH}, 14'); A(f's_lshl_b32 s{sT1}, s{sW}, 12'); A(f's_add_u32 s{sT0}, s{sT0}, s{sT1}')
    A(f'v_add_u32 v{vKX}, s{sT0}, v126')
    A(f's_add_u32 s{sT1}, s{sT1}, {LDS_KV}')
    A(f'v_add_u32 v{vVX}, s{sT1}, v126')
    A('v_lshlrev_b32 v125, 3, v123'); A('v_add_u32 v125, v125, v124   ; 8(m/4)+m%4')
    A('v_lshlrev_b32 v127, 4, v120')
    A(f's_lshl_b32 s{sT0}, s{sH}, 12'); A(f's_lshl_b32 s{sT1}, s{sW}, 10'); A(f's_add_u32 s{sT0}, s{sT0}, s{sT1}')
    A(f'v_add_u32 v{vVM}, s{sT0}, v127')
    A('v_and_b32 v125, 1, v121'); A('v_lshl_add_u32 v125, v123, 1, v125   ; t')
    A('v_lshlrev_b32 v127, 8, v125'); A('v_lshlrev_b32 v126, 4, v122')
    A(f's_lshl_b32 s{sT0}, s{sH}, 11'); A(f's_lshl_b32 s{sT1}, s{sW}, 6'); A(f's_add_u32 s{sT0}, s{sT0}, s{sT1}')
    A(f'v_add3_u32 v{vKM}, v127, v126, s{sT0}')
    A('v_lshrrev_b32 v126, 1, v122'); A('v_lshlrev_b32 v126, 8, v126    ; (g/2)*256')
    A('v_and_b32 v127, 1, v122'); A('v_lshlrev_b32 v127, 5, v127     ; half*32')
    A('v_and_b32 v125, 1, v121'); A('v_lshlrev_b32 v125, 4, v125'); A('v_lshl_add_u32 v125, v123, 6, v125   ; (n/4)*64 + (n&1)*16')
    A(f'v_add3_u32 v{vOW}, v125, v126, v127')
    A(f's_lshl_b32 s{sT0}, s{sW}, 9'); A(f's_add_u32 s{sT0}, s{sT0}, {LDS_O}')
    A(f'v_add_u32 v{vOW}, s{sT0}, v{vOW}')
    A('v_lshlrev_b32 v125, 4, v120')
    A(f's_lshl_b32 s{sT0}, s{sW}, 10'); A(f's_add_u32 s{sT0}, s{sT0}, {LDS_SX - 32}')
    A(f'v_add_u32 v{vSW}, s{sT0}, v125          ; (lane-2)*16 + w*1024')
    A(f'v_add_u32 v{vSR}, {LDS_SX}, v125')
    A(f's_lshl_b32 s{sT0}, s{sW}, 2'); A(f's_add_u32 s{sT0}, s{sT0}, {LDS_SX + 4096 - 32}')
    A(f'v_add_u32 v{vSR2T}, s{sT0}, v125')

def gen_load_weights(A, mid_at=None, mid=None):
    A('v_and_b32 v120, 63, v0'); A('v_and_b32 v121, 15, v120'); A('v_lshrrev_b32 v122, 4, v120')
    vD = 24
    vDO = 28
    vTQ = 32
    vTO = 33
    vTT = 40
    vW2 = 36
    vDT = 72
    for i in range(4):
        A(f'v_xor_b32 v123, {i << 2}, v121')
        A('v_lshlrev_b32 v123, 4, v123')
        A(f'v_add_u32 v124, {4 * i}, v122')
        A('v_lshlrev_b32 v124, 13, v124')
        A(f's_lshl_b32 s{sT0}, s{sW}, 17'); A(f's_lshl_b32 s{sT1}, s{sH}, 8'); A(f's_add_u32 s{sT0}, s{sT0}, s{sT1}')
        A(f'v_add3_u32 v{vD+i}, v123, v124, s{sT0}')
        A(f'v_lshrrev_b32 v{vW2+i}, 6, v123'); A(f'v_lshlrev_b32 v{vW2+i}, 1, v{vW2+i}')
    for i in range(4):
        sw = (i & 1) | ((i >> 1) << 3)
        A(f'v_xor_b32 v123, {sw}, v121')
        A('v_lshrrev_b32 v125, 3, v123       ; u')
        A('v_and_b32 v123, 7, v123')
        A('v_lshlrev_b32 v123, 4, v123')
        A('v_lshl_add_u32 v123, v125, 8, v123')
        A(f'v_add_u32 v124, {4 * i}, v122')
        A('v_lshlrev_b32 v124, 10, v124')
        A(f's_lshl_b32 s{sT0}, s{sW}, 14'); A(f's_lshl_b32 s{sT1}, s{sH}, 17'); A(f's_add_u32 s{sT0}, s{sT0}, s{sT1}')
        A(f'v_add3_u32 v{vDO+i}, v123, v124, s{sT0}')
    A('v_lshrrev_b32 v123, 2, v121    ; r'); A('v_and_b32 v124, 3, v121   ; q')
    A('v_lshrrev_b32 v125, 1, v122'); A('v_lshlrev_b32 v125, 4, v125'); A('v_and_b32 v126, 1, v122'); A('v_lshlrev_b32 v126, 1, v126')
    A('v_lshlrev_b32 v127, 2, v123    ; 4r = 8(r/2)+4(r%2)')
    A('v_add3_u32 v125, v125, v126, v127   ; row')
    A(f's_lshl_b32 s{sT0}, s{sW}, 2')
    A(f'v_add_u32 v126, s{sT0}, v124      ; chunk = 4w+q')
    A('v_xor_b32 v126, v126, v127         ; ^ (r<<2)')
    A('v_lshlrev_b32 v126, 4, v126')
    A(f'v_lshl_add_u32 v{vTQ}, v125, 8, v126')
    A(f'v_add_u32 v{vTQ}, {LDS_MEM}, v{vTQ}')
    A('v_and_b32 v126, 1, v122    ; g%2'); A('v_lshrrev_b32 v127, 1, v123   ; r/2')
    A('v_lshrrev_b32 v125, 1, v122'); A('v_lshlrev_b32 v125, 4, v125')
    A('v_lshl_add_u32 v125, v126, 2, v125'); A('v_lshl_add_u32 v125, v127, 3, v125')
    A('v_and_b32 v34, 1, v123'); A('v_add_u32 v125, v125, v34     ; row')
    A(f's_and_b32 s{sT0}, s{sW}, 1'); A(f's_lshl_b32 s{sT0}, s{sT0}, 3')
    A(f'v_lshlrev_b32 v34, 1, v124'); A(f'v_add_u32 v34, s{sT0}, v34    ; 8u+2q')
    A('v_lshl_add_u32 v126, v127, 3, v126   ; swz')
    A('v_xor_b32 v34, v34, v126')
    A('v_lshlrev_b32 v34, 4, v34')
    A(f'v_lshl_add_u32 v{vTO}, v125, 8, v34')
    A(f'v_add_u32 v{vTO}, {LDS_MEM}, v{vTO}')
    A(f'v_xor_b32 v{vTO+1}, 16, v{vTO}')
    chunks = [('k', ks) for ks in range(8)] + [('o', c) for c in range(8)] + [('v', ks) for ks in range(8)] + [('q', ks) for ks in range(8)]
    NCH = len(chunks)
    BUFS = [LDS_MEM, LDS_MEM + 16384, 0, 32768, 65536, 98304]
    bufof = [BUFS[ci % 6] if ci < 24 else BUFS[ci % 2] for ci in range(NCH)]
    vB = 76
    for j, v in enumerate((vTQ, vTO, vTO + 1)):
        A(f'v_subrev_u32 v{vB+2*j}, {LDS_MEM}, v{v}'); A(f'v_add_u32 v{vB+2*j+1}, 65536, v{vB+2*j}')
    def base_off(which, buf):
        j = {vTQ: 0, vTO: 1, vTO + 1: 2}[which]
        if buf >= LDS_MEM: return which, buf - LDS_MEM
        if buf >= 65536: return vB + 2 * j + 1, buf - 65536
        return vB + 2 * j, buf
    def dma(ci):
        m, x = chunks[ci]
        buf = bufof[ci]
        for i in range(4):
            A(f's_lshl_b32 s{sT0}, s{sW}, 12')
            A(f's_add_u32 m0, s{sT0}, {buf + 1024 * i}')
            if m != 'o':
                S = {'q': S_WQ, 'k': S_WK, 'v': S_WV}[m]
                A(f's_mov_b32 s{sT1}, {x * 64 * 8192}')
                A(f'buffer_load_dwordx4 v{vD+i}, {srd(S)}, s{sT1} offen lds')
            else:
                ks, ah, wp = x >> 2, (x >> 1) & 1, x & 1
                A(f's_mov_b32 s{sT1}, {ks * 65536 + wp * 512 + ah * 128}')
                A(f'buffer_load_dwordx4 v{vDO+i}, {srd(S_WO)}, s{sT1} offen lds')
    def dest(o, tmpi):
        k, b = LOC[o]
        if k == 'lds': return 'v', vTT + 8 * tmpi
        return k, b
    issued = 0
    def can_issue(j, consumed):
        return all(bufof[p] != bufof[j] for p in range(consumed, j))
    def pump(consumed):
        nonlocal issued
        while issued < NCH and can_issue(issued, consumed):
            dma(issued); issued += 1
    pump(0)
    for ci, (m, x) in enumerate(chunks):
        A(f's_waitcnt vmcnt({4 * (issued - ci - 1)})')
        A('s_barrier')
        skip = None
        homed = []
        if m != 'o':
            vb, boff = base_off(vTQ, bufof[ci])
            lend = A.newlabel('L_wv')
            for wv in range(4):
                lnext = A.newlabel('L_wn')
                if wv < 3:
                    A(f's_cmp_lg_u32 s{sW}, {wv}'); A(f's_cbranch_scc1 {lnext}')
                hm = []
                for a in range(2):
                    o = (m, a, (x - 2 * wv) & 7)
                    k, b = dest(o, a)
                    if LOC[o][0] == 'lds': hm.append((o, b))
                    for p in range(4):
                        A(f'ds_read_b64_tr_b16 {k}[{b+2*p}:{b+2*p+1}], v{vb} offset:{boff + (p >> 1) * 8192 + (p & 1) * 256 + 8 * a}')
                if hm: A('s_waitcnt lgkmcnt(0)')
                for o, b in hm:
                    slot = LOC[o][1]
                    A(f'ds_write_b128 v{vHOME}, {vr(b, 4)} offset:{slot * 2048}')
                    A(f'ds_write_b128 v{vHOME}, {vr(b + 4, 4)} offset:{slot * 2048 + 1024}')
                if wv < 3:
                    A(f's_branch {lend}')
                    A.label(lnext)
            A.label(lend)
        else:
            ks, ah, wp = x >> 2, (x >> 1) & 1, x & 1
            skip = A.newlabel('L_wskip')
            A(f's_lshr_b32 s{sT0}, s{sW}, 1'); A(f's_cmp_lg_u32 s{sT0}, {wp}'); A(f's_cbranch_scc1 {skip}')
            for ap in range(4):
                o = ('o', 4 * ah + ap, ks)
                k, b = dest(o, ap)
                if LOC[o][0] == 'lds': homed.append((o, b))
                vb, boff = base_off(vTO + (ap >> 1), bufof[ci])
                for p in range(4):
                    A(f'ds_read_b64_tr_b16 {k}[{b+2*p}:{b+2*p+1}], v{vb} offset:{boff + (p >> 1) * 8192 + (p & 1) * 512 + 8 * (ap & 1)}')
        A('s_waitcnt lgkmcnt(0)')
        for o, b in homed:
            slot = LOC[o][1]
            A(f'ds_write_b128 v{vHOME}, {vr(b, 4)} offset:{slot * 2048}')
            A(f'ds_write_b128 v{vHOME}, {vr(b + 4, 4)} offset:{slot * 2048 + 1024}')
        if skip: A.label(skip)
        A('s_barrier')
        if ci == 23 and mid is not None: mid(A)
        pump(ci + 1)
        if ci == mid_at:
            l = A.newlabel('L_mid')
            A(f's_cmp_lg_u32 s{sW}, 3'); A(f's_cbranch_scc1 {l}')
            A('v_mov_b32 v120, 1'); A(f'v_mov_b32 v121, {4 * DBG_WTK}')
            A('s_mov_b64 exec, 1')
            A(f'buffer_atomic_add v120, v121, {srd(S_DBG)}, 0 offen')
            A('s_mov_b64 exec, -1')
            A('s_waitcnt vmcnt(0)')
            A.label(l)
    A('s_waitcnt lgkmcnt(0)')

def st_mode(A, ins):
    return ins

def gen_stores(A, lst, tag):
    l1 = A.newlabel('L_sslow'); l2 = A.newlabel('L_sdone')
    A(f's_cmp_lg_u32 s{sMODE}, 0'); A(f's_cbranch_scc1 {l1}')
    for s in lst: A(s)
    A(f's_branch {l2}')
    A.label(l1)
    for s in lst:
        A(s + ' sc1' if s.startswith('buffer_store') else s)
    A.label(l2)

def gen_init_exchange(A):
    for r in range(4): A(f'v_mov_b32 v{vTMP+r}, -1')
    lst = []
    for sl in range(1):
        for i in range(2):
            lst.append(f's_mov_b32 s{sT0}, {WS_PX + sl * 262144 + i * PSEC}')
            lst.append(f'buffer_store_dwordx4 {vr(vTMP,4)}, v{vPLD}, {srd(S_WS)}, s{sT0} offen')
    lst.append('s_mov_b64 exec, 0xf000f')
    for sl in range(4):
        lst.append(f's_mov_b32 s{sT0}, {WS_MX + sl * 8192}')
        lst.append(f'buffer_store_dword v{vNEG1}, v{vMPUB}, {srd(S_WS)}, s{sT0} offen')
        lst.append(f'buffer_store_dword v{vNEG1}, v{vMPUB}, {srd(S_WS)}, s{sT0} offen offset:16')
    lst.append('s_mov_b64 exec, -1')
    gen_stores(A, lst, 'init')
    A(f's_lshl_b32 s{sT0}, s{sH}, 7'); A(f's_add_u32 s{sT0}, s{sT0}, {WS_PROG}'); A(f'v_mov_b32 v{vT2+1}, s{sT0}'); A(f'v_mov_b32 v{vT2}, 0')
    A(f'buffer_store_dword v{vT2}, v{vT2+1}, {srd(S_WS)}, 0 offen sc1')
    A('s_waitcnt vmcnt(0)')
    A('s_barrier')
    l = A.newlabel('L_noarr')
    A(f's_cmp_lg_u32 s{sW}, 0'); A(f's_cbranch_scc1 {l}')
    A(f'v_mov_b32 v{vTMP}, 1'); A(f'v_mov_b32 v{vTMP+1}, {4 * DBG_RINIT}')
    A('s_mov_b64 exec, 1')
    A(f'buffer_atomic_add v{vTMP}, v{vTMP+1}, {srd(S_DBG)}, 0 offen')
    A('s_mov_b64 exec, -1')
    A.label(l)

def gen_wait_init(A):
    l = A.newlabel('L_winit')
    A(f'v_mov_b32 v{vTMP+1}, {4 * DBG_RINIT}')
    A.label(l)
    A(f'buffer_load_dword v{vTMP}, v{vTMP+1}, {srd(S_DBG)}, 0 offen sc1')
    A('s_waitcnt vmcnt(0)')
    A(f'v_cmp_gt_u32 vcc, 32, v{vTMP}')
    A(f's_cbranch_vccnz {l}')

def gen_mem0(A):
    A('v_and_b32 v120, 63, v0'); A('v_and_b32 v121, 15, v120'); A('v_lshrrev_b32 v122, 4, v120')
    A('v_lshrrev_b32 v123, 2, v121'); A('v_and_b32 v124, 1, v121'); A('v_lshl_add_u32 v123, v123, 1, v124'); A('v_lshlrev_b32 v123, 10, v123')
    A('v_and_b32 v124, 2, v121'); A('v_lshlrev_b32 v124, 3, v124'); A('v_lshlrev_b32 v125, 5, v122')
    A('v_add3_u32 v123, v123, v124, v125')
    A(f's_lshl_b32 s{sT0}, s{sW}, 8')
    A(f'buffer_load_dwordx4 {vr(vFR+8,4)}, v123, {srd(S_MEM0)}, s{sT0} offen')
    A(f'buffer_load_dwordx4 {vr(vFR+12,4)}, v123, {srd(S_MEM0)}, s{sT0} offen offset:128')
    A('s_waitcnt vmcnt(0)')
    A(f's_mov_b32 s{sT0}, 0x05040100'); A(f's_mov_b32 s{sT1}, 0x07060302')
    for i in range(2):
        s = vFR + 8 + 4 * i; d = vPB + 4 * i
        A(f'v_perm_b32 v{d}, v{s+2}, v{s}, s{sT0}')
        A(f'v_perm_b32 v{d+1}, v{s+2}, v{s}, s{sT1}')
        A(f'v_perm_b32 v{d+2}, v{s+3}, v{s+1}, s{sT0}')
        A(f'v_perm_b32 v{d+3}, v{s+3}, v{s+1}, s{sT1}')


def gen_setup2(A):
    A('v_and_b32 v121, 15, v0')
    A('v_cmp_lt_u32 vcc, 7, v121')
    A('v_mov_b32 v122, 0x3f803f80')
    for r in range(4): A(f'v_cndmask_b32 v{vSEL+r}, v{vSEL+r}, v122, vcc')
    A(f'v_mov_b32 v{vSR2}, v{vSR2T}')

def gen_steps(A, mode, nsteps=64, prof=None, flag=True, opt=(), kvwait=None):
    X = '' if mode == 'f' else ' sc1'
    L = lambda n: f'L_rec{mode}_{n}'
    lg = Cnt(A, 'lgkmcnt', 15)
    SC = 128 ** -0.5 * math.log2(math.e)
    import struct
    SCBITS = struct.unpack('<I', struct.pack('<f', SC))[0]
    homed_seq = [OPS[i] for i in HOMED]
    slot_of = {o: i % NSTG for i, o in enumerate(homed_seq)}
    sTAG = sPSL
    KVF_FL = '' if 'kvplain' in opt else (' nt' if 'kvnt' in opt else (' sc1 nt' if 'kvsc1nt' in opt else ' sc1'))
    QP = 'quad_perm:[2,3,0,1] row_mask:0xf bank_mask:0xf'
    def breg(o):
        k, b = LOC[o]
        if k == 'lds':
            b = vSTG + 8 * slot_of[o]
            return f'v[{b}:{b+7}]'
        return f'{k}[{b}:{b+7}]'
    def stage(i):
        if i >= len(homed_seq): return
        o = homed_seq[i]; b = vSTG + 8 * slot_of[o]; slot = LOC[o][1]
        A(f'ds_read_b128 {vr(b,4)}, v{vHOME} offset:{slot*2048}'); lg.issue()
        A(f'ds_read_b128 {vr(b+4,4)}, v{vHOME} offset:{slot*2048+1024}'); lg.issue(('stg', i))
    def smf(acc, areg, o):
        if LOC[o][0] == 'lds':
            lg.wait(('stg', homed_seq.index(o)))
        A(f'v_smfmac_f32_16x16x64_bf16 {vr(acc,4)}, {vr(areg,4)}, {breg(o)}, v{vIDX}')
    FINE = 'fine' in opt or 'fine2' in opt or 'fine3' in opt
    def P(i):
        if prof is not None and not FINE: A(f's_memtime s[{prof+2*i}:{prof+2*i+1}]')
    def F(i):
        if prof is not None and 'fine' in opt: A(f's_memtime s[{prof+2*i}:{prof+2*i+1}]')
    def G(i):
        if prof is not None and 'fine2' in opt: A(f's_memtime s[{prof+2*i}:{prof+2*i+1}]')
    def H(i):
        if prof is not None and 'fine3' in opt: A(f's_memtime s[{prof+2*i}:{prof+2*i+1}]')
    ZM = [o[3:] for o in opt if o.startswith('zm_')]
    ZM = ZM[0] if ZM else 'm'
    KP = [o[3:] for o in opt if o.startswith('kp_')]
    KP = KP[0] if KP else '0'
    def zero(b, n, tag=''):
        if tag and tag in ZM:
            for r in range(n): A(f'v_mov_b32 v{b+r}, 0')
            return
        for r in range(0, n, 2): A(f'v_mov_b64 v[{b+r}:{b+r+1}], 0')
    def kvdma(lst):
        A(f's_mov_b32 m0, s{sT3}')
        for i in lst:
            if 'nodma' in opt: continue
            A(f'buffer_load_dwordx4 v{vKX}, {srd(S_WS)}, s{sKXO} offen offset:{1024*i}{KVF_FL} lds')
    def kvread():
        for i in range(4): A(f'ds_read_b128 {vr(vKXR+4*i,4)}, v{vVX} offset:{1024*i}')
    def hadd(b): return f'v_pk_add_f32 v[{b}:{b+1}], v[{b}:{b+1}], v[{b+2}:{b+3}]'
    def hadd2(b): return [f'v_add_f32 v{b}, v{b}, v{b+2}', f'v_add_f32 v{b+1}, v{b+1}, v{b+3}']
    SCA = [o[3:] for o in opt if o.startswith('sa_')]
    SCA = SCA[0] if SCA else 'woq'
    A(f's_mov_b32 s{sSTEP}, 0')
    A(f's_mov_b32 s{sTAG}, 0')
    A(f's_mov_b32 s{sMCUR}, {WS_MX}')
    A(f's_mov_b32 s{sKXO}, {WS_KVF}')
    A(f's_mov_b32 s{sKMO}, 0')
    A(f's_mov_b32 s{sT2}, {SCBITS}')
    A(f's_mov_b32 s{sSC}, {SCBITS}'); A(f's_mov_b32 s{sSC+1}, {SCBITS}')
    A(f's_mov_b32 s{sPM}, 0xf0f0f0f0'); A(f's_mov_b32 s{sPM+1}, 0xf0f0f0f0')
    A(f's_mov_b32 s{sVXO}, {WS_PX}')
    A(f's_lshl_b32 s{sT3}, s{sW}, 12'); A(f's_add_u32 s{sT3}, s{sT3}, {LDS_KV}')
    A(f's_lshl_b32 s{sFLA}, s{sH}, 7'); A(f's_add_u32 s{sFLA}, s{sFLA}, {WS_PROG - LDS_MEM}')
    A(f's_cmp_eq_u32 s{sW}, 0'); A(f's_cselect_b32 s{sFLX}, 1, 0'); A(f's_mov_b32 s{sFLX+1}, 0')
    for i in range(2, 8):
        A(f's_lshl_b32 s{sFO+i}, s{sW}, 1'); A(f's_add_u32 s{sFO+i}, s{sFO+i}, {i}'); A(f's_and_b32 s{sFO+i}, s{sFO+i}, 7'); A(f's_lshl_b32 s{sFO+i}, s{sFO+i}, 10')
    if kvwait: kvwait(A, first=True)
    kvdma(range(4))
    for i in range(NSTG): stage(i)
    lg.q = []
    zero(vQK, 24)
    A('s_waitcnt vmcnt(0)')
    kvread()
    A(f's_add_u32 s{sKXO}, s{sKXO}, {32*16384}')
    A(f's_branch {L("have_mem")}')
    A.label(L('step'))
    P(0)
    A(f's_sub_u32 s{sT0}, s{sMCUR}, {LDS_MEM}')
    B2 = [int(o[3:]) for o in opt if o.startswith('b2_')]
    if B2 and B2[0] == 99: A('s_waitcnt vmcnt(0)')
    elif B2 and B2[0]: A(f's_sleep {B2[0]}')
    A.label(L('poll2'))
    A(f'buffer_load_dwordx4 {vr(vPB,4)}, v{vMP}, {srd(S_WS)}, s{sT0} offen sc1')
    A(f'buffer_load_dwordx4 {vr(vPB+4,4)}, v{vMP}, {srd(S_WS)}, s{sT0} offen offset:1024 sc1')
    A('s_waitcnt vmcnt(0)')
    A(f'v_max3_u32 v{vTMP}, v{vPB}, v{vPB+1}, v{vPB+2}'); A(f'v_max3_u32 v{vTMP+1}, v{vPB+3}, v{vPB+4}, v{vPB+5}')
    A(f'v_max3_u32 v{vTMP}, v{vTMP}, v{vPB+6}, v{vPB+7}'); A(f'v_max_u32 v{vTMP}, v{vTMP}, v{vTMP+1}')
    A(f'v_cmp_eq_u32 vcc, -1, v{vTMP}')
    A('s_mov_b64 exec, vcc')
    A(f's_cbranch_execnz {L("poll2")}')
    A('s_mov_b64 exec, -1')
    A.label(L('have_mem'))
    P(1); G(0)
    A(f'ds_write_b128 v{vMP}, {vr(vPB,4)}'); A(f'ds_write_b128 v{vMP}, {vr(vPB+4,4)} offset:1024')
    nstaged = NSTG
    def acc_of(m, a): return (vVA + 4 * a) if m == 'v' else vQK + 8 * a + (4 if m == 'q' else 0)
    pre = [o for o in OPS[:12]]
    for o in pre[:3]: smf(acc_of(o[0], o[1]), vFR + 4 * o[2], o)
    if kvwait: kvwait(A, first=False)
    for i in range(2, 8): A(f'v_add_u32 v{vFR+4*i}, s{sFO+i}, v{vL16H}')
    G(1)
    A('s_waitcnt lgkmcnt(0)')
    A('s_barrier')
    P(2); G(2)
    for i in range(2, 8):
        A(f'ds_read_b128 {vr(vFR+4*i,4)}, v{vFR+4*i}'); lg.issue(('fr', i))
    n_ = 0
    for o in pre[3:]:
        smf(acc_of(o[0], o[1]), vFR + 4 * o[2], o)
        if LOC[o][0] == 'lds':
            stage(nstaged); nstaged += 1
        n_ += 1
        if n_ in (2, 4, 6, 8): kvdma([n_ // 2 - 1])
    A(f's_add_u32 s{sKXO}, s{sKXO}, {32*16384}')
    if kvwait:
        A(f's_cmp_lt_u32 s{sRDY}, 16'); A(f's_cbranch_scc1 {L("rdy1")}')
        A.label(L('rdy1b'))
    G(3)
    vAP = vT2; vDP = vTMP; vX = vTMP + 4
    bg = []
    def post_qk_list(a):
        k = vQK + 8 * a; q = k + 4
        return ((hadd2(k) + hadd2(q)) if 'q' in SCA else [hadd(k), hadd(q)]) + [
                f'v_cvt_pk_bf16_f32 v{vAP}, v{k}, v{k+1}', f'v_cvt_pk_bf16_f32 v{vAP+1}, v{q}, v{q+1}',
                f'v_mfma_f32_16x16x16_bf16 {vr(vDP,4)}, {vr(vAP,2)}, {vr(vID,2)}, 0']
    def post_qk2_list(a):
        return [f'v_cvt_pk_bf16_f32 v{vX+2*a}, v{vDP}, v{vDP+1}', f'v_cvt_pk_bf16_f32 v{vX+2*a+1}, v{vDP+2}, v{vDP+3}']
    if flag:
        A(f'v_mov_b32 v{vT2}, s{sSTEP}')
        A(f's_mov_b64 exec, s[{sFLX}:{sFLX+1}]')
        A(f'buffer_store_dword v{vT2}, v{vL16H}, {srd(S_WS)}, s{sFLA} offen sc1')
        A('s_mov_b64 exec, -1')
    cnt = 0
    for a in range(2):
        G(4 + a)
        for ks in range(2, 8):
            if a == 0: lg.wait(('fr', ks))
            for m in 'kq':
                o = (m, a, ks)
                smf(acc_of(m, a), vFR + 4 * ks, o)
                if LOC[o][0] == 'lds':
                    stage(nstaged); nstaged += 1
                cnt += 1
                if cnt == 13: bg = post_qk_list(0)
                if cnt == 23: bg += post_qk2_list(0)
                if bg: A(bg.pop(0))
    assert not bg
    P(3); G(6)
    vops = [('v', a, ks) for ks in range(2, 8) for a in range(2)]
    vi = [0]
    def vstep(n=1):
        for _ in range(n):
            if vi[0] >= 12: return
            o = vops[vi[0]]; vi[0] += 1
            smf(vVA + 4 * o[1], vFR + 4 * o[2], o)
    VS = [o[3:] for o in opt if o.startswith('vs_')]
    VS = [int(c) for c in (VS[0] if VS else '12144')]
    vstep(VS[0])
    for i_ in post_qk_list(1): A(i_)
    vstep(VS[1])
    for i_ in post_qk2_list(1): A(i_)
    vS = vQK
    G(7)
    A(f'v_mfma_f32_16x16x32_bf16 {vr(vS,4)}, {vr(vKXR,4)}, {vr(vX,4)}, 0')
    A(f'v_mfma_f32_16x16x32_bf16 {vr(vS+4,4)}, {vr(vKXR+4,4)}, {vr(vX,4)}, 0')
    A(f'v_mfma_f32_16x16x32_bf16 {vr(vS+8,4)}, {vr(vX,4)}, {vr(vX,4)}, 0')
    vstep(VS[2])
    A(f's_lshl_b32 s{sT0}, s{sKMO}, 1'); A(f's_add_u32 s{sT0}, s{sT0}, {WS_KM}')
    A('s_mov_b64 exec, s[6:7]')
    A(f'ds_write_b128 v{vSW}, {vr(vS,4)} offset:32'); lg.issue()
    A(f'ds_write_b128 v{vSW}, {vr(vS+4,4)}'); lg.issue()
    A(f'ds_write2_b32 v{vSR2}, v{vS+9}, v{vS+8} offset0:0 offset1:8'); lg.issue()
    A('s_mov_b64 exec, -1')
    if KP == '0': A(f'buffer_store_dwordx4 {vr(vX,4)}, v{vVM}, {srd(S_WS)}, s{sT0} offen sc1')
    vstep(VS[3])
    if KP == '3': A(f'buffer_store_dwordx4 {vr(vX,4)}, v{vVM}, {srd(S_WS)}, s{sT0} offen sc1')
    G(8)
    lg.all()
    A('s_barrier')
    P(4); F(0)
    E = [vS, vS + 4, vS + 8, vKXR]
    Em = [vS + 12, vS + 13, vS + 14, vS + 15]
    for w in range(4):
        A(f'ds_read_b128 {vr(E[w],4)}, v{vSR} offset:{1024*w}'); lg.issue(('e', w))
    A(f'ds_read_b128 {vr(Em[0],4)}, v{vSR} offset:4096'); lg.issue(('em', 3))
    if KP == '2': A(f'buffer_store_dwordx4 {vr(vX,4)}, v{vVM}, {srd(S_WS)}, s{sT0} offen sc1')
    vstep(VS[4])
    F(1)
    lg.wait(('e', 1))
    if 'e' in ZM:
        for r in range(4): A(f'v_add_f32 v{E[0]+r}, v{E[0]+r}, v{E[1]+r}')
    else:
        for r in (0, 2): A(f'v_pk_add_f32 v[{E[0]+r}:{E[0]+r+1}], v[{E[0]+r}:{E[0]+r+1}], v[{E[1]+r}:{E[1]+r+1}]')
    vstep(1)
    lg.wait(('e', 3))
    for r in (0, 2): A(f'v_pk_add_f32 v[{E[2]+r}:{E[2]+r+1}], v[{E[2]+r}:{E[2]+r+1}], v[{E[3]+r}:{E[3]+r+1}]')
    vstep(1)
    lg.wait(('em', 3))
    A(f'v_pk_add_f32 v[{Em[0]}:{Em[1]}], v[{Em[0]}:{Em[1]}], v[{Em[2]}:{Em[3]}]')
    for r in (0, 2): A(f'v_pk_add_f32 v[{E[0]+r}:{E[0]+r+1}], v[{E[0]+r}:{E[0]+r+1}], v[{E[2]+r}:{E[2]+r+1}]')
    vstep(1)
    F(2)
    e4 = vS + 4
    A(f'v_add_f32 v{e4}, v{Em[0]}, v{Em[1]}')
    vM = vTMP; vM2 = vTMP + 1
    A(f'v_max3_f32 v{vM}, v{vS}, v{vS+1}, v{vS+2}'); A(f'v_max3_f32 v{vM}, v{vM}, v{vS+3}, v{e4}')
    vstep(1)
    stage(nstaged); nstaged += 1
    A(f'v_max_f32_dpp v{vM}, v{vM}, v{vM} {QP}')
    A(f'v_mov_b32 v{vM2}, v{vM}')
    vstep(1)
    assert vi[0] == 12, vi
    stage(nstaged); nstaged += 1
    A(f'v_permlane16_swap_b32 v{vM}, v{vM2}')
    A(f'v_max_f32 v{vM}, v{vM}, v{vM2}')
    A(f'v_mov_b32 v{vM2}, v{vM}')
    A(f'v_permlane32_swap_b32 v{vM}, v{vM2}')
    A(f'v_max_f32 v{vM}, v{vM}, v{vM2}')
    A(f'v_mul_f32 v{vM}, s{sT2}, v{vM}')
    F(3)
    for r in (0, 2): A(f'v_pk_fma_f32 v[{vS+r}:{vS+r+1}], v[{vS+r}:{vS+r+1}], s[{sSC}:{sSC+1}], v[{vM}:{vM+1}] op_sel_hi:[1,1,0] neg_lo:[0,0,1] neg_hi:[0,0,1]')
    A(f'v_fma_f32 v{vS+4}, v{vS+4}, s{sT2}, -v{vM}')
    for r in range(5): A(f'v_exp_f32 v{vS+r}, v{vS+r}')
    vPx = vTMP
    vVM0 = vTMP + 4
    A(f'v_cvt_pk_bf16_f32 v{vPx}, v{vS}, v{vS+1}'); A(f'v_cvt_pk_bf16_f32 v{vPx+1}, v{vS+2}, v{vS+3}')
    A(f'v_mov_b32_dpp v{e4+1}, v{e4} {QP}')
    A(f'v_mov_b32_dpp v{vPx+2}, v{vPx} {QP}'); A(f'v_mov_b32_dpp v{vPx+3}, v{vPx+1} {QP}')
    A(f'v_cvt_pk_bf16_f32 v{vS+12}, v{e4}, v{e4+1}')
    A(f'v_mov_b32 v{vS+13}, 0')
    vO = vS
    F(4)
    A(f'v_mfma_f32_16x16x32_bf16 {vr(vS+8,4)}, {vr(vSEL,4)}, {vr(vPx,4)}, 0')
    for i_ in (hadd2(vVA) if 'o' in SCA else [hadd(vVA)]): A(i_)
    A(f'v_mfma_f32_16x16x32_bf16 {vr(vO,4)}, {vr(vVXR,4)}, {vr(vPx,4)}, 0')
    for i_ in (hadd2(vVA + 4) if 'o' in SCA else [hadd(vVA + 4)]): A(i_)
    A(f'v_mfma_f32_16x16x32_bf16 {vr(vO+4,4)}, {vr(vVXR+4,4)}, {vr(vPx,4)}, 0')
    for a in range(2):
        b = vVA + 4 * a
        A(f'v_cvt_pk_bf16_f32 v{vVM0+2*a}, v{b}, v{b+1}'); A(f'v_mov_b32 v{vVM0+2*a+1}, 0')
    A(f's_cmp_eq_u32 s{sSTEP}, {nsteps-1}')
    A(f's_cbranch_scc1 {L("done")}')
    A(f'v_mfma_f32_16x16x16_bf16 {vr(vS+8,4)}, {vr(vSEL,2)}, {vr(vS+12,2)}, {vr(vS+8,4)}')
    for a in range(2):
        A(f'v_mfma_f32_16x16x16_bf16 {vr(vO+4*a,4)}, {vr(vVM0+2*a,2)}, {vr(vS+12,2)}, {vr(vO+4*a,4)}')
    A(f's_lshl_b32 s{sT0}, s{sKMO}, 1'); A(f's_add_u32 s{sT0}, s{sT0}, {WS_VMT}')
    A(f'buffer_store_dwordx4 {vr(vVM0,4)}, v{vVM}, {srd(S_WS)}, s{sT0} offen sc1')
    zero(vFR, 8, 'a')
    vL = vT2; vL2 = vT2 + 1
    F(5)
    A(f'v_rcp_f32 v{vL}, v{vS+8}')
    zero(vFR + 8, 2)
    A(f'v_mov_b32 v{vL2}, v{vL}')
    zero(vFR + 10, 4)
    A(f'v_permlane32_swap_b32 v{vL}, v{vL2}')
    for r in range(0, 8, 2): A(f'v_pk_mul_f32 v[{vO+r}:{vO+r+1}], v[{vO+r}:{vO+r+1}], v[{vL}:{vL+1}] op_sel:[0,1] op_sel_hi:[1,1]')
    for r in range(4): A(f'v_cvt_pk_bf16_f32 v{vTMP+r}, v{vO+2*r}, v{vO+2*r+1}')
    A('s_mov_b64 exec, s[6:7]')
    F(6)
    A(f'ds_write_b128 v{vOW}, {vr(vTMP,4)}')
    A('s_mov_b64 exec, -1')
    vWA = vFR
    zero(vFR + 14, 10)
    A('s_waitcnt lgkmcnt(0)'); lg.q = []
    F(7)
    A('s_barrier')
    P(5); F(8); H(0)
    vOF = vQK
    A(f'ds_read_b128 {vr(vOF,4)}, v{vL16H} offset:{LDS_O-LDS_MEM}'); lg.issue('of0')
    A(f'ds_read_b128 {vr(vOF+4,4)}, v{vL16H} offset:{LDS_O-LDS_MEM+1024}'); lg.issue('of1')
    zero(vFR + 24, 8)
    A(f's_add_u32 s{sT0}, s{sVXO}, 32768')
    lg.wait('of0')
    H(1)
    vPK = vVA
    def post_o(a):
        b = vWA + 4 * a
        return (hadd2(b) if 'w' in SCA else [hadd(b)]) + [f'v_cvt_pk_bf16_f32 v{vPK+a}, v{b}, v{b+1}', f'v_bfi_b32 v{vPK+a}, 1, s{sTAG}, v{vPK+a}']
    bg = []
    WO = [o[3:] for o in opt if o.startswith('wo_')]
    WO = WO[0] if WO else 'a'
    for a in range(8):
        for ks in range(2):
            if a == 0 and ks == 1: lg.wait('of1')
            o = ('o', a, ks)
            smf(vWA + 4 * a, vOF + 4 * ks, o)
            if LOC[o][0] == 'lds':
                stage(nstaged); nstaged += 1
            if WO == 'b' and ks == 1 and a >= 1: bg += post_o(a - 1)
            for _ in range((2 if 'w' in SCA else 1 + ks) if WO == 'a' else (3 if ks == 1 else 0)):
                if bg: A(bg.pop(0))
        if WO == 'a' and a >= 1: bg += post_o(a - 1)
        if a == (5 if WO == 'a' else 4):
            H(2)
            A(f'buffer_store_dwordx4 {vr(vPK,4)}, v{vPST}, {srd(S_WS)}, s{sVXO} offen{X}')
            H(3)
    H(4)
    for i_ in bg + post_o(7): A(i_)
    H(5)
    A(f'buffer_store_dwordx4 {vr(vPK+4,4)}, v{vPST}, {srd(S_WS)}, s{sT0} offen{X}')
    P(6); H(6)
    A(f's_add_u32 s{sT0}, s{sVXO}, {PSEC}')
    B1 = [int(o[3:]) for o in opt if o.startswith('b1_')] or [99]
    if not B1:
        A(f'buffer_load_dwordx4 {vr(vPB,4)}, v{vPLD}, {srd(S_WS)}, s{sVXO} offen sc1')
        A(f'buffer_load_dwordx4 {vr(vPB+4,4)}, v{vPLD}, {srd(S_WS)}, s{sT0} offen sc1')
    for i in range(NSTG): stage(i)
    lg.q = []
    zero(vQK, 16)
    A(f's_add_u32 s{sMNXT}, s{sMCUR}, 8192'); A(f's_and_b32 s{sMNXT}, s{sMNXT}, 32767'); A(f's_add_u32 s{sMNXT}, s{sMNXT}, {WS_MX}')
    if not B1: A(f's_branch {L("poll1c")}')
    elif B1[0] == 99:
        H(7)
        A('s_waitcnt vmcnt(0)')
        H(8)
    elif B1[0]: A(f's_sleep {B1[0]}')
    A.label(L('poll1'))
    A(f'buffer_load_dwordx4 {vr(vPB,4)}, v{vPLD}, {srd(S_WS)}, s{sVXO} offen sc1')
    A(f'buffer_load_dwordx4 {vr(vPB+4,4)}, v{vPLD}, {srd(S_WS)}, s{sT0} offen sc1')
    A.label(L('poll1c'))
    A('s_waitcnt vmcnt(0)')
    tt = 0
    for a_ in range(2):
        for b_ in range(2):
            for t_ in range(2):
                if (a_ ^ t_) | (b_ ^ t_): tt |= 1 << (a_ * 4 + b_ * 2 + t_)
    for i in range(4): A(f'v_bitop3_b32 v{vTMP+i}, v{vPB+2*i}, v{vPB+2*i+1}, s{sTAG} bitop3:{tt}')
    A(f'v_or3_b32 v{vTMP}, v{vTMP}, v{vTMP+1}, v{vTMP+2}')
    A(f'v_bitop3_b32 v{vTMP}, v{vTMP}, v{vTMP+3}, 1 bitop3:0xa8')
    A(f'v_cmp_ne_u32 vcc, 0, v{vTMP}')
    A('s_mov_b64 exec, vcc')
    A(f's_cbranch_execnz {L("poll1")}')
    A('s_mov_b64 exec, -1')
    P(7)
    vR = vTMP
    A(f'v_mfma_f32_16x16x32_bf16 {vr(vR,4)}, {vr(vSEL,4)}, {vr(vPB,4)}, 0')
    A(f'v_mfma_f32_16x16x32_bf16 {vr(vR,4)}, {vr(vSEL,4)}, {vr(vPB+4,4)}, {vr(vR,4)}')
    if 'm' not in ZM: zero(vVA, 8, 'r')
    kvread()
    A(f'v_mov_b32 v{vR+6}, -1')
    for r in range(4): A(f'v_add_f32_dpp v{vR+r}, v{vR+r}, v{vR+r} row_ror:4 row_mask:0xf bank_mask:0xf')
    for r in range(4): A(f'v_add_f32_dpp v{vR+r}, v{vR+r}, v{vR+r} row_ror:8 row_mask:0xf bank_mask:0xf')
    A(f'v_cvt_pk_bf16_f32 v{vR+4}, v{vR}, v{vR+2}'); A(f'v_cvt_pk_bf16_f32 v{vR+5}, v{vR+1}, v{vR+3}')
    A(f'v_cndmask_b32 v{vR+4}, v{vR+4}, v{vR+5}, s[{sPM}:{sPM+1}]')
    A(f'v_min_u32 v{vR+4}, -2, v{vR+4}')
    A('s_mov_b64 exec, 0xff00ff')
    A(f'buffer_store_dword v{vR+4}, v{vMPUB}, {srd(S_WS)}, s{sMNXT} offen{X}')
    A(f'buffer_store_dword v{vR+6}, v{vMPUB}, {srd(S_WS)}, s{sMCUR} offen{X}')
    A('s_mov_b64 exec, -1')
    if 'm' in ZM: zero(vVA, 8)
    if kvwait:
        A(f's_cmp_lt_u32 s{sRDY}, 16'); A(f's_cbranch_scc1 {L("rdy2")}')
        A.label(L('rdy2b'))
    P(8)
    A(f's_mov_b32 s{sMCUR}, s{sMNXT}')
    A(f's_xor_b32 s{sTAG}, s{sTAG}, 1')
    A(f's_add_u32 s{sKMO}, s{sKMO}, 65536')
    A(f's_add_u32 s{sSTEP}, s{sSTEP}, 1')
    if prof is not None:
        A('s_waitcnt lgkmcnt(0)')
        for i in range(9): A(f'v_writelane_b32 v{vTMP}, s{prof+2*i}, {i}')
        A(f's_lshl_b32 s{sT0}, s{sH}, 2'); A(f's_add_u32 s{sT0}, s{sT0}, s{sW}'); A(f's_lshl_b32 s{sT0}, s{sT0}, 6'); A(f's_add_u32 s{sT0}, s{sT0}, s{sSTEP}'); A(f's_lshl_b32 s{sT0}, s{sT0}, 6')
        A(f's_add_u32 s{sT0}, s{sT0}, {120*MB}')
        A(f'v_mbcnt_lo_u32_b32 v{vTMP+1}, -1, 0'); A(f'v_lshlrev_b32 v{vTMP+1}, 2, v{vTMP+1}')
        A('s_mov_b64 exec, 0xffff')
        A(f'buffer_store_dword v{vTMP}, v{vTMP+1}, {srd(S_WS)}, s{sT0} offen')
        A('s_mov_b64 exec, -1')
    A(f's_branch {L("step")}')
    if kvwait:
        A.label(L('rdy1'))
        A(f'v_mbcnt_lo_u32_b32 v{vNEG1}, -1, 0'); A(f'v_lshlrev_b32 v{vNEG1}, 2, v{vNEG1}')
        A('s_mov_b64 exec, 0xffff')
        A(f'buffer_load_dword v{vNEG1}, v{vNEG1}, {srd(S_DBG)}, 0 offen offset:{4*DBG_KV} sc1')
        A('s_mov_b64 exec, -1')
        A(f's_branch {L("rdy1b")}')
        A.label(L('rdy2'))
        A('s_mov_b64 exec, 0xffff')
        A(f'v_and_b32 v{vNEG1}, 0xffff, v{vNEG1}')
        A(f'v_cmp_gt_u32 vcc, 32, v{vNEG1}')
        A(f's_or_b32 s{sT1}, vcc_lo, 0x10000')
        A(f's_ff1_i32_b32 s{sT1}, s{sT1}')
        A(f's_max_u32 s{sRDY}, s{sRDY}, s{sT1}')
        A('s_mov_b64 exec, -1')
        A(f's_branch {L("rdy2b")}')
    A.label(L('done'))
    A(f's_lshl_b32 s{sT0}, s{sKMO}, 1'); A(f's_add_u32 s{sT0}, s{sT0}, {WS_VMT}')
    A(f'buffer_store_dwordx4 {vr(vTMP+4,4)}, v{vVM}, {srd(S_WS)}, s{sT0} offen sc1')
    A('s_waitcnt vmcnt(0)')
    A('s_barrier')
    if flag:
        fl = A.newlabel('L_nofl')
        A(f's_cmp_lg_u32 s{sW}, 0'); A(f's_cbranch_scc1 {fl}')
        A(f'v_mov_b32 v{vT2}, {nsteps}')
        A(f's_lshl_b32 s{sT0}, s{sH}, 7'); A(f's_add_u32 s{sT0}, s{sT0}, {WS_PROG}'); A(f'v_mov_b32 v{vT2+1}, s{sT0}')
        A('s_mov_b64 exec, 1')
        A(f'buffer_store_dword v{vT2}, v{vT2+1}, {srd(S_WS)}, 0 offen sc1')
        A('s_mov_b64 exec, -1')
        A('s_waitcnt vmcnt(0)')
        A.label(fl)
    A('v_mbcnt_lo_u32_b32 v0, -1, 0'); A('v_mbcnt_hi_u32_b32 v0, -1, v0')
    A(f's_lshl_b32 s{sT0}, s{sW}, 6'); A(f'v_add_u32 v0, s{sT0}, v0')

def kvwait(A, first):
    l = A.newlabel('L_kvw'); l2 = A.newlabel('L_kvd')
    if first:
        A(f's_mov_b32 s{sRDY}, 0')
        A(f'v_mov_b32 v{vT2+1}, {4*DBG_CQ}')
        A.label(l)
        A(f'buffer_load_dword v{vT2}, v{vT2+1}, {srd(S_DBG)}, 0 offen sc1')
        A('s_waitcnt vmcnt(0)')
        A(f'v_cmp_gt_u32 vcc, 32, v{vT2}')
        A(f's_cbranch_vccnz {l}')
        return
    A(f's_add_u32 s{sT1}, s{sSTEP}, 1'); A(f's_lshr_b32 s{sT1}, s{sT1}, 2')
    A(f's_cmp_lt_u32 s{sT1}, s{sRDY}'); A(f's_cbranch_scc1 {l2}')
    A(f's_cmp_ge_u32 s{sT1}, 16'); A(f's_cbranch_scc1 {l2}')
    A(f's_cmp_eq_u32 s{sSTEP}, 0'); A(f's_cbranch_scc1 {l2}')
    A(f'v_mbcnt_lo_u32_b32 v{vT2+1}, -1, 0'); A(f'v_lshlrev_b32 v{vT2+1}, 2, v{vT2+1}')
    A('s_mov_b64 exec, 0xffff')
    A.label(l)
    A(f'buffer_load_dword v{vT2}, v{vT2+1}, {srd(S_DBG)}, 0 offen offset:{4*DBG_KV} sc1')
    A('s_waitcnt vmcnt(0)')
    A(f'v_and_b32 v{vT2}, 0xffff, v{vT2}')
    A(f'v_cmp_gt_u32 vcc, 32, v{vT2}')
    A(f's_or_b32 s{sRDY}, vcc_lo, 0x10000')
    A(f's_ff1_i32_b32 s{sRDY}, s{sRDY}')
    A(f's_cmp_lt_u32 s{sT1}, s{sRDY}'); A(f's_cbranch_scc0 {l}')
    A('s_mov_b64 exec, -1')
    A.label(l2)
```
